```python
import torch

def _softmax(x, axis=-1):
    return torch.softmax(x, dim=axis)
def _gelu(x):
    return torch.nn.functional.gelu(x, approximate="tanh")
def _silu(x):
    return torch.nn.functional.silu(x)
def _sigmoid(x):
    return torch.sigmoid(x)
def _layernorm(x, axis=-1, eps=1e-5):
    m = x.mean(dim=axis, keepdim=True)
    v = x.var(dim=axis, keepdim=True, unbiased=False)
    return (x - m) / torch.sqrt(v + eps)
def _scatter_add(tgt, idx, src, axis=0):
    return tgt.clone().index_add_(axis, idx, src)
def _segment_sum(src, seg, n):
    out = torch.zeros((n,) + src.shape[1:], dtype=src.dtype)
    return out.index_add_(0, seg, src)
def _pad(x, pw):
    flat = tuple(v for pair in reversed(pw) for v in pair)
    return torch.nn.functional.pad(x, flat)

kernel_name = 'standalone__gqa_block_cached__near_ridge'

def setup_inputs():

    _w = (lambda a: (lambda t: t.to(torch.bfloat16) if t.is_floating_point() else t)(torch.as_tensor(a)))
    B, Sq, D = 16, 48, 512
    Hq, Hkv, Sk, Dh = 32, 8, 512, 128
    assert Hq % Hkv == 0, (Hq, Hkv)
    return {
        "x": _w((lambda *s: torch.randn(*s, dtype=torch.bfloat16) * 0.8)(B, Sq, D)),
        "k_cache": _w((lambda *s: torch.randn(*s, dtype=torch.bfloat16) * 0.8)(B, Hkv, Sk, Dh)),
        "v_cache": _w((lambda *s: torch.randn(*s, dtype=torch.bfloat16) * 0.05)(B, Hkv, Sk, Dh)),
        "wq": _w((lambda *s: torch.randn(*s, dtype=torch.bfloat16) * 0.8)(D, Hq * Dh) * (D ** -0.5)),
        "wo": _w((lambda *s: torch.randn(*s, dtype=torch.bfloat16) * 0.05)(Hq * Dh, D) * ((Hq * Dh) ** -0.5)),
    }

def reference(x, k_cache, v_cache, wq, wo):
    B, Sq, D = x.shape
    Hq, Dh = 32, 128
    Hkv = k_cache.shape[1]
    rep = Hq // Hkv
    q = (lambda x, *d: x.permute(*d))((x @ wq).reshape(B, Sq, Hq, Dh), 0, 2, 1, 3)
    k = (lambda x, n, axis: torch.repeat_interleave(x, n, dim=axis))(k_cache, rep, axis=1)
    v = (lambda x, n, axis: torch.repeat_interleave(x, n, dim=axis))(v_cache, rep, axis=1)
    scores = torch.einsum("bhqd,bhkd->bhqk", q, k) * (Dh ** -0.5)
    p = _softmax(scores, axis=-1)
    o = torch.einsum("bhqk,bhkd->bhqd", p, v)
    return (lambda x, *d: x.permute(*d))(o, 0, 2, 1, 3).reshape(B, Sq, Hq * Dh) @ wo
```

```python
import re

REG_RE = re.compile(r'^-?\|?([vas])(?:(\d+)|\[(\d+):(\d+)\])\|?$')
TRANS = ('v_exp_f32', 'v_log_f32', 'v_rcp_f32', 'v_rsq_f32', 'v_sqrt_f32', 'v_sin_f32', 'v_cos_f32')


def regs_of(tok):
    tok = tok.strip()
    if tok in ('vcc',):
        return [('s', 106), ('s', 107)]
    if tok == 'm0':
        return [('s', 124)]
    if tok == 'exec':
        return [('s', 126), ('s', 127)]
    m = REG_RE.match(tok)
    if not m:
        return []
    f = m.group(1)
    if m.group(2) is not None:
        return [(f, int(m.group(2)))]
    return [(f, i) for i in range(int(m.group(3)), int(m.group(4)) + 1)]


def split_ops(s):
    ops, cur, depth = [], '', 0
    for ch in s:
        if ch == '[':
            depth += 1
        if ch == ']':
            depth -= 1
        if ch == ',' and depth == 0:
            ops.append(cur.strip())
            cur = ''
        else:
            cur += ch
    if cur.strip():
        ops.append(cur.strip())
    return ops


class Ins:
    __slots__ = ('text', 'mn', 'kind', 'reads', 'writes', 'srcc', 'passes', 'slot', 'tag')


class Emitter:
    def __init__(self):
        self.lines = []
        self.hist = []
        self.slot = 0
        self.vmq = []
        self.ldsq = []
        self.nops_inserted = 0
        self.tagc = 0

    def parse(self, text):
        ins = Ins()
        ins.text = text
        parts = text.split(None, 1)
        mn = parts[0]
        ins.mn = mn
        rest = parts[1] if len(parts) > 1 else ''
        ops = split_ops(rest)
        clean = []
        mods = []
        for o in ops:
            w = o.split()
            clean.append(w[0])
            mods += w[1:]
        ins.srcc = []
        ins.passes = 0
        R, W = [], []
        if mn.startswith('v_mfma'):
            ins.kind = 'mfma'
            ins.passes = 8 if '32x32' in mn else 4
            W = regs_of(clean[0])
            R = regs_of(clean[1]) + regs_of(clean[2])
            ins.srcc = regs_of(clean[3])
        elif mn.startswith('v_'):
            ins.kind = 'trans' if mn.split('_e')[0] in TRANS or mn in TRANS else 'valu'
            if mn.startswith('v_permlane32_swap') or mn.startswith('v_permlane16_swap'):
                ins.kind = 'permlane'
                W = regs_of(clean[0]) + regs_of(clean[1])
                R = list(W)
            else:
                W = regs_of(clean[0])
                for c in clean[1:]:
                    R += regs_of(c)
                if mn.startswith('v_cndmask') and len(clean) == 3:
                    R += regs_of('vcc')
                if mn.startswith('v_add_co') or mn.startswith('v_addc_co'):
                    W += regs_of(clean[1])
                if mn.startswith('v_fmac'):
                    R += regs_of(clean[0])
        elif mn.startswith('ds_read'):
            ins.kind = 'dsr'
            W = regs_of(clean[0])
            R = regs_of(clean[1])
        elif mn.startswith('ds_write'):
            ins.kind = 'dsw'
            for c in clean:
                R += regs_of(c)
        elif mn.startswith('buffer_load'):
            ins.kind = 'vml'
            if 'lds' in mods:
                for c in clean:
                    R += regs_of(c)
                R += regs_of('m0')
            else:
                W = regs_of(clean[0])
                for c in clean[1:]:
                    R += regs_of(c)
        elif mn.startswith('buffer_store'):
            ins.kind = 'vms'
            for c in clean:
                R += regs_of(c)
        elif mn.startswith('s_load'):
            ins.kind = 'smem'
            W = regs_of(clean[0])
            R = regs_of(clean[1])
        elif mn in ('s_nop', 's_waitcnt', 's_barrier', 's_endpgm', 's_setprio', 's_branch', 's_sleep') or mn.startswith('s_cbranch'):
            ins.kind = 'ctl'
        elif mn.startswith('s_cmp'):
            ins.kind = 'salu'
            for c in clean:
                R += regs_of(c)
        elif mn.startswith('s_'):
            ins.kind = 'salu'
            W = regs_of(clean[0])
            for c in clean[1:]:
                R += regs_of(c)
        else:
            raise ValueError('unknown instr ' + text)
        ins.reads, ins.writes = R, W
        return ins

    def need(self, ins):
        req = 0
        rd = set(ins.reads)
        rdc = set(ins.srcc)
        wr = set(ins.writes)
        for p in reversed(self.hist[-40:]):
            dist = self.slot - p.slot - 1
            pw = set(p.writes)
            n = 0
            isvalu_p = p.kind in ('valu', 'trans', 'permlane')
            isvalu_i = ins.kind in ('valu', 'trans', 'permlane')
            if isvalu_p:
                pv = {r for r in pw if r[0] in 'va'}
                ps = {r for r in pw if r[0] == 's'}
                if ins.kind == 'mfma' and pv & (rd | rdc):
                    n = max(n, 2)
                if ins.kind == 'permlane' and pv & rd:
                    n = max(n, 2)
                if p.kind == 'trans' and isvalu_i and ins.kind != 'trans' and pv & (rd | wr):
                    n = max(n, 1)
                if ins.mn.startswith('v_readfirstlane') or ins.mn.startswith('v_readlane'):
                    if pv & rd:
                        n = max(n, 1)
                if ps:
                    if ins.kind in ('vml', 'vms') and ps & rd:
                        n = max(n, 5)
                    if isvalu_i and ps & rd:
                        n = max(n, 2)
                    if ins.kind == 'salu' and ps & rd:
                        n = max(n, 2)
            if p.kind == 'mfma':
                big = 12 if p.passes == 8 else 8
                if ins.kind == 'mfma':
                    if pw & rd:
                        n = max(n, big)
                    if pw & rdc:
                        if pw == rdc and p.passes == ins.passes:
                            pass
                        else:
                            n = max(n, 10 if p.passes == 8 else 6)
                    if pw & wr and not (pw == wr and pw == rdc):
                        n = max(n, big)
                elif ins.kind != 'ctl' and ins.kind != 'salu':
                    if pw & (rd | wr):
                        n = max(n, big)
                    if isvalu_i and set(p.srcc) & wr:
                        n = max(n, 7 if p.passes == 8 else 3)
            if p.kind == 'salu' and ('s', 124) in pw and ins.kind == 'vml' and ('s', 124) in rd:
                n = max(n, 1)
            if p.kind == 'vms' and ('x4' in p.mn or 'x3' in p.mn):
                if set(p.reads) & wr:
                    n = max(n, 2)
            if n > dist:
                req = max(req, n - dist)
        return req

    def raw(self, line):
        self.lines.append(line)

    def label(self, name):
        self.lines.append(name + ':')
        self.hist = []

    def __call__(self, text, tag=None):
        ins = self.parse(text)
        k = self.need(ins)
        while k > 0:
            n = min(k, 16)
            self.lines.append('  s_nop %d' % (n - 1))
            self.slot += n
            self.nops_inserted += n
            k -= n
        ins.slot = self.slot
        if ins.mn == 's_nop':
            self.slot += int(text.split()[1]) + 1
        else:
            self.slot += 1
        self.hist.append(ins)
        self.lines.append('  ' + text)
        if ins.kind in ('vml', 'vms'):
            if tag is None:
                self.tagc += 1
                tag = 'v%d' % self.tagc
            self.vmq.append(tag)
            assert len(self.vmq) <= 63, 'too many vmem outstanding'
        elif ins.kind in ('dsr', 'dsw'):
            if tag is None:
                self.tagc += 1
                tag = 'l%d' % self.tagc
            self.ldsq.append(tag)
        return tag

    def wait(self, vm=None, lds=None):
        parts = []
        if vm is not None:
            if vm == 'all':
                n = 0
                idx = len(self.vmq) - 1
            else:
                tags = vm if isinstance(vm, (list, tuple, set)) else [vm]
                idx = max([i for i, t in enumerate(self.vmq) if t in tags], default=-1)
                n = len(self.vmq) - 1 - idx
            if idx >= 0:
                parts.append('vmcnt(%d)' % n)
                self.vmq = self.vmq[idx + 1:]
        if lds is not None:
            if lds == 'all':
                idx = len(self.ldsq) - 1
                n = 0
            else:
                tags = lds if isinstance(lds, (list, tuple, set)) else [lds]
                idx = max([i for i, t in enumerate(self.ldsq) if t in tags], default=-1)
                n = len(self.ldsq) - 1 - idx
            if idx >= 0:
                if n > 15:
                    n = 15
                    idx = len(self.ldsq) - 1 - 15
                parts.append('lgkmcnt(%d)' % n)
                self.ldsq = self.ldsq[idx + 1:]
        if parts:
            self('s_waitcnt ' + ' '.join(parts))

    def text(self):
        return '\n'.join(self.lines) + '\n'


def merge(a, b):
    out = []
    ia = ib = 0
    na, nb = len(a), len(b)
    while ia < na or ib < nb:
        if ib >= nb or (ia < na and ia * nb <= ib * na):
            out.append(a[ia]); ia += 1
        else:
            out.append(b[ib]); ib += 1
    return out
```

```python
import struct, sys, math
from emit import Emitter, merge

NAME = 'standalone__gqa_block_cached__near_ridge'
KA = 'gqa_attn_kernel'
KB = 'gqa_oproj_kernel'

def f32bits(x):
    return struct.unpack('<I', struct.pack('<f', x))[0]

XB = 0
QB = 24576
PB = [0, 24576]
RING = 49152
RING_W = 28672
NSLOT = 7
VS = [49152, 49152 + 32768, 49152 + 65536, 49152]
STATS = 147456
LSTAT = STATS + 4096
WOST = 0
LDS_A = 163840

WOT_OFF = 0x800000
WS_SIZE = 0x1000000


def kernel_a():
    e = Emitter()
    E = e
    e.raw('.p2align 8')
    e.raw('.globl %s' % KA)
    e.raw('.type %s,@function' % KA)
    e.label(KA)
    E('s_cmp_ge_u32 s2, 256')
    E('s_cbranch_scc1 L_a_done')
    E('s_load_dwordx16 s[40:55], s[0:1], 0')
    E('v_and_b32 v1, 63, v0')
    E('v_lshrrev_b32 v2, 6, v0')
    E('s_nop 0')
    E('v_readfirstlane_b32 s3, v2')
    E('s_and_b32 s38, s2, 7')
    E('s_lshr_b32 s4, s2, 3')
    E('s_lshr_b32 s37, s4, 1')
    E('s_and_b32 s4, s4, 1')
    E('s_lshl_b32 s39, s38, 2')
    E('s_lshl_b32 s4, s4, 1')
    E('s_add_u32 s39, s39, s4')
    E('s_lshl_b32 s4, s37, 3')
    E('s_add_u32 s4, s4, s38')
    E('s_lshl_b32 s32, s4, 17')
    E('s_lshl_b32 s5, s3, 15')
    E('s_add_u32 s32, s32, s5')
    E('s_mul_i32 s33, s37, 49152')
    E('s_lshl_b32 s5, s3, 8')
    E('s_add_u32 s33, s33, s5')
    E('s_lshl_b32 s34, s39, 8')
    E('s_lshl_b32 s5, s3, 7')
    E('s_add_u32 s34, s34, s5')
    E('s_mul_i32 s35, s3, %d' % RING_W)
    E('s_add_u32 s35, s35, %d' % RING)
    E('s_mov_b32 s36, 0x%08x' % f32bits(math.log2(math.e) / math.sqrt(128.0)))
    E('v_and_b32 v46, 15, v1')
    E('v_lshrrev_b32 v47, 4, v1')
    E('v_lshlrev_b32 v2, 10, v46')
    E('v_lshl_add_u32 v2, v47, 4, v2')
    E('v_lshlrev_b32 v11, 4, v1')
    E('v_lshrrev_b32 v48, 3, v1')
    E('v_and_b32 v49, 7, v1')
    E('v_lshrrev_b32 v50, 1, v49')
    E('v_and_b32 v51, 1, v47')
    E('v_xor_b32 v50, v50, v51')
    E('v_and_b32 v52, 1, v49')
    E('v_lshlrev_b32 v52, 4, v52')
    E('v_lshl_add_u32 v53, v48, 13, v52')
    E('v_lshl_add_u32 v3, v50, 5, v53')
    E('v_xor_b32 v50, 2, v50')
    E('v_lshl_add_u32 v4, v50, 5, v53')
    E('v_add_u32 v4, 0x10000, v4')
    E('v_add_u32 v5, 0x20000, v3')
    E('v_add_u32 v6, 0x20000, v4')
    E('v_lshrrev_b32 v48, 2, v1')
    E('v_and_b32 v48, 3, v48')
    E('v_and_b32 v49, 3, v1')
    E('v_lshrrev_b32 v50, 1, v48')
    E('v_lshlrev_b32 v51, 1, v51')
    E('v_or_b32 v50, v50, v51')
    E('v_lshl_add_u32 v52, v47, 3, v48')
    E('v_lshlrev_b32 v52, 7, v52')
    E('v_lshl_add_u32 v52, v49, 3, v52')
    E('v_add_u32 v52, s35, v52')
    for t in range(4):
        E('v_xor_b32 v53, %d, v50' % t)
        E('v_lshl_add_u32 v%d, v53, 5, v52' % (7 + t))
    E('v_and_b32 v53, 31, v1')
    E('v_lshrrev_b32 v54, 5, v1')
    E('v_lshlrev_b32 v12, 8, v53')
    E('v_lshl_add_u32 v12, v54, 4, v12')
    E('v_lshlrev_b32 v55, 2, v47')
    E('v_xor_b32 v55, v55, v46')
    E('v_lshlrev_b32 v55, 4, v55')
    E('v_lshl_add_u32 v13, v47, 8, v55')
    E('v_lshl_add_u32 v55, v54, 2, v48')
    E('v_lshlrev_b32 v55, 8, v55')
    E('v_xor_b32 v56, s3, v48')
    E('v_lshl_add_u32 v55, v56, 6, v55')
    E('v_and_b32 v56, 1, v47')
    E('v_lshl_add_u32 v55, v56, 5, v55')
    E('v_lshl_add_u32 v14, v49, 3, v55')
    E('v_add_u32 v14, %d, v14' % VS[0])
    E('s_mul_i32 s4, s3, 6144')
    E('v_add_u32 v15, s4, v11')
    E('v_lshlrev_b32 v55, 4, v46')
    E('v_lshl_add_u32 v55, v54, 9, v55')
    E('v_lshl_add_u32 v55, v56, 3, v55')
    E('s_lshr_b32 s4, s3, 1')
    E('s_mul_i32 s4, s4, 3')
    E('s_and_b32 s5, s3, 1')
    E('s_lshl_b32 s5, s5, 12')
    E('s_add_u32 s5, s5, %d' % QB)
    for st in range(3):
        E('s_add_u32 s6, s4, %d' % st)
        E('s_lshr_b32 s7, s6, 1')
        E('s_lshl_b32 s7, s7, 13')
        E('s_and_b32 s6, s6, 1')
        E('s_lshl_b32 s6, s6, 8')
        E('s_add_u32 s6, s6, s7')
        E('s_add_u32 s6, s6, s5')
        E('v_add_u32 v%d, s6, v55' % (16 + st))
    E('v_lshlrev_b32 v20, 5, v53')
    E('v_add_u32 v20, %d, v20' % STATS)
    E('v_lshl_add_u32 v19, v54, 2, v20')
    E('s_lshl_b32 s4, s3, 3')
    E('v_add_u32 v19, s4, v19')
    E('v_lshlrev_b32 v55, 4, v46')
    E('v_lshl_add_u32 v55, v54, 8, v55')
    for qt in range(3):
        E('v_add_u32 v57, %d, v56' % (2 * qt))
        E('v_cmp_le_u32 vcc, 3, v57')
        E('v_subrev_u32 v58, 3, v57')
        E('v_lshlrev_b32 v58, 10, v58')
        E('v_add_u32 v58, 12288, v58')
        E('v_lshlrev_b32 v57, 10, v57')
        E('v_cndmask_b32 v57, v57, v58, vcc')
        E('v_add_u32 v%d, v57, v55' % (27 + qt))
    E('s_waitcnt lgkmcnt(0)')
    def srd(d, lo, size):
        E('s_mov_b32 s%d, s%d' % (d, lo))
        E('s_and_b32 s%d, s%d, 0xffff' % (d + 1, lo + 1))
        E('s_mov_b32 s%d, 0x%x' % (d + 2, size))
        E('s_mov_b32 s%d, 0x20000' % (d + 3))
    srd(8, 40, 786432)
    srd(12, 42, 16777216)
    srd(16, 44, 16777216)
    srd(20, 46, 4194304)
    srd(24, 48, 4194304)
    srd(28, 54, WS_SIZE)

    E('s_mul_i32 s4, s3, 12288')
    for i in range(12):
        E('s_add_u32 s5, s4, %d' % (XB + i * 1024))
        E('s_mov_b32 m0, s5')
        E('s_add_u32 s6, s33, %d' % ((i % 3) * 16384 + (i // 3) * 64))
        E('buffer_load_dwordx4 v2, s[8:11], s6 offen lds', tag='x')

    def wq_chunk(c):
        out = []
        for m in range(4):
            def f(m=m):
                E('s_add_u32 s5, s35, %d' % ((c % NSLOT) * 4096 + m * 1024))
                E('s_mov_b32 m0, s5')
                E('s_add_u32 s6, s34, %d' % (c * 262144))
                E('buffer_load_dwordx4 v%d, s[20:23], s6 offen lds' % (3 + m), tag='wq%d' % c)
            out.append(f)
        return out

    for c in range(NSLOT):
        for f in wq_chunk(c):
            f()

    ACC = 64
    AF = [112, 128]
    BF = [144, 156]

    def p1_reads(c):
        out = []
        bu = c & 1
        sl = c % NSLOT
        for st in range(3):
            out.append(lambda st=st: E('ds_read_b128 v[%d:%d], v11 offset:%d' % (BF[bu] + 4 * st, BF[bu] + 4 * st + 3, XB + (c * 3 + st) * 1024), tag='p1r%d' % c))
        for t in range(4):
            for hh in range(2):
                out.append(lambda t=t, hh=hh: E('ds_read_b64_tr_b16 v[%d:%d], v%d offset:%d' % (
                    AF[bu] + 4 * t + 2 * hh, AF[bu] + 4 * t + 2 * hh + 1, 7 + t, sl * 4096 + hh * 512), tag='p1r%d' % c))
        return out

    def kload(n):
        kt, ks = n // 8, n % 8
        def f():
            E('s_add_u32 s7, s32, %d' % (kt * 8192))
            E('buffer_load_dwordx4 a[%d:%d], v12, s[12:15], s7 offen offset:%d' % (n * 4, n * 4 + 3, 32 * ks), tag='K')
        return f

    e.wait(vm='wq0')
    E('s_barrier')
    for f in p1_reads(0):
        f()
    for c in range(16):
        bu = c & 1
        e.wait(lds='p1r%d' % c)
        side = []
        if c + NSLOT < 16:
            side += wq_chunk(c + NSLOT)
        side += [kload(2 * c), kload(2 * c + 1)]
        rd = []
        if c + 1 < 16:
            rd.append(lambda c=c: e.wait(vm='wq%d' % (c + 1)))
            rd += p1_reads(c + 1)
        mf = []
        for nt in range(4):
            for st in range(3):
                a = ACC + (nt * 3 + st) * 4
                src = 'v[%d:%d]' % (a, a + 3) if c > 0 else '0'
                mf.append(lambda a=a, nt=nt, st=st, src=src: E('v_mfma_f32_16x16x32_bf16 v[%d:%d], v[%d:%d], v[%d:%d], %s' % (
                    a, a + 3, AF[bu] + 4 * nt, AF[bu] + 4 * nt + 3, BF[bu] + 4 * st, BF[bu] + 4 * st + 3, src)))
        for f in merge(mf, rd + side):
            f()
    for nt in range(4):
        for st in range(3):
            a = ACC + (nt * 3 + st) * 4
            E('v_cvt_pk_bf16_f32 v%d, v%d, v%d' % (a, a, a + 1))
            E('v_cvt_pk_bf16_f32 v%d, v%d, v%d' % (a + 1, a + 2, a + 3))
    E('s_barrier')
    for nt in range(4):
        for st in range(3):
            a = ACC + (nt * 3 + st) * 4
            E('ds_write_b64 v%d, v[%d:%d] offset:%d' % (16 + st, a, a + 1, nt * 1024))

    def v_chunk(t):
        out = []
        for mm in range(8):
            def f(mm=mm):
                E('s_lshl_b32 s5, s3, 13')
                E('s_add_u32 s5, s5, %d' % (VS[t] + mm * 1024))
                E('s_mov_b32 m0, s5')
                E('s_add_u32 s6, s32, %d' % ((32 * t + 4 * mm) * 256))
                E('buffer_load_dwordx4 v13, s[16:19], s6 offen lds', tag='V%d' % t)
            out.append(f)
        return out
    for t in range(3):
        for f in v_chunk(t):
            f()
    e.wait(lds='all')
    E('s_barrier')
    QF = 128
    for qt in range(3):
        for ks in range(8):
            r = QF + (qt * 8 + ks) * 4
            E('ds_read_b128 a[%d:%d], v11 offset:%d' % (r, r + 3, QB + (qt * 8 + ks) * 1024), tag='Q')
    e.wait(vm='K', lds='Q')
    S = 64
    def sreg(kt, qt):
        return S + (kt * 3 + qt) * 16
    def max_ops(kt):
        out = []
        for i in range(8):
            for qt in range(3):
                s = sreg(kt, qt) + 2 * i
                if kt == 0 and i == 0:
                    out.append(lambda s=s, qt=qt: E('v_max_f32 v%d, v%d, v%d' % (21 + qt, s, s + 1)))
                else:
                    out.append(lambda s=s, qt=qt: E('v_max3_f32 v%d, v%d, v%d, v%d' % (21 + qt, s, s + 1, 21 + qt)))
        return out
    for kt in range(4):
        mf = []
        for ks in range(8):
            for qt in range(3):
                s = sreg(kt, qt)
                src = 'v[%d:%d]' % (s, s + 15) if ks > 0 else '0'
                kr = (kt * 8 + ks) * 4
                qr = QF + (qt * 8 + ks) * 4
                mf.append(lambda s=s, kr=kr, qr=qr, src=src: E('v_mfma_f32_32x32x16_bf16 v[%d:%d], a[%d:%d], a[%d:%d], %s' % (
                    s, s + 15, kr, kr + 3, qr, qr + 3, src)))
        if kt == 0:
            for f in mf:
                f()
        else:
            for f in mf[:12]:
                f()
            for f in merge(mf[12:], max_ops(kt - 1)):
                f()
    for f in max_ops(3):
        f()
    for qt in range(3):
        E('ds_write_b32 v19, v%d offset:%d' % (21 + qt, qt * 1024))
    e.wait(lds='all')
    E('s_barrier')
    for qt in range(3):
        E('ds_read_b128 v[46:49], v20 offset:%d' % (qt * 1024), tag='st')
        E('ds_read_b128 v[50:53], v20 offset:%d' % (qt * 1024 + 16), tag='st')
        e.wait(lds='st')
        E('v_max3_f32 v46, v46, v47, v48')
        E('v_max3_f32 v50, v50, v51, v52')
        E('v_max3_f32 v46, v46, v49, v53')
        E('v_max_f32 v46, v46, v50')
        E('v_mul_f32 v%d, s36, v46' % (21 + qt))
    PK = [30, 34, 38, 42]
    pkc = [0]
    def exp_ops(t):
        out = []
        for qt in range(3):
            s0 = sreg(t, qt)
            for hf in range(2):
                pk = PK[pkc[0] % 4]; pkc[0] += 1
                regs = [s0 + 8 * hf + i for i in range(8)]
                for r in regs:
                    out.append(lambda r=r, qt=qt: E('v_fma_f32 v%d, v%d, s36, -v%d' % (r, r, 21 + qt)))
                for r in regs:
                    out.append(lambda r=r: E('v_exp_f32 v%d, v%d' % (r, r)))
                for k, r in enumerate(regs):
                    if t == 0 and hf == 0 and k == 0:
                        out.append(lambda r=r, qt=qt: E('v_add_f32 v%d, v%d, v%d' % (24 + qt, r, r + 1)))
                    elif t == 0 and hf == 0 and k == 1:
                        pass
                    else:
                        out.append(lambda r=r, qt=qt: E('v_add_f32 v%d, v%d, v%d' % (24 + qt, r, 24 + qt)))
                    if k & 1:
                        out.append(lambda r=r, pk=pk, k=k: E('v_cvt_pk_bf16_f32 v%d, v%d, v%d' % (pk + k // 2, r - 1, r)))
                out.append(lambda pk=pk, hf=hf, qt=qt: E('ds_write_b128 v15, v[%d:%d] offset:%d' % (pk, pk + 3, PB[t & 1] + (hf * 3 + qt) * 1024)))
        return out

    O = 0
    VA = [48, 52]
    PF = [56, 68]
    def pv_reads(t, n):
        u, hf = n // 2, n % 2
        bu = n & 1
        out = []
        for ee in range(2):
            out.append(lambda ee=ee: E('ds_read_b64_tr_b16 a[%d:%d], v14 offset:%d' % (
                VA[bu] + 2 * ee, VA[bu] + 2 * ee + 1, (32 * u + 16 * hf + 8 * ee) * 256), tag='pv%d_%d' % (t, n)))
        for qt in range(3):
            out.append(lambda qt=qt: E('ds_read_b128 a[%d:%d], v11 offset:%d' % (
                PF[bu] + 4 * qt, PF[bu] + 4 * qt + 3, PB[t & 1] + ((u * 2 + hf) * 3 + qt) * 1024), tag='pv%d_%d' % (t, n)))
        return out
    def pv_ops(t):
        out = []
        out += pv_reads(t, 0)
        for n in range(8):
            bu = n & 1
            if n + 1 < 8:
                out += pv_reads(t, n + 1)
            out.append(lambda n=n: e.wait(lds='pv%d_%d' % (t, n)))
            for qt in range(3):
                o = O + 16 * qt
                src = 'a[%d:%d]' % (o, o + 15) if (t > 0 or n > 0) else '0'
                out.append(lambda o=o, bu=bu, qt=qt, src=src: E('v_mfma_f32_32x32x16_bf16 a[%d:%d], a[%d:%d], a[%d:%d], %s' % (
                    o, o + 15, VA[bu], VA[bu] + 3, PF[bu] + 4 * qt, PF[bu] + 4 * qt + 3, src)))
        return out

    WOR = 240
    def wo_loads():
        out = []
        def pre():
            E('s_lshr_b32 s4, s2, 2')
            E('s_lshl_b32 s4, s4, 16')
            E('s_and_b32 s5, s2, 3')
            E('s_lshl_b32 s5, s5, 8')
            E('s_add_u32 s4, s4, s5')
            E('s_lshl_b32 s5, s3, 14')
            E('s_add_u32 s56, s4, s5')
            E('v_lshrrev_b32 v60, 4, v1')
            E('v_and_b32 v61, 15, v1')
            E('v_lshlrev_b32 v60, 10, v60')
            E('v_lshl_add_u32 v60, v61, 4, v60')
        out.append(pre)
        for m in range(4):
            def f(m=m):
                E('s_add_u32 s6, s56, %d' % (m * 4096))
                E('buffer_load_dwordx4 a[%d:%d], v60, s[24:27], s6 offen' % (WOR + 4 * m, WOR + 4 * m + 3), tag='WO')
            out.append(f)
        return out

    for f in exp_ops(0):
        f()
    e.wait(vm='V0', lds='all')
    E('s_barrier')
    for t in range(4):
        a = pv_ops(t)
        b = []
        if t == 1:
            b += v_chunk(3) + wo_loads()
        if t < 3:
            b += exp_ops(t + 1)
        if t == 2:
            for qt in range(3):
                b.append(lambda qt=qt: E('ds_write_b32 v19, v%d offset:%d' % (24 + qt, 4096 + qt * 1024)))
        if t == 3:
            def stg():
                e.wait(vm='WO')
                E('s_lshl_b32 s4, s3, 12')
                E('v_add_u32 v60, s4, v13')
                for m in range(4):
                    E('ds_write_b128 v60, a[%d:%d] offset:%d' % (WOR + 4 * m, WOR + 4 * m + 3, WOST + m * 1024))
            b.append(stg)
            for qt in range(3):
                def ls(qt=qt):
                    E('ds_read_b128 v[46:49], v20 offset:%d' % (4096 + qt * 1024), tag='ls%d' % qt)
                    E('ds_read_b128 v[50:53], v20 offset:%d' % (4096 + qt * 1024 + 16), tag='ls%d' % qt)
                    e.wait(lds='ls%d' % qt)
                    E('v_add_f32 v46, v46, v47')
                    E('v_add_f32 v48, v48, v49')
                    E('v_add_f32 v50, v50, v51')
                    E('v_add_f32 v52, v52, v53')
                    E('v_add_f32 v46, v46, v48')
                    E('v_add_f32 v50, v50, v52')
                    E('v_add_f32 v46, v46, v50')
                    E('v_rcp_f32 v%d, v46' % (24 + qt))
                b.append(ls)
        for f in merge(a, b):
            f()
        if t < 3:
            e.wait(vm='V%d' % (t + 1), lds='all')
            E('s_barrier')
            if t + 1 < 3:
                E('v_add_u32 v14, 0x8000, v14')
            else:
                E('v_subrev_u32 v14, 0x10000, v14')
    e.wait(lds='all')
    E('s_barrier')
    E('v_lshrrev_b32 v46, 4, v1')
    E('v_lshrrev_b32 v47, 2, v1')
    E('v_and_b32 v47, 3, v47')
    E('v_and_b32 v48, 3, v1')
    E('v_lshl_add_u32 v49, v46, 3, v47')
    E('v_lshlrev_b32 v49, 8, v49')
    E('v_xor_b32 v50, s3, v47')
    E('v_lshl_add_u32 v49, v50, 6, v49')
    E('v_lshl_add_u32 v49, v48, 3, v49')
    for kk in range(2):
        for nn in range(2):
            for hh in range(2):
                r = 30 + (kk * 2 + nn) * 4 + 2 * hh
                E('ds_read_b64_tr_b16 v[%d:%d], v49 offset:%d' % (r, r + 1, WOST + (32 * kk + 4 * hh) * 256 + nn * 32), tag='wt')
    E('s_mul_i32 s4, s37, 393216')
    E('s_lshl_b32 s5, s39, 2')
    E('s_add_u32 s5, s5, s3')
    E('s_mul_i32 s5, s5, 3072')
    E('s_add_u32 s57, s4, s5')
    for qt in range(3):
        T = 64 + qt * 16
        for r in range(16):
            E('v_accvgpr_read_b32 v%d, a%d' % (T + r, O + 16 * qt + r))
        for r in range(16):
            E('v_mul_f32 v%d, v%d, v%d' % (T + r, T + r, 24 + qt))
        for k in range(8):
            E('v_cvt_pk_bf16_f32 v%d, v%d, v%d' % (T + k, T + 2 * k, T + 2 * k + 1))
        for k in (0, 2):
            E('v_permlane32_swap_b32 v%d, v%d' % (T + 2 * k, T + 2 * k + 2))
            E('v_permlane32_swap_b32 v%d, v%d' % (T + 2 * k + 1, T + 2 * k + 3))
            E('buffer_store_dwordx4 v[%d:%d], v%d, s[28:31], s57 offen offset:%d' % (T + 2 * k, T + 2 * k + 3, 27 + qt, k * 256))
    E('s_and_b32 s4, s2, 3')
    E('s_lshl_b32 s4, s4, 3')
    E('s_lshl_b32 s5, s3, 1')
    E('s_add_u32 s4, s4, s5')
    E('s_lshl_b32 s4, s4, 17')
    E('s_lshr_b32 s5, s2, 2')
    E('s_lshl_b32 s5, s5, 11')
    E('s_add_u32 s4, s4, s5')
    E('s_add_u32 s4, s4, 0x%x' % WOT_OFF)
    E('s_add_u32 s5, s4, 0x20000')
    e.wait(lds='wt')
    for kk in range(2):
        for nn in range(2):
            r = 30 + (kk * 2 + nn) * 4
            E('buffer_store_dwordx4 v[%d:%d], v11, s[28:31], s%d offen offset:%d' % (r, r + 3, 4 + nn, kk * 1024))
    e.label('L_a_done')
    E('s_endpgm')
    return e


def kernel_b():
    e = Emitter()
    E = e
    e.raw('.p2align 8')
    e.raw('.globl %s' % KB)
    e.raw('.type %s,@function' % KB)
    e.label(KB)
    E('s_cmp_ge_u32 s2, 256')
    E('s_cbranch_scc1 L_b_done')
    E('s_load_dwordx2 s[40:41], s[0:1], 40')
    E('s_load_dwordx2 s[42:43], s[0:1], 56')
    E('v_and_b32 v1, 63, v0')
    E('v_lshrrev_b32 v2, 6, v0')
    E('s_nop 0')
    E('v_readfirstlane_b32 s3, v2')
    E('s_and_b32 s4, s2, 7')
    E('s_lshr_b32 s5, s2, 3')
    E('s_lshr_b32 s6, s4, 1')
    E('s_lshl_b32 s6, s6, 2')
    E('s_lshr_b32 s7, s5, 3')
    E('s_add_u32 s37, s6, s7')
    E('s_and_b32 s6, s4, 1')
    E('s_lshl_b32 s6, s6, 3')
    E('s_and_b32 s7, s5, 7')
    E('s_add_u32 s38, s6, s7')
    E('v_lshlrev_b32 v11, 4, v1')
    E('s_mul_i32 s32, s37, 393216')
    E('s_mul_i32 s4, s3, 49152')
    E('s_add_u32 s32, s32, s4')
    E('s_lshl_b32 s33, s38, 18')
    E('s_lshl_b32 s4, s3, 14')
    E('s_add_u32 s33, s33, s4')
    E('s_add_u32 s33, s33, 0x%x' % WOT_OFF)
    E('s_add_u32 s34, s33, 0x20000')
    E('s_waitcnt lgkmcnt(0)')
    E('s_mov_b32 s8, s40')
    E('s_and_b32 s9, s41, 0xffff')
    E('s_mov_b32 s10, 786432')
    E('s_mov_b32 s11, 0x20000')
    E('s_mov_b32 s28, s42')
    E('s_and_b32 s29, s43, 0xffff')
    E('s_mov_b32 s30, 0x%x' % WS_SIZE)
    E('s_mov_b32 s31, 0x20000')
    D = 5
    ACC = 16
    FR = 40
    def loads(i):
        base = FR + (i % D) * 20
        E('s_add_u32 s5, s32, %d' % (i * 3072))
        for st in range(3):
            E('buffer_load_dwordx4 v[%d:%d], v11, s[28:31], s5 offen offset:%d' % (base + 4 * st, base + 4 * st + 3, st * 1024), tag='k%d' % i)
        E('s_add_u32 s6, s33, %d' % (i * 1024))
        E('s_add_u32 s7, s34, %d' % (i * 1024))
        E('buffer_load_dwordx4 v[%d:%d], v11, s[28:31], s6 offen' % (base + 12, base + 15), tag='k%d' % i)
        E('buffer_load_dwordx4 v[%d:%d], v11, s[28:31], s7 offen' % (base + 16, base + 19), tag='k%d' % i)
    for i in range(D):
        loads(i)
    for i in range(16):
        base = FR + (i % D) * 20
        e.wait(vm='k%d' % i)
        for nn in range(2):
            for st in range(3):
                a = ACC + (nn * 3 + st) * 4
                src = 'v[%d:%d]' % (a, a + 3) if i > 0 else '0'
                E('v_mfma_f32_16x16x32_bf16 v[%d:%d], v[%d:%d], v[%d:%d], %s' % (
                    a, a + 3, base + 12 + 4 * nn, base + 15 + 4 * nn, base + 4 * st, base + 4 * st + 3, src))
        if i + D < 16:
            loads(i + D)
    E('s_mul_i32 s4, s3, 6144')
    E('v_add_u32 v12, s4, v11')
    for tl in range(6):
        E('ds_write_b128 v12, v[%d:%d] offset:%d' % (ACC + 4 * tl, ACC + 4 * tl + 3, tl * 1024))
    e.wait(lds='all')
    E('s_barrier')
    E('s_cmp_ge_u32 s3, 6')
    E('s_cbranch_scc1 L_b_done')
    E('s_lshl_b32 s4, s3, 10')
    E('v_add_u32 v12, s4, v11')
    for wv in range(8):
        E('ds_read_b128 v[%d:%d], v12 offset:%d' % (FR + 4 * wv, FR + 4 * wv + 3, wv * 6144), tag='r%d' % wv)
    e.wait(lds='r1')
    for r in range(4):
        E('v_add_f32 v%d, v%d, v%d' % (16 + r, FR + r, FR + 4 + r))
    for wv in range(2, 8):
        e.wait(lds='r%d' % wv)
        for r in range(4):
            E('v_add_f32 v%d, v%d, v%d' % (16 + r, 16 + r, FR + 4 * wv + r))
    E('v_cvt_pk_bf16_f32 v20, v16, v17')
    E('v_cvt_pk_bf16_f32 v21, v18, v19')
    E('s_cmp_ge_u32 s3, 3')
    E('s_cselect_b32 s4, 1, 0')
    E('s_mul_i32 s5, s4, 3')
    E('s_sub_u32 s5, s3, s5')
    E('s_mul_i32 s6, s37, 49152')
    E('s_lshl_b32 s5, s5, 14')
    E('s_add_u32 s6, s6, s5')
    E('s_lshl_b32 s5, s38, 6')
    E('s_add_u32 s6, s6, s5')
    E('s_lshl_b32 s4, s4, 5')
    E('s_add_u32 s6, s6, s4')
    E('v_and_b32 v2, 15, v1')
    E('v_lshrrev_b32 v3, 4, v1')
    E('v_lshlrev_b32 v2, 10, v2')
    E('v_lshl_add_u32 v2, v3, 3, v2')
    E('buffer_store_dwordx2 v[20:21], v2, s[8:11], s6 offen')
    e.label('L_b_done')
    E('s_endpgm')
    return e


def kd(name, vgpr, accum, sgpr=64):
    return '''.p2align 6
.amdhsa_kernel %s
  .amdhsa_next_free_vgpr %d
  .amdhsa_next_free_sgpr %d
  .amdhsa_accum_offset %d
  .amdhsa_group_segment_fixed_size 0
  .amdhsa_kernarg_size 64
  .amdhsa_user_sgpr_count 2
  .amdhsa_user_sgpr_kernarg_segment_ptr 1
  .amdhsa_system_sgpr_workgroup_id_x 1
.end_amdhsa_kernel
''' % (name, vgpr, sgpr, accum)


def main():
    ref = open('cdna_kernels/%s.s.ref' % NAME).read().splitlines()
    head = [l for l in ref if l.startswith(';') and '@launch' not in l and 'launch geometry' not in l and 'grid=ceil' not in l]
    a = kernel_a()
    b = kernel_b()
    out = '\n'.join(head) + '\n'
    out += '; @launch kernel=%s grid=(256,1,1) block=(256,1,1) lds=%d\n' % (KA, LDS_A)
    out += '; @launch kernel=%s grid=(256,1,1) block=(512,1,1) lds=49152\n' % KB
    out += '.amdgcn_target "amdgcn-amd-amdhsa--gfx950"\n.text\n'
    out += a.text() + b.text()
    out += '.section .rodata,"a"\n'
    out += kd(KA, 512, 256) + kd(KB, 144, 144)
    path = sys.argv[1] if len(sys.argv) > 1 else 'cdna_kernels/%s.s' % NAME
    open(path, 'w').write(out)
    print('nops inserted: A %d  B %d; lines %d' % (a.nops_inserted, b.nops_inserted, out.count('\n')))


if __name__ == '__main__':
    main()
```

```python
import struct, sys, math
from emit import Emitter, merge

NAME = 'standalone__gqa_block_cached__near_ridge'
KA = 'gqa_attn_kernel'
KB = 'gqa_oproj_kernel'

def f32bits(x):
    return struct.unpack('<I', struct.pack('<f', x))[0]

XB = 0
QB = 24576
PB = [0, 24576]
RING = 49152
RING_W = 12288
NSLOT = 3
VS = [98304, 131072, 98304, 131072]
STATS = 65536
LSTAT = 0
WOST = 8192
LDS_A = 163840

WOT_OFF = 0x800000
WS_SIZE = 0x1000000


DIAG = False
PRO0, PRO1, STEPN, SLOWCOST = 24, 12, 12, 6
KFIRST = 0
NV_LATE, NV_S0 = 32, 8
def kernel_a():
    e = Emitter()
    E = e
    stampc = [0]
    def stamp():
        if not DIAG:
            return
        i = stampc[0]; stampc[0] += 1
        E('s_memtime s[60:61]')
        E('s_waitcnt lgkmcnt(0)')
        E('s_lshl_b32 s58, s2, 2')
        E('s_add_u32 s58, s58, s3')
        E('s_lshl_b32 s58, s58, 8')
        E('s_add_u32 s58, s58, 0x%x' % (0xC00000 + i * 8))
        E('v_mov_b32 v63, 0')
        E('v_mov_b32 v0, s60')
        E('buffer_store_dword v0, v63, s[28:31], s58 offen', tag='stamp')
        E('v_mov_b32 v0, s61')
        E('buffer_store_dword v0, v63, s[28:31], s58 offen offset:4', tag='stamp')
    e.raw('.p2align 8')
    e.raw('.globl %s' % KA)
    e.raw('.type %s,@function' % KA)
    e.label(KA)
    E('s_cmp_ge_u32 s2, 256')
    E('s_cbranch_scc1 L_a_done')
    E('s_load_dwordx16 s[40:55], s[0:1], 0')
    E('v_and_b32 v1, 63, v0')
    E('v_lshrrev_b32 v2, 6, v0')
    E('s_nop 0')
    E('v_readfirstlane_b32 s3, v2')
    E('s_and_b32 s38, s2, 7')
    E('s_lshr_b32 s4, s2, 3')
    E('s_lshr_b32 s37, s4, 1')
    E('s_and_b32 s4, s4, 1')
    E('s_lshl_b32 s39, s38, 2')
    E('s_lshl_b32 s4, s4, 1')
    E('s_add_u32 s39, s39, s4')
    E('s_lshl_b32 s4, s37, 3')
    E('s_add_u32 s4, s4, s38')
    E('s_lshl_b32 s32, s4, 17')
    E('s_lshl_b32 s5, s3, 15')
    E('s_add_u32 s32, s32, s5')
    E('s_lshr_b32 s5, s2, 3')
    E('s_and_b32 s5, s5, 1')
    E('s_lshl_b32 s5, s5, 1')
    for kt in range(4):
        E('s_add_u32 s6, s5, %d' % kt)
        E('s_and_b32 s6, s6, 3')
        E('s_lshl_b32 s6, s6, 13')
        E('s_add_u32 s%d, s32, s6' % (64 + kt))
    E('s_mul_i32 s33, s37, 49152')
    E('s_mul_i32 s5, s3, 12288')
    E('s_add_u32 s33, s33, s5')
    E('s_lshl_b32 s34, s39, 8')
    E('s_lshl_b32 s5, s3, 7')
    E('s_add_u32 s34, s34, s5')
    E('s_mul_i32 s35, s3, %d' % RING_W)
    E('s_add_u32 s35, s35, %d' % RING)
    E('s_mov_b32 s36, 0x%08x' % f32bits(math.log2(math.e) / math.sqrt(128.0)))
    E('v_and_b32 v46, 15, v1')
    E('v_lshrrev_b32 v47, 4, v1')
    E('v_xor_b32 v2, v46, v47')
    E('v_lshlrev_b32 v2, 4, v2')
    E('v_lshl_add_u32 v2, v46, 10, v2')
    E('v_lshlrev_b32 v11, 4, v1')
    E('v_lshrrev_b32 v48, 3, v1')
    E('v_and_b32 v49, 7, v1')
    E('v_lshrrev_b32 v50, 1, v49')
    E('v_and_b32 v51, 1, v47')
    E('v_xor_b32 v50, v50, v51')
    E('v_and_b32 v52, 1, v49')
    E('v_lshlrev_b32 v52, 4, v52')
    E('v_lshl_add_u32 v53, v48, 13, v52')
    E('v_lshl_add_u32 v3, v50, 5, v53')
    E('v_xor_b32 v50, 2, v50')
    E('v_lshl_add_u32 v4, v50, 5, v53')
    E('v_add_u32 v4, 0x10000, v4')
    E('v_add_u32 v5, 0x20000, v3')
    E('v_add_u32 v6, 0x20000, v4')
    E('v_lshrrev_b32 v48, 2, v1')
    E('v_and_b32 v48, 3, v48')
    E('v_and_b32 v49, 3, v1')
    E('v_lshrrev_b32 v50, 1, v48')
    E('v_lshlrev_b32 v51, 1, v51')
    E('v_or_b32 v50, v50, v51')
    E('v_lshl_add_u32 v52, v47, 3, v48')
    E('v_lshlrev_b32 v52, 7, v52')
    E('v_lshl_add_u32 v52, v49, 3, v52')
    E('v_add_u32 v52, s35, v52')
    for t in range(4):
        E('v_xor_b32 v53, %d, v50' % t)
        E('v_lshl_add_u32 v%d, v53, 5, v52' % (7 + t))
    E('v_and_b32 v53, 31, v1')
    E('v_lshrrev_b32 v54, 5, v1')
    E('v_lshlrev_b32 v12, 4, v46')
    E('v_lshl_add_u32 v12, v47, 8, v12')
    E('v_lshlrev_b32 v55, 2, v47')
    E('v_xor_b32 v55, v55, v46')
    E('v_lshlrev_b32 v55, 4, v55')
    E('v_lshl_add_u32 v13, v47, 8, v55')
    E('v_lshl_add_u32 v55, v54, 2, v48')
    E('v_lshlrev_b32 v55, 8, v55')
    E('v_xor_b32 v56, s3, v48')
    E('v_lshl_add_u32 v55, v56, 6, v55')
    E('v_and_b32 v56, 1, v47')
    E('v_lshl_add_u32 v55, v56, 5, v55')
    E('v_lshl_add_u32 v14, v49, 3, v55')
    E('v_add_u32 v14, %d, v14' % VS[0])
    E('s_lshl_b32 s4, s3, 11')
    E('v_add_u32 v15, s4, v11')
    E('v_lshlrev_b32 v55, 4, v46')
    E('v_lshl_add_u32 v55, v54, 9, v55')
    E('v_lshl_add_u32 v55, v56, 3, v55')
    E('s_lshr_b32 s4, s3, 1')
    E('s_mul_i32 s4, s4, 3')
    E('s_and_b32 s5, s3, 1')
    E('s_lshl_b32 s5, s5, 12')
    E('s_add_u32 s5, s5, %d' % QB)
    for st in range(3):
        E('s_add_u32 s6, s4, %d' % st)
        E('s_lshr_b32 s7, s6, 1')
        E('s_lshl_b32 s7, s7, 13')
        E('s_and_b32 s6, s6, 1')
        E('s_lshl_b32 s6, s6, 8')
        E('s_add_u32 s6, s6, s7')
        E('s_add_u32 s6, s6, s5')
        E('v_add_u32 v%d, s6, v55' % (16 + st))
    E('v_lshlrev_b32 v20, 5, v53')
    E('v_lshl_add_u32 v19, v54, 2, v20')
    E('s_lshl_b32 s4, s3, 3')
    E('v_add_u32 v19, s4, v19')
    E('v_lshlrev_b32 v55, 4, v46')
    E('v_lshl_add_u32 v55, v54, 8, v55')
    for qt in range(3):
        E('v_add_u32 v57, %d, v56' % (2 * qt))
        E('v_cmp_le_u32 vcc, 3, v57')
        E('v_subrev_u32 v58, 3, v57')
        E('v_lshlrev_b32 v58, 10, v58')
        E('v_add_u32 v58, 12288, v58')
        E('v_lshlrev_b32 v57, 10, v57')
        E('v_cndmask_b32 v57, v57, v58, vcc')
        E('v_add_u32 v%d, v57, v55' % (27 + qt))
    E('s_waitcnt lgkmcnt(0)')
    def srd(d, lo, size):
        E('s_mov_b32 s%d, s%d' % (d, lo))
        E('s_and_b32 s%d, s%d, 0xffff' % (d + 1, lo + 1))
        E('s_mov_b32 s%d, 0x%x' % (d + 2, size))
        E('s_mov_b32 s%d, 0x20000' % (d + 3))
    srd(8, 40, 786432)
    srd(12, 42, 16777216)
    srd(16, 44, 16777216)
    srd(20, 46, 4194304)
    srd(24, 48, 4194304)
    srd(28, 54, WS_SIZE)

    stamp()
    for n in range(KFIRST):
        E('s_add_u32 s7, s%d, %d' % (64 + n // 8, (n % 8) * 1024))
        E('buffer_load_dwordx4 a[%d:%d], v12, s[12:15], s7 offen' % (n * 4, n * 4 + 3), tag='K%d' % (n // 8))
    E('s_mul_i32 s4, s3, 12288')
    for i in range(12):
        E('s_mul_i32 s5, s3, 12')
        E('s_add_u32 s5, s5, %d' % i)
        E('s_and_b32 s5, s5, 15')
        E('s_lshl_b32 s5, s5, 4')
        E('v_xor_b32 v%d, s5, v11' % (60 + (i & 1)))
        E('s_add_u32 s5, s4, %d' % (XB + i * 1024))
        E('s_mov_b32 m0, s5')
        E('s_add_u32 s6, s33, %d' % (i * 1024))
        E('buffer_load_dwordx4 v%d, s[8:11], s6 offen lds' % (60 + (i & 1)), tag='x')

    def wq_dma(c):
        out = []
        for m in range(4):
            def f(m=m):
                E('s_add_u32 s5, s35, %d' % ((c % NSLOT) * 4096 + m * 1024))
                E('s_mov_b32 m0, s5')
                E('s_add_u32 s6, s34, %d' % (c * 262144))
                E('buffer_load_dwordx4 v%d, s[20:23], s6 offen lds' % (3 + m), tag='wq%d' % c)
            out.append(f)
        return out

    def wq_reg(c):
        if c < 8:
            return 'v', 168 + (c - 3) * 16
        return 'a', 128 + (c - 8) * 16

    def wq_load(c):
        out = []
        fl, r = wq_reg(c)
        for m in range(4):
            def f(m=m):
                E('s_add_u32 s6, s34, %d' % (c * 262144))
                E('buffer_load_dwordx4 %s[%d:%d], v%d, s[20:23], s6 offen' % (fl, r + 4 * m, r + 4 * m + 3, 3 + m), tag='wq%d' % c)
            out.append(f)
        return out

    def wq_write(c):
        out = []
        fl, r = wq_reg(c)
        out.append(lambda: e.wait(vm='wq%d' % c))
        for m in range(4):
            out.append(lambda m=m: E('ds_write_b128 v59, %s[%d:%d] offset:%d' % (fl, r + 4 * m, r + 4 * m + 3, (c % NSLOT) * 4096 + m * 1024)))
        return out

    ACC = 64
    AF = [112, 128]
    BF = [144, 156]

    def p1_reads(c):
        out = []
        bu = c & 1
        sl = c % NSLOT
        out.append(lambda: E('v_xor_b32 v%d, %d, v2' % (60 + bu, c * 64)))
        for st in range(3):
            out.append(lambda st=st: E('ds_read_b128 v[%d:%d], v%d offset:%d' % (BF[bu] + 4 * st, BF[bu] + 4 * st + 3, 60 + bu, XB + st * 16384), tag='p1r%d' % c))
        for t in range(4):
            for hh in range(2):
                out.append(lambda t=t, hh=hh: E('ds_read_b64_tr_b16 v[%d:%d], v%d offset:%d' % (
                    AF[bu] + 4 * t + 2 * hh, AF[bu] + 4 * t + 2 * hh + 1, 7 + t, sl * 4096 + hh * 512), tag='p1r%d' % c))
        return out

    def kload(n):
        def f():
            E('s_add_u32 s7, s%d, %d' % (64 + n // 8, (n % 8) * 1024))
            E('buffer_load_dwordx4 a[%d:%d], v12, s[12:15], s7 offen' % (n * 4, n * 4 + 3), tag='K%d' % (n // 8))
        return f

    def v_chunk(t):
        out = []
        for mm in range(8):
            def f(mm=mm):
                E('s_lshl_b32 s5, s3, 13')
                E('s_add_u32 s5, s5, %d' % (VS[t] + mm * 1024))
                E('s_mov_b32 m0, s5')
                E('s_add_u32 s6, s%d, %d' % (64 + t, mm * 1024))
                E('buffer_load_dwordx4 v13, s[16:19], s6 offen lds', tag='V%d' % t)
            out.append(f)
        return out

    def v_regs(t):
        out = []
        for mm in range(8):
            def f(mm=mm):
                r = 192 + (t - 2) * 32 + mm * 4
                E('s_add_u32 s6, s%d, %d' % (64 + t, mm * 1024))
                E('buffer_load_dwordx4 v[%d:%d], v12, s[16:19], s6 offen' % (r, r + 3), tag='V%d' % t)
            out.append(f)
        return out
    E('v_add_u32 v59, s35, v11')
    seq = []
    for c in range(3):
        seq += wq_dma(c)
    for c in range(3, 16):
        seq += wq_load(c)
    nfast = len(seq)
    seq += [kload(n) for n in range(KFIRST, 32)] + v_chunk(0) + v_chunk(1) + v_regs(2) + v_regs(3)
    issued = [0]
    def issue(maxn=1000):
        n = 0
        while seq and len(e.vmq) < 62 and n < maxn:
            seq.pop(0)()
            n += 1 if issued[0] < nfast else SLOWCOST
            issued[0] += 1
    stamp()
    issue(PRO0)
    stamp()
    e.wait(vm='wq0')
    stamp()
    E('s_barrier')
    stamp()
    issue(PRO1)
    for f in p1_reads(0):
        f()
    for c in range(16):
        bu = c & 1
        e.wait(lds='p1r%d' % c)
        if c in (2, 4, 6, 8, 12):
            stamp()
        rd = []
        if c + 1 < 16:
            if c + 1 < 3:
                rd.append(lambda c=c: e.wait(vm='wq%d' % (c + 1)))
            rd += p1_reads(c + 1)
        rd2 = []
        if 3 <= c + 2 < 16:
            rd2 = wq_write(c + 2)
        rd2.append(lambda: issue(STEPN))
        mf = []
        for nt in range(4):
            for st in range(3):
                a = ACC + (nt * 3 + st) * 4
                src = 'v[%d:%d]' % (a, a + 3) if c > 0 else '0'
                mf.append(lambda a=a, nt=nt, st=st, src=src: E('v_mfma_f32_16x16x32_bf16 v[%d:%d], v[%d:%d], v[%d:%d], %s' % (
                    a, a + 3, AF[bu] + 4 * nt, AF[bu] + 4 * nt + 3, BF[bu] + 4 * st, BF[bu] + 4 * st + 3, src)))
        for f in merge(mf[:6], rd) + merge(mf[6:], rd2):
            f()
    for nt in range(4):
        for st in range(3):
            a = ACC + (nt * 3 + st) * 4
            E('v_cvt_pk_bf16_f32 v%d, v%d, v%d' % (a, a, a + 1))
            E('v_cvt_pk_bf16_f32 v%d, v%d, v%d' % (a + 1, a + 2, a + 3))
    stamp()
    E('s_barrier')
    for nt in range(4):
        for st in range(3):
            a = ACC + (nt * 3 + st) * 4
            E('ds_write_b64 v%d, v[%d:%d] offset:%d' % (16 + st, a, a + 1, nt * 1024))

    while len(seq) > NV_LATE:
        issue(SLOWCOST)
    e.wait(lds='all')
    E('s_barrier')
    QF = 128
    for qt in range(3):
        for ks in range(8):
            r = QF + (qt * 8 + ks) * 4
            E('ds_read_b128 a[%d:%d], v11 offset:%d' % (r, r + 3, QB + (qt * 8 + ks) * 1024), tag='Q')
    E('s_lshl_b32 s4, s3, 13')
    E('s_cmp_eq_u32 s3, 3')
    E('s_cselect_b32 s4, 0x16000, s4')
    E('v_and_b32 v46, 15, v1')
    E('v_lshrrev_b32 v47, 4, v1')
    E('v_xor_b32 v48, v46, v47')
    for jj in range(4):
        E('v_xor_b32 v49, %d, v48' % (4 * jj))
        E('v_lshlrev_b32 v49, 4, v49')
        E('v_lshl_add_u32 v49, v47, 8, v49')
        E('v_add_u32 v%d, s4, v49' % (50 + jj))
    E('v_and_b32 v46, 31, v1')
    E('v_lshrrev_b32 v47, 5, v1')
    E('v_and_b32 v48, 15, v1')
    E('v_xor_b32 v48, v48, v47')
    E('v_lshlrev_b32 v48, 4, v48')
    E('v_lshl_add_u32 v48, v46, 8, v48')
    E('v_add_u32 v54, s4, v48')
    E('v_add_u32 v57, 0x10000, v15')
    E('v_add_u32 v58, 0x10000, v11')
    E('v_add_u32 v60, 0x10000, v19')
    E('v_add_u32 v61, 0x10000, v20')
    def ktr(kt):
        out = [lambda: e.wait(vm='K%d' % kt)]
        for m in range(8):
            r = (kt * 8 + m) * 4
            out.append(lambda m=m, r=r: E('ds_write_b128 v%d, a[%d:%d] offset:%d' % (50 + (m & 3), r, r + 3, m * 1024)))
        for ks in range(8):
            r = (kt * 8 + ks) * 4
            def f(ks=ks, r=r):
                E('v_xor_b32 v%d, %d, v54' % (55 + (ks & 1), ks * 32))
                E('ds_read_b128 a[%d:%d], v%d' % (r, r + 3, 55 + (ks & 1)), tag='kt%d' % kt)
            out.append(f)
        return out
    for f in ktr(0):
        f()
    e.wait(lds='kt0')
    stamp()
    SB = [64, 128]
    MX = 62
    def sreg(q, kt):
        return SB[q & 1] + kt * 16
    def max_ops(q, kt):
        out = []
        for i in range(8):
            s_ = sreg(q, kt) + 2 * i
            if kt == 0 and i == 0:
                out.append(lambda s_=s_: E('v_max_f32 v%d, v%d, v%d' % (MX, s_, s_ + 1)))
            else:
                out.append(lambda s_=s_: E('v_max3_f32 v%d, v%d, v%d, v%d' % (MX, s_, s_ + 1, MX)))
        return out
    def s_mf(q, kt):
        mf = []
        for ks in range(8):
            s_ = sreg(q, kt)
            src = 'v[%d:%d]' % (s_, s_ + 15) if ks > 0 else '0'
            kr = (kt * 8 + ks) * 4
            qr = QF + (q * 8 + ks) * 4
            mf.append(lambda s_=s_, kr=kr, qr=qr, src=src: E('v_mfma_f32_32x32x16_bf16 v[%d:%d], a[%d:%d], a[%d:%d], %s' % (
                s_, s_ + 15, kr, kr + 3, qr, qr + 3, src)))
        return mf
    PK = [30, 34, 38, 42]
    pkc = [0]
    def exp_ops(q, kt):
        out = []
        s0 = sreg(q, kt)
        for hf in range(2):
            pk = PK[pkc[0] % 4]; pkc[0] += 1
            regs = [s0 + 8 * hf + i for i in range(8)]
            for r in regs:
                out.append(lambda r=r: E('v_fma_f32 v%d, v%d, s36, -v%d' % (r, r, 21 + q)))
            for r in regs:
                out.append(lambda r=r: E('v_exp_f32 v%d, v%d' % (r, r)))
            for k, r in enumerate(regs):
                if kt == 0 and hf == 0 and k == 0:
                    out.append(lambda r=r: E('v_add_f32 v%d, v%d, v%d' % (24 + q, r, r + 1)))
                elif kt == 0 and hf == 0 and k == 1:
                    pass
                else:
                    out.append(lambda r=r: E('v_add_f32 v%d, v%d, v%d' % (24 + q, r, 24 + q)))
                if k & 1:
                    out.append(lambda r=r, pk=pk, k=k: E('v_cvt_pk_bf16_f32 v%d, v%d, v%d' % (pk + k // 2, r - 1, r)))
            av = 57 if q == 2 else 15
            off = (q & 1) * 32768 + kt * 8192 + hf * 1024
            out.append(lambda pk=pk, av=av, off=off: E('ds_write_b128 v%d, v[%d:%d] offset:%d' % (av, pk, pk + 3, off)))
        return out
    def exchange(q):
        E('ds_write_b32 v60, v%d offset:%d' % (MX, q * 1024))
        e.wait(lds='all')
        stamp()
        E('s_barrier')
        E('ds_read_b128 v[46:49], v61 offset:%d' % (q * 1024), tag='st')
        E('ds_read_b128 v[50:53], v61 offset:%d' % (q * 1024 + 16), tag='st')
        e.wait(lds='st')
        E('v_max3_f32 v46, v46, v47, v48')
        E('v_max3_f32 v50, v50, v51, v52')
        E('v_max3_f32 v46, v46, v49, v53')
        E('v_max_f32 v46, v46, v50')
        E('v_mul_f32 v%d, s36, v46' % (21 + q))
    for q in range(3):
        for kt in range(4):
            side = []
            if q == 0:
                if kt < 3:
                    side = ktr(kt + 1)
                side = merge(side, [lambda: issue(SLOWCOST)] * min(NV_S0, len(seq)))
            else:
                side = exp_ops(q - 1, kt)
            if kt > 0:
                h = len(side) // 2
                side = side[:h] + merge(side[h:], max_ops(q, kt - 1))
            for f in merge(s_mf(q, kt), side):
                f()
            if q == 0 and kt < 3:
                e.wait(lds='kt%d' % (kt + 1))
        if q == 0:
            while seq:
                issue(SLOWCOST)
        for f in max_ops(q, 3):
            f()
        exchange(q)

    O = 0
    VA = [48, 52]
    PF = [56, 68]
    def pv_reads(t, n):
        u, hf = n // 2, n % 2
        bu = n & 1
        out = []
        for ee in range(2):
            out.append(lambda ee=ee: E('ds_read_b64_tr_b16 a[%d:%d], v14 offset:%d' % (
                VA[bu] + 2 * ee, VA[bu] + 2 * ee + 1, (32 * u + 16 * hf + 8 * ee) * 256), tag='pv%d_%d' % (t, n)))
        for qt in range(3):
            av = 58 if qt == 2 else 11
            off = (qt & 1) * 32768 + t * 8192 + u * 2048 + hf * 1024
            out.append(lambda qt=qt, av=av, off=off: E('ds_read_b128 a[%d:%d], v%d offset:%d' % (
                PF[bu] + 4 * qt, PF[bu] + 4 * qt + 3, av, off), tag='pv%d_%d' % (t, n)))
        return out
    def pv_ops(t):
        out = []
        out += pv_reads(t, 0)
        for n in range(8):
            bu = n & 1
            if n + 1 < 8:
                out += pv_reads(t, n + 1)
            out.append(lambda n=n: e.wait(lds='pv%d_%d' % (t, n)))
            for qt in range(3):
                o = O + 16 * qt
                src = 'a[%d:%d]' % (o, o + 15) if (t > 0 or n > 0) else '0'
                out.append(lambda o=o, bu=bu, qt=qt, src=src: E('v_mfma_f32_32x32x16_bf16 a[%d:%d], a[%d:%d], a[%d:%d], %s' % (
                    o, o + 15, VA[bu], VA[bu] + 3, PF[bu] + 4 * qt, PF[bu] + 4 * qt + 3, src)))
        return out

    WOR = 240
    def wo_loads():
        out = []
        def pre():
            E('s_lshr_b32 s4, s2, 2')
            E('s_lshl_b32 s4, s4, 16')
            E('s_and_b32 s5, s2, 3')
            E('s_lshl_b32 s5, s5, 8')
            E('s_add_u32 s4, s4, s5')
            E('s_lshl_b32 s5, s3, 14')
            E('s_add_u32 s56, s4, s5')
            E('v_lshrrev_b32 v60, 4, v1')
            E('v_and_b32 v61, 15, v1')
            E('v_lshlrev_b32 v60, 10, v60')
            E('v_lshl_add_u32 v60, v61, 4, v60')
        out.append(pre)
        for m in range(4):
            def f(m=m):
                E('s_add_u32 s6, s56, %d' % (m * 4096))
                E('buffer_load_dwordx4 a[%d:%d], v60, s[24:27], s6 offen' % (WOR + 4 * m, WOR + 4 * m + 3), tag='WO')
            out.append(f)
        return out
    def v_store(t):
        out = [lambda: e.wait(vm='V%d' % t)]
        def pre():
            E('s_lshl_b32 s4, s3, 13')
            E('s_add_u32 s4, s4, %d' % VS[t])
            E('v_add_u32 v55, s4, v13')
        out.append(pre)
        for mm in range(8):
            r = 192 + (t - 2) * 32 + mm * 4
            out.append(lambda r=r, mm=mm: E('ds_write_b128 v55, v[%d:%d] offset:%d' % (r, r + 3, mm * 1024)))
        return out

    for f in wo_loads():
        f()
    for kt in range(4):
        for f in exp_ops(2, kt):
            f()
    e.wait(vm='V0', lds='all')
    stamp()
    E('s_barrier')
    stamp()
    for t in range(4):
        a = pv_ops(t)
        b = []
        if t == 1:
            b += v_store(2)
            for qt in range(3):
                b.append(lambda qt=qt: E('ds_write_b32 v19, v%d offset:%d' % (24 + qt, LSTAT + qt * 1024)))
        if t == 2:
            b += v_store(3)
            for qt in range(3):
                def ls(qt=qt):
                    E('ds_read_b128 v[46:49], v20 offset:%d' % (LSTAT + qt * 1024), tag='ls%d' % qt)
                    E('ds_read_b128 v[50:53], v20 offset:%d' % (LSTAT + qt * 1024 + 16), tag='ls%d' % qt)
                    e.wait(lds='ls%d' % qt)
                    E('v_add_f32 v46, v46, v47')
                    E('v_add_f32 v48, v48, v49')
                    E('v_add_f32 v50, v50, v51')
                    E('v_add_f32 v52, v52, v53')
                    E('v_add_f32 v46, v46, v48')
                    E('v_add_f32 v50, v50, v52')
                    E('v_add_f32 v46, v46, v50')
                    E('v_rcp_f32 v%d, v46' % (24 + qt))
                b.append(ls)
        if t == 3:
            def stg():
                e.wait(vm='WO')
                E('s_lshl_b32 s4, s3, 12')
                E('v_add_u32 v60, s4, v13')
                for m in range(4):
                    E('ds_write_b128 v60, a[%d:%d] offset:%d' % (WOR + 4 * m, WOR + 4 * m + 3, WOST + m * 1024))
            b.append(stg)
        for f in merge(a, b):
            f()
        if t < 3:
            e.wait(lds='all')
            stamp()
            if t == 0:
                e.wait(vm='V1')
            E('s_barrier')
            stamp()
            d = VS[t + 1] - VS[t]
            if d > 0:
                E('v_add_u32 v14, 0x%x, v14' % d)
            else:
                E('v_subrev_u32 v14, 0x%x, v14' % (-d))
    e.wait(lds='all')
    stamp()
    E('s_barrier')
    E('v_lshrrev_b32 v46, 4, v1')
    E('v_lshrrev_b32 v47, 2, v1')
    E('v_and_b32 v47, 3, v47')
    E('v_and_b32 v48, 3, v1')
    E('v_lshl_add_u32 v49, v46, 3, v47')
    E('v_lshlrev_b32 v49, 8, v49')
    E('v_xor_b32 v50, s3, v47')
    E('v_lshl_add_u32 v49, v50, 6, v49')
    E('v_lshl_add_u32 v49, v48, 3, v49')
    for kk in range(2):
        for nn in range(2):
            for hh in range(2):
                r = 30 + (kk * 2 + nn) * 4 + 2 * hh
                E('ds_read_b64_tr_b16 v[%d:%d], v49 offset:%d' % (r, r + 1, WOST + (32 * kk + 4 * hh) * 256 + nn * 32), tag='wt')
    E('s_mul_i32 s4, s37, 393216')
    E('s_lshl_b32 s5, s39, 2')
    E('s_add_u32 s5, s5, s3')
    E('s_mul_i32 s5, s5, 3072')
    E('s_add_u32 s57, s4, s5')
    for qt in range(3):
        T = 64 + qt * 16
        for r in range(16):
            E('v_accvgpr_read_b32 v%d, a%d' % (T + r, O + 16 * qt + r))
        for r in range(16):
            E('v_mul_f32 v%d, v%d, v%d' % (T + r, T + r, 24 + qt))
        for k in range(8):
            E('v_cvt_pk_bf16_f32 v%d, v%d, v%d' % (T + k, T + 2 * k, T + 2 * k + 1))
        for k in (0, 2):
            E('v_permlane32_swap_b32 v%d, v%d' % (T + 2 * k, T + 2 * k + 2))
            E('v_permlane32_swap_b32 v%d, v%d' % (T + 2 * k + 1, T + 2 * k + 3))
            E('buffer_store_dwordx4 v[%d:%d], v%d, s[28:31], s57 offen offset:%d' % (T + 2 * k, T + 2 * k + 3, 27 + qt, k * 256))
    E('s_and_b32 s4, s2, 3')
    E('s_lshl_b32 s4, s4, 3')
    E('s_lshl_b32 s5, s3, 1')
    E('s_add_u32 s4, s4, s5')
    E('s_lshl_b32 s4, s4, 17')
    E('s_lshr_b32 s5, s2, 2')
    E('s_lshl_b32 s5, s5, 11')
    E('s_add_u32 s4, s4, s5')
    E('s_add_u32 s4, s4, 0x%x' % WOT_OFF)
    E('s_add_u32 s5, s4, 0x20000')
    e.wait(lds='wt')
    for kk in range(2):
        for nn in range(2):
            r = 30 + (kk * 2 + nn) * 4
            E('buffer_store_dwordx4 v[%d:%d], v11, s[28:31], s%d offen offset:%d' % (r, r + 3, 4 + nn, kk * 1024))
    stamp()
    e.label('L_a_done')
    E('s_endpgm')
    return e


def kernel_b():
    e = Emitter()
    E = e
    e.raw('.p2align 8')
    e.raw('.globl %s' % KB)
    e.raw('.type %s,@function' % KB)
    e.label(KB)
    E('s_cmp_ge_u32 s2, 256')
    E('s_cbranch_scc1 L_b_done')
    E('s_load_dwordx2 s[40:41], s[0:1], 40')
    E('s_load_dwordx2 s[42:43], s[0:1], 56')
    E('v_and_b32 v1, 63, v0')
    E('v_lshrrev_b32 v2, 6, v0')
    E('s_nop 0')
    E('v_readfirstlane_b32 s3, v2')
    E('s_and_b32 s4, s2, 7')
    E('s_lshr_b32 s5, s2, 3')
    E('s_lshr_b32 s6, s4, 1')
    E('s_lshl_b32 s6, s6, 2')
    E('s_lshr_b32 s7, s5, 3')
    E('s_add_u32 s37, s6, s7')
    E('s_and_b32 s6, s4, 1')
    E('s_lshl_b32 s6, s6, 3')
    E('s_and_b32 s7, s5, 7')
    E('s_add_u32 s38, s6, s7')
    E('v_lshlrev_b32 v11, 4, v1')
    E('s_mul_i32 s32, s37, 393216')
    E('s_mul_i32 s4, s3, 49152')
    E('s_add_u32 s32, s32, s4')
    E('s_lshl_b32 s33, s38, 18')
    E('s_lshl_b32 s4, s3, 14')
    E('s_add_u32 s33, s33, s4')
    E('s_add_u32 s33, s33, 0x%x' % WOT_OFF)
    E('s_add_u32 s34, s33, 0x20000')
    E('s_waitcnt lgkmcnt(0)')
    E('s_mov_b32 s8, s40')
    E('s_and_b32 s9, s41, 0xffff')
    E('s_mov_b32 s10, 786432')
    E('s_mov_b32 s11, 0x20000')
    E('s_mov_b32 s28, s42')
    E('s_and_b32 s29, s43, 0xffff')
    E('s_mov_b32 s30, 0x%x' % WS_SIZE)
    E('s_mov_b32 s31, 0x20000')
    D = 5
    ACC = 16
    FR = 40
    def loads(i):
        base = FR + (i % D) * 20
        E('s_add_u32 s5, s32, %d' % (i * 3072))
        for st in range(3):
            E('buffer_load_dwordx4 v[%d:%d], v11, s[28:31], s5 offen offset:%d' % (base + 4 * st, base + 4 * st + 3, st * 1024), tag='k%d' % i)
        E('s_add_u32 s6, s33, %d' % (i * 1024))
        E('s_add_u32 s7, s34, %d' % (i * 1024))
        E('buffer_load_dwordx4 v[%d:%d], v11, s[28:31], s6 offen' % (base + 12, base + 15), tag='k%d' % i)
        E('buffer_load_dwordx4 v[%d:%d], v11, s[28:31], s7 offen' % (base + 16, base + 19), tag='k%d' % i)
    for i in range(D):
        loads(i)
    for i in range(16):
        base = FR + (i % D) * 20
        e.wait(vm='k%d' % i)
        for nn in range(2):
            for st in range(3):
                a = ACC + (nn * 3 + st) * 4
                src = 'v[%d:%d]' % (a, a + 3) if i > 0 else '0'
                E('v_mfma_f32_16x16x32_bf16 v[%d:%d], v[%d:%d], v[%d:%d], %s' % (
                    a, a + 3, base + 12 + 4 * nn, base + 15 + 4 * nn, base + 4 * st, base + 4 * st + 3, src))
        if i + D < 16:
            loads(i + D)
    E('s_mul_i32 s4, s3, 6144')
    E('v_add_u32 v12, s4, v11')
    for tl in range(6):
        E('ds_write_b128 v12, v[%d:%d] offset:%d' % (ACC + 4 * tl, ACC + 4 * tl + 3, tl * 1024))
    e.wait(lds='all')
    E('s_barrier')
    E('s_cmp_ge_u32 s3, 6')
    E('s_cbranch_scc1 L_b_done')
    E('s_lshl_b32 s4, s3, 10')
    E('v_add_u32 v12, s4, v11')
    for wv in range(8):
        E('ds_read_b128 v[%d:%d], v12 offset:%d' % (FR + 4 * wv, FR + 4 * wv + 3, wv * 6144), tag='r%d' % wv)
    e.wait(lds='r1')
    for r in range(4):
        E('v_add_f32 v%d, v%d, v%d' % (16 + r, FR + r, FR + 4 + r))
    for wv in range(2, 8):
        e.wait(lds='r%d' % wv)
        for r in range(4):
            E('v_add_f32 v%d, v%d, v%d' % (16 + r, 16 + r, FR + 4 * wv + r))
    E('v_cvt_pk_bf16_f32 v20, v16, v17')
    E('v_cvt_pk_bf16_f32 v21, v18, v19')
    E('s_cmp_ge_u32 s3, 3')
    E('s_cselect_b32 s4, 1, 0')
    E('s_mul_i32 s5, s4, 3')
    E('s_sub_u32 s5, s3, s5')
    E('s_mul_i32 s6, s37, 49152')
    E('s_lshl_b32 s5, s5, 14')
    E('s_add_u32 s6, s6, s5')
    E('s_lshl_b32 s5, s38, 6')
    E('s_add_u32 s6, s6, s5')
    E('s_lshl_b32 s4, s4, 5')
    E('s_add_u32 s6, s6, s4')
    E('v_and_b32 v2, 15, v1')
    E('v_lshrrev_b32 v3, 4, v1')
    E('v_lshlrev_b32 v2, 10, v2')
    E('v_lshl_add_u32 v2, v3, 3, v2')
    E('buffer_store_dwordx2 v[20:21], v2, s[8:11], s6 offen')
    e.label('L_b_done')
    E('s_endpgm')
    return e


def kd(name, vgpr, accum, sgpr=72):
    return '''.p2align 6
.amdhsa_kernel %s
  .amdhsa_next_free_vgpr %d
  .amdhsa_next_free_sgpr %d
  .amdhsa_accum_offset %d
  .amdhsa_group_segment_fixed_size 0
  .amdhsa_kernarg_size 64
  .amdhsa_user_sgpr_count 2
  .amdhsa_user_sgpr_kernarg_segment_ptr 1
  .amdhsa_system_sgpr_workgroup_id_x 1
.end_amdhsa_kernel
''' % (name, vgpr, sgpr, accum)


def main():
    global DIAG
    if len(sys.argv) > 2 and sys.argv[2] == 'diag':
        DIAG = True
    ref = open('cdna_kernels/%s.s.ref' % NAME).read().splitlines()
    head = [l for l in ref if l.startswith(';') and '@launch' not in l and 'launch geometry' not in l and 'grid=ceil' not in l]
    a = kernel_a()
    b = kernel_b()
    out = '\n'.join(head) + '\n'
    out += '; @launch kernel=%s grid=(256,1,1) block=(256,1,1) lds=%d\n' % (KA, LDS_A)
    out += '; @launch kernel=%s grid=(256,1,1) block=(512,1,1) lds=49152\n' % KB
    out += '.amdgcn_target "amdgcn-amd-amdhsa--gfx950"\n.text\n'
    out += a.text() + b.text()
    out += '.section .rodata,"a"\n'
    out += kd(KA, 512, 256) + kd(KB, 144, 144)
    path = sys.argv[1] if len(sys.argv) > 1 else 'cdna_kernels/%s.s' % NAME
    open(path, 'w').write(out)
    print('nops inserted: A %d  B %d; lines %d' % (a.nops_inserted, b.nops_inserted, out.count('\n')))


if __name__ == '__main__':
    main()
```

```python
import struct, sys, math
from emit import Emitter, merge

NAME = 'standalone__gqa_block_cached__near_ridge'
KA = 'gqa_attn_kernel'
KB = 'gqa_oproj_kernel'

def f32bits(x):
    return struct.unpack('<I', struct.pack('<f', x))[0]

XB = 0
QB = 24576
PB = [0, 24576]
RING = 49152
RING_W = 12288
NSLOT = 3
VS = [98304, 131072, 98304, 131072]
STATS = 81920
LSTAT = 86016
WOST = 49152
LDS_A = 163840

WOT_OFF = 0x800000
WS_SIZE = 0x1000000


DIAG = False
PRO0, PRO1, STEPN, SLOWCOST = 12, 8, 8, 6
KFIRST = 0
NV_LATE = 40
NV_S = [[3, 3, 3, 3, 2], [2, 2, 2, 0, 0]]
def kernel_a():
    e = Emitter()
    E = e
    stampc = [0]
    def stamp():
        if not DIAG:
            return
        i = stampc[0]; stampc[0] += 1
        E('s_memtime s[60:61]')
        E('s_waitcnt lgkmcnt(0)')
        E('s_lshl_b32 s58, s2, 2')
        E('s_add_u32 s58, s58, s3')
        E('s_lshl_b32 s58, s58, 8')
        E('s_add_u32 s58, s58, 0x%x' % (0xC00000 + i * 8))
        E('v_mov_b32 v63, 0')
        E('v_mov_b32 v0, s60')
        E('buffer_store_dword v0, v63, s[28:31], s58 offen', tag='stamp')
        E('v_mov_b32 v0, s61')
        E('buffer_store_dword v0, v63, s[28:31], s58 offen offset:4', tag='stamp')
    e.raw('.p2align 8')
    e.raw('.globl %s' % KA)
    e.raw('.type %s,@function' % KA)
    e.label(KA)
    E('s_cmp_ge_u32 s2, 256')
    E('s_cbranch_scc1 L_a_done')
    E('s_load_dwordx16 s[40:55], s[0:1], 0')
    E('v_and_b32 v1, 63, v0')
    E('v_lshrrev_b32 v2, 6, v0')
    E('s_nop 0')
    E('v_readfirstlane_b32 s3, v2')
    E('s_and_b32 s38, s2, 7')
    E('s_lshr_b32 s4, s2, 3')
    E('s_lshr_b32 s37, s4, 1')
    E('s_and_b32 s4, s4, 1')
    E('s_lshl_b32 s39, s38, 2')
    E('s_lshl_b32 s4, s4, 1')
    E('s_add_u32 s39, s39, s4')
    E('s_lshl_b32 s4, s37, 3')
    E('s_add_u32 s4, s4, s38')
    E('s_lshl_b32 s32, s4, 17')
    E('s_lshl_b32 s5, s3, 15')
    E('s_add_u32 s32, s32, s5')
    E('s_lshr_b32 s5, s2, 3')
    E('s_and_b32 s5, s5, 1')
    E('s_lshl_b32 s5, s5, 1')
    for kt in range(4):
        E('s_add_u32 s6, s5, %d' % kt)
        E('s_and_b32 s6, s6, 3')
        E('s_lshl_b32 s6, s6, 13')
        E('s_add_u32 s%d, s32, s6' % (64 + kt))
    E('s_mul_i32 s33, s37, 49152')
    E('s_mul_i32 s5, s3, 12288')
    E('s_add_u32 s33, s33, s5')
    E('s_lshl_b32 s34, s39, 8')
    E('s_lshl_b32 s5, s3, 7')
    E('s_add_u32 s34, s34, s5')
    E('s_mul_i32 s35, s3, %d' % RING_W)
    E('s_add_u32 s35, s35, %d' % RING)
    E('s_mov_b32 s36, 0x%08x' % f32bits(math.log2(math.e) / math.sqrt(128.0)))
    E('v_and_b32 v46, 15, v1')
    E('v_lshrrev_b32 v47, 4, v1')
    E('v_xor_b32 v2, v46, v47')
    E('v_lshlrev_b32 v2, 4, v2')
    E('v_lshl_add_u32 v2, v46, 10, v2')
    E('v_lshlrev_b32 v11, 4, v1')
    E('v_lshrrev_b32 v48, 3, v1')
    E('v_and_b32 v49, 7, v1')
    E('v_lshrrev_b32 v50, 1, v49')
    E('v_and_b32 v51, 1, v47')
    E('v_xor_b32 v50, v50, v51')
    E('v_and_b32 v52, 1, v49')
    E('v_lshlrev_b32 v52, 4, v52')
    E('v_lshl_add_u32 v53, v48, 13, v52')
    E('v_lshl_add_u32 v3, v50, 5, v53')
    E('v_xor_b32 v50, 2, v50')
    E('v_lshl_add_u32 v4, v50, 5, v53')
    E('v_add_u32 v4, 0x10000, v4')
    E('v_add_u32 v5, 0x20000, v3')
    E('v_add_u32 v6, 0x20000, v4')
    E('v_lshrrev_b32 v48, 2, v1')
    E('v_and_b32 v48, 3, v48')
    E('v_and_b32 v49, 3, v1')
    E('v_lshrrev_b32 v50, 1, v48')
    E('v_lshlrev_b32 v51, 1, v51')
    E('v_or_b32 v50, v50, v51')
    E('v_lshl_add_u32 v52, v47, 3, v48')
    E('v_lshlrev_b32 v52, 7, v52')
    E('v_lshl_add_u32 v52, v49, 3, v52')
    E('v_add_u32 v52, s35, v52')
    for t in range(4):
        E('v_xor_b32 v53, %d, v50' % t)
        E('v_lshl_add_u32 v%d, v53, 5, v52' % (7 + t))
    E('v_and_b32 v53, 31, v1')
    E('v_lshrrev_b32 v54, 5, v1')
    E('v_lshlrev_b32 v12, 4, v46')
    E('v_lshl_add_u32 v12, v47, 8, v12')
    E('v_lshlrev_b32 v55, 2, v47')
    E('v_xor_b32 v55, v55, v46')
    E('v_lshlrev_b32 v55, 4, v55')
    E('v_lshl_add_u32 v13, v47, 8, v55')
    E('v_lshl_add_u32 v55, v54, 2, v48')
    E('v_lshlrev_b32 v55, 8, v55')
    E('v_xor_b32 v56, s3, v48')
    E('v_lshl_add_u32 v55, v56, 6, v55')
    E('v_and_b32 v56, 1, v47')
    E('v_lshl_add_u32 v55, v56, 5, v55')
    E('v_lshl_add_u32 v14, v49, 3, v55')
    E('v_add_u32 v14, %d, v14' % VS[0])
    E('s_lshl_b32 s4, s3, 11')
    E('v_add_u32 v15, s4, v11')
    E('v_lshlrev_b32 v55, 4, v46')
    E('v_lshl_add_u32 v55, v54, 9, v55')
    E('v_lshl_add_u32 v55, v56, 3, v55')
    E('s_lshr_b32 s4, s3, 1')
    E('s_mul_i32 s4, s4, 3')
    E('s_and_b32 s5, s3, 1')
    E('s_lshl_b32 s5, s5, 12')
    E('s_add_u32 s5, s5, %d' % QB)
    for st in range(3):
        E('s_add_u32 s6, s4, %d' % st)
        E('s_lshr_b32 s7, s6, 1')
        E('s_lshl_b32 s7, s7, 13')
        E('s_and_b32 s6, s6, 1')
        E('s_lshl_b32 s6, s6, 8')
        E('s_add_u32 s6, s6, s7')
        E('s_add_u32 s6, s6, s5')
        E('v_add_u32 v%d, s6, v55' % (16 + st))
    E('v_lshlrev_b32 v20, 5, v53')
    E('v_lshl_add_u32 v19, v54, 2, v20')
    E('s_lshl_b32 s4, s3, 3')
    E('v_add_u32 v19, s4, v19')
    E('v_lshlrev_b32 v55, 4, v46')
    E('v_lshl_add_u32 v55, v54, 8, v55')
    for qt in range(3):
        E('v_add_u32 v57, %d, v56' % (2 * qt))
        E('v_cmp_le_u32 vcc, 3, v57')
        E('v_subrev_u32 v58, 3, v57')
        E('v_lshlrev_b32 v58, 10, v58')
        E('v_add_u32 v58, 12288, v58')
        E('v_lshlrev_b32 v57, 10, v57')
        E('v_cndmask_b32 v57, v57, v58, vcc')
        E('v_add_u32 v%d, v57, v55' % (27 + qt))
    E('s_waitcnt lgkmcnt(0)')
    def srd(d, lo, size):
        E('s_mov_b32 s%d, s%d' % (d, lo))
        E('s_and_b32 s%d, s%d, 0xffff' % (d + 1, lo + 1))
        E('s_mov_b32 s%d, 0x%x' % (d + 2, size))
        E('s_mov_b32 s%d, 0x20000' % (d + 3))
    srd(8, 40, 786432)
    srd(12, 42, 16777216)
    srd(16, 44, 16777216)
    srd(20, 46, 4194304)
    srd(24, 48, 4194304)
    srd(28, 54, WS_SIZE)

    stamp()
    for n in range(KFIRST):
        E('s_add_u32 s7, s%d, %d' % (64 + n // 8, (n % 8) * 1024))
        E('buffer_load_dwordx4 a[%d:%d], v12, s[12:15], s7 offen' % (n * 4, n * 4 + 3), tag='K%d' % (n // 8))
    E('s_mul_i32 s4, s3, 12288')
    for i in range(12):
        E('s_mul_i32 s5, s3, 12')
        E('s_add_u32 s5, s5, %d' % i)
        E('s_and_b32 s5, s5, 15')
        E('s_lshl_b32 s5, s5, 4')
        E('v_xor_b32 v%d, s5, v11' % (60 + (i & 1)))
        E('s_add_u32 s5, s4, %d' % (XB + i * 1024))
        E('s_mov_b32 m0, s5')
        E('s_add_u32 s6, s33, %d' % (i * 1024))
        E('buffer_load_dwordx4 v%d, s[8:11], s6 offen lds' % (60 + (i & 1)), tag='x')

    def wq_dma(c):
        out = []
        for m in range(4):
            def f(m=m):
                E('s_add_u32 s5, s35, %d' % ((c % NSLOT) * 4096 + m * 1024))
                E('s_mov_b32 m0, s5')
                E('s_add_u32 s6, s34, %d' % (c * 262144))
                E('buffer_load_dwordx4 v%d, s[20:23], s6 offen lds' % (3 + m), tag='wq%d' % c)
            out.append(f)
        return out

    def wq_reg(c):
        if c < 8:
            return 'v', 168 + (c - 3) * 16
        return 'a', 128 + (c - 8) * 16

    def wq_load(c):
        out = []
        fl, r = wq_reg(c)
        for m in range(4):
            def f(m=m):
                E('s_add_u32 s6, s34, %d' % (c * 262144))
                E('buffer_load_dwordx4 %s[%d:%d], v%d, s[20:23], s6 offen' % (fl, r + 4 * m, r + 4 * m + 3, 3 + m), tag='wq%d' % c)
            out.append(f)
        return out

    def wq_write(c):
        out = []
        fl, r = wq_reg(c)
        out.append(lambda: e.wait(vm='wq%d' % c))
        for m in range(4):
            out.append(lambda m=m: E('ds_write_b128 v59, %s[%d:%d] offset:%d' % (fl, r + 4 * m, r + 4 * m + 3, (c % NSLOT) * 4096 + m * 1024)))
        return out

    ACC = 64
    AF = [112, 128]
    BF = [144, 156]

    def p1_reads(c):
        out = []
        bu = c & 1
        sl = c % NSLOT
        out.append(lambda: E('v_xor_b32 v%d, %d, v2' % (60 + bu, c * 64)))
        for st in range(3):
            out.append(lambda st=st: E('ds_read_b128 v[%d:%d], v%d offset:%d' % (BF[bu] + 4 * st, BF[bu] + 4 * st + 3, 60 + bu, XB + st * 16384), tag='p1r%d' % c))
        for t in range(4):
            for hh in range(2):
                out.append(lambda t=t, hh=hh: E('ds_read_b64_tr_b16 v[%d:%d], v%d offset:%d' % (
                    AF[bu] + 4 * t + 2 * hh, AF[bu] + 4 * t + 2 * hh + 1, 7 + t, sl * 4096 + hh * 512), tag='p1r%d' % c))
        return out

    def kload(n):
        def f():
            E('s_add_u32 s7, s%d, %d' % (64 + n // 8, (n % 8) * 1024))
            E('buffer_load_dwordx4 a[%d:%d], v12, s[12:15], s7 offen' % (n * 4, n * 4 + 3), tag='K%d' % (n // 8))
        return f

    def v_chunk(t):
        out = []
        for mm in range(8):
            def f(mm=mm):
                E('s_lshl_b32 s5, s3, 13')
                E('s_add_u32 s5, s5, %d' % (VS[t] + mm * 1024))
                E('s_mov_b32 m0, s5')
                E('s_add_u32 s6, s%d, %d' % (64 + t, mm * 1024))
                E('buffer_load_dwordx4 v13, s[16:19], s6 offen lds', tag='V%d' % t)
            out.append(f)
        return out

    def v_regs(t):
        out = []
        for mm in range(8):
            def f(mm=mm):
                r = 192 + (t - 2) * 32 + mm * 4
                E('s_add_u32 s6, s%d, %d' % (64 + t, mm * 1024))
                E('buffer_load_dwordx4 v[%d:%d], v12, s[16:19], s6 offen' % (r, r + 3), tag='V%d' % t)
            out.append(f)
        return out
    E('v_add_u32 v59, s35, v11')
    seq = []
    for c in range(3):
        seq += wq_dma(c)
    for c in range(3, 16):
        seq += wq_load(c)
    nfast = len(seq)
    seq += [kload(n) for n in range(KFIRST, 16)] + v_chunk(0) + v_chunk(1) + [kload(n) for n in range(16, 32)] + v_regs(2) + v_regs(3)
    LEFT = {'K0': 56, 'K1': 48, 'V0': 40, 'V1': 32, 'K2': 24, 'K3': 16, 'V2': 8, 'V3': 0}
    def vwait(tag):
        nf = 0
        while len(seq) > LEFT[tag]:
            issue(SLOWCOST); nf += 1
        if nf:
            print('forced issue of %d loads for %s' % (nf, tag))
        e.wait(vm=tag)
    issued = [0]
    def issue(maxn=1000):
        n = 0
        while seq and len(e.vmq) < 62 and n < maxn:
            seq.pop(0)()
            n += 1 if issued[0] < nfast else SLOWCOST
            issued[0] += 1
    stamp()
    issue(PRO0)
    stamp()
    e.wait(vm='wq0')
    stamp()
    E('s_barrier')
    stamp()
    issue(PRO1)
    for f in p1_reads(0):
        f()
    for c in range(16):
        bu = c & 1
        e.wait(lds='p1r%d' % c)
        if c in (2, 4, 6, 8, 12):
            stamp()
        rd = []
        if c + 1 < 16:
            if c + 1 < 3:
                rd.append(lambda c=c: e.wait(vm='wq%d' % (c + 1)))
            rd += p1_reads(c + 1)
        rd2 = []
        if 3 <= c + 2 < 16:
            rd2 = wq_write(c + 2)
        rd2.append(lambda: issue(STEPN))
        mf = []
        for nt in range(4):
            for st in range(3):
                a = ACC + (nt * 3 + st) * 4
                src = 'v[%d:%d]' % (a, a + 3) if c > 0 else '0'
                mf.append(lambda a=a, nt=nt, st=st, src=src: E('v_mfma_f32_16x16x32_bf16 v[%d:%d], v[%d:%d], v[%d:%d], %s' % (
                    a, a + 3, AF[bu] + 4 * nt, AF[bu] + 4 * nt + 3, BF[bu] + 4 * st, BF[bu] + 4 * st + 3, src)))
        for f in merge(mf[:6], rd) + merge(mf[6:], rd2):
            f()
    for nt in range(4):
        for st in range(3):
            a = ACC + (nt * 3 + st) * 4
            E('v_cvt_pk_bf16_f32 v%d, v%d, v%d' % (a, a, a + 1))
            E('v_cvt_pk_bf16_f32 v%d, v%d, v%d' % (a + 1, a + 2, a + 3))
    stamp()
    E('s_barrier')
    for nt in range(4):
        for st in range(3):
            a = ACC + (nt * 3 + st) * 4
            E('ds_write_b64 v%d, v[%d:%d] offset:%d' % (16 + st, a, a + 1, nt * 1024))

    while len(seq) > NV_LATE:
        issue(SLOWCOST)
    e.wait(lds='all')
    E('s_barrier')
    QF = 128
    for qt in range(3):
        for ks in range(8):
            r = QF + (qt * 8 + ks) * 4
            E('ds_read_b128 a[%d:%d], v11 offset:%d' % (r, r + 3, QB + (qt * 8 + ks) * 1024), tag='Q')
    E('s_lshl_b32 s4, s3, 13')
    E('s_add_u32 s4, s4, 0xC000')
    E('v_and_b32 v46, 15, v1')
    E('v_lshrrev_b32 v47, 4, v1')
    E('v_xor_b32 v48, v46, v47')
    for jj in range(4):
        E('v_xor_b32 v49, %d, v48' % (4 * jj))
        E('v_lshlrev_b32 v49, 4, v49')
        E('v_lshl_add_u32 v49, v47, 8, v49')
        E('v_add_u32 v%d, s4, v49' % (6 + jj))
    E('v_and_b32 v46, 31, v1')
    E('v_lshrrev_b32 v47, 5, v1')
    E('v_and_b32 v48, 15, v1')
    E('v_xor_b32 v48, v48, v47')
    E('v_lshlrev_b32 v48, 4, v48')
    E('v_lshl_add_u32 v48, v46, 8, v48')
    E('v_add_u32 v54, s4, v48')
    E('v_add_u32 v60, 0x%x, v19' % STATS)
    E('v_add_u32 v61, 0x%x, v20' % STATS)
    def ktr(kt):
        out = [lambda: vwait('K%d' % kt)]
        for m in range(8):
            r = (kt * 8 + m) * 4
            out.append(lambda m=m, r=r: E('ds_write_b128 v%d, a[%d:%d] offset:%d' % (6 + (m & 3), r, r + 3, m * 1024)))
        for ks in range(8):
            r = (kt * 8 + ks) * 4
            def f(ks=ks, r=r):
                E('v_xor_b32 v%d, %d, v54' % (55 + (ks & 1), ks * 32))
                E('ds_read_b128 a[%d:%d], v%d' % (r, r + 3, 55 + (ks & 1)), tag='kt%d' % kt)
            out.append(f)
        return out
    SB = [64, 128]
    MX = 62
    def sreg(q, kt):
        return SB[q & 1] + (kt & 1) * 16
    def max_ops(q, kt):
        out = []
        for i in range(8):
            s_ = sreg(q, kt) + 2 * i
            if (kt & 1) == 0 and i == 0:
                out.append(lambda s_=s_: E('v_max_f32 v%d, v%d, v%d' % (MX, s_, s_ + 1)))
            else:
                out.append(lambda s_=s_: E('v_max3_f32 v%d, v%d, v%d, v%d' % (MX, s_, s_ + 1, MX)))
        return out
    def s_mf(q, kt):
        mf = []
        for ks in range(8):
            s_ = sreg(q, kt)
            src = 'v[%d:%d]' % (s_, s_ + 15) if ks > 0 else '0'
            kr = (kt * 8 + ks) * 4
            qr = QF + (q * 8 + ks) * 4
            mf.append(lambda s_=s_, kr=kr, qr=qr, src=src: E('v_mfma_f32_32x32x16_bf16 v[%d:%d], a[%d:%d], a[%d:%d], %s' % (
                s_, s_ + 15, kr, kr + 3, qr, qr + 3, src)))
        return mf
    PK = [30, 34, 38, 42]
    pkc = [0]
    O = 0
    def exp_ops(q, kt):
        out = []
        s0 = sreg(q, kt)
        for hf in range(2):
            pk = PK[pkc[0] % 4]; pkc[0] += 1
            regs = [s0 + 8 * hf + i for i in range(8)]
            for r in regs:
                out.append(lambda r=r: E('v_fma_f32 v%d, v%d, s36, -v%d' % (r, r, 21 + q)))
            for r in regs:
                out.append(lambda r=r: E('v_exp_f32 v%d, v%d' % (r, r)))
            for k, r in enumerate(regs):
                if kt == 0 and hf == 0 and k == 0:
                    out.append(lambda r=r: E('v_add_f32 v%d, v%d, v%d' % (24 + q, r, r + 1)))
                elif kt == 0 and hf == 0 and k == 1:
                    pass
                else:
                    out.append(lambda r=r: E('v_add_f32 v%d, v%d, v%d' % (24 + q, r, 24 + q)))
                if k & 1:
                    out.append(lambda r=r, pk=pk, k=k: E('v_cvt_pk_bf16_f32 v%d, v%d, v%d' % (pk + k // 2, r - 1, r)))
            off = q * 16384 + (kt & 1) * 8192 + hf * 1024
            out.append(lambda pk=pk, off=off: E('ds_write_b128 v15, v[%d:%d] offset:%d' % (pk, pk + 3, off)))
        return out
    def rescale_ops(q):
        out = []
        for r in range(16):
            a = O + 16 * q + r
            t_ = 46 + (r & 7)
            def f(a=a, t_=t_):
                E('v_accvgpr_read_b32 v%d, a%d' % (t_, a))
                E('v_mul_f32 v%d, v%d, v%d' % (t_, t_, 57 + q))
                E('v_accvgpr_write_b32 a%d, v%d' % (a, t_))
            out.append(f)
        return out
    def exchange(h, q):
        E('ds_write_b32 v60, v%d offset:%d' % (MX, q * 1024))
        e.wait(lds='all')
        stamp()
        E('s_barrier')
        E('ds_read_b128 v[46:49], v61 offset:%d' % (q * 1024), tag='st')
        E('ds_read_b128 v[50:53], v61 offset:%d' % (q * 1024 + 16), tag='st')
        e.wait(lds='st')
        E('v_max3_f32 v46, v46, v47, v48')
        E('v_max3_f32 v50, v50, v51, v52')
        E('v_max3_f32 v46, v46, v49, v53')
        E('v_max_f32 v46, v46, v50')
        if h == 0:
            E('v_mul_f32 v%d, s36, v46' % (21 + q))
        else:
            E('v_mul_f32 v46, s36, v46')
            E('v_max_f32 v46, v46, v%d' % (21 + q))
            E('v_sub_f32 v47, v%d, v46' % (21 + q))
            E('v_exp_f32 v%d, v47' % (57 + q))
            E('v_mov_b32 v%d, v46' % (21 + q))
            E('v_mul_f32 v%d, v%d, v%d' % (24 + q, 24 + q, 57 + q))

    VA = [96, 100]
    PF = [104, 116]
    def pv_reads(t, n):
        u, hf = n // 2, n % 2
        bu = n & 1
        out = []
        for ee in range(2):
            out.append(lambda ee=ee: E('ds_read_b64_tr_b16 v[%d:%d], v14 offset:%d' % (
                VA[bu] + 2 * ee, VA[bu] + 2 * ee + 1, (32 * u + 16 * hf + 8 * ee) * 256), tag='pv%d_%d' % (t, n)))
        for qt in range(3):
            off = qt * 16384 + (t & 1) * 8192 + u * 2048 + hf * 1024
            out.append(lambda qt=qt, off=off: E('ds_read_b128 v[%d:%d], v11 offset:%d' % (
                PF[bu] + 4 * qt, PF[bu] + 4 * qt + 3, off), tag='pv%d_%d' % (t, n)))
        return out
    def pv_ops(t):
        out = []
        out += pv_reads(t, 0)
        for n in range(8):
            bu = n & 1
            if n + 1 < 8:
                out += pv_reads(t, n + 1)
            out.append(lambda n=n: e.wait(lds='pv%d_%d' % (t, n)))
            for qt in range(3):
                o = O + 16 * qt
                src = 'a[%d:%d]' % (o, o + 15) if (t > 0 or n > 0) else '0'
                out.append(lambda o=o, bu=bu, qt=qt, src=src: E('v_mfma_f32_32x32x16_bf16 a[%d:%d], v[%d:%d], v[%d:%d], %s' % (
                    o, o + 15, VA[bu], VA[bu] + 3, PF[bu] + 4 * qt, PF[bu] + 4 * qt + 3, src)))
        return out

    WOR = 240
    def wo_loads():
        out = []
        def pre():
            E('s_lshr_b32 s4, s2, 2')
            E('s_lshl_b32 s4, s4, 16')
            E('s_and_b32 s5, s2, 3')
            E('s_lshl_b32 s5, s5, 8')
            E('s_add_u32 s4, s4, s5')
            E('s_lshl_b32 s5, s3, 14')
            E('s_add_u32 s56, s4, s5')
            E('v_lshrrev_b32 v3, 4, v1')
            E('v_and_b32 v4, 15, v1')
            E('v_lshlrev_b32 v3, 10, v3')
            E('v_lshl_add_u32 v3, v4, 4, v3')
        out.append(pre)
        for m in range(4):
            def f(m=m):
                E('s_add_u32 s6, s56, %d' % (m * 4096))
                E('buffer_load_dwordx4 a[%d:%d], v3, s[24:27], s6 offen' % (WOR + 4 * m, WOR + 4 * m + 3), tag='WO')
            out.append(f)
        return out
    def v_store(t):
        out = [lambda: vwait('V%d' % t)]
        def pre():
            E('s_lshl_b32 s4, s3, 13')
            E('s_add_u32 s4, s4, %d' % VS[t])
            E('v_add_u32 v55, s4, v13')
        out.append(pre)
        for mm in range(8):
            r = 192 + (t - 2) * 32 + mm * 4
            out.append(lambda r=r, mm=mm: E('ds_write_b128 v55, v[%d:%d] offset:%d' % (r, r + 3, mm * 1024)))
        return out
    def iss(n):
        return [lambda: issue(SLOWCOST)] * n

    for h in range(2):
        t0, t1 = 2 * h, 2 * h + 1
        for f in ktr(t0):
            f()
        e.wait(lds='kt%d' % t0)
        stamp()
        for q in range(3):
            for kt in (t0, t1):
                if q == 0:
                    side = ktr(t1) if kt == t0 else []
                else:
                    side = exp_ops(q - 1, kt)
                    if h == 1 and kt == t0:
                        side = merge(side, rescale_ops(q - 1))
                side = merge(side, iss(NV_S[h][q]))
                if kt == t1:
                    hh = len(side) // 2
                    side = side[:hh] + merge(side[hh:], max_ops(q, t0))
                for f in merge(s_mf(q, kt), side):
                    f()
                if q == 0 and kt == t0:
                    e.wait(lds='kt%d' % t1)
            for f in max_ops(q, t1):
                f()
            exchange(h, q)
        tail = exp_ops(2, t0) + exp_ops(2, t1)
        if h == 1:
            tail = merge(tail, rescale_ops(2))
            tail = merge(tail, iss(100)[:len(seq)])
            tail = tail + wo_loads() + v_store(2)
            for qt in range(3):
                tail.append(lambda qt=qt: E('ds_write_b32 v60, v%d offset:%d' % (24 + qt, LSTAT - STATS + qt * 1024)))
        else:
            tail = merge(tail, iss(NV_S[h][3]))
        for f in tail:
            f()
        if h == 0:
            vwait('V0')
        e.wait(lds='all')
        stamp()
        E('s_barrier')
        stamp()
        for t in (t0, t1):
            a = pv_ops(t)
            b = []
            if h == 0:
                b = iss(NV_S[h][4])
            if t == 2:
                b += v_store(3)
                for qt in range(3):
                    def ls(qt=qt):
                        E('ds_read_b128 v[46:49], v61 offset:%d' % (LSTAT - STATS + qt * 1024), tag='ls%d' % qt)
                        E('ds_read_b128 v[50:53], v61 offset:%d' % (LSTAT - STATS + qt * 1024 + 16), tag='ls%d' % qt)
                        e.wait(lds='ls%d' % qt)
                        E('v_add_f32 v46, v46, v47')
                        E('v_add_f32 v48, v48, v49')
                        E('v_add_f32 v50, v50, v51')
                        E('v_add_f32 v52, v52, v53')
                        E('v_add_f32 v46, v46, v48')
                        E('v_add_f32 v50, v50, v52')
                        E('v_add_f32 v46, v46, v50')
                        E('v_rcp_f32 v%d, v46' % (24 + qt))
                    b.append(ls)
            if t == 3:
                def stg():
                    e.wait(vm='WO')
                    E('s_lshl_b32 s4, s3, 12')
                    E('v_add_u32 v60, s4, v13')
                    for m in range(4):
                        E('ds_write_b128 v60, a[%d:%d] offset:%d' % (WOR + 4 * m, WOR + 4 * m + 3, WOST + m * 1024))
                b.append(stg)
            for f in merge(a, b):
                f()
            if t < 3:
                e.wait(lds='all')
                stamp()
                if t == 0:
                    vwait('V1')
                if t != 1:
                    E('s_barrier')
                stamp()
                d = VS[t + 1] - VS[t]
                if d > 0:
                    E('v_add_u32 v14, 0x%x, v14' % d)
                else:
                    E('v_subrev_u32 v14, 0x%x, v14' % (-d))
    e.wait(lds='all')
    stamp()
    E('s_barrier')
    E('v_lshrrev_b32 v46, 4, v1')
    E('v_lshrrev_b32 v47, 2, v1')
    E('v_and_b32 v47, 3, v47')
    E('v_and_b32 v48, 3, v1')
    E('v_lshl_add_u32 v49, v46, 3, v47')
    E('v_lshlrev_b32 v49, 8, v49')
    E('v_xor_b32 v50, s3, v47')
    E('v_lshl_add_u32 v49, v50, 6, v49')
    E('v_lshl_add_u32 v49, v48, 3, v49')
    for kk in range(2):
        for nn in range(2):
            for hh in range(2):
                r = 30 + (kk * 2 + nn) * 4 + 2 * hh
                E('ds_read_b64_tr_b16 v[%d:%d], v49 offset:%d' % (r, r + 1, WOST + (32 * kk + 4 * hh) * 256 + nn * 32), tag='wt')
    E('s_mul_i32 s4, s37, 393216')
    E('s_lshl_b32 s5, s39, 2')
    E('s_add_u32 s5, s5, s3')
    E('s_mul_i32 s5, s5, 3072')
    E('s_add_u32 s57, s4, s5')
    for qt in range(3):
        T = 64 + qt * 16
        for r in range(16):
            E('v_accvgpr_read_b32 v%d, a%d' % (T + r, O + 16 * qt + r))
        for r in range(16):
            E('v_mul_f32 v%d, v%d, v%d' % (T + r, T + r, 24 + qt))
        for k in range(8):
            E('v_cvt_pk_bf16_f32 v%d, v%d, v%d' % (T + k, T + 2 * k, T + 2 * k + 1))
        for k in (0, 2):
            E('v_permlane32_swap_b32 v%d, v%d' % (T + 2 * k, T + 2 * k + 2))
            E('v_permlane32_swap_b32 v%d, v%d' % (T + 2 * k + 1, T + 2 * k + 3))
            E('buffer_store_dwordx4 v[%d:%d], v%d, s[28:31], s57 offen offset:%d' % (T + 2 * k, T + 2 * k + 3, 27 + qt, k * 256))
    E('s_and_b32 s4, s2, 3')
    E('s_lshl_b32 s4, s4, 3')
    E('s_lshl_b32 s5, s3, 1')
    E('s_add_u32 s4, s4, s5')
    E('s_lshl_b32 s4, s4, 17')
    E('s_lshr_b32 s5, s2, 2')
    E('s_lshl_b32 s5, s5, 11')
    E('s_add_u32 s4, s4, s5')
    E('s_add_u32 s4, s4, 0x%x' % WOT_OFF)
    E('s_add_u32 s5, s4, 0x20000')
    e.wait(lds='wt')
    for kk in range(2):
        for nn in range(2):
            r = 30 + (kk * 2 + nn) * 4
            E('buffer_store_dwordx4 v[%d:%d], v11, s[28:31], s%d offen offset:%d' % (r, r + 3, 4 + nn, kk * 1024))
    stamp()
    e.label('L_a_done')
    E('s_endpgm')
    return e


def kernel_b():
    e = Emitter()
    E = e
    e.raw('.p2align 8')
    e.raw('.globl %s' % KB)
    e.raw('.type %s,@function' % KB)
    e.label(KB)
    E('s_cmp_ge_u32 s2, 256')
    E('s_cbranch_scc1 L_b_done')
    E('s_load_dwordx2 s[40:41], s[0:1], 40')
    E('s_load_dwordx2 s[42:43], s[0:1], 56')
    E('v_and_b32 v1, 63, v0')
    E('v_lshrrev_b32 v2, 6, v0')
    E('s_nop 0')
    E('v_readfirstlane_b32 s3, v2')
    E('s_and_b32 s4, s2, 7')
    E('s_lshr_b32 s5, s2, 3')
    E('s_lshr_b32 s6, s4, 1')
    E('s_lshl_b32 s6, s6, 2')
    E('s_lshr_b32 s7, s5, 3')
    E('s_add_u32 s37, s6, s7')
    E('s_and_b32 s6, s4, 1')
    E('s_lshl_b32 s6, s6, 3')
    E('s_and_b32 s7, s5, 7')
    E('s_add_u32 s38, s6, s7')
    E('v_lshlrev_b32 v11, 4, v1')
    E('s_mul_i32 s32, s37, 393216')
    E('s_mul_i32 s4, s3, 49152')
    E('s_add_u32 s32, s32, s4')
    E('s_lshl_b32 s33, s38, 18')
    E('s_lshl_b32 s4, s3, 14')
    E('s_add_u32 s33, s33, s4')
    E('s_add_u32 s33, s33, 0x%x' % WOT_OFF)
    E('s_add_u32 s34, s33, 0x20000')
    E('s_waitcnt lgkmcnt(0)')
    E('s_mov_b32 s8, s40')
    E('s_and_b32 s9, s41, 0xffff')
    E('s_mov_b32 s10, 786432')
    E('s_mov_b32 s11, 0x20000')
    E('s_mov_b32 s28, s42')
    E('s_and_b32 s29, s43, 0xffff')
    E('s_mov_b32 s30, 0x%x' % WS_SIZE)
    E('s_mov_b32 s31, 0x20000')
    D = 5
    ACC = 16
    FR = 40
    def loads(i):
        base = FR + (i % D) * 20
        E('s_add_u32 s5, s32, %d' % (i * 3072))
        for st in range(3):
            E('buffer_load_dwordx4 v[%d:%d], v11, s[28:31], s5 offen offset:%d' % (base + 4 * st, base + 4 * st + 3, st * 1024), tag='k%d' % i)
        E('s_add_u32 s6, s33, %d' % (i * 1024))
        E('s_add_u32 s7, s34, %d' % (i * 1024))
        E('buffer_load_dwordx4 v[%d:%d], v11, s[28:31], s6 offen' % (base + 12, base + 15), tag='k%d' % i)
        E('buffer_load_dwordx4 v[%d:%d], v11, s[28:31], s7 offen' % (base + 16, base + 19), tag='k%d' % i)
    for i in range(D):
        loads(i)
    for i in range(16):
        base = FR + (i % D) * 20
        e.wait(vm='k%d' % i)
        for nn in range(2):
            for st in range(3):
                a = ACC + (nn * 3 + st) * 4
                src = 'v[%d:%d]' % (a, a + 3) if i > 0 else '0'
                E('v_mfma_f32_16x16x32_bf16 v[%d:%d], v[%d:%d], v[%d:%d], %s' % (
                    a, a + 3, base + 12 + 4 * nn, base + 15 + 4 * nn, base + 4 * st, base + 4 * st + 3, src))
        if i + D < 16:
            loads(i + D)
    E('s_mul_i32 s4, s3, 6144')
    E('v_add_u32 v12, s4, v11')
    for tl in range(6):
        E('ds_write_b128 v12, v[%d:%d] offset:%d' % (ACC + 4 * tl, ACC + 4 * tl + 3, tl * 1024))
    e.wait(lds='all')
    E('s_barrier')
    E('s_cmp_ge_u32 s3, 6')
    E('s_cbranch_scc1 L_b_done')
    E('s_lshl_b32 s4, s3, 10')
    E('v_add_u32 v12, s4, v11')
    for wv in range(8):
        E('ds_read_b128 v[%d:%d], v12 offset:%d' % (FR + 4 * wv, FR + 4 * wv + 3, wv * 6144), tag='r%d' % wv)
    e.wait(lds='r1')
    for r in range(4):
        E('v_add_f32 v%d, v%d, v%d' % (16 + r, FR + r, FR + 4 + r))
    for wv in range(2, 8):
        e.wait(lds='r%d' % wv)
        for r in range(4):
            E('v_add_f32 v%d, v%d, v%d' % (16 + r, 16 + r, FR + 4 * wv + r))
    E('v_cvt_pk_bf16_f32 v20, v16, v17')
    E('v_cvt_pk_bf16_f32 v21, v18, v19')
    E('s_cmp_ge_u32 s3, 3')
    E('s_cselect_b32 s4, 1, 0')
    E('s_mul_i32 s5, s4, 3')
    E('s_sub_u32 s5, s3, s5')
    E('s_mul_i32 s6, s37, 49152')
    E('s_lshl_b32 s5, s5, 14')
    E('s_add_u32 s6, s6, s5')
    E('s_lshl_b32 s5, s38, 6')
    E('s_add_u32 s6, s6, s5')
    E('s_lshl_b32 s4, s4, 5')
    E('s_add_u32 s6, s6, s4')
    E('v_and_b32 v2, 15, v1')
    E('v_lshrrev_b32 v3, 4, v1')
    E('v_lshlrev_b32 v2, 10, v2')
    E('v_lshl_add_u32 v2, v3, 3, v2')
    E('buffer_store_dwordx2 v[20:21], v2, s[8:11], s6 offen')
    e.label('L_b_done')
    E('s_endpgm')
    return e


def kd(name, vgpr, accum, sgpr=72):
    return '''.p2align 6
.amdhsa_kernel %s
  .amdhsa_next_free_vgpr %d
  .amdhsa_next_free_sgpr %d
  .amdhsa_accum_offset %d
  .amdhsa_group_segment_fixed_size 0
  .amdhsa_kernarg_size 64
  .amdhsa_user_sgpr_count 2
  .amdhsa_user_sgpr_kernarg_segment_ptr 1
  .amdhsa_system_sgpr_workgroup_id_x 1
.end_amdhsa_kernel
''' % (name, vgpr, sgpr, accum)


def main():
    global DIAG
    if len(sys.argv) > 2 and sys.argv[2] == 'diag':
        DIAG = True
    ref = open('cdna_kernels/%s.s.ref' % NAME).read().splitlines()
    head = [l for l in ref if l.startswith(';') and '@launch' not in l and 'launch geometry' not in l and 'grid=ceil' not in l]
    a = kernel_a()
    b = kernel_b()
    out = '\n'.join(head) + '\n'
    out += '; @launch kernel=%s grid=(256,1,1) block=(256,1,1) lds=%d\n' % (KA, LDS_A)
    out += '; @launch kernel=%s grid=(256,1,1) block=(512,1,1) lds=49152\n' % KB
    out += '.amdgcn_target "amdgcn-amd-amdhsa--gfx950"\n.text\n'
    out += a.text() + b.text()
    out += '.section .rodata,"a"\n'
    out += kd(KA, 512, 256) + kd(KB, 144, 144)
    path = sys.argv[1] if len(sys.argv) > 1 else 'cdna_kernels/%s.s' % NAME
    open(path, 'w').write(out)
    print('nops inserted: A %d  B %d; lines %d' % (a.nops_inserted, b.nops_inserted, out.count('\n')))


if __name__ == '__main__':
    main()
```

```python
import struct, sys, math
from emit import Emitter, merge

NAME = 'standalone__gqa_block_cached__near_ridge'
KA = 'gqa_attn_kernel'
KB = 'gqa_oproj_kernel'

def f32bits(x):
    return struct.unpack('<I', struct.pack('<f', x))[0]

XB = 0
QB = 24576
PB = [0, 24576]
RING = 49152
RING_W = 12288
NSLOT = 3
VS = [98304, 131072, 98304, 131072]
STATS = 81920
LSTAT = 86016
WOST = 49152
LDS_A = 163840

WOT_OFF = 0x800000
WS_SIZE = 0x1000000


DIAG = False
DIAG_ALL = True
PRO0, PRO1, STEPN, SLOWCOST = 12, 8, 8, 6
KFIRST = 0
ROT = 0
CI, KI = 3, 0
NV_LATE = 40
NV_S = [[3, 3, 3, 3, 2], [2, 2, 2, 0, 0]]
def kernel_a():
    e = Emitter()
    E = e
    stampc = [0]
    def stamp(key=False):
        if not DIAG or not (DIAG_ALL or key):
            return
        i = stampc[0]; stampc[0] += 1
        E('s_memtime s[60:61]')
        E('s_waitcnt lgkmcnt(0)')
        E('s_lshl_b32 s58, s2, 2')
        E('s_add_u32 s58, s58, s3')
        E('s_lshl_b32 s58, s58, 8')
        E('s_add_u32 s58, s58, 0x%x' % (0xC00000 + i * 8))
        E('v_mov_b32 v63, 0')
        E('v_mov_b32 v0, s60')
        E('buffer_store_dword v0, v63, s[28:31], s58 offen', tag='stamp')
        E('v_mov_b32 v0, s61')
        E('buffer_store_dword v0, v63, s[28:31], s58 offen offset:4', tag='stamp')
    e.raw('.p2align 8')
    e.raw('.globl %s' % KA)
    e.raw('.type %s,@function' % KA)
    e.label(KA)
    E('s_cmp_ge_u32 s2, 256')
    E('s_cbranch_scc1 L_a_done')
    E('s_load_dwordx16 s[40:55], s[0:1], 0')
    E('v_and_b32 v1, 63, v0')
    E('v_lshrrev_b32 v2, 6, v0')
    E('s_nop 0')
    E('v_readfirstlane_b32 s3, v2')
    E('s_and_b32 s38, s2, 7')
    E('s_lshr_b32 s4, s2, 3')
    E('s_lshr_b32 s37, s4, 1')
    E('s_and_b32 s4, s4, 1')
    E('s_lshl_b32 s39, s38, 2')
    E('s_lshl_b32 s4, s4, 1')
    E('s_add_u32 s39, s39, s4')
    E('s_lshl_b32 s4, s37, 3')
    E('s_add_u32 s4, s4, s38')
    E('s_lshl_b32 s32, s4, 17')
    E('s_lshl_b32 s5, s3, 15')
    E('s_add_u32 s32, s32, s5')
    E('s_lshr_b32 s5, s2, 3')
    E('s_and_b32 s5, s5, 1')
    E('s_mul_i32 s5, s5, %d' % ROT)
    for kt in range(4):
        E('s_add_u32 s6, s5, %d' % kt)
        E('s_and_b32 s6, s6, 3')
        E('s_lshl_b32 s6, s6, 13')
        E('s_add_u32 s%d, s32, s6' % (64 + kt))
    E('s_mul_i32 s33, s37, 49152')
    E('s_mul_i32 s5, s3, 12288')
    E('s_add_u32 s33, s33, s5')
    E('s_lshl_b32 s34, s39, 8')
    E('s_lshl_b32 s5, s3, 7')
    E('s_add_u32 s34, s34, s5')
    E('s_mul_i32 s35, s3, %d' % RING_W)
    E('s_add_u32 s35, s35, %d' % RING)
    E('s_mov_b32 s36, 0x%08x' % f32bits(math.log2(math.e) / math.sqrt(128.0)))
    E('v_and_b32 v46, 15, v1')
    E('v_lshrrev_b32 v47, 4, v1')
    E('v_xor_b32 v2, v46, v47')
    E('v_lshlrev_b32 v2, 4, v2')
    E('v_lshl_add_u32 v2, v46, 10, v2')
    E('v_lshlrev_b32 v11, 4, v1')
    E('v_lshrrev_b32 v48, 3, v1')
    E('v_and_b32 v49, 7, v1')
    E('v_lshrrev_b32 v50, 1, v49')
    E('v_and_b32 v51, 1, v47')
    E('v_xor_b32 v50, v50, v51')
    E('v_and_b32 v52, 1, v49')
    E('v_lshlrev_b32 v52, 4, v52')
    E('v_lshl_add_u32 v53, v48, 13, v52')
    E('v_lshl_add_u32 v3, v50, 5, v53')
    E('v_xor_b32 v50, 2, v50')
    E('v_lshl_add_u32 v4, v50, 5, v53')
    E('v_add_u32 v4, 0x10000, v4')
    E('v_add_u32 v5, 0x20000, v3')
    E('v_add_u32 v6, 0x20000, v4')
    E('v_lshrrev_b32 v48, 2, v1')
    E('v_and_b32 v48, 3, v48')
    E('v_and_b32 v49, 3, v1')
    E('v_lshrrev_b32 v50, 1, v48')
    E('v_lshlrev_b32 v51, 1, v51')
    E('v_or_b32 v50, v50, v51')
    E('v_lshl_add_u32 v52, v47, 3, v48')
    E('v_lshlrev_b32 v52, 7, v52')
    E('v_lshl_add_u32 v52, v49, 3, v52')
    E('v_add_u32 v52, s35, v52')
    for t in range(4):
        E('v_xor_b32 v53, %d, v50' % t)
        E('v_lshl_add_u32 v%d, v53, 5, v52' % (7 + t))
    E('v_and_b32 v53, 31, v1')
    E('v_lshrrev_b32 v54, 5, v1')
    E('v_lshlrev_b32 v12, 4, v46')
    E('v_lshl_add_u32 v12, v47, 8, v12')
    E('v_lshlrev_b32 v55, 2, v47')
    E('v_xor_b32 v55, v55, v46')
    E('v_lshlrev_b32 v55, 4, v55')
    E('v_lshl_add_u32 v13, v47, 8, v55')
    E('v_lshl_add_u32 v55, v54, 2, v48')
    E('v_lshlrev_b32 v55, 8, v55')
    E('v_xor_b32 v56, s3, v48')
    E('v_lshl_add_u32 v55, v56, 6, v55')
    E('v_and_b32 v56, 1, v47')
    E('v_lshl_add_u32 v55, v56, 5, v55')
    E('v_lshl_add_u32 v14, v49, 3, v55')
    E('v_add_u32 v14, %d, v14' % VS[0])
    E('s_lshl_b32 s4, s3, 11')
    E('v_add_u32 v15, s4, v11')
    E('v_lshlrev_b32 v55, 4, v46')
    E('v_lshl_add_u32 v55, v54, 9, v55')
    E('v_lshl_add_u32 v55, v56, 3, v55')
    E('s_lshr_b32 s4, s3, 1')
    E('s_mul_i32 s4, s4, 3')
    E('s_and_b32 s5, s3, 1')
    E('s_lshl_b32 s5, s5, 12')
    E('s_add_u32 s5, s5, %d' % QB)
    for st in range(3):
        E('s_add_u32 s6, s4, %d' % st)
        E('s_lshr_b32 s7, s6, 1')
        E('s_lshl_b32 s7, s7, 13')
        E('s_and_b32 s6, s6, 1')
        E('s_lshl_b32 s6, s6, 8')
        E('s_add_u32 s6, s6, s7')
        E('s_add_u32 s6, s6, s5')
        E('v_add_u32 v%d, s6, v55' % (16 + st))
    E('v_lshlrev_b32 v20, 5, v53')
    E('v_lshl_add_u32 v19, v54, 2, v20')
    E('s_lshl_b32 s4, s3, 3')
    E('v_add_u32 v19, s4, v19')
    E('v_lshlrev_b32 v55, 4, v46')
    E('v_lshl_add_u32 v55, v54, 8, v55')
    for qt in range(3):
        E('v_add_u32 v57, %d, v56' % (2 * qt))
        E('v_cmp_le_u32 vcc, 3, v57')
        E('v_subrev_u32 v58, 3, v57')
        E('v_lshlrev_b32 v58, 10, v58')
        E('v_add_u32 v58, 12288, v58')
        E('v_lshlrev_b32 v57, 10, v57')
        E('v_cndmask_b32 v57, v57, v58, vcc')
        E('v_add_u32 v%d, v57, v55' % (27 + qt))
    E('s_waitcnt lgkmcnt(0)')
    def srd(d, lo, size):
        E('s_mov_b32 s%d, s%d' % (d, lo))
        E('s_and_b32 s%d, s%d, 0xffff' % (d + 1, lo + 1))
        E('s_mov_b32 s%d, 0x%x' % (d + 2, size))
        E('s_mov_b32 s%d, 0x20000' % (d + 3))
    srd(8, 40, 786432)
    srd(12, 42, 16777216)
    srd(16, 44, 16777216)
    srd(20, 46, 4194304)
    srd(24, 48, 4194304)
    srd(28, 54, WS_SIZE)

    stamp(True)
    for n in range(KFIRST):
        E('s_add_u32 s7, s%d, %d' % (64 + n // 8, (n % 8) * 1024))
        E('buffer_load_dwordx4 a[%d:%d], v12, s[12:15], s7 offen' % (n * 4, n * 4 + 3), tag='K%d' % (n // 8))
    E('s_mul_i32 s4, s3, 12288')
    for i in range(12):
        E('s_mul_i32 s5, s3, 12')
        E('s_add_u32 s5, s5, %d' % i)
        E('s_and_b32 s5, s5, 15')
        E('s_lshl_b32 s5, s5, 4')
        E('v_xor_b32 v%d, s5, v11' % (60 + (i & 1)))
        E('s_add_u32 s5, s4, %d' % (XB + i * 1024))
        E('s_mov_b32 m0, s5')
        E('s_add_u32 s6, s33, %d' % (i * 1024))
        E('buffer_load_dwordx4 v%d, s[8:11], s6 offen lds' % (60 + (i & 1)), tag='x')

    def wq_dma(c):
        out = []
        for m in range(4):
            def f(m=m):
                E('s_add_u32 s5, s35, %d' % ((c % NSLOT) * 4096 + m * 1024))
                E('s_mov_b32 m0, s5')
                E('s_add_u32 s6, s34, %d' % (c * 262144))
                E('buffer_load_dwordx4 v%d, s[20:23], s6 offen lds' % (3 + m), tag='wq%d' % c)
            out.append(f)
        return out

    def wq_reg(c):
        if c < 8:
            return 'v', 168 + (c - 3) * 16
        return 'a', 128 + (c - 8) * 16

    def wq_load(c):
        out = []
        fl, r = wq_reg(c)
        for m in range(4):
            def f(m=m):
                E('s_add_u32 s6, s34, %d' % (c * 262144))
                E('buffer_load_dwordx4 %s[%d:%d], v%d, s[20:23], s6 offen' % (fl, r + 4 * m, r + 4 * m + 3, 3 + m), tag='wq%d' % c)
            out.append(f)
        return out

    def wq_write(c):
        out = []
        fl, r = wq_reg(c)
        out.append(lambda: e.wait(vm='wq%d' % c))
        for m in range(4):
            out.append(lambda m=m: E('ds_write_b128 v59, %s[%d:%d] offset:%d' % (fl, r + 4 * m, r + 4 * m + 3, (c % NSLOT) * 4096 + m * 1024)))
        return out

    ACC = 64
    AF = [112, 128]
    BF = [144, 156]

    def p1_reads(c):
        out = []
        bu = c & 1
        sl = c % NSLOT
        out.append(lambda: E('v_xor_b32 v%d, %d, v2' % (60 + bu, c * 64)))
        for st in range(3):
            out.append(lambda st=st: E('ds_read_b128 v[%d:%d], v%d offset:%d' % (BF[bu] + 4 * st, BF[bu] + 4 * st + 3, 60 + bu, XB + st * 16384), tag='p1r%d' % c))
        for t in range(4):
            for hh in range(2):
                out.append(lambda t=t, hh=hh: E('ds_read_b64_tr_b16 v[%d:%d], v%d offset:%d' % (
                    AF[bu] + 4 * t + 2 * hh, AF[bu] + 4 * t + 2 * hh + 1, 7 + t, sl * 4096 + hh * 512), tag='p1r%d' % c))
        return out

    def kload(n):
        def f():
            E('s_add_u32 s7, s%d, %d' % (64 + n // 8, (n % 8) * 1024))
            E('buffer_load_dwordx4 a[%d:%d], v12, s[12:15], s7 offen' % (n * 4, n * 4 + 3), tag='K%d' % (n // 8))
        return f

    def v_chunk(t):
        out = []
        for mm in range(8):
            def f(mm=mm):
                E('s_lshl_b32 s5, s3, 13')
                E('s_add_u32 s5, s5, %d' % (VS[t] + mm * 1024))
                E('s_mov_b32 m0, s5')
                E('s_add_u32 s6, s%d, %d' % (64 + t, mm * 1024))
                E('buffer_load_dwordx4 v13, s[16:19], s6 offen lds', tag='V%d' % t)
            out.append(f)
        return out

    def v_regs(t):
        out = []
        for mm in range(8):
            def f(mm=mm):
                r = 192 + (t - 2) * 32 + mm * 4
                E('s_add_u32 s6, s%d, %d' % (64 + t, mm * 1024))
                E('buffer_load_dwordx4 v[%d:%d], v12, s[16:19], s6 offen' % (r, r + 3), tag='V%d' % t)
            out.append(f)
        return out
    E('v_add_u32 v59, s35, v11')
    seq = []
    slow = [kload(n) for n in range(KFIRST, 16)] + v_chunk(0) + v_chunk(1) + [kload(n) for n in range(16, 32)] + v_regs(2) + v_regs(3)
    for c in range(3):
        seq += wq_dma(c)
    for c in range(3, 16):
        seq += wq_load(c)
        if c >= CI:
            seq += slow[:KI]
            slow = slow[KI:]
    nfast = len(seq)
    seq += slow
    LEFT = {'K0': 56, 'K1': 48, 'V0': 40, 'V1': 32, 'K2': 24, 'K3': 16, 'V2': 8, 'V3': 0}
    def vwait(tag):
        nf = 0
        while len(seq) > LEFT[tag]:
            issue(SLOWCOST); nf += 1
        if nf:
            print('forced issue of %d loads for %s' % (nf, tag))
        e.wait(vm=tag)
    issued = [0]
    def issue(maxn=1000):
        n = 0
        while seq and len(e.vmq) < 62 and n < maxn:
            seq.pop(0)()
            n += 1 if issued[0] < nfast else SLOWCOST
            issued[0] += 1
    stamp()
    issue(PRO0)
    stamp()
    e.wait(vm='wq0')
    stamp()
    E('s_barrier')
    stamp()
    issue(PRO1)
    for f in p1_reads(0):
        f()
    for c in range(16):
        bu = c & 1
        e.wait(lds='p1r%d' % c)
        if c in (2, 4, 6, 8, 12):
            stamp()
        rd = []
        if c + 1 < 16:
            if c + 1 < 3:
                rd.append(lambda c=c: e.wait(vm='wq%d' % (c + 1)))
            rd += p1_reads(c + 1)
        rd2 = []
        if 3 <= c + 2 < 16:
            rd2 = wq_write(c + 2)
        rd2.append(lambda: issue(STEPN))
        mf = []
        for nt in range(4):
            for st in range(3):
                a = ACC + (nt * 3 + st) * 4
                src = 'v[%d:%d]' % (a, a + 3) if c > 0 else '0'
                mf.append(lambda a=a, nt=nt, st=st, src=src: E('v_mfma_f32_16x16x32_bf16 v[%d:%d], v[%d:%d], v[%d:%d], %s' % (
                    a, a + 3, AF[bu] + 4 * nt, AF[bu] + 4 * nt + 3, BF[bu] + 4 * st, BF[bu] + 4 * st + 3, src)))
        for f in merge(mf[:6], rd) + merge(mf[6:], rd2):
            f()
    for nt in range(4):
        for st in range(3):
            a = ACC + (nt * 3 + st) * 4
            E('v_cvt_pk_bf16_f32 v%d, v%d, v%d' % (a, a, a + 1))
            E('v_cvt_pk_bf16_f32 v%d, v%d, v%d' % (a + 1, a + 2, a + 3))
    stamp(True)
    E('s_barrier')
    for nt in range(4):
        for st in range(3):
            a = ACC + (nt * 3 + st) * 4
            E('ds_write_b64 v%d, v[%d:%d] offset:%d' % (16 + st, a, a + 1, nt * 1024))

    while len(seq) > NV_LATE:
        issue(SLOWCOST)
    e.wait(lds='all')
    E('s_barrier')
    QF = 128
    for qt in range(3):
        for ks in range(8):
            r = QF + (qt * 8 + ks) * 4
            E('ds_read_b128 a[%d:%d], v11 offset:%d' % (r, r + 3, QB + (qt * 8 + ks) * 1024), tag='Q')
    E('s_lshl_b32 s4, s3, 13')
    E('s_add_u32 s4, s4, 0xC000')
    E('v_and_b32 v46, 15, v1')
    E('v_lshrrev_b32 v47, 4, v1')
    E('v_xor_b32 v48, v46, v47')
    for jj in range(4):
        E('v_xor_b32 v49, %d, v48' % (4 * jj))
        E('v_lshlrev_b32 v49, 4, v49')
        E('v_lshl_add_u32 v49, v47, 8, v49')
        E('v_add_u32 v%d, s4, v49' % (6 + jj))
    E('v_and_b32 v46, 31, v1')
    E('v_lshrrev_b32 v47, 5, v1')
    E('v_and_b32 v48, 15, v1')
    E('v_xor_b32 v48, v48, v47')
    E('v_lshlrev_b32 v48, 4, v48')
    E('v_lshl_add_u32 v48, v46, 8, v48')
    E('v_add_u32 v54, s4, v48')
    E('v_add_u32 v60, 0x%x, v19' % STATS)
    E('v_add_u32 v61, 0x%x, v20' % STATS)
    def ktr(kt):
        out = [lambda: vwait('K%d' % kt)]
        for m in range(8):
            r = (kt * 8 + m) * 4
            out.append(lambda m=m, r=r: E('ds_write_b128 v%d, a[%d:%d] offset:%d' % (6 + (m & 3), r, r + 3, m * 1024)))
        for ks in range(8):
            r = (kt * 8 + ks) * 4
            def f(ks=ks, r=r):
                E('v_xor_b32 v%d, %d, v54' % (55 + (ks & 1), ks * 32))
                E('ds_read_b128 a[%d:%d], v%d' % (r, r + 3, 55 + (ks & 1)), tag='kt%d' % kt)
            out.append(f)
        return out
    SB = [64, 128]
    MX = 62
    def sreg(q, kt):
        return SB[q & 1] + (kt & 1) * 16
    def max_ops(q, kt):
        out = []
        for i in range(8):
            s_ = sreg(q, kt) + 2 * i
            if (kt & 1) == 0 and i == 0:
                out.append(lambda s_=s_: E('v_max_f32 v%d, v%d, v%d' % (MX, s_, s_ + 1)))
            else:
                out.append(lambda s_=s_: E('v_max3_f32 v%d, v%d, v%d, v%d' % (MX, s_, s_ + 1, MX)))
        return out
    def s_mf(q, kt):
        mf = []
        for ks in range(8):
            s_ = sreg(q, kt)
            src = 'v[%d:%d]' % (s_, s_ + 15) if ks > 0 else '0'
            kr = (kt * 8 + ks) * 4
            qr = QF + (q * 8 + ks) * 4
            mf.append(lambda s_=s_, kr=kr, qr=qr, src=src: E('v_mfma_f32_32x32x16_bf16 v[%d:%d], a[%d:%d], a[%d:%d], %s' % (
                s_, s_ + 15, kr, kr + 3, qr, qr + 3, src)))
        return mf
    PK = [30, 34, 38, 42]
    pkc = [0]
    O = 0
    def exp_ops(q, kt):
        out = []
        s0 = sreg(q, kt)
        for hf in range(2):
            pk = PK[pkc[0] % 4]; pkc[0] += 1
            regs = [s0 + 8 * hf + i for i in range(8)]
            for r in regs:
                out.append(lambda r=r: E('v_fma_f32 v%d, v%d, s36, -v%d' % (r, r, 21 + q)))
            for r in regs:
                out.append(lambda r=r: E('v_exp_f32 v%d, v%d' % (r, r)))
            for k, r in enumerate(regs):
                if kt == 0 and hf == 0 and k == 0:
                    out.append(lambda r=r: E('v_add_f32 v%d, v%d, v%d' % (24 + q, r, r + 1)))
                elif kt == 0 and hf == 0 and k == 1:
                    pass
                else:
                    out.append(lambda r=r: E('v_add_f32 v%d, v%d, v%d' % (24 + q, r, 24 + q)))
                if k & 1:
                    out.append(lambda r=r, pk=pk, k=k: E('v_cvt_pk_bf16_f32 v%d, v%d, v%d' % (pk + k // 2, r - 1, r)))
            off = q * 16384 + (kt & 1) * 8192 + hf * 1024
            out.append(lambda pk=pk, off=off: E('ds_write_b128 v15, v[%d:%d] offset:%d' % (pk, pk + 3, off)))
        return out
    def rescale_ops(q):
        out = []
        for r in range(16):
            a = O + 16 * q + r
            t_ = 46 + (r & 7)
            def f(a=a, t_=t_):
                E('v_accvgpr_read_b32 v%d, a%d' % (t_, a))
                E('v_mul_f32 v%d, v%d, v%d' % (t_, t_, 57 + q))
                E('v_accvgpr_write_b32 a%d, v%d' % (a, t_))
            out.append(f)
        return out
    def exchange(h, q):
        E('ds_write_b32 v60, v%d offset:%d' % (MX, q * 1024))
        e.wait(lds='all')
        stamp()
        E('s_barrier')
        E('ds_read_b128 v[46:49], v61 offset:%d' % (q * 1024), tag='st')
        E('ds_read_b128 v[50:53], v61 offset:%d' % (q * 1024 + 16), tag='st')
        e.wait(lds='st')
        E('v_max3_f32 v46, v46, v47, v48')
        E('v_max3_f32 v50, v50, v51, v52')
        E('v_max3_f32 v46, v46, v49, v53')
        E('v_max_f32 v46, v46, v50')
        if h == 0:
            E('v_mul_f32 v%d, s36, v46' % (21 + q))
        else:
            E('v_mul_f32 v46, s36, v46')
            E('v_max_f32 v46, v46, v%d' % (21 + q))
            E('v_sub_f32 v47, v%d, v46' % (21 + q))
            E('v_exp_f32 v%d, v47' % (57 + q))
            E('v_mov_b32 v%d, v46' % (21 + q))
            E('v_mul_f32 v%d, v%d, v%d' % (24 + q, 24 + q, 57 + q))

    VA = [96, 100]
    PF = [104, 116]
    def pv_reads(t, n):
        u, hf = n // 2, n % 2
        bu = n & 1
        out = []
        for ee in range(2):
            out.append(lambda ee=ee: E('ds_read_b64_tr_b16 v[%d:%d], v14 offset:%d' % (
                VA[bu] + 2 * ee, VA[bu] + 2 * ee + 1, (32 * u + 16 * hf + 8 * ee) * 256), tag='pv%d_%d' % (t, n)))
        for qt in range(3):
            off = qt * 16384 + (t & 1) * 8192 + u * 2048 + hf * 1024
            out.append(lambda qt=qt, off=off: E('ds_read_b128 v[%d:%d], v11 offset:%d' % (
                PF[bu] + 4 * qt, PF[bu] + 4 * qt + 3, off), tag='pv%d_%d' % (t, n)))
        return out
    def pv_ops(t):
        out = []
        out += pv_reads(t, 0)
        for n in range(8):
            bu = n & 1
            if n + 1 < 8:
                out += pv_reads(t, n + 1)
            out.append(lambda n=n: e.wait(lds='pv%d_%d' % (t, n)))
            for qt in range(3):
                o = O + 16 * qt
                src = 'a[%d:%d]' % (o, o + 15) if (t > 0 or n > 0) else '0'
                out.append(lambda o=o, bu=bu, qt=qt, src=src: E('v_mfma_f32_32x32x16_bf16 a[%d:%d], v[%d:%d], v[%d:%d], %s' % (
                    o, o + 15, VA[bu], VA[bu] + 3, PF[bu] + 4 * qt, PF[bu] + 4 * qt + 3, src)))
        return out

    WOR = 240
    def wo_loads():
        out = []
        def pre():
            E('s_lshr_b32 s4, s2, 2')
            E('s_lshl_b32 s4, s4, 16')
            E('s_and_b32 s5, s2, 3')
            E('s_lshl_b32 s5, s5, 8')
            E('s_add_u32 s4, s4, s5')
            E('s_lshl_b32 s5, s3, 14')
            E('s_add_u32 s56, s4, s5')
            E('v_lshrrev_b32 v3, 4, v1')
            E('v_and_b32 v4, 15, v1')
            E('v_lshlrev_b32 v3, 10, v3')
            E('v_lshl_add_u32 v3, v4, 4, v3')
        out.append(pre)
        for m in range(4):
            def f(m=m):
                E('s_add_u32 s6, s56, %d' % (m * 4096))
                E('buffer_load_dwordx4 a[%d:%d], v3, s[24:27], s6 offen' % (WOR + 4 * m, WOR + 4 * m + 3), tag='WO')
            out.append(f)
        return out
    def v_store(t):
        out = [lambda: vwait('V%d' % t)]
        def pre():
            E('s_lshl_b32 s4, s3, 13')
            E('s_add_u32 s4, s4, %d' % VS[t])
            E('v_add_u32 v55, s4, v13')
        out.append(pre)
        for mm in range(8):
            r = 192 + (t - 2) * 32 + mm * 4
            out.append(lambda r=r, mm=mm: E('ds_write_b128 v55, v[%d:%d] offset:%d' % (r, r + 3, mm * 1024)))
        return out
    def iss(n):
        return [lambda: issue(SLOWCOST)] * n

    for h in range(2):
        t0, t1 = 2 * h, 2 * h + 1
        for f in ktr(t0):
            f()
        e.wait(lds='kt%d' % t0)
        stamp()
        for q in range(3):
            for kt in (t0, t1):
                if q == 0:
                    side = ktr(t1) if kt == t0 else []
                else:
                    side = exp_ops(q - 1, kt)
                    if h == 1 and kt == t0:
                        side = merge(side, rescale_ops(q - 1))
                side = merge(side, iss(NV_S[h][q]))
                if kt == t1:
                    hh = len(side) // 2
                    side = side[:hh] + merge(side[hh:], max_ops(q, t0))
                for f in merge(s_mf(q, kt), side):
                    f()
                if q == 0 and kt == t0:
                    e.wait(lds='kt%d' % t1)
            for f in max_ops(q, t1):
                f()
            exchange(h, q)
        tail = exp_ops(2, t0) + exp_ops(2, t1)
        if h == 1:
            tail = merge(tail, rescale_ops(2))
            tail = merge(tail, iss(100)[:len(seq)])
            tail = tail + wo_loads() + v_store(2)
            for qt in range(3):
                tail.append(lambda qt=qt: E('ds_write_b32 v60, v%d offset:%d' % (24 + qt, LSTAT - STATS + qt * 1024)))
        else:
            tail = merge(tail, iss(NV_S[h][3]))
        for f in tail:
            f()
        if h == 0:
            vwait('V0')
        e.wait(lds='all')
        stamp()
        E('s_barrier')
        stamp(True)
        for t in (t0, t1):
            a = pv_ops(t)
            b = []
            if h == 0:
                b = iss(NV_S[h][4])
            if t == 2:
                b += v_store(3)
                for qt in range(3):
                    def ls(qt=qt):
                        E('ds_read_b128 v[46:49], v61 offset:%d' % (LSTAT - STATS + qt * 1024), tag='ls%d' % qt)
                        E('ds_read_b128 v[50:53], v61 offset:%d' % (LSTAT - STATS + qt * 1024 + 16), tag='ls%d' % qt)
                        e.wait(lds='ls%d' % qt)
                        E('v_add_f32 v46, v46, v47')
                        E('v_add_f32 v48, v48, v49')
                        E('v_add_f32 v50, v50, v51')
                        E('v_add_f32 v52, v52, v53')
                        E('v_add_f32 v46, v46, v48')
                        E('v_add_f32 v50, v50, v52')
                        E('v_add_f32 v46, v46, v50')
                        E('v_rcp_f32 v%d, v46' % (24 + qt))
                    b.append(ls)
            if t == 3:
                def stg():
                    e.wait(vm='WO')
                    E('s_lshl_b32 s4, s3, 12')
                    E('v_add_u32 v60, s4, v13')
                    for m in range(4):
                        E('ds_write_b128 v60, a[%d:%d] offset:%d' % (WOR + 4 * m, WOR + 4 * m + 3, WOST + m * 1024))
                b.append(stg)
            for f in merge(a, b):
                f()
            if t < 3:
                e.wait(lds='all')
                stamp()
                if t == 0:
                    vwait('V1')
                if t != 1:
                    E('s_barrier')
                stamp()
                d = VS[t + 1] - VS[t]
                if d > 0:
                    E('v_add_u32 v14, 0x%x, v14' % d)
                else:
                    E('v_subrev_u32 v14, 0x%x, v14' % (-d))
    e.wait(lds='all')
    stamp()
    E('s_barrier')
    E('v_lshrrev_b32 v46, 4, v1')
    E('v_lshrrev_b32 v47, 2, v1')
    E('v_and_b32 v47, 3, v47')
    E('v_and_b32 v48, 3, v1')
    E('v_lshl_add_u32 v49, v46, 3, v47')
    E('v_lshlrev_b32 v49, 8, v49')
    E('v_xor_b32 v50, s3, v47')
    E('v_lshl_add_u32 v49, v50, 6, v49')
    E('v_lshl_add_u32 v49, v48, 3, v49')
    for kk in range(2):
        for nn in range(2):
            for hh in range(2):
                r = 30 + (kk * 2 + nn) * 4 + 2 * hh
                E('ds_read_b64_tr_b16 v[%d:%d], v49 offset:%d' % (r, r + 1, WOST + (32 * kk + 4 * hh) * 256 + nn * 32), tag='wt')
    E('s_mul_i32 s4, s37, 393216')
    E('s_lshl_b32 s5, s39, 2')
    E('s_add_u32 s5, s5, s3')
    E('s_mul_i32 s5, s5, 3072')
    E('s_add_u32 s57, s4, s5')
    for qt in range(3):
        T = 64 + qt * 16
        for r in range(16):
            E('v_accvgpr_read_b32 v%d, a%d' % (T + r, O + 16 * qt + r))
        for r in range(16):
            E('v_mul_f32 v%d, v%d, v%d' % (T + r, T + r, 24 + qt))
        for k in range(8):
            E('v_cvt_pk_bf16_f32 v%d, v%d, v%d' % (T + k, T + 2 * k, T + 2 * k + 1))
        for k in (0, 2):
            E('v_permlane32_swap_b32 v%d, v%d' % (T + 2 * k, T + 2 * k + 2))
            E('v_permlane32_swap_b32 v%d, v%d' % (T + 2 * k + 1, T + 2 * k + 3))
            E('buffer_store_dwordx4 v[%d:%d], v%d, s[28:31], s57 offen offset:%d' % (T + 2 * k, T + 2 * k + 3, 27 + qt, k * 256))
    E('s_and_b32 s4, s2, 3')
    E('s_lshl_b32 s4, s4, 3')
    E('s_lshl_b32 s5, s3, 1')
    E('s_add_u32 s4, s4, s5')
    E('s_lshl_b32 s4, s4, 17')
    E('s_lshr_b32 s5, s2, 2')
    E('s_lshl_b32 s5, s5, 11')
    E('s_add_u32 s4, s4, s5')
    E('s_add_u32 s4, s4, 0x%x' % WOT_OFF)
    E('s_add_u32 s5, s4, 0x20000')
    e.wait(lds='wt')
    for kk in range(2):
        for nn in range(2):
            r = 30 + (kk * 2 + nn) * 4
            E('buffer_store_dwordx4 v[%d:%d], v11, s[28:31], s%d offen offset:%d' % (r, r + 3, 4 + nn, kk * 1024))
    stamp(True)
    e.label('L_a_done')
    E('s_endpgm')
    return e


def kernel_b():
    e = Emitter()
    E = e
    e.raw('.p2align 8')
    e.raw('.globl %s' % KB)
    e.raw('.type %s,@function' % KB)
    e.label(KB)
    E('s_cmp_ge_u32 s2, 256')
    E('s_cbranch_scc1 L_b_done')
    E('s_load_dwordx2 s[40:41], s[0:1], 40')
    E('s_load_dwordx2 s[42:43], s[0:1], 56')
    E('v_and_b32 v1, 63, v0')
    E('v_lshrrev_b32 v2, 6, v0')
    E('s_nop 0')
    E('v_readfirstlane_b32 s3, v2')
    E('s_and_b32 s4, s2, 7')
    E('s_lshr_b32 s5, s2, 3')
    E('s_lshr_b32 s6, s4, 1')
    E('s_lshl_b32 s6, s6, 2')
    E('s_lshr_b32 s7, s5, 3')
    E('s_add_u32 s37, s6, s7')
    E('s_and_b32 s6, s4, 1')
    E('s_lshl_b32 s6, s6, 3')
    E('s_and_b32 s7, s5, 7')
    E('s_add_u32 s38, s6, s7')
    E('v_lshlrev_b32 v11, 4, v1')
    E('s_mul_i32 s32, s37, 393216')
    E('s_mul_i32 s4, s3, 49152')
    E('s_add_u32 s32, s32, s4')
    E('s_lshl_b32 s33, s38, 18')
    E('s_lshl_b32 s4, s3, 14')
    E('s_add_u32 s33, s33, s4')
    E('s_add_u32 s33, s33, 0x%x' % WOT_OFF)
    E('s_add_u32 s34, s33, 0x20000')
    E('s_waitcnt lgkmcnt(0)')
    E('s_mov_b32 s8, s40')
    E('s_and_b32 s9, s41, 0xffff')
    E('s_mov_b32 s10, 786432')
    E('s_mov_b32 s11, 0x20000')
    E('s_mov_b32 s28, s42')
    E('s_and_b32 s29, s43, 0xffff')
    E('s_mov_b32 s30, 0x%x' % WS_SIZE)
    E('s_mov_b32 s31, 0x20000')
    D = 5
    ACC = 16
    FR = 40
    def loads(i):
        base = FR + (i % D) * 20
        E('s_add_u32 s5, s32, %d' % (i * 3072))
        for st in range(3):
            E('buffer_load_dwordx4 v[%d:%d], v11, s[28:31], s5 offen offset:%d' % (base + 4 * st, base + 4 * st + 3, st * 1024), tag='k%d' % i)
        E('s_add_u32 s6, s33, %d' % (i * 1024))
        E('s_add_u32 s7, s34, %d' % (i * 1024))
        E('buffer_load_dwordx4 v[%d:%d], v11, s[28:31], s6 offen' % (base + 12, base + 15), tag='k%d' % i)
        E('buffer_load_dwordx4 v[%d:%d], v11, s[28:31], s7 offen' % (base + 16, base + 19), tag='k%d' % i)
    for i in range(D):
        loads(i)
    for i in range(16):
        base = FR + (i % D) * 20
        e.wait(vm='k%d' % i)
        for nn in range(2):
            for st in range(3):
                a = ACC + (nn * 3 + st) * 4
                src = 'v[%d:%d]' % (a, a + 3) if i > 0 else '0'
                E('v_mfma_f32_16x16x32_bf16 v[%d:%d], v[%d:%d], v[%d:%d], %s' % (
                    a, a + 3, base + 12 + 4 * nn, base + 15 + 4 * nn, base + 4 * st, base + 4 * st + 3, src))
        if i + D < 16:
            loads(i + D)
    E('s_mul_i32 s4, s3, 6144')
    E('v_add_u32 v12, s4, v11')
    for tl in range(6):
        E('ds_write_b128 v12, v[%d:%d] offset:%d' % (ACC + 4 * tl, ACC + 4 * tl + 3, tl * 1024))
    e.wait(lds='all')
    E('s_barrier')
    E('s_cmp_ge_u32 s3, 6')
    E('s_cbranch_scc1 L_b_done')
    E('s_lshl_b32 s4, s3, 10')
    E('v_add_u32 v12, s4, v11')
    for wv in range(8):
        E('ds_read_b128 v[%d:%d], v12 offset:%d' % (FR + 4 * wv, FR + 4 * wv + 3, wv * 6144), tag='r%d' % wv)
    e.wait(lds='r1')
    for r in range(4):
        E('v_add_f32 v%d, v%d, v%d' % (16 + r, FR + r, FR + 4 + r))
    for wv in range(2, 8):
        e.wait(lds='r%d' % wv)
        for r in range(4):
            E('v_add_f32 v%d, v%d, v%d' % (16 + r, 16 + r, FR + 4 * wv + r))
    E('v_cvt_pk_bf16_f32 v20, v16, v17')
    E('v_cvt_pk_bf16_f32 v21, v18, v19')
    E('s_cmp_ge_u32 s3, 3')
    E('s_cselect_b32 s4, 1, 0')
    E('s_mul_i32 s5, s4, 3')
    E('s_sub_u32 s5, s3, s5')
    E('s_mul_i32 s6, s37, 49152')
    E('s_lshl_b32 s5, s5, 14')
    E('s_add_u32 s6, s6, s5')
    E('s_lshl_b32 s5, s38, 6')
    E('s_add_u32 s6, s6, s5')
    E('s_lshl_b32 s4, s4, 5')
    E('s_add_u32 s6, s6, s4')
    E('v_and_b32 v2, 15, v1')
    E('v_lshrrev_b32 v3, 4, v1')
    E('v_lshlrev_b32 v2, 10, v2')
    E('v_lshl_add_u32 v2, v3, 3, v2')
    E('buffer_store_dwordx2 v[20:21], v2, s[8:11], s6 offen')
    e.label('L_b_done')
    E('s_endpgm')
    return e


def kd(name, vgpr, accum, sgpr=72):
    return '''.p2align 6
.amdhsa_kernel %s
  .amdhsa_next_free_vgpr %d
  .amdhsa_next_free_sgpr %d
  .amdhsa_accum_offset %d
  .amdhsa_group_segment_fixed_size 0
  .amdhsa_kernarg_size 64
  .amdhsa_user_sgpr_count 2
  .amdhsa_user_sgpr_kernarg_segment_ptr 1
  .amdhsa_system_sgpr_workgroup_id_x 1
.end_amdhsa_kernel
''' % (name, vgpr, sgpr, accum)


def main():
    global DIAG
    global DIAG_ALL
    if len(sys.argv) > 2 and sys.argv[2].startswith('diag'):
        DIAG = True
        DIAG_ALL = sys.argv[2] == 'diag'
    for kv in sys.argv[3:]:
        k, v = kv.split('=', 1)
        globals()[k] = eval(v)
    ref = open('cdna_kernels/%s.s.ref' % NAME).read().splitlines()
    head = [l for l in ref if l.startswith(';') and '@launch' not in l and 'launch geometry' not in l and 'grid=ceil' not in l]
    a = kernel_a()
    b = kernel_b()
    out = '\n'.join(head) + '\n'
    out += '; @launch kernel=%s grid=(256,1,1) block=(256,1,1) lds=%d\n' % (KA, LDS_A)
    out += '; @launch kernel=%s grid=(256,1,1) block=(512,1,1) lds=49152\n' % KB
    out += '.amdgcn_target "amdgcn-amd-amdhsa--gfx950"\n.text\n'
    out += a.text() + b.text()
    out += '.section .rodata,"a"\n'
    out += kd(KA, 512, 256) + kd(KB, 144, 144)
    path = sys.argv[1] if len(sys.argv) > 1 else 'cdna_kernels/%s.s' % NAME
    open(path, 'w').write(out)
    print('nops inserted: A %d  B %d; lines %d' % (a.nops_inserted, b.nops_inserted, out.count('\n')))


if __name__ == '__main__':
    main()
```

```python
import struct, sys, math
from emit import Emitter, merge

NAME = 'standalone__gqa_block_cached__near_ridge'
KA = 'gqa_attn_kernel'
KB = 'gqa_oproj_kernel'

def f32bits(x):
    return struct.unpack('<I', struct.pack('<f', x))[0]

XB = 0
QB = 24576
PB = [0, 24576]
RING = 49152
RING_W = 12288
NSLOT = 3
VS = [98304, 131072, 98304, 131072]
STATS = 81920
LSTAT = 86016
WOST = 65536
LDS_A = 163840

WOT_OFF = 0x800000
WS_SIZE = 0x1000000


DIAG = False
DIAG_ALL = True
PRO0, PRO1, STEPN, SLOWCOST = 12, 8, 8, 6
KFIRST = 0
ROT = 0
CI, KI = 3, 0
NV_LATE = 40
NV_S = [[4, 4], [4, 4], [4, 4], [4, 4], [4, 4], [0, 0]]
def kernel_a():
    e = Emitter()
    E = e
    stampc = [0]
    def stamp(key=False):
        if not DIAG or not (DIAG_ALL or key):
            return
        i = stampc[0]; stampc[0] += 1
        E('s_memtime s[60:61]')
        E('s_waitcnt lgkmcnt(0)')
        E('s_lshl_b32 s58, s2, 2')
        E('s_add_u32 s58, s58, s3')
        E('s_lshl_b32 s58, s58, 8')
        E('s_add_u32 s58, s58, 0x%x' % (0xC00000 + i * 8))
        E('v_mov_b32 v63, 0')
        E('v_mov_b32 v0, s60')
        E('buffer_store_dword v0, v63, s[28:31], s58 offen', tag='stamp')
        E('v_mov_b32 v0, s61')
        E('buffer_store_dword v0, v63, s[28:31], s58 offen offset:4', tag='stamp')
    e.raw('.p2align 8')
    e.raw('.globl %s' % KA)
    e.raw('.type %s,@function' % KA)
    e.label(KA)
    E('s_cmp_ge_u32 s2, 256')
    E('s_cbranch_scc1 L_a_done')
    E('s_load_dwordx16 s[40:55], s[0:1], 0')
    E('v_and_b32 v1, 63, v0')
    E('v_lshrrev_b32 v2, 6, v0')
    E('s_nop 0')
    E('v_readfirstlane_b32 s3, v2')
    E('s_and_b32 s38, s2, 7')
    E('s_lshr_b32 s4, s2, 3')
    E('s_lshr_b32 s37, s4, 1')
    E('s_and_b32 s4, s4, 1')
    E('s_lshl_b32 s39, s38, 2')
    E('s_lshl_b32 s4, s4, 1')
    E('s_add_u32 s39, s39, s4')
    E('s_lshl_b32 s4, s37, 3')
    E('s_add_u32 s4, s4, s38')
    E('s_lshl_b32 s32, s4, 17')
    E('s_lshl_b32 s5, s3, 15')
    E('s_add_u32 s32, s32, s5')
    E('s_lshr_b32 s5, s2, 3')
    E('s_and_b32 s5, s5, 1')
    E('s_mul_i32 s5, s5, %d' % ROT)
    for kt in range(4):
        E('s_add_u32 s6, s5, %d' % kt)
        E('s_and_b32 s6, s6, 3')
        E('s_lshl_b32 s6, s6, 13')
        E('s_add_u32 s%d, s32, s6' % (64 + kt))
    E('s_mul_i32 s33, s37, 49152')
    E('s_mul_i32 s5, s3, 12288')
    E('s_add_u32 s33, s33, s5')
    E('s_lshl_b32 s34, s39, 8')
    E('s_lshl_b32 s5, s3, 7')
    E('s_add_u32 s34, s34, s5')
    E('s_mul_i32 s35, s3, %d' % RING_W)
    E('s_add_u32 s35, s35, %d' % RING)
    E('s_mov_b32 s36, 0x%08x' % f32bits(math.log2(math.e) / math.sqrt(128.0)))
    E('v_and_b32 v46, 15, v1')
    E('v_lshrrev_b32 v47, 4, v1')
    E('v_xor_b32 v2, v46, v47')
    E('v_lshlrev_b32 v2, 4, v2')
    E('v_lshl_add_u32 v2, v46, 10, v2')
    E('v_lshlrev_b32 v11, 4, v1')
    E('v_lshrrev_b32 v48, 3, v1')
    E('v_and_b32 v49, 7, v1')
    E('v_lshrrev_b32 v50, 1, v49')
    E('v_and_b32 v51, 1, v47')
    E('v_xor_b32 v50, v50, v51')
    E('v_and_b32 v52, 1, v49')
    E('v_lshlrev_b32 v52, 4, v52')
    E('v_lshl_add_u32 v53, v48, 13, v52')
    E('v_lshl_add_u32 v3, v50, 5, v53')
    E('v_xor_b32 v50, 2, v50')
    E('v_lshl_add_u32 v4, v50, 5, v53')
    E('v_add_u32 v4, 0x10000, v4')
    E('v_add_u32 v5, 0x20000, v3')
    E('v_add_u32 v6, 0x20000, v4')
    E('v_lshrrev_b32 v48, 2, v1')
    E('v_and_b32 v48, 3, v48')
    E('v_and_b32 v49, 3, v1')
    E('v_lshrrev_b32 v50, 1, v48')
    E('v_lshlrev_b32 v51, 1, v51')
    E('v_or_b32 v50, v50, v51')
    E('v_lshl_add_u32 v52, v47, 3, v48')
    E('v_lshlrev_b32 v52, 7, v52')
    E('v_lshl_add_u32 v52, v49, 3, v52')
    E('v_add_u32 v52, s35, v52')
    for t in range(4):
        E('v_xor_b32 v53, %d, v50' % t)
        E('v_lshl_add_u32 v%d, v53, 5, v52' % (7 + t))
    E('v_and_b32 v53, 31, v1')
    E('v_lshrrev_b32 v54, 5, v1')
    E('v_lshlrev_b32 v12, 4, v46')
    E('v_lshl_add_u32 v12, v47, 8, v12')
    E('v_lshlrev_b32 v55, 2, v47')
    E('v_xor_b32 v55, v55, v46')
    E('v_lshlrev_b32 v55, 4, v55')
    E('v_lshl_add_u32 v13, v47, 8, v55')
    E('v_lshl_add_u32 v55, v54, 2, v48')
    E('v_lshlrev_b32 v55, 8, v55')
    E('v_xor_b32 v56, s3, v48')
    E('v_lshl_add_u32 v55, v56, 6, v55')
    E('v_and_b32 v56, 1, v47')
    E('v_lshl_add_u32 v55, v56, 5, v55')
    E('v_lshl_add_u32 v14, v49, 3, v55')
    E('v_add_u32 v14, %d, v14' % VS[0])
    E('s_lshl_b32 s4, s3, 11')
    E('v_add_u32 v15, s4, v11')
    E('v_lshlrev_b32 v55, 4, v46')
    E('v_lshl_add_u32 v55, v54, 9, v55')
    E('v_lshl_add_u32 v55, v56, 3, v55')
    E('s_lshr_b32 s4, s3, 1')
    E('s_mul_i32 s4, s4, 3')
    E('s_and_b32 s5, s3, 1')
    E('s_lshl_b32 s5, s5, 12')
    E('s_add_u32 s5, s5, %d' % QB)
    for st in range(3):
        E('s_add_u32 s6, s4, %d' % st)
        E('s_lshr_b32 s7, s6, 1')
        E('s_lshl_b32 s7, s7, 13')
        E('s_and_b32 s6, s6, 1')
        E('s_lshl_b32 s6, s6, 8')
        E('s_add_u32 s6, s6, s7')
        E('s_add_u32 s6, s6, s5')
        E('v_add_u32 v%d, s6, v55' % (16 + st))
    E('v_lshlrev_b32 v20, 5, v53')
    E('v_lshl_add_u32 v19, v54, 2, v20')
    E('s_lshl_b32 s4, s3, 3')
    E('v_add_u32 v19, s4, v19')
    E('v_lshlrev_b32 v55, 4, v46')
    E('v_lshl_add_u32 v55, v54, 8, v55')
    for qt in range(3):
        E('v_add_u32 v57, %d, v56' % (2 * qt))
        E('v_cmp_le_u32 vcc, 3, v57')
        E('v_subrev_u32 v58, 3, v57')
        E('v_lshlrev_b32 v58, 10, v58')
        E('v_add_u32 v58, 12288, v58')
        E('v_lshlrev_b32 v57, 10, v57')
        E('v_cndmask_b32 v57, v57, v58, vcc')
        E('v_add_u32 v%d, v57, v55' % (27 + qt))
    E('s_waitcnt lgkmcnt(0)')
    def srd(d, lo, size):
        E('s_mov_b32 s%d, s%d' % (d, lo))
        E('s_and_b32 s%d, s%d, 0xffff' % (d + 1, lo + 1))
        E('s_mov_b32 s%d, 0x%x' % (d + 2, size))
        E('s_mov_b32 s%d, 0x20000' % (d + 3))
    srd(8, 40, 786432)
    srd(12, 42, 16777216)
    srd(16, 44, 16777216)
    srd(20, 46, 4194304)
    srd(24, 48, 4194304)
    srd(28, 54, WS_SIZE)

    stamp(True)
    for n in range(KFIRST):
        E('s_add_u32 s7, s%d, %d' % (64 + n // 8, (n % 8) * 1024))
        E('buffer_load_dwordx4 a[%d:%d], v12, s[12:15], s7 offen' % (n * 4, n * 4 + 3), tag='K%d' % (n // 8))
    E('s_mul_i32 s4, s3, 12288')
    for i in range(12):
        E('s_mul_i32 s5, s3, 12')
        E('s_add_u32 s5, s5, %d' % i)
        E('s_and_b32 s5, s5, 15')
        E('s_lshl_b32 s5, s5, 4')
        E('v_xor_b32 v%d, s5, v11' % (60 + (i & 1)))
        E('s_add_u32 s5, s4, %d' % (XB + i * 1024))
        E('s_mov_b32 m0, s5')
        E('s_add_u32 s6, s33, %d' % (i * 1024))
        E('buffer_load_dwordx4 v%d, s[8:11], s6 offen lds' % (60 + (i & 1)), tag='x')

    def wq_dma(c):
        out = []
        for m in range(4):
            def f(m=m):
                E('s_add_u32 s5, s35, %d' % ((c % NSLOT) * 4096 + m * 1024))
                E('s_mov_b32 m0, s5')
                E('s_add_u32 s6, s34, %d' % (c * 262144))
                E('buffer_load_dwordx4 v%d, s[20:23], s6 offen lds' % (3 + m), tag='wq%d' % c)
            out.append(f)
        return out

    def wq_reg(c):
        if c < 8:
            return 'v', 168 + (c - 3) * 16
        return 'a', 128 + (c - 8) * 16

    def wq_load(c):
        out = []
        fl, r = wq_reg(c)
        for m in range(4):
            def f(m=m):
                E('s_add_u32 s6, s34, %d' % (c * 262144))
                E('buffer_load_dwordx4 %s[%d:%d], v%d, s[20:23], s6 offen' % (fl, r + 4 * m, r + 4 * m + 3, 3 + m), tag='wq%d' % c)
            out.append(f)
        return out

    def wq_write(c):
        out = []
        fl, r = wq_reg(c)
        out.append(lambda: e.wait(vm='wq%d' % c))
        for m in range(4):
            out.append(lambda m=m: E('ds_write_b128 v59, %s[%d:%d] offset:%d' % (fl, r + 4 * m, r + 4 * m + 3, (c % NSLOT) * 4096 + m * 1024)))
        return out

    ACC = 64
    AF = [112, 128]
    BF = [144, 156]

    def p1_reads(c):
        out = []
        bu = c & 1
        sl = c % NSLOT
        out.append(lambda: E('v_xor_b32 v%d, %d, v2' % (60 + bu, c * 64)))
        for st in range(3):
            out.append(lambda st=st: E('ds_read_b128 v[%d:%d], v%d offset:%d' % (BF[bu] + 4 * st, BF[bu] + 4 * st + 3, 60 + bu, XB + st * 16384), tag='p1r%d' % c))
        for t in range(4):
            for hh in range(2):
                out.append(lambda t=t, hh=hh: E('ds_read_b64_tr_b16 v[%d:%d], v%d offset:%d' % (
                    AF[bu] + 4 * t + 2 * hh, AF[bu] + 4 * t + 2 * hh + 1, 7 + t, sl * 4096 + hh * 512), tag='p1r%d' % c))
        return out

    def kload(n):
        def f():
            E('s_add_u32 s7, s%d, %d' % (64 + n // 8, (n % 8) * 1024))
            E('buffer_load_dwordx4 a[%d:%d], v12, s[12:15], s7 offen' % (n * 4, n * 4 + 3), tag='K%d' % (n // 8))
        return f

    def v_chunk(t):
        out = []
        for mm in range(8):
            def f(mm=mm):
                E('s_lshl_b32 s5, s3, 13')
                E('s_add_u32 s5, s5, %d' % (VS[t] + mm * 1024))
                E('s_mov_b32 m0, s5')
                E('s_add_u32 s6, s%d, %d' % (64 + t, mm * 1024))
                E('buffer_load_dwordx4 v13, s[16:19], s6 offen lds', tag='V%d' % t)
            out.append(f)
        return out

    def v_regs(t):
        out = []
        for mm in range(8):
            def f(mm=mm):
                r = 192 + (t - 2) * 32 + mm * 4
                E('s_add_u32 s6, s%d, %d' % (64 + t, mm * 1024))
                E('buffer_load_dwordx4 v[%d:%d], v12, s[16:19], s6 offen' % (r, r + 3), tag='V%d' % t)
            out.append(f)
        return out
    E('v_add_u32 v59, s35, v11')
    seq = []
    slow = [kload(n) for n in range(KFIRST, 16)] + v_chunk(0) + v_chunk(1) + [kload(n) for n in range(16, 32)] + v_regs(2) + v_regs(3)
    for c in range(3):
        seq += wq_dma(c)
    for c in range(3, 16):
        seq += wq_load(c)
        if c >= CI:
            seq += slow[:KI]
            slow = slow[KI:]
    nfast = len(seq)
    seq += slow
    LEFT = {'K0': 56, 'K1': 48, 'V0': 40, 'V1': 32, 'K2': 24, 'K3': 16, 'V2': 8, 'V3': 0}
    def vwait(tag):
        nf = 0
        while len(seq) > LEFT[tag]:
            issue(SLOWCOST); nf += 1
        if nf:
            print('forced issue of %d loads for %s' % (nf, tag))
        e.wait(vm=tag)
    issued = [0]
    def issue(maxn=1000):
        n = 0
        while seq and len(e.vmq) < 62 and n < maxn:
            seq.pop(0)()
            n += 1 if issued[0] < nfast else SLOWCOST
            issued[0] += 1
    stamp()
    issue(PRO0)
    stamp()
    e.wait(vm='wq0')
    stamp()
    E('s_barrier')
    stamp()
    issue(PRO1)
    for f in p1_reads(0):
        f()
    for c in range(16):
        bu = c & 1
        e.wait(lds='p1r%d' % c)
        if c in (2, 4, 6, 8, 12):
            stamp()
        rd = []
        if c + 1 < 16:
            if c + 1 < 3:
                rd.append(lambda c=c: e.wait(vm='wq%d' % (c + 1)))
            rd += p1_reads(c + 1)
        rd2 = []
        if 3 <= c + 2 < 16:
            rd2 = wq_write(c + 2)
        rd2.append(lambda: issue(STEPN))
        mf = []
        for nt in range(4):
            for st in range(3):
                a = ACC + (nt * 3 + st) * 4
                src = 'v[%d:%d]' % (a, a + 3) if c > 0 else '0'
                mf.append(lambda a=a, nt=nt, st=st, src=src: E('v_mfma_f32_16x16x32_bf16 v[%d:%d], v[%d:%d], v[%d:%d], %s' % (
                    a, a + 3, AF[bu] + 4 * nt, AF[bu] + 4 * nt + 3, BF[bu] + 4 * st, BF[bu] + 4 * st + 3, src)))
        for f in merge(mf[:6], rd) + merge(mf[6:], rd2):
            f()
    for nt in range(4):
        for st in range(3):
            a = ACC + (nt * 3 + st) * 4
            E('v_cvt_pk_bf16_f32 v%d, v%d, v%d' % (a, a, a + 1))
            E('v_cvt_pk_bf16_f32 v%d, v%d, v%d' % (a + 1, a + 2, a + 3))
    stamp(True)
    E('s_barrier')
    for nt in range(4):
        for st in range(3):
            a = ACC + (nt * 3 + st) * 4
            E('ds_write_b64 v%d, v[%d:%d] offset:%d' % (16 + st, a, a + 1, nt * 1024))

    while len(seq) > NV_LATE:
        issue(SLOWCOST)
    e.wait(lds='all')
    E('s_barrier')
    QF = 128
    for qt in range(3):
        for ks in range(8):
            r = QF + (qt * 8 + ks) * 4
            E('ds_read_b128 a[%d:%d], v11 offset:%d' % (r, r + 3, QB + (qt * 8 + ks) * 1024), tag='Q')
    E('s_lshl_b32 s4, s3, 13')
    E('s_add_u32 s4, s4, 0xC000')
    E('v_and_b32 v46, 15, v1')
    E('v_lshrrev_b32 v47, 4, v1')
    E('v_xor_b32 v48, v46, v47')
    for jj in range(4):
        E('v_xor_b32 v49, %d, v48' % (4 * jj))
        E('v_lshlrev_b32 v49, 4, v49')
        E('v_lshl_add_u32 v49, v47, 8, v49')
        E('v_add_u32 v%d, s4, v49' % (6 + jj))
    E('v_and_b32 v46, 31, v1')
    E('v_lshrrev_b32 v47, 5, v1')
    E('v_and_b32 v48, 15, v1')
    E('v_xor_b32 v48, v48, v47')
    E('v_lshlrev_b32 v48, 4, v48')
    E('v_lshl_add_u32 v48, v46, 8, v48')
    E('v_add_u32 v54, s4, v48')
    E('v_add_u32 v60, 0x%x, v19' % STATS)
    E('v_add_u32 v61, 0x%x, v20' % STATS)
    def ktr(kt):
        out = [lambda: vwait('K%d' % kt)]
        for m in range(8):
            r = (kt * 8 + m) * 4
            out.append(lambda m=m, r=r: E('ds_write_b128 v%d, a[%d:%d] offset:%d' % (6 + (m & 3), r, r + 3, m * 1024)))
        for ks in range(8):
            r = (kt * 8 + ks) * 4
            def f(ks=ks, r=r):
                E('v_xor_b32 v%d, %d, v54' % (55 + (ks & 1), ks * 32))
                E('ds_read_b128 a[%d:%d], v%d' % (r, r + 3, 55 + (ks & 1)), tag='kt%d' % kt)
            out.append(f)
        return out
    SB = [64, 128]
    MX = 62
    def sreg(u, kt):
        return SB[u & 1] + (kt & 1) * 16
    def max_ops(u, kt):
        out = []
        for i in range(8):
            s_ = sreg(u, kt) + 2 * i
            if (kt & 1) == 0 and i == 0:
                out.append(lambda s_=s_: E('v_max_f32 v%d, v%d, v%d' % (MX, s_, s_ + 1)))
            else:
                out.append(lambda s_=s_: E('v_max3_f32 v%d, v%d, v%d, v%d' % (MX, s_, s_ + 1, MX)))
        return out
    def s_mf(u, kt):
        q = u % 3
        mf = []
        for ks in range(8):
            s_ = sreg(u, kt)
            src = 'v[%d:%d]' % (s_, s_ + 15) if ks > 0 else '0'
            kr = (kt * 8 + ks) * 4
            qr = QF + (q * 8 + ks) * 4
            mf.append(lambda s_=s_, kr=kr, qr=qr, src=src: E('v_mfma_f32_32x32x16_bf16 v[%d:%d], a[%d:%d], a[%d:%d], %s' % (
                s_, s_ + 15, kr, kr + 3, qr, qr + 3, src)))
        return mf
    PK = [30, 34, 38, 42]
    pkc = [0]
    OA = [0, 64]
    PSL = {(0, 0): 0, (0, 1): 8192, (1, 0): 16384, (1, 1): 24576, (2, 0): 32768, (2, 1): 40960,
           (0, 2): 49152, (0, 3): 57344, (1, 2): 0, (1, 3): 16384, (2, 2): 32768, (2, 3): 8192}
    def exp_ops(u, kt):
        q = u % 3
        out = []
        s0 = sreg(u, kt)
        for hf in range(2):
            pk = PK[pkc[0] % 4]; pkc[0] += 1
            regs = [s0 + 8 * hf + i for i in range(8)]
            for r in regs:
                out.append(lambda r=r: E('v_fma_f32 v%d, v%d, s36, -v%d' % (r, r, 21 + q)))
            for r in regs:
                out.append(lambda r=r: E('v_exp_f32 v%d, v%d' % (r, r)))
            for k, r in enumerate(regs):
                if kt == 0 and hf == 0 and k == 0:
                    out.append(lambda r=r: E('v_add_f32 v%d, v%d, v%d' % (24 + q, r, r + 1)))
                elif kt == 0 and hf == 0 and k == 1:
                    pass
                else:
                    out.append(lambda r=r: E('v_add_f32 v%d, v%d, v%d' % (24 + q, r, 24 + q)))
                if k & 1:
                    out.append(lambda r=r, pk=pk, k=k: E('v_cvt_pk_bf16_f32 v%d, v%d, v%d' % (pk + k // 2, r - 1, r)))
            off = PSL[(q, kt)] + hf * 1024
            out.append(lambda pk=pk, off=off: E('ds_write_b128 v15, v[%d:%d] offset:%d' % (pk, pk + 3, off)))
        return out
    def exchange(u):
        h, q = u // 3, u % 3
        E('ds_write_b32 v60, v%d offset:%d' % (MX, q * 1024))
        e.wait(lds='all')
        stamp()
        E('s_barrier')
        E('ds_read_b128 v[46:49], v61 offset:%d' % (q * 1024), tag='st')
        E('ds_read_b128 v[50:53], v61 offset:%d' % (q * 1024 + 16), tag='st')
        e.wait(lds='st')
        E('v_max3_f32 v46, v46, v47, v48')
        E('v_max3_f32 v50, v50, v51, v52')
        E('v_max3_f32 v46, v46, v49, v53')
        E('v_max_f32 v46, v46, v50')
        if h == 0:
            E('v_mul_f32 v%d, s36, v46' % (21 + q))
        else:
            E('v_mul_f32 v46, s36, v46')
            E('v_max_f32 v46, v46, v%d' % (21 + q))
            E('v_sub_f32 v47, v%d, v46' % (21 + q))
            E('v_exp_f32 v%d, v47' % (57 + q))
            E('v_mov_b32 v%d, v46' % (21 + q))
            E('v_mul_f32 v%d, v%d, v%d' % (24 + q, 24 + q, 57 + q))

    VA = [96, 100]
    PF = [104, 116]
    pvc = [0]
    def pv_ops(t, qs, first):
        pvc[0] += 1
        key = 'pv%d_' % pvc[0]
        vb = 14 if (t & 1) == 0 else 10
        def reads(n):
            u, hf = n // 2, n % 2
            bu = n & 1
            out = []
            for ee in range(2):
                out.append(lambda ee=ee: E('ds_read_b64_tr_b16 v[%d:%d], v%d offset:%d' % (
                    VA[bu] + 2 * ee, VA[bu] + 2 * ee + 1, vb, (32 * u + 16 * hf + 8 * ee) * 256), tag=key + str(n)))
            for qt in qs:
                off = PSL[(qt, t)] + u * 2048 + hf * 1024
                out.append(lambda qt=qt, off=off: E('ds_read_b128 v[%d:%d], v11 offset:%d' % (
                    PF[bu] + 4 * qt, PF[bu] + 4 * qt + 3, off), tag=key + str(n)))
            return out
        out = []
        out += reads(0)
        for n in range(8):
            bu = n & 1
            if n + 1 < 8:
                out += reads(n + 1)
            out.append(lambda n=n: e.wait(lds=key + str(n)))
            for qt in qs:
                o = OA[t >> 1] + 16 * qt
                src = '0' if (first and n == 0) else 'a[%d:%d]' % (o, o + 15)
                out.append(lambda o=o, bu=bu, qt=qt, src=src: E('v_mfma_f32_32x32x16_bf16 a[%d:%d], v[%d:%d], v[%d:%d], %s' % (
                    o, o + 15, VA[bu], VA[bu] + 3, PF[bu] + 4 * qt, PF[bu] + 4 * qt + 3, src)))
        return out

    WOR = 240
    def wo_loads():
        out = []
        def pre():
            E('s_lshr_b32 s4, s2, 2')
            E('s_lshl_b32 s4, s4, 16')
            E('s_and_b32 s5, s2, 3')
            E('s_lshl_b32 s5, s5, 8')
            E('s_add_u32 s4, s4, s5')
            E('s_lshl_b32 s5, s3, 14')
            E('s_add_u32 s56, s4, s5')
            E('v_lshrrev_b32 v3, 4, v1')
            E('v_and_b32 v4, 15, v1')
            E('v_lshlrev_b32 v3, 10, v3')
            E('v_lshl_add_u32 v3, v4, 4, v3')
        out.append(pre)
        for m in range(4):
            def f(m=m):
                E('s_add_u32 s6, s56, %d' % (m * 4096))
                E('buffer_load_dwordx4 a[%d:%d], v3, s[24:27], s6 offen' % (WOR + 4 * m, WOR + 4 * m + 3), tag='WO')
            out.append(f)
        return out
    def v_store(t):
        out = [lambda: vwait('V%d' % t)]
        def pre():
            E('s_lshl_b32 s4, s3, 13')
            E('s_add_u32 s4, s4, %d' % VS[t])
            E('v_add_u32 v55, s4, v13')
        out.append(pre)
        for mm in range(8):
            r = 192 + (t - 2) * 32 + mm * 4
            out.append(lambda r=r, mm=mm: E('ds_write_b128 v55, v[%d:%d] offset:%d' % (r, r + 3, mm * 1024)))
        return out
    def iss(n):
        return [lambda: issue(SLOWCOST)] * n

    E('v_add_u32 v10, 0x%x, v14' % (VS[1] - VS[0]))
    for f in ktr(0):
        f()
    e.wait(lds='kt0')
    stamp()
    for u in range(6):
        h, q = u // 3, u % 3
        t0, t1 = 2 * h, 2 * h + 1
        pv = []
        if u == 4:
            pv = pv_ops(0, (0, 1, 2), True)
        if u == 5:
            pv = pv_ops(1, (0, 1, 2), False)
        hp = len(pv) // 2
        for kt in (t0, t1):
            side = []
            if u > 0:
                pu = u - 1
                side = exp_ops(pu, 2 * (pu // 3) + (kt & 1))
            if q == 0 and kt == t0:
                side = merge(side, ktr(t1))
            if u == 2 and kt == t1:
                side = merge(side, ktr(2))
            if u == 5 and kt == t1:
                side = merge(side, v_store(2))
            if u == 4 and kt == t1:
                side = merge(side, wo_loads())
            side = merge(side, iss(NV_S[u][kt & 1]))
            if kt == t1:
                hh = len(side) // 2
                side = side[:hh] + merge(side[hh:], max_ops(u, t0))
            mf = s_mf(u, kt)
            if pv:
                mf = merge(mf, pv[:hp] if kt == t0 else pv[hp:])
            for f in merge(mf, side):
                f()
            if q == 0 and kt == t0:
                e.wait(lds='kt%d' % t1)
        for f in max_ops(u, t1):
            f()
        exchange(u)
        if u == 2:
            stamp(True)
    tail = exp_ops(5, 2) + exp_ops(5, 3)
    tail = merge(tail, v_store(3))
    for qt in range(3):
        tail.append(lambda qt=qt: E('ds_write_b32 v60, v%d offset:%d' % (24 + qt, LSTAT - STATS + qt * 1024)))
    def stg():
        e.wait(vm='WO')
        E('s_lshl_b32 s4, s3, 12')
        E('s_add_u32 s4, s4, %d' % WOST)
        E('v_add_u32 v56, s4, v13')
        for m in range(4):
            E('ds_write_b128 v56, a[%d:%d] offset:%d' % (WOR + 4 * m, WOR + 4 * m + 3, m * 1024))
    tail.append(stg)
    for f in merge(pv_ops(2, (0, 1), True), tail):
        f()
    e.wait(lds='all')
    stamp()
    E('s_barrier')
    stamp(True)
    b = []
    TB = [64, 80, 128]
    for qt in range(3):
        def ls(qt=qt):
            E('ds_read_b128 v[46:49], v61 offset:%d' % (LSTAT - STATS + qt * 1024), tag='ls%d' % qt)
            E('ds_read_b128 v[50:53], v61 offset:%d' % (LSTAT - STATS + qt * 1024 + 16), tag='ls%d' % qt)
            e.wait(lds='ls%d' % qt)
            E('v_add_f32 v46, v46, v47')
            E('v_add_f32 v48, v48, v49')
            E('v_add_f32 v50, v50, v51')
            E('v_add_f32 v52, v52, v53')
            E('v_add_f32 v46, v46, v48')
            E('v_add_f32 v50, v50, v52')
            E('v_add_f32 v46, v46, v50')
            E('v_rcp_f32 v%d, v46' % (24 + qt))
            E('v_mul_f32 v%d, v%d, v%d' % (57 + qt, 57 + qt, 24 + qt))
        b.append(ls)
        for r in range(16):
            def f(qt=qt, r=r):
                E('v_accvgpr_read_b32 v%d, a%d' % (TB[qt] + r, OA[0] + 16 * qt + r))
                E('v_mul_f32 v%d, v%d, v%d' % (TB[qt] + r, TB[qt] + r, 57 + qt))
            b.append(f)
    def wt_addr():
        E('v_lshrrev_b32 v46, 4, v1')
        E('v_lshrrev_b32 v47, 2, v1')
        E('v_and_b32 v47, 3, v47')
        E('v_and_b32 v48, 3, v1')
        E('v_lshl_add_u32 v49, v46, 3, v47')
        E('v_lshlrev_b32 v49, 8, v49')
        E('v_xor_b32 v50, s3, v47')
        E('v_lshl_add_u32 v49, v50, 6, v49')
        E('v_lshl_add_u32 v49, v48, 3, v49')
        E('v_add_u32 v49, 0x%x, v49' % WOST)
        for kk in range(2):
            for nn in range(2):
                for hh in range(2):
                    r = 30 + (kk * 2 + nn) * 4 + 2 * hh
                    E('ds_read_b64_tr_b16 v[%d:%d], v49 offset:%d' % (r, r + 1, (32 * kk + 4 * hh) * 256 + nn * 32), tag='wt')
    b.append(wt_addr)
    a = pv_ops(2, (2,), True) + pv_ops(3, (0, 1, 2), False)
    for f in merge(a, b):
        f()
    stamp()
    E('s_mul_i32 s4, s37, 393216')
    E('s_lshl_b32 s5, s39, 2')
    E('s_add_u32 s5, s5, s3')
    E('s_mul_i32 s5, s5, 3072')
    E('s_add_u32 s57, s4, s5')
    for qt in range(3):
        T = TB[qt]
        U = 96 + (qt & 1) * 16
        for r in range(16):
            E('v_accvgpr_read_b32 v%d, a%d' % (U + r, OA[1] + 16 * qt + r))
        for r in range(16):
            E('v_fma_f32 v%d, v%d, v%d, v%d' % (T + r, U + r, 24 + qt, T + r))
        for k in range(8):
            E('v_cvt_pk_bf16_f32 v%d, v%d, v%d' % (T + k, T + 2 * k, T + 2 * k + 1))
        for k in (0, 2):
            E('v_permlane32_swap_b32 v%d, v%d' % (T + 2 * k, T + 2 * k + 2))
            E('v_permlane32_swap_b32 v%d, v%d' % (T + 2 * k + 1, T + 2 * k + 3))
            E('buffer_store_dwordx4 v[%d:%d], v%d, s[28:31], s57 offen offset:%d' % (T + 2 * k, T + 2 * k + 3, 27 + qt, k * 256))
    E('s_and_b32 s4, s2, 3')
    E('s_lshl_b32 s4, s4, 3')
    E('s_lshl_b32 s5, s3, 1')
    E('s_add_u32 s4, s4, s5')
    E('s_lshl_b32 s4, s4, 17')
    E('s_lshr_b32 s5, s2, 2')
    E('s_lshl_b32 s5, s5, 11')
    E('s_add_u32 s4, s4, s5')
    E('s_add_u32 s4, s4, 0x%x' % WOT_OFF)
    E('s_add_u32 s5, s4, 0x20000')
    e.wait(lds='wt')
    for kk in range(2):
        for nn in range(2):
            r = 30 + (kk * 2 + nn) * 4
            E('buffer_store_dwordx4 v[%d:%d], v11, s[28:31], s%d offen offset:%d' % (r, r + 3, 4 + nn, kk * 1024))
    stamp(True)
    e.label('L_a_done')
    E('s_endpgm')
    return e


def kernel_b():
    e = Emitter()
    E = e
    e.raw('.p2align 8')
    e.raw('.globl %s' % KB)
    e.raw('.type %s,@function' % KB)
    e.label(KB)
    E('s_cmp_ge_u32 s2, 256')
    E('s_cbranch_scc1 L_b_done')
    E('s_load_dwordx2 s[40:41], s[0:1], 40')
    E('s_load_dwordx2 s[42:43], s[0:1], 56')
    E('v_and_b32 v1, 63, v0')
    E('v_lshrrev_b32 v2, 6, v0')
    E('s_nop 0')
    E('v_readfirstlane_b32 s3, v2')
    E('s_and_b32 s4, s2, 7')
    E('s_lshr_b32 s5, s2, 3')
    E('s_lshr_b32 s6, s4, 1')
    E('s_lshl_b32 s6, s6, 2')
    E('s_lshr_b32 s7, s5, 3')
    E('s_add_u32 s37, s6, s7')
    E('s_and_b32 s6, s4, 1')
    E('s_lshl_b32 s6, s6, 3')
    E('s_and_b32 s7, s5, 7')
    E('s_add_u32 s38, s6, s7')
    E('v_lshlrev_b32 v11, 4, v1')
    E('s_mul_i32 s32, s37, 393216')
    E('s_mul_i32 s4, s3, 49152')
    E('s_add_u32 s32, s32, s4')
    E('s_lshl_b32 s33, s38, 18')
    E('s_lshl_b32 s4, s3, 14')
    E('s_add_u32 s33, s33, s4')
    E('s_add_u32 s33, s33, 0x%x' % WOT_OFF)
    E('s_add_u32 s34, s33, 0x20000')
    E('s_waitcnt lgkmcnt(0)')
    E('s_mov_b32 s8, s40')
    E('s_and_b32 s9, s41, 0xffff')
    E('s_mov_b32 s10, 786432')
    E('s_mov_b32 s11, 0x20000')
    E('s_mov_b32 s28, s42')
    E('s_and_b32 s29, s43, 0xffff')
    E('s_mov_b32 s30, 0x%x' % WS_SIZE)
    E('s_mov_b32 s31, 0x20000')
    D = 5
    ACC = 16
    FR = 40
    def loads(i):
        base = FR + (i % D) * 20
        E('s_add_u32 s5, s32, %d' % (i * 3072))
        for st in range(3):
            E('buffer_load_dwordx4 v[%d:%d], v11, s[28:31], s5 offen offset:%d' % (base + 4 * st, base + 4 * st + 3, st * 1024), tag='k%d' % i)
        E('s_add_u32 s6, s33, %d' % (i * 1024))
        E('s_add_u32 s7, s34, %d' % (i * 1024))
        E('buffer_load_dwordx4 v[%d:%d], v11, s[28:31], s6 offen' % (base + 12, base + 15), tag='k%d' % i)
        E('buffer_load_dwordx4 v[%d:%d], v11, s[28:31], s7 offen' % (base + 16, base + 19), tag='k%d' % i)
    for i in range(D):
        loads(i)
    for i in range(16):
        base = FR + (i % D) * 20
        e.wait(vm='k%d' % i)
        for nn in range(2):
            for st in range(3):
                a = ACC + (nn * 3 + st) * 4
                src = 'v[%d:%d]' % (a, a + 3) if i > 0 else '0'
                E('v_mfma_f32_16x16x32_bf16 v[%d:%d], v[%d:%d], v[%d:%d], %s' % (
                    a, a + 3, base + 12 + 4 * nn, base + 15 + 4 * nn, base + 4 * st, base + 4 * st + 3, src))
        if i + D < 16:
            loads(i + D)
    E('s_mul_i32 s4, s3, 6144')
    E('v_add_u32 v12, s4, v11')
    for tl in range(6):
        E('ds_write_b128 v12, v[%d:%d] offset:%d' % (ACC + 4 * tl, ACC + 4 * tl + 3, tl * 1024))
    e.wait(lds='all')
    E('s_barrier')
    E('s_cmp_ge_u32 s3, 6')
    E('s_cbranch_scc1 L_b_done')
    E('s_lshl_b32 s4, s3, 10')
    E('v_add_u32 v12, s4, v11')
    for wv in range(8):
        E('ds_read_b128 v[%d:%d], v12 offset:%d' % (FR + 4 * wv, FR + 4 * wv + 3, wv * 6144), tag='r%d' % wv)
    e.wait(lds='r1')
    for r in range(4):
        E('v_add_f32 v%d, v%d, v%d' % (16 + r, FR + r, FR + 4 + r))
    for wv in range(2, 8):
        e.wait(lds='r%d' % wv)
        for r in range(4):
            E('v_add_f32 v%d, v%d, v%d' % (16 + r, 16 + r, FR + 4 * wv + r))
    E('v_cvt_pk_bf16_f32 v20, v16, v17')
    E('v_cvt_pk_bf16_f32 v21, v18, v19')
    E('s_cmp_ge_u32 s3, 3')
    E('s_cselect_b32 s4, 1, 0')
    E('s_mul_i32 s5, s4, 3')
    E('s_sub_u32 s5, s3, s5')
    E('s_mul_i32 s6, s37, 49152')
    E('s_lshl_b32 s5, s5, 14')
    E('s_add_u32 s6, s6, s5')
    E('s_lshl_b32 s5, s38, 6')
    E('s_add_u32 s6, s6, s5')
    E('s_lshl_b32 s4, s4, 5')
    E('s_add_u32 s6, s6, s4')
    E('v_and_b32 v2, 15, v1')
    E('v_lshrrev_b32 v3, 4, v1')
    E('v_lshlrev_b32 v2, 10, v2')
    E('v_lshl_add_u32 v2, v3, 3, v2')
    E('buffer_store_dwordx2 v[20:21], v2, s[8:11], s6 offen')
    e.label('L_b_done')
    E('s_endpgm')
    return e


def kd(name, vgpr, accum, sgpr=72):
    return '''.p2align 6
.amdhsa_kernel %s
  .amdhsa_next_free_vgpr %d
  .amdhsa_next_free_sgpr %d
  .amdhsa_accum_offset %d
  .amdhsa_group_segment_fixed_size 0
  .amdhsa_kernarg_size 64
  .amdhsa_user_sgpr_count 2
  .amdhsa_user_sgpr_kernarg_segment_ptr 1
  .amdhsa_system_sgpr_workgroup_id_x 1
.end_amdhsa_kernel
''' % (name, vgpr, sgpr, accum)


def main():
    global DIAG
    global DIAG_ALL
    if len(sys.argv) > 2 and sys.argv[2].startswith('diag'):
        DIAG = True
        DIAG_ALL = sys.argv[2] == 'diag'
    for kv in sys.argv[3:]:
        k, v = kv.split('=', 1)
        globals()[k] = eval(v)
    ref = open('cdna_kernels/%s.s.ref' % NAME).read().splitlines()
    head = [l for l in ref if l.startswith(';') and '@launch' not in l and 'launch geometry' not in l and 'grid=ceil' not in l]
    a = kernel_a()
    b = kernel_b()
    out = '\n'.join(head) + '\n'
    out += '; @launch kernel=%s grid=(256,1,1) block=(256,1,1) lds=%d\n' % (KA, LDS_A)
    out += '; @launch kernel=%s grid=(256,1,1) block=(512,1,1) lds=49152\n' % KB
    out += '.amdgcn_target "amdgcn-amd-amdhsa--gfx950"\n.text\n'
    out += a.text() + b.text()
    out += '.section .rodata,"a"\n'
    out += kd(KA, 512, 256) + kd(KB, 144, 144)
    path = sys.argv[1] if len(sys.argv) > 1 else 'cdna_kernels/%s.s' % NAME
    open(path, 'w').write(out)
    print('nops inserted: A %d  B %d; lines %d' % (a.nops_inserted, b.nops_inserted, out.count('\n')))


if __name__ == '__main__':
    main()
```

```python
import re

REG_RE = re.compile(r'^-?\|?([vas])(?:(\d+)|\[(\d+):(\d+)\])\|?$')
TRANS = ('v_exp_f32', 'v_log_f32', 'v_rcp_f32', 'v_rsq_f32', 'v_sqrt_f32', 'v_sin_f32', 'v_cos_f32')


def regs_of(tok):
    tok = tok.strip()
    if tok in ('vcc',):
        return [('s', 106), ('s', 107)]
    if tok == 'm0':
        return [('s', 124)]
    if tok == 'exec':
        return [('s', 126), ('s', 127)]
    m = REG_RE.match(tok)
    if not m:
        return []
    f = m.group(1)
    if m.group(2) is not None:
        return [(f, int(m.group(2)))]
    return [(f, i) for i in range(int(m.group(3)), int(m.group(4)) + 1)]


def split_ops(s):
    ops, cur, depth = [], '', 0
    for ch in s:
        if ch == '[':
            depth += 1
        if ch == ']':
            depth -= 1
        if ch == ',' and depth == 0:
            ops.append(cur.strip())
            cur = ''
        else:
            cur += ch
    if cur.strip():
        ops.append(cur.strip())
    return ops


class Ins:
    __slots__ = ('text', 'mn', 'kind', 'reads', 'writes', 'srcc', 'passes', 'slot', 'tag')


class Emitter:
    def __init__(self):
        self.lines = []
        self.hist = []
        self.slot = 0
        self.vmq = []
        self.ldsq = []
        self.nops_inserted = 0
        self.tagc = 0
        self.probing = None

    def cost_of(self, ins):
        k = ins.kind
        if k == 'mfma':
            return 8
        if k == 'trans':
            return 8
        if k in ('valu', 'permlane'):
            return 5 if 'cvt_pk' in ins.mn else 4
        if k == 'dsr':
            return 4
        if k == 'dsw':
            return 13 if 'b128' in ins.mn else (6 if 'b64' in ins.mn else 4)
        if k in ('vml', 'vms'):
            return 20
        if k == 'salu':
            return 2
        return 1

    def probe(self, fn):
        if hasattr(fn, 'cost'):
            return fn.cost
        self.probing = [0]
        fn()
        c = self.probing[0]
        self.probing = None
        return c

    def parse(self, text):
        ins = Ins()
        ins.text = text
        parts = text.split(None, 1)
        mn = parts[0]
        ins.mn = mn
        rest = parts[1] if len(parts) > 1 else ''
        ops = split_ops(rest)
        clean = []
        mods = []
        for o in ops:
            w = o.split()
            clean.append(w[0])
            mods += w[1:]
        ins.srcc = []
        ins.passes = 0
        R, W = [], []
        if mn.startswith('v_mfma'):
            ins.kind = 'mfma'
            ins.passes = 8 if '32x32' in mn else 4
            W = regs_of(clean[0])
            R = regs_of(clean[1]) + regs_of(clean[2])
            ins.srcc = regs_of(clean[3])
        elif mn.startswith('v_'):
            ins.kind = 'trans' if mn.split('_e')[0] in TRANS or mn in TRANS else 'valu'
            if mn.startswith('v_permlane32_swap') or mn.startswith('v_permlane16_swap'):
                ins.kind = 'permlane'
                W = regs_of(clean[0]) + regs_of(clean[1])
                R = list(W)
            else:
                W = regs_of(clean[0])
                for c in clean[1:]:
                    R += regs_of(c)
                if mn.startswith('v_cndmask') and len(clean) == 3:
                    R += regs_of('vcc')
                if mn.startswith('v_add_co') or mn.startswith('v_addc_co'):
                    W += regs_of(clean[1])
                if mn.startswith('v_fmac'):
                    R += regs_of(clean[0])
        elif mn.startswith('ds_read'):
            ins.kind = 'dsr'
            W = regs_of(clean[0])
            R = regs_of(clean[1])
        elif mn.startswith('ds_write'):
            ins.kind = 'dsw'
            for c in clean:
                R += regs_of(c)
        elif mn.startswith('buffer_load'):
            ins.kind = 'vml'
            if 'lds' in mods:
                for c in clean:
                    R += regs_of(c)
                R += regs_of('m0')
            else:
                W = regs_of(clean[0])
                for c in clean[1:]:
                    R += regs_of(c)
        elif mn.startswith('buffer_store') or mn.startswith('buffer_atomic'):
            ins.kind = 'vms'
            for c in clean:
                R += regs_of(c)
        elif mn.startswith('s_load'):
            ins.kind = 'smem'
            W = regs_of(clean[0])
            R = regs_of(clean[1])
        elif mn in ('s_nop', 's_waitcnt', 's_barrier', 's_endpgm', 's_setprio', 's_branch', 's_sleep') or mn.startswith('s_cbranch'):
            ins.kind = 'ctl'
        elif mn.startswith('s_cmp'):
            ins.kind = 'salu'
            for c in clean:
                R += regs_of(c)
        elif mn.startswith('s_'):
            ins.kind = 'salu'
            W = regs_of(clean[0])
            for c in clean[1:]:
                R += regs_of(c)
        else:
            raise ValueError('unknown instr ' + text)
        ins.reads, ins.writes = R, W
        return ins

    def need(self, ins):
        req = 0
        rd = set(ins.reads)
        rdc = set(ins.srcc)
        wr = set(ins.writes)
        for p in reversed(self.hist[-40:]):
            dist = self.slot - p.slot - 1
            pw = set(p.writes)
            n = 0
            isvalu_p = p.kind in ('valu', 'trans', 'permlane')
            isvalu_i = ins.kind in ('valu', 'trans', 'permlane')
            if isvalu_p:
                pv = {r for r in pw if r[0] in 'va'}
                ps = {r for r in pw if r[0] == 's'}
                if ins.kind == 'mfma' and pv & (rd | rdc):
                    n = max(n, 2)
                if ins.kind == 'permlane' and pv & rd:
                    n = max(n, 2)
                if p.kind == 'trans' and isvalu_i and ins.kind != 'trans' and pv & (rd | wr):
                    n = max(n, 1)
                if ins.mn.startswith('v_readfirstlane') or ins.mn.startswith('v_readlane'):
                    if pv & rd:
                        n = max(n, 1)
                if ps:
                    if ins.kind in ('vml', 'vms') and ps & rd:
                        n = max(n, 5)
                    if isvalu_i and ps & rd:
                        n = max(n, 2)
                    if ins.kind == 'salu' and ps & rd:
                        n = max(n, 2)
            if p.kind == 'mfma':
                big = 12 if p.passes == 8 else 8
                if ins.kind == 'mfma':
                    if pw & rd:
                        n = max(n, big)
                    if pw & rdc:
                        if pw == rdc and p.passes == ins.passes:
                            pass
                        else:
                            n = max(n, 10 if p.passes == 8 else 6)
                    if pw & wr and not (pw == wr and pw == rdc):
                        n = max(n, big)
                elif ins.kind != 'ctl' and ins.kind != 'salu':
                    if pw & (rd | wr):
                        n = max(n, big)
                    if isvalu_i and set(p.srcc) & wr:
                        n = max(n, 7 if p.passes == 8 else 3)
            if p.kind == 'salu' and ('s', 124) in pw and ins.kind == 'vml' and ('s', 124) in rd:
                n = max(n, 1)
            if p.kind == 'vms' and ('x4' in p.mn or 'x3' in p.mn):
                if set(p.reads) & wr:
                    n = max(n, 2)
            if n > dist:
                req = max(req, n - dist)
        return req

    def raw(self, line):
        self.lines.append(line)

    def label(self, name):
        self.lines.append(name + ':')
        self.hist = []

    def __call__(self, text, tag=None):
        ins = self.parse(text)
        if self.probing is not None:
            self.probing[0] += self.cost_of(ins)
            return None
        k = self.need(ins)
        while k > 0:
            n = min(k, 16)
            self.lines.append('  s_nop %d' % (n - 1))
            self.slot += n
            self.nops_inserted += n
            k -= n
        ins.slot = self.slot
        if ins.mn == 's_nop':
            self.slot += int(text.split()[1]) + 1
        else:
            self.slot += 1
        self.hist.append(ins)
        self.lines.append('  ' + text)
        if ins.kind in ('vml', 'vms'):
            if tag is None:
                self.tagc += 1
                tag = 'v%d' % self.tagc
            self.vmq.append(tag)
            assert len(self.vmq) <= 63, 'too many vmem outstanding'
        elif ins.kind in ('dsr', 'dsw'):
            if tag is None:
                self.tagc += 1
                tag = 'l%d' % self.tagc
            self.ldsq.append(tag)
        return tag

    def wait(self, vm=None, lds=None):
        if self.probing is not None:
            return
        parts = []
        if vm is not None:
            if vm == 'all':
                n = 0
                idx = len(self.vmq) - 1
            else:
                tags = vm if isinstance(vm, (list, tuple, set)) else [vm]
                idx = max([i for i, t in enumerate(self.vmq) if t in tags], default=-1)
                n = len(self.vmq) - 1 - idx
            if idx >= 0:
                parts.append('vmcnt(%d)' % n)
                self.vmq = self.vmq[idx + 1:]
        if lds is not None:
            if lds == 'all':
                idx = len(self.ldsq) - 1
                n = 0
            else:
                tags = lds if isinstance(lds, (list, tuple, set)) else [lds]
                idx = max([i for i, t in enumerate(self.ldsq) if t in tags], default=-1)
                n = len(self.ldsq) - 1 - idx
            if idx >= 0:
                if n > 15:
                    n = 15
                    idx = len(self.ldsq) - 1 - 15
                parts.append('lgkmcnt(%d)' % n)
                self.ldsq = self.ldsq[idx + 1:]
        if parts:
            self('s_waitcnt ' + ' '.join(parts))

    def text(self):
        return '\n'.join(self.lines) + '\n'


def merge(a, b):
    out = []
    ia = ib = 0
    na, nb = len(a), len(b)
    while ia < na or ib < nb:
        if ib >= nb or (ia < na and ia * nb <= ib * na):
            out.append(a[ia]); ia += 1
        else:
            out.append(b[ib]); ib += 1
    return out


def sched(e, anchors, main, cons=(), slack=0, lead=0, burst=0):
    main = [(e.probe(f), f) for f in main]
    cons = [(m, e.probe(f), f) for m, f in cons]
    att = [sum(e.probe(f) for f in a[0]) + sum(e.probe(f) for f in a[2]) for a in anchors]
    total = sum(c for c, _ in main) + sum(c for _, c, _ in cons) + sum(att)
    n = len(anchors)
    done = 0.0
    while main and done < lead:
        c, f = main.pop(0)
        f()
        done += c
    total -= done
    done = 0.0
    for i, (pre, fn, post) in enumerate(anchors):
        for f in pre:
            f()
        fn()
        for f in post:
            f()
        done += att[i]
        goal = total * (i + 1) / n + slack
        while i >= burst:
            if cons and cons[0][0] <= i and done + cons[0][1] / 2 <= goal:
                m, c, f = cons.pop(0)
            elif main and done + main[0][0] / 2 <= goal:
                c, f = main.pop(0)
            else:
                break
            f()
            done += c
    for c, f in main:
        f()
    for m, c, f in cons:
        f()
```

```python
import struct, sys, math
from emit import Emitter, merge, sched

NAME = 'standalone__gqa_block_cached__near_ridge'
KA = 'gqa_attn_kernel'
KB = 'gqa_oproj_kernel'

def f32bits(x):
    return struct.unpack('<I', struct.pack('<f', x))[0]

XB = 0
QB = 24576
PB = [0, 24576]
RING = 49152
RING_W = 12288
NSLOT = 3
VS = [98304, 131072, 98304, 131072]
STATS = 81920
LSTAT = 86016
WOST = 65536
LDS_A = 163840

WOT_OFF = 0x800000
WS_SIZE = 0x1000000


DIAG = False
DIAG_ALL = True
PRO0, PRO1, STEPN, SLOWCOST = 12, 8, 8, 6
KFIRST = 0
PVS = 16
KTF = 0
NOLOAD = 0
ROT = 0
CI, KI = 3, 0
NV_LATE = 40
NV_S = [[4, 4], [4, 4], [4, 4], [4, 4], [4, 4], [0, 0]]
def kernel_a():
    e = Emitter()
    E = e
    stampc = [0]
    def stamp(key=False):
        if not DIAG or not (DIAG_ALL or key):
            return
        i = stampc[0]; stampc[0] += 1
        E('s_memtime s[60:61]')
        E('s_waitcnt lgkmcnt(0)')
        E('s_lshl_b32 s58, s2, 2')
        E('s_add_u32 s58, s58, s3')
        E('s_lshl_b32 s58, s58, 8')
        E('s_add_u32 s58, s58, 0x%x' % (0xC00000 + i * 8))
        E('v_mov_b32 v63, 0')
        E('v_mov_b32 v0, s60')
        E('buffer_store_dword v0, v63, s[28:31], s58 offen', tag='stamp')
        E('v_mov_b32 v0, s61')
        E('buffer_store_dword v0, v63, s[28:31], s58 offen offset:4', tag='stamp')
    e.raw('.p2align 8')
    e.raw('.globl %s' % KA)
    e.raw('.type %s,@function' % KA)
    e.label(KA)
    E('s_cmp_ge_u32 s2, 256')
    E('s_cbranch_scc1 L_a_done')
    E('s_load_dwordx16 s[40:55], s[0:1], 0')
    E('v_and_b32 v1, 63, v0')
    E('v_lshrrev_b32 v2, 6, v0')
    E('s_nop 0')
    E('v_readfirstlane_b32 s3, v2')
    E('s_and_b32 s38, s2, 7')
    E('s_lshr_b32 s4, s2, 3')
    E('s_lshr_b32 s37, s4, 1')
    E('s_and_b32 s4, s4, 1')
    E('s_lshl_b32 s39, s38, 2')
    E('s_lshl_b32 s4, s4, 1')
    E('s_add_u32 s39, s39, s4')
    E('s_lshl_b32 s4, s37, 3')
    E('s_add_u32 s4, s4, s38')
    E('s_lshl_b32 s32, s4, 17')
    E('s_lshl_b32 s5, s3, 15')
    E('s_add_u32 s32, s32, s5')
    E('s_lshr_b32 s5, s2, 3')
    E('s_and_b32 s5, s5, 1')
    E('s_mul_i32 s5, s5, %d' % ROT)
    for kt in range(4):
        E('s_add_u32 s6, s5, %d' % kt)
        E('s_and_b32 s6, s6, 3')
        E('s_lshl_b32 s6, s6, 13')
        E('s_add_u32 s%d, s32, s6' % (64 + kt))
    E('s_mul_i32 s33, s37, 49152')
    E('s_mul_i32 s5, s3, 12288')
    E('s_add_u32 s33, s33, s5')
    E('s_lshl_b32 s34, s39, 8')
    E('s_lshl_b32 s5, s3, 7')
    E('s_add_u32 s34, s34, s5')
    E('s_mul_i32 s35, s3, %d' % RING_W)
    E('s_add_u32 s35, s35, %d' % RING)
    E('s_mov_b32 s36, 0x%08x' % f32bits(math.log2(math.e) / math.sqrt(128.0)))
    E('v_and_b32 v46, 15, v1')
    E('v_lshrrev_b32 v47, 4, v1')
    E('v_xor_b32 v2, v46, v47')
    E('v_lshlrev_b32 v2, 4, v2')
    E('v_lshl_add_u32 v2, v46, 10, v2')
    E('v_lshlrev_b32 v11, 4, v1')
    E('v_lshrrev_b32 v48, 3, v1')
    E('v_and_b32 v49, 7, v1')
    E('v_lshrrev_b32 v50, 1, v49')
    E('v_and_b32 v51, 1, v47')
    E('v_xor_b32 v50, v50, v51')
    E('v_and_b32 v52, 1, v49')
    E('v_lshlrev_b32 v52, 4, v52')
    E('v_lshl_add_u32 v53, v48, 13, v52')
    E('v_lshl_add_u32 v3, v50, 5, v53')
    E('v_xor_b32 v50, 2, v50')
    E('v_lshl_add_u32 v4, v50, 5, v53')
    E('v_add_u32 v4, 0x10000, v4')
    E('v_add_u32 v5, 0x20000, v3')
    E('v_add_u32 v6, 0x20000, v4')
    E('v_lshrrev_b32 v48, 2, v1')
    E('v_and_b32 v48, 3, v48')
    E('v_and_b32 v49, 3, v1')
    E('v_lshrrev_b32 v50, 1, v48')
    E('v_lshlrev_b32 v51, 1, v51')
    E('v_or_b32 v50, v50, v51')
    E('v_lshl_add_u32 v52, v47, 3, v48')
    E('v_lshlrev_b32 v52, 7, v52')
    E('v_lshl_add_u32 v52, v49, 3, v52')
    E('v_add_u32 v52, s35, v52')
    for t in range(4):
        E('v_xor_b32 v53, %d, v50' % t)
        E('v_lshl_add_u32 v%d, v53, 5, v52' % (7 + t))
    E('v_and_b32 v53, 31, v1')
    E('v_lshrrev_b32 v54, 5, v1')
    E('v_lshlrev_b32 v12, 4, v46')
    E('v_lshl_add_u32 v12, v47, 8, v12')
    E('v_lshlrev_b32 v55, 2, v47')
    E('v_xor_b32 v55, v55, v46')
    E('v_lshlrev_b32 v55, 4, v55')
    E('v_lshl_add_u32 v13, v47, 8, v55')
    E('v_lshl_add_u32 v55, v54, 2, v48')
    E('v_lshlrev_b32 v55, 8, v55')
    E('v_xor_b32 v56, s3, v48')
    E('v_lshl_add_u32 v55, v56, 6, v55')
    E('v_and_b32 v56, 1, v47')
    E('v_lshl_add_u32 v55, v56, 5, v55')
    E('v_lshl_add_u32 v14, v49, 3, v55')
    E('v_add_u32 v14, %d, v14' % VS[0])
    E('s_lshl_b32 s4, s3, 11')
    E('v_add_u32 v15, s4, v11')
    E('v_lshlrev_b32 v55, 4, v46')
    E('v_lshl_add_u32 v55, v54, 9, v55')
    E('v_lshl_add_u32 v55, v56, 3, v55')
    E('s_lshr_b32 s4, s3, 1')
    E('s_mul_i32 s4, s4, 3')
    E('s_and_b32 s5, s3, 1')
    E('s_lshl_b32 s5, s5, 12')
    E('s_add_u32 s5, s5, %d' % QB)
    for st in range(3):
        E('s_add_u32 s6, s4, %d' % st)
        E('s_lshr_b32 s7, s6, 1')
        E('s_lshl_b32 s7, s7, 13')
        E('s_and_b32 s6, s6, 1')
        E('s_lshl_b32 s6, s6, 8')
        E('s_add_u32 s6, s6, s7')
        E('s_add_u32 s6, s6, s5')
        E('v_add_u32 v%d, s6, v55' % (16 + st))
    E('v_lshlrev_b32 v20, 5, v53')
    E('v_lshl_add_u32 v19, v54, 2, v20')
    E('s_lshl_b32 s4, s3, 3')
    E('v_add_u32 v19, s4, v19')
    E('v_lshlrev_b32 v55, 4, v46')
    E('v_lshl_add_u32 v55, v54, 8, v55')
    for qt in range(3):
        E('v_add_u32 v57, %d, v56' % (2 * qt))
        E('v_cmp_le_u32 vcc, 3, v57')
        E('v_subrev_u32 v58, 3, v57')
        E('v_lshlrev_b32 v58, 10, v58')
        E('v_add_u32 v58, 12288, v58')
        E('v_lshlrev_b32 v57, 10, v57')
        E('v_cndmask_b32 v57, v57, v58, vcc')
        E('v_add_u32 v%d, v57, v55' % (27 + qt))
    E('s_waitcnt lgkmcnt(0)')
    def srd(d, lo, size):
        E('s_mov_b32 s%d, s%d' % (d, lo))
        E('s_and_b32 s%d, s%d, 0xffff' % (d + 1, lo + 1))
        E('s_mov_b32 s%d, 0x%x' % (d + 2, size))
        E('s_mov_b32 s%d, 0x20000' % (d + 3))
    srd(8, 40, 786432)
    srd(12, 42, 16777216)
    srd(16, 44, 16777216)
    srd(20, 46, 4194304)
    srd(24, 48, 4194304)
    srd(28, 54, WS_SIZE)

    stamp(True)
    for n in range(KFIRST):
        E('s_add_u32 s7, s%d, %d' % (64 + n // 8, (n % 8) * 1024))
        E('buffer_load_dwordx4 a[%d:%d], v12, s[12:15], s7 offen' % (n * 4, n * 4 + 3), tag='K%d' % (n // 8))
    E('s_mul_i32 s4, s3, 12288')
    for i in range(12):
        E('s_mul_i32 s5, s3, 12')
        E('s_add_u32 s5, s5, %d' % i)
        E('s_and_b32 s5, s5, 15')
        E('s_lshl_b32 s5, s5, 4')
        E('v_xor_b32 v%d, s5, v11' % (60 + (i & 1)))
        E('s_add_u32 s5, s4, %d' % (XB + i * 1024))
        E('s_mov_b32 m0, s5')
        E('s_add_u32 s6, s33, %d' % (i * 1024))
        E('buffer_load_dwordx4 v%d, s[8:11], s6 offen lds' % (60 + (i & 1)), tag='x')

    def wq_dma(c):
        out = []
        for m in range(4):
            def f(m=m):
                E('s_add_u32 s5, s35, %d' % ((c % NSLOT) * 4096 + m * 1024))
                E('s_mov_b32 m0, s5')
                E('s_add_u32 s6, s34, %d' % (c * 262144))
                E('buffer_load_dwordx4 v%d, s[20:23], s6 offen lds' % (3 + m), tag='wq%d' % c)
            out.append(f)
        return out

    def wq_reg(c):
        if c < 8:
            return 'v', 168 + (c - 3) * 16
        return 'a', 128 + (c - 8) * 16

    def wq_load(c):
        out = []
        fl, r = wq_reg(c)
        for m in range(4):
            def f(m=m):
                E('s_add_u32 s6, s34, %d' % (c * 262144))
                E('buffer_load_dwordx4 %s[%d:%d], v%d, s[20:23], s6 offen' % (fl, r + 4 * m, r + 4 * m + 3, 3 + m), tag='wq%d' % c)
            out.append(f)
        return out

    def wq_write(c):
        out = []
        fl, r = wq_reg(c)
        out.append(lambda: e.wait(vm='wq%d' % c))
        for m in range(4):
            out.append(lambda m=m: E('ds_write_b128 v59, %s[%d:%d] offset:%d' % (fl, r + 4 * m, r + 4 * m + 3, (c % NSLOT) * 4096 + m * 1024)))
        return out

    ACC = 64
    AF = [112, 128]
    BF = [144, 156]

    def p1_reads(c):
        out = []
        bu = c & 1
        sl = c % NSLOT
        out.append(lambda: E('v_xor_b32 v%d, %d, v2' % (60 + bu, c * 64)))
        for st in range(3):
            out.append(lambda st=st: E('ds_read_b128 v[%d:%d], v%d offset:%d' % (BF[bu] + 4 * st, BF[bu] + 4 * st + 3, 60 + bu, XB + st * 16384), tag='p1r%d' % c))
        for t in range(4):
            for hh in range(2):
                out.append(lambda t=t, hh=hh: E('ds_read_b64_tr_b16 v[%d:%d], v%d offset:%d' % (
                    AF[bu] + 4 * t + 2 * hh, AF[bu] + 4 * t + 2 * hh + 1, 7 + t, sl * 4096 + hh * 512), tag='p1r%d' % c))
        return out

    def kload(n):
        def f():
            E('s_add_u32 s7, s%d, %d' % (64 + n // 8, (n % 8) * 1024))
            E('buffer_load_dwordx4 a[%d:%d], v12, s[12:15], s7 offen' % (n * 4, n * 4 + 3), tag='K%d' % (n // 8))
        return f

    def v_chunk(t):
        out = []
        for mm in range(8):
            def f(mm=mm):
                E('s_lshl_b32 s5, s3, 13')
                E('s_add_u32 s5, s5, %d' % (VS[t] + mm * 1024))
                E('s_mov_b32 m0, s5')
                E('s_add_u32 s6, s%d, %d' % (64 + t, mm * 1024))
                E('buffer_load_dwordx4 v13, s[16:19], s6 offen lds', tag='V%d' % t)
            out.append(f)
        return out

    def v_regs(t):
        out = []
        for mm in range(8):
            def f(mm=mm):
                r = 192 + (t - 2) * 32 + mm * 4
                E('s_add_u32 s6, s%d, %d' % (64 + t, mm * 1024))
                E('buffer_load_dwordx4 v[%d:%d], v12, s[16:19], s6 offen' % (r, r + 3), tag='V%d' % t)
            out.append(f)
        return out
    E('v_add_u32 v59, s35, v11')
    seq = []
    slow = [kload(n) for n in range(KFIRST, 16)] + v_chunk(0) + v_chunk(1) + [kload(n) for n in range(16, 32)] + v_regs(2) + v_regs(3)
    for c in range(3):
        seq += wq_dma(c)
    for c in range(3, 16):
        seq += wq_load(c)
        if c >= CI:
            seq += slow[:KI]
            slow = slow[KI:]
    nfast = len(seq)
    seq += slow
    LEFT = {'K0': 56, 'K1': 48, 'V0': 40, 'V1': 32, 'K2': 24, 'K3': 16, 'V2': 8, 'V3': 0}
    def vwait(tag):
        nf = 0
        while len(seq) > LEFT[tag]:
            issue(SLOWCOST); nf += 1
        if nf:
            print('forced issue of %d loads for %s' % (nf, tag))
        e.wait(vm=tag)
    issued = [0]
    def issue(maxn=1000):
        n = 0
        while seq and len(e.vmq) < 62 and n < maxn:
            seq.pop(0)()
            n += 1 if issued[0] < nfast else SLOWCOST
            issued[0] += 1
    stamp()
    issue(PRO0)
    stamp()
    e.wait(vm='wq0')
    stamp()
    E('s_barrier')
    stamp()
    issue(PRO1)
    for f in p1_reads(0):
        f()
    for c in range(16):
        bu = c & 1
        e.wait(lds='p1r%d' % c)
        if c in (2, 4, 6, 8, 12):
            stamp()
        rd = []
        if c + 1 < 16:
            if c + 1 < 3:
                rd.append(lambda c=c: e.wait(vm='wq%d' % (c + 1)))
            rd += p1_reads(c + 1)
        rd2 = []
        if 3 <= c + 2 < 16:
            rd2 = wq_write(c + 2)
        rd2.append(lambda: issue(STEPN))
        mf = []
        for nt in range(4):
            for st in range(3):
                a = ACC + (nt * 3 + st) * 4
                src = 'v[%d:%d]' % (a, a + 3) if c > 0 else '0'
                mf.append(lambda a=a, nt=nt, st=st, src=src: E('v_mfma_f32_16x16x32_bf16 v[%d:%d], v[%d:%d], v[%d:%d], %s' % (
                    a, a + 3, AF[bu] + 4 * nt, AF[bu] + 4 * nt + 3, BF[bu] + 4 * st, BF[bu] + 4 * st + 3, src)))
        for f in merge(mf[:6], rd) + merge(mf[6:], rd2):
            f()
    for nt in range(4):
        for st in range(3):
            a = ACC + (nt * 3 + st) * 4
            E('v_cvt_pk_bf16_f32 v%d, v%d, v%d' % (a, a, a + 1))
            E('v_cvt_pk_bf16_f32 v%d, v%d, v%d' % (a + 1, a + 2, a + 3))
    stamp(True)
    E('s_barrier')
    for nt in range(4):
        for st in range(3):
            a = ACC + (nt * 3 + st) * 4
            E('ds_write_b64 v%d, v[%d:%d] offset:%d' % (16 + st, a, a + 1, nt * 1024))

    while len(seq) > NV_LATE:
        issue(SLOWCOST)
    if NOLOAD:
        del seq[:]
    e.wait(lds='all')
    E('s_barrier')
    QF = 128
    for qt in range(3):
        for ks in range(8):
            r = QF + (qt * 8 + ks) * 4
            E('ds_read_b128 a[%d:%d], v11 offset:%d' % (r, r + 3, QB + (qt * 8 + ks) * 1024), tag='Q')
    E('s_lshl_b32 s4, s3, 13')
    E('s_add_u32 s4, s4, 0xC000')
    E('v_and_b32 v46, 15, v1')
    E('v_lshrrev_b32 v47, 4, v1')
    E('v_xor_b32 v48, v46, v47')
    for jj in range(4):
        E('v_xor_b32 v49, %d, v48' % (4 * jj))
        E('v_lshlrev_b32 v49, 4, v49')
        E('v_lshl_add_u32 v49, v47, 8, v49')
        E('v_add_u32 v%d, s4, v49' % (6 + jj))
    E('v_and_b32 v46, 31, v1')
    E('v_lshrrev_b32 v47, 5, v1')
    E('v_and_b32 v48, 15, v1')
    E('v_xor_b32 v48, v48, v47')
    E('v_lshlrev_b32 v48, 4, v48')
    E('v_lshl_add_u32 v48, v46, 8, v48')
    E('v_add_u32 v54, s4, v48')
    E('v_add_u32 v60, 0x%x, v19' % STATS)
    E('v_add_u32 v61, 0x%x, v20' % STATS)
    def ktr(kt):
        w_ = lambda: vwait('K%d' % kt)
        w_.cost = 0
        out = [w_]
        for m in range(8):
            r = (kt * 8 + m) * 4
            out.append(lambda m=m, r=r: E('ds_write_b128 v%d, a[%d:%d] offset:%d' % (6 + (m & 3), r, r + 3, m * 1024)))
        for ks in range(8):
            r = (kt * 8 + ks) * 4
            def f(ks=ks, r=r):
                E('v_xor_b32 v%d, %d, v54' % (55 + (ks & 1), ks * 32))
                E('ds_read_b128 a[%d:%d], v%d' % (r, r + 3, 55 + (ks & 1)), tag='kt%d' % kt)
            out.append(f)
        return out
    SB = [64, 128]
    MX = 62
    def sreg(u, kt):
        return SB[u & 1] + (kt & 1) * 16
    def max_ops(u, kt):
        out = []
        for i in range(8):
            s_ = sreg(u, kt) + 2 * i
            if (kt & 1) == 0 and i == 0:
                out.append(lambda s_=s_: E('v_max_f32 v%d, v%d, v%d' % (MX, s_, s_ + 1)))
            else:
                out.append(lambda s_=s_: E('v_max3_f32 v%d, v%d, v%d, v%d' % (MX, s_, s_ + 1, MX)))
        return out
    def s_mf(u, kt):
        q = u % 3
        mf = []
        for ks in range(8):
            s_ = sreg(u, kt)
            src = 'v[%d:%d]' % (s_, s_ + 15) if ks > 0 else '0'
            kr = (kt * 8 + ks) * 4
            qr = QF + (q * 8 + ks) * 4
            mf.append(lambda s_=s_, kr=kr, qr=qr, src=src: E('v_mfma_f32_32x32x16_bf16 v[%d:%d], a[%d:%d], a[%d:%d], %s' % (
                s_, s_ + 15, kr, kr + 3, qr, qr + 3, src)))
        return mf
    PK = [30, 34, 38, 42]
    pkc = [0]
    OA = [0, 64]
    PSL = {(0, 0): 0, (0, 1): 8192, (1, 0): 16384, (1, 1): 24576, (2, 0): 32768, (2, 1): 40960,
           (0, 2): 49152, (0, 3): 57344, (1, 2): 0, (1, 3): 16384, (2, 2): 32768, (2, 3): 8192}
    def exp_ops(u, kt):
        q = u % 3
        out = []
        s0 = sreg(u, kt)
        for hf in range(2):
            pk = PK[pkc[0] % 4]; pkc[0] += 1
            regs = [s0 + 8 * hf + i for i in range(8)]
            for r in regs:
                out.append(lambda r=r: E('v_fma_f32 v%d, v%d, s36, -v%d' % (r, r, 21 + q)))
            for r in regs:
                out.append(lambda r=r: E('v_exp_f32 v%d, v%d' % (r, r)))
            for k, r in enumerate(regs):
                if kt == 0 and hf == 0 and k == 0:
                    out.append(lambda r=r: E('v_add_f32 v%d, v%d, v%d' % (24 + q, r, r + 1)))
                elif kt == 0 and hf == 0 and k == 1:
                    pass
                else:
                    out.append(lambda r=r: E('v_add_f32 v%d, v%d, v%d' % (24 + q, r, 24 + q)))
                if k & 1:
                    out.append(lambda r=r, pk=pk, k=k: E('v_cvt_pk_bf16_f32 v%d, v%d, v%d' % (pk + k // 2, r - 1, r)))
            off = PSL[(q, kt)] + hf * 1024
            out.append(lambda pk=pk, off=off: E('ds_write_b128 v15, v[%d:%d] offset:%d' % (pk, pk + 3, off)))
        return out
    def exchange(u):
        h, q = u // 3, u % 3
        E('ds_write_b32 v60, v%d offset:%d' % (MX, q * 1024))
        e.wait(lds='all')
        stamp()
        E('s_barrier')
        E('ds_read_b128 v[46:49], v61 offset:%d' % (q * 1024), tag='st')
        E('ds_read_b128 v[50:53], v61 offset:%d' % (q * 1024 + 16), tag='st')
        e.wait(lds='st')
        E('v_max3_f32 v46, v46, v47, v48')
        E('v_max3_f32 v50, v50, v51, v52')
        E('v_max3_f32 v46, v46, v49, v53')
        E('v_max_f32 v46, v46, v50')
        if h == 0:
            E('v_mul_f32 v%d, s36, v46' % (21 + q))
        else:
            E('v_mul_f32 v46, s36, v46')
            E('v_max_f32 v46, v46, v%d' % (21 + q))
            E('v_sub_f32 v47, v%d, v46' % (21 + q))
            E('v_exp_f32 v%d, v47' % (57 + q))
            E('v_mov_b32 v%d, v46' % (21 + q))
            E('v_mul_f32 v%d, v%d, v%d' % (24 + q, 24 + q, 57 + q))

    PB4 = [96, 112, 160, 176]
    pvc = [0]
    def C(cost, fn):
        fn.cost = cost
        return fn
    def pv_anchors(lst):
        steps = []
        for (t, qs, first) in lst:
            for n in range(8):
                steps.append((t, qs, first, n))
        base = pvc[0]
        pvc[0] += len(steps)
        def reads(i):
            t, qs, first, n = steps[i]
            u, hf = n // 2, n % 2
            b = PB4[(base + i) & 3]
            vb = 14 if (t & 1) == 0 else 10
            tag = 'pv%d' % (base + i)
            out = []
            for ee in range(2):
                out.append(lambda ee=ee: E('ds_read_b64_tr_b16 v[%d:%d], v%d offset:%d' % (
                    b + 2 * ee, b + 2 * ee + 1, vb, (32 * u + 16 * hf + 8 * ee) * 256), tag=tag))
            for qt in qs:
                off = PSL[(qt, t)] + u * 2048 + hf * 1024
                out.append(lambda qt=qt, off=off: E('ds_read_b128 v[%d:%d], v11 offset:%d' % (
                    b + 4 + 4 * qt, b + 7 + 4 * qt, off), tag=tag))
            return out
        pro = reads(0) + reads(1)
        anc = []
        for i, (t, qs, first, n) in enumerate(steps):
            b = PB4[(base + i) & 3]
            rd = reads(i + 2) if i + 2 < len(steps) else []
            k = len(qs)
            for x, qt in enumerate(qs):
                o = OA[t >> 1] + 16 * qt
                src = '0' if (first and n == 0) else 'a[%d:%d]' % (o, o + 15)
                fn = (lambda o=o, b=b, qt=qt, src=src: E('v_mfma_f32_32x32x16_bf16 a[%d:%d], v[%d:%d], v[%d:%d], %s' % (
                    o, o + 15, b, b + 3, b + 4 + 4 * qt, b + 7 + 4 * qt, src)))
                pre = [lambda i=i: e.wait(lds='pv%d' % (base + i))] if x == 0 else []
                post = rd[len(rd) * x // k: len(rd) * (x + 1) // k]
                anc.append((pre, fn, post))
        return pro, anc

    WOR = 240
    def wo_loads():
        out = []
        def pre():
            E('s_lshr_b32 s4, s2, 2')
            E('s_lshl_b32 s4, s4, 16')
            E('s_and_b32 s5, s2, 3')
            E('s_lshl_b32 s5, s5, 8')
            E('s_add_u32 s4, s4, s5')
            E('s_lshl_b32 s5, s3, 14')
            E('s_add_u32 s56, s4, s5')
            E('v_lshrrev_b32 v3, 4, v1')
            E('v_and_b32 v4, 15, v1')
            E('v_lshlrev_b32 v3, 10, v3')
            E('v_lshl_add_u32 v3, v4, 4, v3')
        out.append(pre)
        for m in range(4):
            def f(m=m):
                E('s_add_u32 s6, s56, %d' % (m * 4096))
                E('buffer_load_dwordx4 a[%d:%d], v3, s[24:27], s6 offen' % (WOR + 4 * m, WOR + 4 * m + 3), tag='WO')
            out.append(f)
        return out
    def v_store(t):
        out = [C(0, lambda: vwait('V%d' % t))]
        def pre():
            E('s_lshl_b32 s4, s3, 13')
            E('s_add_u32 s4, s4, %d' % VS[t])
            E('v_add_u32 v55, s4, v13')
        out.append(pre)
        for mm in range(8):
            r = 192 + (t - 2) * 32 + mm * 4
            out.append(lambda r=r, mm=mm: E('ds_write_b128 v55, v[%d:%d] offset:%d' % (r, r + 3, mm * 1024)))
        return out
    def iss(n):
        return [C(20, lambda: issue(SLOWCOST))] * n

    E('v_add_u32 v10, 0x%x, v14' % (VS[1] - VS[0]))
    for f in ktr(0):
        f()
    e.wait(lds='kt0')
    stamp()
    for u in range(6):
        h, q = u // 3, u % 3
        t0, t1 = 2 * h, 2 * h + 1
        sa = [([], f, []) for f in s_mf(u, t0)] + [([], f, []) for f in s_mf(u, t1)]
        if q == 0:
            sa[8] = ([lambda t1=t1: e.wait(lds='kt%d' % t1)], sa[8][1], [])
        pro = []
        if u in (4, 5):
            pro, pa = pv_anchors([(u - 4, (0, 1, 2), u == 4)])
            anc = sa[:2] + merge(sa[2:], pa[:PVS]) + pa[PVS:]
        else:
            anc = sa
        i7 = [k for k, a in enumerate(anc) if a[1] is sa[7][1]][0]
        i15 = [k for k, a in enumerate(anc) if a[1] is sa[15][1]][0]
        s0, s1 = [], []
        if u > 0:
            pu = u - 1
            s0 = exp_ops(pu, 2 * (pu // 3))
            s1 = exp_ops(pu, 2 * (pu // 3) + 1)
        if q == 0:
            s0 = ktr(t1) + s0 if KTF else merge(s0, ktr(t1))
        if u == 2:
            s1 = merge(s1, ktr(2))
        if u == 5:
            s1 = merge(s1, v_store(2))
        if u == 4:
            s1 = merge(s1, wo_loads())
        s0 = merge(s0, iss(NV_S[u][0]))
        s1 = merge(s1, iss(NV_S[u][1]))
        cons = [(i7 + 1, f) for f in max_ops(u, t0)] + [(i15 + 1, f) for f in max_ops(u, t1)]
        for f in pro:
            f()
        if q == 0:
            sched(e, anc[:8], s0)
            sched(e, anc[8:], s1, [(m - 8, f) for m, f in cons])
        else:
            sched(e, anc, s0 + s1, cons)
        exchange(u)
        if u == 2:
            stamp(True)
    tail = exp_ops(5, 2) + exp_ops(5, 3)
    tail = merge(tail, v_store(3))
    for qt in range(3):
        tail.append(lambda qt=qt: E('ds_write_b32 v60, v%d offset:%d' % (24 + qt, LSTAT - STATS + qt * 1024)))
    def stg():
        e.wait(vm='WO')
        E('s_lshl_b32 s4, s3, 12')
        E('s_add_u32 s4, s4, %d' % WOST)
        E('v_add_u32 v56, s4, v13')
        for m in range(4):
            E('ds_write_b128 v56, a[%d:%d] offset:%d' % (WOR + 4 * m, WOR + 4 * m + 3, m * 1024))
    tail.append(stg)
    pro, pa = pv_anchors([(2, (0, 1), True)])
    for f in pro:
        f()
    sched(e, pa, tail, lead=100)
    e.wait(lds='all')
    stamp()
    E('s_barrier')
    stamp(True)
    b = []
    TB = [64, 80, 128]
    for qt in range(3):
        def ls(qt=qt):
            E('ds_read_b128 v[46:49], v61 offset:%d' % (LSTAT - STATS + qt * 1024), tag='ls%d' % qt)
            E('ds_read_b128 v[50:53], v61 offset:%d' % (LSTAT - STATS + qt * 1024 + 16), tag='ls%d' % qt)
            e.wait(lds='ls%d' % qt)
            E('v_add_f32 v46, v46, v47')
            E('v_add_f32 v48, v48, v49')
            E('v_add_f32 v50, v50, v51')
            E('v_add_f32 v52, v52, v53')
            E('v_add_f32 v46, v46, v48')
            E('v_add_f32 v50, v50, v52')
            E('v_add_f32 v46, v46, v50')
            E('v_rcp_f32 v%d, v46' % (24 + qt))
            E('v_mul_f32 v%d, v%d, v%d' % (57 + qt, 57 + qt, 24 + qt))
        b.append(ls)
        for r in range(16):
            def f(qt=qt, r=r):
                E('v_accvgpr_read_b32 v%d, a%d' % (TB[qt] + r, OA[0] + 16 * qt + r))
                E('v_mul_f32 v%d, v%d, v%d' % (TB[qt] + r, TB[qt] + r, 57 + qt))
            b.append(f)
    def wt_addr():
        E('v_lshrrev_b32 v46, 4, v1')
        E('v_lshrrev_b32 v47, 2, v1')
        E('v_and_b32 v47, 3, v47')
        E('v_and_b32 v48, 3, v1')
        E('v_lshl_add_u32 v49, v46, 3, v47')
        E('v_lshlrev_b32 v49, 8, v49')
        E('v_xor_b32 v50, s3, v47')
        E('v_lshl_add_u32 v49, v50, 6, v49')
        E('v_lshl_add_u32 v49, v48, 3, v49')
        E('v_add_u32 v49, 0x%x, v49' % WOST)
        for kk in range(2):
            for nn in range(2):
                for hh in range(2):
                    r = 30 + (kk * 2 + nn) * 4 + 2 * hh
                    E('ds_read_b64_tr_b16 v[%d:%d], v49 offset:%d' % (r, r + 1, (32 * kk + 4 * hh) * 256 + nn * 32), tag='wt')
    b.append(wt_addr)
    pro, pa = pv_anchors([(2, (2,), True), (3, (0, 1, 2), False)])
    for f in pro:
        f()
    sched(e, pa, b, lead=60)
    stamp()
    E('s_mul_i32 s4, s37, 393216')
    E('s_lshl_b32 s5, s39, 2')
    E('s_add_u32 s5, s5, s3')
    E('s_mul_i32 s5, s5, 3072')
    E('s_add_u32 s57, s4, s5')
    for qt in range(3):
        T = TB[qt]
        U = 96 + (qt & 1) * 16
        for r in range(16):
            E('v_accvgpr_read_b32 v%d, a%d' % (U + r, OA[1] + 16 * qt + r))
        for r in range(16):
            E('v_fma_f32 v%d, v%d, v%d, v%d' % (T + r, U + r, 24 + qt, T + r))
        for k in range(8):
            E('v_cvt_pk_bf16_f32 v%d, v%d, v%d' % (T + k, T + 2 * k, T + 2 * k + 1))
        for k in (0, 2):
            E('v_permlane32_swap_b32 v%d, v%d' % (T + 2 * k, T + 2 * k + 2))
            E('v_permlane32_swap_b32 v%d, v%d' % (T + 2 * k + 1, T + 2 * k + 3))
            E('buffer_store_dwordx4 v[%d:%d], v%d, s[28:31], s57 offen offset:%d' % (T + 2 * k, T + 2 * k + 3, 27 + qt, k * 256))
    E('s_and_b32 s4, s2, 3')
    E('s_lshl_b32 s4, s4, 3')
    E('s_lshl_b32 s5, s3, 1')
    E('s_add_u32 s4, s4, s5')
    E('s_lshl_b32 s4, s4, 17')
    E('s_lshr_b32 s5, s2, 2')
    E('s_lshl_b32 s5, s5, 11')
    E('s_add_u32 s4, s4, s5')
    E('s_add_u32 s4, s4, 0x%x' % WOT_OFF)
    E('s_add_u32 s5, s4, 0x20000')
    e.wait(lds='wt')
    for kk in range(2):
        for nn in range(2):
            r = 30 + (kk * 2 + nn) * 4
            E('buffer_store_dwordx4 v[%d:%d], v11, s[28:31], s%d offen offset:%d' % (r, r + 3, 4 + nn, kk * 1024))
    stamp(True)
    e.label('L_a_done')
    E('s_endpgm')
    return e


def kernel_b():
    e = Emitter()
    E = e
    e.raw('.p2align 8')
    e.raw('.globl %s' % KB)
    e.raw('.type %s,@function' % KB)
    e.label(KB)
    E('s_cmp_ge_u32 s2, 256')
    E('s_cbranch_scc1 L_b_done')
    E('s_load_dwordx2 s[40:41], s[0:1], 40')
    E('s_load_dwordx2 s[42:43], s[0:1], 56')
    E('v_and_b32 v1, 63, v0')
    E('v_lshrrev_b32 v2, 6, v0')
    E('s_nop 0')
    E('v_readfirstlane_b32 s3, v2')
    E('s_and_b32 s4, s2, 7')
    E('s_lshr_b32 s5, s2, 3')
    E('s_lshr_b32 s6, s4, 1')
    E('s_lshl_b32 s6, s6, 2')
    E('s_lshr_b32 s7, s5, 3')
    E('s_add_u32 s37, s6, s7')
    E('s_and_b32 s6, s4, 1')
    E('s_lshl_b32 s6, s6, 3')
    E('s_and_b32 s7, s5, 7')
    E('s_add_u32 s38, s6, s7')
    E('v_lshlrev_b32 v11, 4, v1')
    E('s_mul_i32 s32, s37, 393216')
    E('s_mul_i32 s4, s3, 49152')
    E('s_add_u32 s32, s32, s4')
    E('s_lshl_b32 s33, s38, 18')
    E('s_lshl_b32 s4, s3, 14')
    E('s_add_u32 s33, s33, s4')
    E('s_add_u32 s33, s33, 0x%x' % WOT_OFF)
    E('s_add_u32 s34, s33, 0x20000')
    E('s_waitcnt lgkmcnt(0)')
    E('s_mov_b32 s8, s40')
    E('s_and_b32 s9, s41, 0xffff')
    E('s_mov_b32 s10, 786432')
    E('s_mov_b32 s11, 0x20000')
    E('s_mov_b32 s28, s42')
    E('s_and_b32 s29, s43, 0xffff')
    E('s_mov_b32 s30, 0x%x' % WS_SIZE)
    E('s_mov_b32 s31, 0x20000')
    D = 5
    ACC = 16
    FR = 40
    def loads(i):
        base = FR + (i % D) * 20
        E('s_add_u32 s5, s32, %d' % (i * 3072))
        for st in range(3):
            E('buffer_load_dwordx4 v[%d:%d], v11, s[28:31], s5 offen offset:%d' % (base + 4 * st, base + 4 * st + 3, st * 1024), tag='k%d' % i)
        E('s_add_u32 s6, s33, %d' % (i * 1024))
        E('s_add_u32 s7, s34, %d' % (i * 1024))
        E('buffer_load_dwordx4 v[%d:%d], v11, s[28:31], s6 offen' % (base + 12, base + 15), tag='k%d' % i)
        E('buffer_load_dwordx4 v[%d:%d], v11, s[28:31], s7 offen' % (base + 16, base + 19), tag='k%d' % i)
    for i in range(D):
        loads(i)
    for i in range(16):
        base = FR + (i % D) * 20
        e.wait(vm='k%d' % i)
        for nn in range(2):
            for st in range(3):
                a = ACC + (nn * 3 + st) * 4
                src = 'v[%d:%d]' % (a, a + 3) if i > 0 else '0'
                E('v_mfma_f32_16x16x32_bf16 v[%d:%d], v[%d:%d], v[%d:%d], %s' % (
                    a, a + 3, base + 12 + 4 * nn, base + 15 + 4 * nn, base + 4 * st, base + 4 * st + 3, src))
        if i + D < 16:
            loads(i + D)
    E('s_mul_i32 s4, s3, 6144')
    E('v_add_u32 v12, s4, v11')
    for tl in range(6):
        E('ds_write_b128 v12, v[%d:%d] offset:%d' % (ACC + 4 * tl, ACC + 4 * tl + 3, tl * 1024))
    e.wait(lds='all')
    E('s_barrier')
    E('s_cmp_ge_u32 s3, 6')
    E('s_cbranch_scc1 L_b_done')
    E('s_lshl_b32 s4, s3, 10')
    E('v_add_u32 v12, s4, v11')
    for wv in range(8):
        E('ds_read_b128 v[%d:%d], v12 offset:%d' % (FR + 4 * wv, FR + 4 * wv + 3, wv * 6144), tag='r%d' % wv)
    e.wait(lds='r1')
    for r in range(4):
        E('v_add_f32 v%d, v%d, v%d' % (16 + r, FR + r, FR + 4 + r))
    for wv in range(2, 8):
        e.wait(lds='r%d' % wv)
        for r in range(4):
            E('v_add_f32 v%d, v%d, v%d' % (16 + r, 16 + r, FR + 4 * wv + r))
    E('v_cvt_pk_bf16_f32 v20, v16, v17')
    E('v_cvt_pk_bf16_f32 v21, v18, v19')
    E('s_cmp_ge_u32 s3, 3')
    E('s_cselect_b32 s4, 1, 0')
    E('s_mul_i32 s5, s4, 3')
    E('s_sub_u32 s5, s3, s5')
    E('s_mul_i32 s6, s37, 49152')
    E('s_lshl_b32 s5, s5, 14')
    E('s_add_u32 s6, s6, s5')
    E('s_lshl_b32 s5, s38, 6')
    E('s_add_u32 s6, s6, s5')
    E('s_lshl_b32 s4, s4, 5')
    E('s_add_u32 s6, s6, s4')
    E('v_and_b32 v2, 15, v1')
    E('v_lshrrev_b32 v3, 4, v1')
    E('v_lshlrev_b32 v2, 10, v2')
    E('v_lshl_add_u32 v2, v3, 3, v2')
    E('buffer_store_dwordx2 v[20:21], v2, s[8:11], s6 offen')
    e.label('L_b_done')
    E('s_endpgm')
    return e


def kd(name, vgpr, accum, sgpr=72):
    return '''.p2align 6
.amdhsa_kernel %s
  .amdhsa_next_free_vgpr %d
  .amdhsa_next_free_sgpr %d
  .amdhsa_accum_offset %d
  .amdhsa_group_segment_fixed_size 0
  .amdhsa_kernarg_size 64
  .amdhsa_user_sgpr_count 2
  .amdhsa_user_sgpr_kernarg_segment_ptr 1
  .amdhsa_system_sgpr_workgroup_id_x 1
.end_amdhsa_kernel
''' % (name, vgpr, sgpr, accum)


def main():
    global DIAG
    global DIAG_ALL
    if len(sys.argv) > 2 and sys.argv[2].startswith('diag'):
        DIAG = True
        DIAG_ALL = sys.argv[2] == 'diag'
    for kv in sys.argv[3:]:
        k, v = kv.split('=', 1)
        globals()[k] = eval(v)
    ref = open('cdna_kernels/%s.s.ref' % NAME).read().splitlines()
    head = [l for l in ref if l.startswith(';') and '@launch' not in l and 'launch geometry' not in l and 'grid=ceil' not in l]
    a = kernel_a()
    b = kernel_b()
    out = '\n'.join(head) + '\n'
    out += '; @launch kernel=%s grid=(256,1,1) block=(256,1,1) lds=%d\n' % (KA, LDS_A)
    out += '; @launch kernel=%s grid=(256,1,1) block=(512,1,1) lds=49152\n' % KB
    out += '.amdgcn_target "amdgcn-amd-amdhsa--gfx950"\n.text\n'
    out += a.text() + b.text()
    out += '.section .rodata,"a"\n'
    out += kd(KA, 512, 256) + kd(KB, 144, 144)
    path = sys.argv[1] if len(sys.argv) > 1 else 'cdna_kernels/%s.s' % NAME
    open(path, 'w').write(out)
    print('nops inserted: A %d  B %d; lines %d' % (a.nops_inserted, b.nops_inserted, out.count('\n')))


if __name__ == '__main__':
    main()
```

```python
import struct, sys, math
from emit import Emitter, merge, sched

NAME = 'standalone__gqa_block_cached__near_ridge'
KA = 'gqa_attn_kernel'
KB = 'gqa_oproj_kernel'

def f32bits(x):
    return struct.unpack('<I', struct.pack('<f', x))[0]

XB = 0
QB = 24576
PB = [0, 24576]
RING = 49152
RING_W = 12288
NSLOT = 3
VS = [98304, 131072, 98304, 131072]
STATS = 81920
LSTAT = 86016
WOST = 65536
LDS_A = 163840

WOT_OFF = 0x800000
WS_SIZE = 0x1000000


DIAG = False
DIAG_ALL = True
PRO0, PRO1, STEPN, SLOWCOST = 12, 8, 8, 6
KFIRST = 0
KVPOL = ''
STPOL = ''
PVS = 16
KTF = 0
NOLOAD = 0
ROT = 0
CI, KI = 3, 0
NV_LATE = 40
NV_S = [[4, 4], [4, 4], [4, 4], [4, 4], [4, 4], [0, 0]]
def kernel_a():
    e = Emitter()
    E = e
    stampc = [0]
    def stamp(key=False):
        if not DIAG or not (DIAG_ALL or key):
            return
        i = stampc[0]; stampc[0] += 1
        E('s_memtime s[60:61]')
        E('s_waitcnt lgkmcnt(0)')
        E('s_lshl_b32 s58, s2, 2')
        E('s_add_u32 s58, s58, s3')
        E('s_lshl_b32 s58, s58, 8')
        E('s_add_u32 s58, s58, 0x%x' % (0xC00000 + i * 8))
        E('v_mov_b32 v63, 0')
        E('v_mov_b32 v0, s60')
        E('buffer_store_dword v0, v63, s[28:31], s58 offen', tag='stamp')
        E('v_mov_b32 v0, s61')
        E('buffer_store_dword v0, v63, s[28:31], s58 offen offset:4', tag='stamp')
    e.raw('.p2align 8')
    e.raw('.globl %s' % KA)
    e.raw('.type %s,@function' % KA)
    e.label(KA)
    E('s_cmp_ge_u32 s2, 256')
    E('s_cbranch_scc1 L_a_done')
    E('s_load_dwordx16 s[40:55], s[0:1], 0')
    E('v_and_b32 v1, 63, v0')
    E('v_lshrrev_b32 v2, 6, v0')
    E('s_nop 0')
    E('v_readfirstlane_b32 s3, v2')
    E('s_and_b32 s38, s2, 7')
    E('s_lshr_b32 s4, s2, 3')
    E('s_lshr_b32 s37, s4, 1')
    E('s_and_b32 s4, s4, 1')
    E('s_lshl_b32 s39, s38, 2')
    E('s_lshl_b32 s4, s4, 1')
    E('s_add_u32 s39, s39, s4')
    E('s_lshl_b32 s4, s37, 3')
    E('s_add_u32 s4, s4, s38')
    E('s_lshl_b32 s32, s4, 17')
    E('s_lshl_b32 s5, s3, 15')
    E('s_add_u32 s32, s32, s5')
    E('s_lshr_b32 s5, s2, 3')
    E('s_and_b32 s5, s5, 1')
    E('s_mul_i32 s5, s5, %d' % ROT)
    for kt in range(4):
        E('s_add_u32 s6, s5, %d' % kt)
        E('s_and_b32 s6, s6, 3')
        E('s_lshl_b32 s6, s6, 13')
        E('s_add_u32 s%d, s32, s6' % (64 + kt))
    E('s_mul_i32 s33, s37, 49152')
    E('s_mul_i32 s5, s3, 12288')
    E('s_add_u32 s33, s33, s5')
    E('s_lshl_b32 s34, s39, 8')
    E('s_lshl_b32 s5, s3, 7')
    E('s_add_u32 s34, s34, s5')
    E('s_mul_i32 s35, s3, %d' % RING_W)
    E('s_add_u32 s35, s35, %d' % RING)
    E('s_mov_b32 s36, 0x%08x' % f32bits(math.log2(math.e) / math.sqrt(128.0)))
    E('v_and_b32 v46, 15, v1')
    E('v_lshrrev_b32 v47, 4, v1')
    E('v_xor_b32 v2, v46, v47')
    E('v_lshlrev_b32 v2, 4, v2')
    E('v_lshl_add_u32 v2, v46, 10, v2')
    E('v_lshlrev_b32 v11, 4, v1')
    E('v_lshrrev_b32 v48, 3, v1')
    E('v_and_b32 v49, 7, v1')
    E('v_lshrrev_b32 v50, 1, v49')
    E('v_and_b32 v51, 1, v47')
    E('v_xor_b32 v50, v50, v51')
    E('v_and_b32 v52, 1, v49')
    E('v_lshlrev_b32 v52, 4, v52')
    E('v_lshl_add_u32 v53, v48, 13, v52')
    E('v_lshl_add_u32 v3, v50, 5, v53')
    E('v_xor_b32 v50, 2, v50')
    E('v_lshl_add_u32 v4, v50, 5, v53')
    E('v_add_u32 v4, 0x10000, v4')
    E('v_add_u32 v5, 0x20000, v3')
    E('v_add_u32 v6, 0x20000, v4')
    E('v_lshrrev_b32 v48, 2, v1')
    E('v_and_b32 v48, 3, v48')
    E('v_and_b32 v49, 3, v1')
    E('v_lshrrev_b32 v50, 1, v48')
    E('v_lshlrev_b32 v51, 1, v51')
    E('v_or_b32 v50, v50, v51')
    E('v_lshl_add_u32 v52, v47, 3, v48')
    E('v_lshlrev_b32 v52, 7, v52')
    E('v_lshl_add_u32 v52, v49, 3, v52')
    E('v_add_u32 v52, s35, v52')
    for t in range(4):
        E('v_xor_b32 v53, %d, v50' % t)
        E('v_lshl_add_u32 v%d, v53, 5, v52' % (7 + t))
    E('v_and_b32 v53, 31, v1')
    E('v_lshrrev_b32 v54, 5, v1')
    E('v_lshlrev_b32 v12, 4, v46')
    E('v_lshl_add_u32 v12, v47, 8, v12')
    E('v_lshlrev_b32 v55, 2, v47')
    E('v_xor_b32 v55, v55, v46')
    E('v_lshlrev_b32 v55, 4, v55')
    E('v_lshl_add_u32 v13, v47, 8, v55')
    E('v_lshl_add_u32 v55, v54, 2, v48')
    E('v_lshlrev_b32 v55, 8, v55')
    E('v_xor_b32 v56, s3, v48')
    E('v_lshl_add_u32 v55, v56, 6, v55')
    E('v_and_b32 v56, 1, v47')
    E('v_lshl_add_u32 v55, v56, 5, v55')
    E('v_lshl_add_u32 v14, v49, 3, v55')
    E('v_add_u32 v14, %d, v14' % VS[0])
    E('s_lshl_b32 s4, s3, 11')
    E('v_add_u32 v15, s4, v11')
    E('v_lshlrev_b32 v55, 4, v46')
    E('v_lshl_add_u32 v55, v54, 9, v55')
    E('v_lshl_add_u32 v55, v56, 3, v55')
    E('s_lshr_b32 s4, s3, 1')
    E('s_mul_i32 s4, s4, 3')
    E('s_and_b32 s5, s3, 1')
    E('s_lshl_b32 s5, s5, 12')
    E('s_add_u32 s5, s5, %d' % QB)
    for st in range(3):
        E('s_add_u32 s6, s4, %d' % st)
        E('s_lshr_b32 s7, s6, 1')
        E('s_lshl_b32 s7, s7, 13')
        E('s_and_b32 s6, s6, 1')
        E('s_lshl_b32 s6, s6, 8')
        E('s_add_u32 s6, s6, s7')
        E('s_add_u32 s6, s6, s5')
        E('v_add_u32 v%d, s6, v55' % (16 + st))
    E('v_lshlrev_b32 v20, 5, v53')
    E('v_lshl_add_u32 v19, v54, 2, v20')
    E('s_lshl_b32 s4, s3, 3')
    E('v_add_u32 v19, s4, v19')
    E('v_lshlrev_b32 v55, 4, v46')
    E('v_lshl_add_u32 v55, v54, 8, v55')
    for qt in range(3):
        E('v_add_u32 v57, %d, v56' % (2 * qt))
        E('v_cmp_le_u32 vcc, 3, v57')
        E('v_subrev_u32 v58, 3, v57')
        E('v_lshlrev_b32 v58, 10, v58')
        E('v_add_u32 v58, 12288, v58')
        E('v_lshlrev_b32 v57, 10, v57')
        E('v_cndmask_b32 v57, v57, v58, vcc')
        E('v_add_u32 v%d, v57, v55' % (27 + qt))
    E('s_waitcnt lgkmcnt(0)')
    def srd(d, lo, size):
        E('s_mov_b32 s%d, s%d' % (d, lo))
        E('s_and_b32 s%d, s%d, 0xffff' % (d + 1, lo + 1))
        E('s_mov_b32 s%d, 0x%x' % (d + 2, size))
        E('s_mov_b32 s%d, 0x20000' % (d + 3))
    srd(8, 40, 786432)
    srd(12, 42, 16777216)
    srd(16, 44, 16777216)
    srd(20, 46, 4194304)
    srd(24, 48, 4194304)
    srd(28, 54, WS_SIZE)

    stamp(True)
    for n in range(KFIRST):
        E('s_add_u32 s7, s%d, %d' % (64 + n // 8, (n % 8) * 1024))
        E('buffer_load_dwordx4 a[%d:%d], v12, s[12:15], s7 offen' % (n * 4, n * 4 + 3), tag='K%d' % (n // 8))
    E('s_mul_i32 s4, s3, 12288')
    for i in range(12):
        E('s_mul_i32 s5, s3, 12')
        E('s_add_u32 s5, s5, %d' % i)
        E('s_and_b32 s5, s5, 15')
        E('s_lshl_b32 s5, s5, 4')
        E('v_xor_b32 v%d, s5, v11' % (60 + (i & 1)))
        E('s_add_u32 s5, s4, %d' % (XB + i * 1024))
        E('s_mov_b32 m0, s5')
        E('s_add_u32 s6, s33, %d' % (i * 1024))
        E('buffer_load_dwordx4 v%d, s[8:11], s6 offen lds' % (60 + (i & 1)), tag='x')

    def wq_dma(c):
        out = []
        for m in range(4):
            def f(m=m):
                E('s_add_u32 s5, s35, %d' % ((c % NSLOT) * 4096 + m * 1024))
                E('s_mov_b32 m0, s5')
                E('s_add_u32 s6, s34, %d' % (c * 262144))
                E('buffer_load_dwordx4 v%d, s[20:23], s6 offen lds' % (3 + m), tag='wq%d' % c)
            out.append(f)
        return out

    def wq_reg(c):
        if c < 8:
            return 'v', 168 + (c - 3) * 16
        return 'a', 128 + (c - 8) * 16

    def wq_load(c):
        out = []
        fl, r = wq_reg(c)
        for m in range(4):
            def f(m=m):
                E('s_add_u32 s6, s34, %d' % (c * 262144))
                E('buffer_load_dwordx4 %s[%d:%d], v%d, s[20:23], s6 offen' % (fl, r + 4 * m, r + 4 * m + 3, 3 + m), tag='wq%d' % c)
            out.append(f)
        return out

    def wq_write(c):
        out = []
        fl, r = wq_reg(c)
        out.append(lambda: e.wait(vm='wq%d' % c))
        for m in range(4):
            out.append(lambda m=m: E('ds_write_b128 v59, %s[%d:%d] offset:%d' % (fl, r + 4 * m, r + 4 * m + 3, (c % NSLOT) * 4096 + m * 1024)))
        return out

    ACC = 64
    AF = [112, 128]
    BF = [144, 156]

    def p1_reads(c):
        out = []
        bu = c & 1
        sl = c % NSLOT
        out.append(lambda: E('v_xor_b32 v%d, %d, v2' % (60 + bu, c * 64)))
        for st in range(3):
            out.append(lambda st=st: E('ds_read_b128 v[%d:%d], v%d offset:%d' % (BF[bu] + 4 * st, BF[bu] + 4 * st + 3, 60 + bu, XB + st * 16384), tag='p1r%d' % c))
        for t in range(4):
            for hh in range(2):
                out.append(lambda t=t, hh=hh: E('ds_read_b64_tr_b16 v[%d:%d], v%d offset:%d' % (
                    AF[bu] + 4 * t + 2 * hh, AF[bu] + 4 * t + 2 * hh + 1, 7 + t, sl * 4096 + hh * 512), tag='p1r%d' % c))
        return out

    def kload(n):
        def f():
            E('s_add_u32 s7, s%d, %d' % (64 + n // 8, (n % 8) * 1024))
            E('buffer_load_dwordx4 a[%d:%d], v12, s[12:15], s7 offen%s' % (n * 4, n * 4 + 3, KVPOL), tag='K%d' % (n // 8))
        return f

    def v_chunk(t):
        out = []
        for mm in range(8):
            def f(mm=mm):
                E('s_lshl_b32 s5, s3, 13')
                E('s_add_u32 s5, s5, %d' % (VS[t] + mm * 1024))
                E('s_mov_b32 m0, s5')
                E('s_add_u32 s6, s%d, %d' % (64 + t, mm * 1024))
                E('buffer_load_dwordx4 v13, s[16:19], s6 offen%s lds' % KVPOL, tag='V%d' % t)
            out.append(f)
        return out

    def v_regs(t):
        out = []
        for mm in range(8):
            def f(mm=mm):
                r = 192 + (t - 2) * 32 + mm * 4
                E('s_add_u32 s6, s%d, %d' % (64 + t, mm * 1024))
                E('buffer_load_dwordx4 v[%d:%d], v12, s[16:19], s6 offen%s' % (r, r + 3, KVPOL), tag='V%d' % t)
            out.append(f)
        return out
    E('v_add_u32 v59, s35, v11')
    seq = []
    slow = [kload(n) for n in range(KFIRST, 16)] + v_chunk(0) + v_chunk(1) + [kload(n) for n in range(16, 32)] + v_regs(2) + v_regs(3)
    for c in range(3):
        seq += wq_dma(c)
    for c in range(3, 16):
        seq += wq_load(c)
        if c >= CI:
            seq += slow[:KI]
            slow = slow[KI:]
    nfast = len(seq)
    seq += slow
    LEFT = {'K0': 56, 'K1': 48, 'V0': 40, 'V1': 32, 'K2': 24, 'K3': 16, 'V2': 8, 'V3': 0}
    def vwait(tag):
        nf = 0
        while len(seq) > LEFT[tag]:
            issue(SLOWCOST); nf += 1
        if nf:
            print('forced issue of %d loads for %s' % (nf, tag))
        e.wait(vm=tag)
    issued = [0]
    def issue(maxn=1000):
        n = 0
        while seq and len(e.vmq) < 62 and n < maxn:
            seq.pop(0)()
            n += 1 if issued[0] < nfast else SLOWCOST
            issued[0] += 1
    stamp()
    issue(PRO0)
    stamp()
    e.wait(vm='wq0')
    stamp()
    E('s_barrier')
    stamp()
    issue(PRO1)
    for f in p1_reads(0):
        f()
    for c in range(16):
        bu = c & 1
        e.wait(lds='p1r%d' % c)
        if c in (2, 4, 6, 8, 12):
            stamp()
        rd = []
        if c + 1 < 16:
            if c + 1 < 3:
                rd.append(lambda c=c: e.wait(vm='wq%d' % (c + 1)))
            rd += p1_reads(c + 1)
        rd2 = []
        if 3 <= c + 2 < 16:
            rd2 = wq_write(c + 2)
        rd2.append(lambda: issue(STEPN))
        mf = []
        for nt in range(4):
            for st in range(3):
                a = ACC + (nt * 3 + st) * 4
                src = 'v[%d:%d]' % (a, a + 3) if c > 0 else '0'
                mf.append(lambda a=a, nt=nt, st=st, src=src: E('v_mfma_f32_16x16x32_bf16 v[%d:%d], v[%d:%d], v[%d:%d], %s' % (
                    a, a + 3, AF[bu] + 4 * nt, AF[bu] + 4 * nt + 3, BF[bu] + 4 * st, BF[bu] + 4 * st + 3, src)))
        for f in merge(mf[:6], rd) + merge(mf[6:], rd2):
            f()
    for nt in range(4):
        for st in range(3):
            a = ACC + (nt * 3 + st) * 4
            E('v_cvt_pk_bf16_f32 v%d, v%d, v%d' % (a, a, a + 1))
            E('v_cvt_pk_bf16_f32 v%d, v%d, v%d' % (a + 1, a + 2, a + 3))
    stamp(True)
    E('s_barrier')
    for nt in range(4):
        for st in range(3):
            a = ACC + (nt * 3 + st) * 4
            E('ds_write_b64 v%d, v[%d:%d] offset:%d' % (16 + st, a, a + 1, nt * 1024))

    while len(seq) > NV_LATE:
        issue(SLOWCOST)
    if NOLOAD:
        del seq[:]
    e.wait(lds='all')
    E('s_barrier')
    QF = 128
    for qt in range(3):
        for ks in range(8):
            r = QF + (qt * 8 + ks) * 4
            E('ds_read_b128 a[%d:%d], v11 offset:%d' % (r, r + 3, QB + (qt * 8 + ks) * 1024), tag='Q')
    E('s_lshl_b32 s4, s3, 13')
    E('s_add_u32 s4, s4, 0xC000')
    E('v_and_b32 v46, 15, v1')
    E('v_lshrrev_b32 v47, 4, v1')
    E('v_xor_b32 v48, v46, v47')
    for jj in range(4):
        E('v_xor_b32 v49, %d, v48' % (4 * jj))
        E('v_lshlrev_b32 v49, 4, v49')
        E('v_lshl_add_u32 v49, v47, 8, v49')
        E('v_add_u32 v%d, s4, v49' % (6 + jj))
    E('v_and_b32 v46, 31, v1')
    E('v_lshrrev_b32 v47, 5, v1')
    E('v_and_b32 v48, 15, v1')
    E('v_xor_b32 v48, v48, v47')
    E('v_lshlrev_b32 v48, 4, v48')
    E('v_lshl_add_u32 v48, v46, 8, v48')
    E('v_add_u32 v54, s4, v48')
    E('v_add_u32 v60, 0x%x, v19' % STATS)
    E('v_add_u32 v61, 0x%x, v20' % STATS)
    def ktr(kt):
        w_ = lambda: vwait('K%d' % kt)
        w_.cost = 0
        out = [w_]
        for m in range(8):
            r = (kt * 8 + m) * 4
            out.append(lambda m=m, r=r: E('ds_write_b128 v%d, a[%d:%d] offset:%d' % (6 + (m & 3), r, r + 3, m * 1024)))
        for ks in range(8):
            r = (kt * 8 + ks) * 4
            def f(ks=ks, r=r):
                E('v_xor_b32 v%d, %d, v54' % (55 + (ks & 1), ks * 32))
                E('ds_read_b128 a[%d:%d], v%d' % (r, r + 3, 55 + (ks & 1)), tag='kt%d' % kt)
            out.append(f)
        return out
    SB = [64, 128]
    MX = 62
    def sreg(u, kt):
        return SB[u & 1] + (kt & 1) * 16
    def max_ops(u, kt):
        out = []
        for i in range(8):
            s_ = sreg(u, kt) + 2 * i
            if (kt & 1) == 0 and i == 0:
                out.append(lambda s_=s_: E('v_max_f32 v%d, v%d, v%d' % (MX, s_, s_ + 1)))
            else:
                out.append(lambda s_=s_: E('v_max3_f32 v%d, v%d, v%d, v%d' % (MX, s_, s_ + 1, MX)))
        return out
    def s_mf(u, kt):
        q = u % 3
        mf = []
        for ks in range(8):
            s_ = sreg(u, kt)
            src = 'v[%d:%d]' % (s_, s_ + 15) if ks > 0 else '0'
            kr = (kt * 8 + ks) * 4
            qr = QF + (q * 8 + ks) * 4
            mf.append(lambda s_=s_, kr=kr, qr=qr, src=src: E('v_mfma_f32_32x32x16_bf16 v[%d:%d], a[%d:%d], a[%d:%d], %s' % (
                s_, s_ + 15, kr, kr + 3, qr, qr + 3, src)))
        return mf
    PK = [30, 34, 38, 42]
    pkc = [0]
    OA = [0, 64]
    PSL = {(0, 0): 0, (0, 1): 8192, (1, 0): 16384, (1, 1): 24576, (2, 0): 32768, (2, 1): 40960,
           (0, 2): 49152, (0, 3): 57344, (1, 2): 0, (1, 3): 16384, (2, 2): 32768, (2, 3): 8192}
    def exp_ops(u, kt):
        q = u % 3
        out = []
        s0 = sreg(u, kt)
        for hf in range(2):
            pk = PK[pkc[0] % 4]; pkc[0] += 1
            regs = [s0 + 8 * hf + i for i in range(8)]
            for r in regs:
                out.append(lambda r=r: E('v_fma_f32 v%d, v%d, s36, -v%d' % (r, r, 21 + q)))
            for r in regs:
                out.append(lambda r=r: E('v_exp_f32 v%d, v%d' % (r, r)))
            for k, r in enumerate(regs):
                if kt == 0 and hf == 0 and k == 0:
                    out.append(lambda r=r: E('v_add_f32 v%d, v%d, v%d' % (24 + q, r, r + 1)))
                elif kt == 0 and hf == 0 and k == 1:
                    pass
                else:
                    out.append(lambda r=r: E('v_add_f32 v%d, v%d, v%d' % (24 + q, r, 24 + q)))
                if k & 1:
                    out.append(lambda r=r, pk=pk, k=k: E('v_cvt_pk_bf16_f32 v%d, v%d, v%d' % (pk + k // 2, r - 1, r)))
            off = PSL[(q, kt)] + hf * 1024
            out.append(lambda pk=pk, off=off: E('ds_write_b128 v15, v[%d:%d] offset:%d' % (pk, pk + 3, off)))
        return out
    def exchange(u):
        h, q = u // 3, u % 3
        E('ds_write_b32 v60, v%d offset:%d' % (MX, q * 1024))
        e.wait(lds='all')
        stamp()
        E('s_barrier')
        E('ds_read_b128 v[46:49], v61 offset:%d' % (q * 1024), tag='st')
        E('ds_read_b128 v[50:53], v61 offset:%d' % (q * 1024 + 16), tag='st')
        e.wait(lds='st')
        E('v_max3_f32 v46, v46, v47, v48')
        E('v_max3_f32 v50, v50, v51, v52')
        E('v_max3_f32 v46, v46, v49, v53')
        E('v_max_f32 v46, v46, v50')
        if h == 0:
            E('v_mul_f32 v%d, s36, v46' % (21 + q))
        else:
            E('v_mul_f32 v46, s36, v46')
            E('v_max_f32 v46, v46, v%d' % (21 + q))
            E('v_sub_f32 v47, v%d, v46' % (21 + q))
            E('v_exp_f32 v%d, v47' % (57 + q))
            E('v_mov_b32 v%d, v46' % (21 + q))
            E('v_mul_f32 v%d, v%d, v%d' % (24 + q, 24 + q, 57 + q))

    PB4 = [96, 112, 160, 176]
    pvc = [0]
    def C(cost, fn):
        fn.cost = cost
        return fn
    def pv_anchors(lst):
        steps = []
        for (t, qs, first) in lst:
            for n in range(8):
                steps.append((t, qs, first, n))
        base = pvc[0]
        pvc[0] += len(steps)
        def reads(i):
            t, qs, first, n = steps[i]
            u, hf = n // 2, n % 2
            b = PB4[(base + i) & 3]
            vb = 14 if (t & 1) == 0 else 10
            tag = 'pv%d' % (base + i)
            out = []
            for ee in range(2):
                out.append(lambda ee=ee: E('ds_read_b64_tr_b16 v[%d:%d], v%d offset:%d' % (
                    b + 2 * ee, b + 2 * ee + 1, vb, (32 * u + 16 * hf + 8 * ee) * 256), tag=tag))
            for qt in qs:
                off = PSL[(qt, t)] + u * 2048 + hf * 1024
                out.append(lambda qt=qt, off=off: E('ds_read_b128 v[%d:%d], v11 offset:%d' % (
                    b + 4 + 4 * qt, b + 7 + 4 * qt, off), tag=tag))
            return out
        pro = reads(0) + reads(1)
        anc = []
        for i, (t, qs, first, n) in enumerate(steps):
            b = PB4[(base + i) & 3]
            rd = reads(i + 2) if i + 2 < len(steps) else []
            k = len(qs)
            for x, qt in enumerate(qs):
                o = OA[t >> 1] + 16 * qt
                src = '0' if (first and n == 0) else 'a[%d:%d]' % (o, o + 15)
                fn = (lambda o=o, b=b, qt=qt, src=src: E('v_mfma_f32_32x32x16_bf16 a[%d:%d], v[%d:%d], v[%d:%d], %s' % (
                    o, o + 15, b, b + 3, b + 4 + 4 * qt, b + 7 + 4 * qt, src)))
                pre = [lambda i=i: e.wait(lds='pv%d' % (base + i))] if x == 0 else []
                post = rd[len(rd) * x // k: len(rd) * (x + 1) // k]
                anc.append((pre, fn, post))
        return pro, anc

    WOR = 240
    def wo_loads():
        out = []
        def pre():
            E('s_lshr_b32 s4, s2, 2')
            E('s_lshl_b32 s4, s4, 16')
            E('s_and_b32 s5, s2, 3')
            E('s_lshl_b32 s5, s5, 8')
            E('s_add_u32 s4, s4, s5')
            E('s_lshl_b32 s5, s3, 14')
            E('s_add_u32 s56, s4, s5')
            E('v_lshrrev_b32 v3, 4, v1')
            E('v_and_b32 v4, 15, v1')
            E('v_lshlrev_b32 v3, 10, v3')
            E('v_lshl_add_u32 v3, v4, 4, v3')
        out.append(pre)
        for m in range(4):
            def f(m=m):
                E('s_add_u32 s6, s56, %d' % (m * 4096))
                E('buffer_load_dwordx4 a[%d:%d], v3, s[24:27], s6 offen' % (WOR + 4 * m, WOR + 4 * m + 3), tag='WO')
            out.append(f)
        return out
    def v_store(t):
        out = [C(0, lambda: vwait('V%d' % t))]
        def pre():
            E('s_lshl_b32 s4, s3, 13')
            E('s_add_u32 s4, s4, %d' % VS[t])
            E('v_add_u32 v55, s4, v13')
        out.append(pre)
        for mm in range(8):
            r = 192 + (t - 2) * 32 + mm * 4
            out.append(lambda r=r, mm=mm: E('ds_write_b128 v55, v[%d:%d] offset:%d' % (r, r + 3, mm * 1024)))
        return out
    def iss(n):
        return [C(20, lambda: issue(SLOWCOST))] * n

    E('v_add_u32 v10, 0x%x, v14' % (VS[1] - VS[0]))
    for f in ktr(0):
        f()
    e.wait(lds='kt0')
    stamp()
    for u in range(6):
        h, q = u // 3, u % 3
        t0, t1 = 2 * h, 2 * h + 1
        sa = [([], f, []) for f in s_mf(u, t0)] + [([], f, []) for f in s_mf(u, t1)]
        if q == 0:
            sa[8] = ([lambda t1=t1: e.wait(lds='kt%d' % t1)], sa[8][1], [])
        pro = []
        if u in (4, 5):
            pro, pa = pv_anchors([(u - 4, (0, 1, 2), u == 4)])
            anc = sa[:2] + merge(sa[2:], pa[:PVS]) + pa[PVS:]
        else:
            anc = sa
        i7 = [k for k, a in enumerate(anc) if a[1] is sa[7][1]][0]
        i15 = [k for k, a in enumerate(anc) if a[1] is sa[15][1]][0]
        s0, s1 = [], []
        if u > 0:
            pu = u - 1
            s0 = exp_ops(pu, 2 * (pu // 3))
            s1 = exp_ops(pu, 2 * (pu // 3) + 1)
        if q == 0:
            s0 = ktr(t1) + s0 if KTF else merge(s0, ktr(t1))
        if u == 2:
            s1 = merge(s1, ktr(2))
        if u == 5:
            s1 = merge(s1, v_store(2))
        if u == 4:
            s1 = merge(s1, wo_loads())
        s0 = merge(s0, iss(NV_S[u][0]))
        s1 = merge(s1, iss(NV_S[u][1]))
        cons = [(i7 + 1, f) for f in max_ops(u, t0)] + [(i15 + 1, f) for f in max_ops(u, t1)]
        for f in pro:
            f()
        if q == 0:
            sched(e, anc[:8], s0)
            sched(e, anc[8:], s1, [(m - 8, f) for m, f in cons])
        else:
            sched(e, anc, s0 + s1, cons)
        exchange(u)
        if u == 2:
            stamp(True)
    tail = exp_ops(5, 2) + exp_ops(5, 3)
    tail = merge(tail, v_store(3))
    for qt in range(3):
        tail.append(lambda qt=qt: E('ds_write_b32 v60, v%d offset:%d' % (24 + qt, LSTAT - STATS + qt * 1024)))
    def stg():
        e.wait(vm='WO')
        E('s_lshl_b32 s4, s3, 12')
        E('s_add_u32 s4, s4, %d' % WOST)
        E('v_add_u32 v56, s4, v13')
        for m in range(4):
            E('ds_write_b128 v56, a[%d:%d] offset:%d' % (WOR + 4 * m, WOR + 4 * m + 3, m * 1024))
    tail.append(stg)
    pro, pa = pv_anchors([(2, (0, 1), True)])
    for f in pro:
        f()
    sched(e, pa, tail, lead=100)
    e.wait(lds='all')
    stamp()
    E('s_barrier')
    stamp(True)
    b = []
    TB = [64, 80, 128]
    for qt in range(3):
        def ls(qt=qt):
            E('ds_read_b128 v[46:49], v61 offset:%d' % (LSTAT - STATS + qt * 1024), tag='ls%d' % qt)
            E('ds_read_b128 v[50:53], v61 offset:%d' % (LSTAT - STATS + qt * 1024 + 16), tag='ls%d' % qt)
            e.wait(lds='ls%d' % qt)
            E('v_add_f32 v46, v46, v47')
            E('v_add_f32 v48, v48, v49')
            E('v_add_f32 v50, v50, v51')
            E('v_add_f32 v52, v52, v53')
            E('v_add_f32 v46, v46, v48')
            E('v_add_f32 v50, v50, v52')
            E('v_add_f32 v46, v46, v50')
            E('v_rcp_f32 v%d, v46' % (24 + qt))
            E('v_mul_f32 v%d, v%d, v%d' % (57 + qt, 57 + qt, 24 + qt))
        b.append(ls)
        for r in range(16):
            def f(qt=qt, r=r):
                E('v_accvgpr_read_b32 v%d, a%d' % (TB[qt] + r, OA[0] + 16 * qt + r))
                E('v_mul_f32 v%d, v%d, v%d' % (TB[qt] + r, TB[qt] + r, 57 + qt))
            b.append(f)
    def wt_addr():
        E('v_lshrrev_b32 v46, 4, v1')
        E('v_lshrrev_b32 v47, 2, v1')
        E('v_and_b32 v47, 3, v47')
        E('v_and_b32 v48, 3, v1')
        E('v_lshl_add_u32 v49, v46, 3, v47')
        E('v_lshlrev_b32 v49, 8, v49')
        E('v_xor_b32 v50, s3, v47')
        E('v_lshl_add_u32 v49, v50, 6, v49')
        E('v_lshl_add_u32 v49, v48, 3, v49')
        E('v_add_u32 v49, 0x%x, v49' % WOST)
        for kk in range(2):
            for nn in range(2):
                for hh in range(2):
                    r = 30 + (kk * 2 + nn) * 4 + 2 * hh
                    E('ds_read_b64_tr_b16 v[%d:%d], v49 offset:%d' % (r, r + 1, (32 * kk + 4 * hh) * 256 + nn * 32), tag='wt')
    b.append(wt_addr)
    pro, pa = pv_anchors([(2, (2,), True), (3, (0, 1, 2), False)])
    for f in pro:
        f()
    sched(e, pa, b, lead=60)
    stamp()
    E('s_mul_i32 s4, s37, 393216')
    E('s_lshl_b32 s5, s39, 2')
    E('s_add_u32 s5, s5, s3')
    E('s_mul_i32 s5, s5, 3072')
    E('s_add_u32 s57, s4, s5')
    for qt in range(3):
        T = TB[qt]
        U = 96 + (qt & 1) * 16
        for r in range(16):
            E('v_accvgpr_read_b32 v%d, a%d' % (U + r, OA[1] + 16 * qt + r))
        for r in range(16):
            E('v_fma_f32 v%d, v%d, v%d, v%d' % (T + r, U + r, 24 + qt, T + r))
        for k in range(8):
            E('v_cvt_pk_bf16_f32 v%d, v%d, v%d' % (T + k, T + 2 * k, T + 2 * k + 1))
        for k in (0, 2):
            E('v_permlane32_swap_b32 v%d, v%d' % (T + 2 * k, T + 2 * k + 2))
            E('v_permlane32_swap_b32 v%d, v%d' % (T + 2 * k + 1, T + 2 * k + 3))
            E('buffer_store_dwordx4 v[%d:%d], v%d, s[28:31], s57 offen offset:%d%s' % (T + 2 * k, T + 2 * k + 3, 27 + qt, k * 256, STPOL))
    E('s_and_b32 s4, s2, 3')
    E('s_lshl_b32 s4, s4, 3')
    E('s_lshl_b32 s5, s3, 1')
    E('s_add_u32 s4, s4, s5')
    E('s_lshl_b32 s4, s4, 17')
    E('s_lshr_b32 s5, s2, 2')
    E('s_lshl_b32 s5, s5, 11')
    E('s_add_u32 s4, s4, s5')
    E('s_add_u32 s4, s4, 0x%x' % WOT_OFF)
    E('s_add_u32 s5, s4, 0x20000')
    e.wait(lds='wt')
    for kk in range(2):
        for nn in range(2):
            r = 30 + (kk * 2 + nn) * 4
            E('buffer_store_dwordx4 v[%d:%d], v11, s[28:31], s%d offen offset:%d%s' % (r, r + 3, 4 + nn, kk * 1024, STPOL))
    stamp(True)
    e.label('L_a_done')
    E('s_endpgm')
    return e


def kernel_b():
    e = Emitter()
    E = e
    e.raw('.p2align 8')
    e.raw('.globl %s' % KB)
    e.raw('.type %s,@function' % KB)
    e.label(KB)
    E('s_cmp_ge_u32 s2, 256')
    E('s_cbranch_scc1 L_b_done')
    E('s_load_dwordx2 s[40:41], s[0:1], 40')
    E('s_load_dwordx2 s[42:43], s[0:1], 56')
    E('v_and_b32 v1, 63, v0')
    E('v_lshrrev_b32 v2, 6, v0')
    E('s_nop 0')
    E('v_readfirstlane_b32 s3, v2')
    E('s_and_b32 s4, s2, 7')
    E('s_lshr_b32 s5, s2, 3')
    E('s_lshr_b32 s6, s4, 1')
    E('s_lshl_b32 s6, s6, 2')
    E('s_lshr_b32 s7, s5, 3')
    E('s_add_u32 s37, s6, s7')
    E('s_and_b32 s6, s4, 1')
    E('s_lshl_b32 s6, s6, 3')
    E('s_and_b32 s7, s5, 7')
    E('s_add_u32 s38, s6, s7')
    E('v_lshlrev_b32 v11, 4, v1')
    E('s_mul_i32 s32, s37, 393216')
    E('s_mul_i32 s4, s3, 49152')
    E('s_add_u32 s32, s32, s4')
    E('s_lshl_b32 s33, s38, 18')
    E('s_lshl_b32 s4, s3, 14')
    E('s_add_u32 s33, s33, s4')
    E('s_add_u32 s33, s33, 0x%x' % WOT_OFF)
    E('s_add_u32 s34, s33, 0x20000')
    E('s_waitcnt lgkmcnt(0)')
    E('s_mov_b32 s8, s40')
    E('s_and_b32 s9, s41, 0xffff')
    E('s_mov_b32 s10, 786432')
    E('s_mov_b32 s11, 0x20000')
    E('s_mov_b32 s28, s42')
    E('s_and_b32 s29, s43, 0xffff')
    E('s_mov_b32 s30, 0x%x' % WS_SIZE)
    E('s_mov_b32 s31, 0x20000')
    D = 5
    ACC = 16
    FR = 40
    def loads(i):
        base = FR + (i % D) * 20
        E('s_add_u32 s5, s32, %d' % (i * 3072))
        for st in range(3):
            E('buffer_load_dwordx4 v[%d:%d], v11, s[28:31], s5 offen offset:%d' % (base + 4 * st, base + 4 * st + 3, st * 1024), tag='k%d' % i)
        E('s_add_u32 s6, s33, %d' % (i * 1024))
        E('s_add_u32 s7, s34, %d' % (i * 1024))
        E('buffer_load_dwordx4 v[%d:%d], v11, s[28:31], s6 offen' % (base + 12, base + 15), tag='k%d' % i)
        E('buffer_load_dwordx4 v[%d:%d], v11, s[28:31], s7 offen' % (base + 16, base + 19), tag='k%d' % i)
    for i in range(D):
        loads(i)
    for i in range(16):
        base = FR + (i % D) * 20
        e.wait(vm='k%d' % i)
        for nn in range(2):
            for st in range(3):
                a = ACC + (nn * 3 + st) * 4
                src = 'v[%d:%d]' % (a, a + 3) if i > 0 else '0'
                E('v_mfma_f32_16x16x32_bf16 v[%d:%d], v[%d:%d], v[%d:%d], %s' % (
                    a, a + 3, base + 12 + 4 * nn, base + 15 + 4 * nn, base + 4 * st, base + 4 * st + 3, src))
        if i + D < 16:
            loads(i + D)
    E('s_mul_i32 s4, s3, 6144')
    E('v_add_u32 v12, s4, v11')
    for tl in range(6):
        E('ds_write_b128 v12, v[%d:%d] offset:%d' % (ACC + 4 * tl, ACC + 4 * tl + 3, tl * 1024))
    e.wait(lds='all')
    E('s_barrier')
    E('s_cmp_ge_u32 s3, 6')
    E('s_cbranch_scc1 L_b_done')
    E('s_lshl_b32 s4, s3, 10')
    E('v_add_u32 v12, s4, v11')
    for wv in range(8):
        E('ds_read_b128 v[%d:%d], v12 offset:%d' % (FR + 4 * wv, FR + 4 * wv + 3, wv * 6144), tag='r%d' % wv)
    e.wait(lds='r1')
    for r in range(4):
        E('v_add_f32 v%d, v%d, v%d' % (16 + r, FR + r, FR + 4 + r))
    for wv in range(2, 8):
        e.wait(lds='r%d' % wv)
        for r in range(4):
            E('v_add_f32 v%d, v%d, v%d' % (16 + r, 16 + r, FR + 4 * wv + r))
    E('v_cvt_pk_bf16_f32 v20, v16, v17')
    E('v_cvt_pk_bf16_f32 v21, v18, v19')
    E('s_cmp_ge_u32 s3, 3')
    E('s_cselect_b32 s4, 1, 0')
    E('s_mul_i32 s5, s4, 3')
    E('s_sub_u32 s5, s3, s5')
    E('s_mul_i32 s6, s37, 49152')
    E('s_lshl_b32 s5, s5, 14')
    E('s_add_u32 s6, s6, s5')
    E('s_lshl_b32 s5, s38, 6')
    E('s_add_u32 s6, s6, s5')
    E('s_lshl_b32 s4, s4, 5')
    E('s_add_u32 s6, s6, s4')
    E('v_and_b32 v2, 15, v1')
    E('v_lshrrev_b32 v3, 4, v1')
    E('v_lshlrev_b32 v2, 10, v2')
    E('v_lshl_add_u32 v2, v3, 3, v2')
    E('buffer_store_dwordx2 v[20:21], v2, s[8:11], s6 offen')
    e.label('L_b_done')
    E('s_endpgm')
    return e


def kd(name, vgpr, accum, sgpr=72):
    return '''.p2align 6
.amdhsa_kernel %s
  .amdhsa_next_free_vgpr %d
  .amdhsa_next_free_sgpr %d
  .amdhsa_accum_offset %d
  .amdhsa_group_segment_fixed_size 0
  .amdhsa_kernarg_size 64
  .amdhsa_user_sgpr_count 2
  .amdhsa_user_sgpr_kernarg_segment_ptr 1
  .amdhsa_system_sgpr_workgroup_id_x 1
.end_amdhsa_kernel
''' % (name, vgpr, sgpr, accum)


def main():
    global DIAG
    global DIAG_ALL
    if len(sys.argv) > 2 and sys.argv[2].startswith('diag'):
        DIAG = True
        DIAG_ALL = sys.argv[2] == 'diag'
    for kv in sys.argv[3:]:
        k, v = kv.split('=', 1)
        globals()[k] = eval(v)
    ref = open('cdna_kernels/%s.s.ref' % NAME).read().splitlines()
    head = [l for l in ref if l.startswith(';') and '@launch' not in l and 'launch geometry' not in l and 'grid=ceil' not in l]
    a = kernel_a()
    b = kernel_b()
    out = '\n'.join(head) + '\n'
    out += '; @launch kernel=%s grid=(256,1,1) block=(256,1,1) lds=%d\n' % (KA, LDS_A)
    out += '; @launch kernel=%s grid=(256,1,1) block=(512,1,1) lds=49152\n' % KB
    out += '.amdgcn_target "amdgcn-amd-amdhsa--gfx950"\n.text\n'
    out += a.text() + b.text()
    out += '.section .rodata,"a"\n'
    out += kd(KA, 512, 256) + kd(KB, 144, 144)
    path = sys.argv[1] if len(sys.argv) > 1 else 'cdna_kernels/%s.s' % NAME
    open(path, 'w').write(out)
    print('nops inserted: A %d  B %d; lines %d' % (a.nops_inserted, b.nops_inserted, out.count('\n')))


if __name__ == '__main__':
    main()
```

```python
import struct, sys, math
from emit import Emitter, merge, sched

NAME = 'standalone__gqa_block_cached__near_ridge'
KA = 'gqa_attn_kernel'
KB = 'gqa_oproj_kernel'

def f32bits(x):
    return struct.unpack('<I', struct.pack('<f', x))[0]

XB = 0
QB = 24576
PB = [0, 24576]
RING = 49152
RING_W = 12288
NSLOT = 3
VS = [98304, 131072, 98304, 131072]
STATS = 81920
LSTAT = 86016
WOST = 65536
LDS_A = 163840

WOT_OFF = 0x800000
WS_SIZE = 0x1000000


DIAG = False
DIAG_ALL = True
PRO0, PRO1, STEPN, SLOWCOST = 12, 8, 8, 6
KFIRST = 0
KORD = 1
KVPOL = ''
STPOL = ''
PVS = 16
KTF = 0
NOLOAD = 0
ROT = 0
CI, KI = 3, 0
NV_LATE = 40
NV_S = [[4, 4], [4, 4], [4, 4], [4, 4], [4, 4], [0, 0]]
def kernel_a():
    e = Emitter()
    E = e
    stampc = [0]
    def stamp(key=False):
        if not DIAG or not (DIAG_ALL or key):
            return
        i = stampc[0]; stampc[0] += 1
        E('s_memtime s[60:61]')
        E('s_waitcnt lgkmcnt(0)')
        E('s_lshl_b32 s58, s2, 2')
        E('s_add_u32 s58, s58, s3')
        E('s_lshl_b32 s58, s58, 8')
        E('s_add_u32 s58, s58, 0x%x' % (0xC00000 + i * 8))
        E('v_mov_b32 v63, 0')
        E('v_mov_b32 v0, s60')
        E('buffer_store_dword v0, v63, s[28:31], s58 offen', tag='stamp')
        E('v_mov_b32 v0, s61')
        E('buffer_store_dword v0, v63, s[28:31], s58 offen offset:4', tag='stamp')
    e.raw('.p2align 8')
    e.raw('.globl %s' % KA)
    e.raw('.type %s,@function' % KA)
    e.label(KA)
    E('s_cmp_ge_u32 s2, 256')
    E('s_cbranch_scc1 L_a_done')
    E('s_load_dwordx16 s[40:55], s[0:1], 0')
    E('v_and_b32 v1, 63, v0')
    E('v_lshrrev_b32 v2, 6, v0')
    E('s_nop 0')
    E('v_readfirstlane_b32 s3, v2')
    E('s_and_b32 s38, s2, 7')
    E('s_lshr_b32 s4, s2, 3')
    E('s_lshr_b32 s37, s4, 1')
    E('s_and_b32 s4, s4, 1')
    E('s_lshl_b32 s39, s38, 2')
    E('s_lshl_b32 s4, s4, 1')
    E('s_add_u32 s39, s39, s4')
    E('s_lshl_b32 s4, s37, 3')
    E('s_add_u32 s4, s4, s38')
    E('s_lshl_b32 s32, s4, 17')
    E('s_lshl_b32 s5, s3, 15')
    E('s_add_u32 s32, s32, s5')
    E('s_lshr_b32 s5, s2, 3')
    E('s_and_b32 s5, s5, 1')
    E('s_mul_i32 s5, s5, %d' % ROT)
    for kt in range(4):
        E('s_add_u32 s6, s5, %d' % kt)
        E('s_and_b32 s6, s6, 3')
        E('s_lshl_b32 s6, s6, 13')
        E('s_add_u32 s%d, s32, s6' % (64 + kt))
    E('s_mul_i32 s33, s37, 49152')
    E('s_mul_i32 s5, s3, 12288')
    E('s_add_u32 s33, s33, s5')
    E('s_lshl_b32 s34, s39, 8')
    E('s_lshl_b32 s5, s3, 7')
    E('s_add_u32 s34, s34, s5')
    E('s_mul_i32 s35, s3, %d' % RING_W)
    E('s_add_u32 s35, s35, %d' % RING)
    E('s_mov_b32 s36, 0x%08x' % f32bits(math.log2(math.e) / math.sqrt(128.0)))
    E('v_and_b32 v46, 15, v1')
    E('v_lshrrev_b32 v47, 4, v1')
    E('v_xor_b32 v2, v46, v47')
    E('v_lshlrev_b32 v2, 4, v2')
    E('v_lshl_add_u32 v2, v46, 10, v2')
    E('v_lshlrev_b32 v11, 4, v1')
    E('v_lshrrev_b32 v48, 3, v1')
    E('v_and_b32 v49, 7, v1')
    E('v_lshrrev_b32 v50, 1, v49')
    E('v_and_b32 v51, 1, v47')
    E('v_xor_b32 v50, v50, v51')
    E('v_and_b32 v52, 1, v49')
    E('v_lshlrev_b32 v52, 4, v52')
    E('v_lshl_add_u32 v53, v48, 13, v52')
    E('v_lshl_add_u32 v3, v50, 5, v53')
    E('v_xor_b32 v50, 2, v50')
    E('v_lshl_add_u32 v4, v50, 5, v53')
    E('v_add_u32 v4, 0x10000, v4')
    E('v_add_u32 v5, 0x20000, v3')
    E('v_add_u32 v6, 0x20000, v4')
    E('v_lshrrev_b32 v48, 2, v1')
    E('v_and_b32 v48, 3, v48')
    E('v_and_b32 v49, 3, v1')
    E('v_lshrrev_b32 v50, 1, v48')
    E('v_lshlrev_b32 v51, 1, v51')
    E('v_or_b32 v50, v50, v51')
    E('v_lshl_add_u32 v52, v47, 3, v48')
    E('v_lshlrev_b32 v52, 7, v52')
    E('v_lshl_add_u32 v52, v49, 3, v52')
    E('v_add_u32 v52, s35, v52')
    for t in range(4):
        E('v_xor_b32 v53, %d, v50' % t)
        E('v_lshl_add_u32 v%d, v53, 5, v52' % (7 + t))
    E('v_and_b32 v53, 31, v1')
    E('v_lshrrev_b32 v54, 5, v1')
    E('v_lshlrev_b32 v12, 4, v46')
    E('v_lshl_add_u32 v12, v47, 8, v12')
    E('v_lshlrev_b32 v55, 2, v47')
    E('v_xor_b32 v55, v55, v46')
    E('v_lshlrev_b32 v55, 4, v55')
    E('v_lshl_add_u32 v13, v47, 8, v55')
    E('v_lshl_add_u32 v55, v54, 2, v48')
    E('v_lshlrev_b32 v55, 8, v55')
    E('v_xor_b32 v56, s3, v48')
    E('v_lshl_add_u32 v55, v56, 6, v55')
    E('v_and_b32 v56, 1, v47')
    E('v_lshl_add_u32 v55, v56, 5, v55')
    E('v_lshl_add_u32 v14, v49, 3, v55')
    E('v_add_u32 v14, %d, v14' % VS[0])
    E('s_lshl_b32 s4, s3, 11')
    E('v_add_u32 v15, s4, v11')
    E('v_lshlrev_b32 v55, 4, v46')
    E('v_lshl_add_u32 v55, v54, 9, v55')
    E('v_lshl_add_u32 v55, v56, 3, v55')
    E('s_lshr_b32 s4, s3, 1')
    E('s_mul_i32 s4, s4, 3')
    E('s_and_b32 s5, s3, 1')
    E('s_lshl_b32 s5, s5, 12')
    E('s_add_u32 s5, s5, %d' % QB)
    for st in range(3):
        E('s_add_u32 s6, s4, %d' % st)
        E('s_lshr_b32 s7, s6, 1')
        E('s_lshl_b32 s7, s7, 13')
        E('s_and_b32 s6, s6, 1')
        E('s_lshl_b32 s6, s6, 8')
        E('s_add_u32 s6, s6, s7')
        E('s_add_u32 s6, s6, s5')
        E('v_add_u32 v%d, s6, v55' % (16 + st))
    E('v_lshlrev_b32 v20, 5, v53')
    E('v_lshl_add_u32 v19, v54, 2, v20')
    E('s_lshl_b32 s4, s3, 3')
    E('v_add_u32 v19, s4, v19')
    E('v_lshlrev_b32 v55, 4, v46')
    E('v_lshl_add_u32 v55, v54, 8, v55')
    for qt in range(3):
        E('v_add_u32 v57, %d, v56' % (2 * qt))
        E('v_cmp_le_u32 vcc, 3, v57')
        E('v_subrev_u32 v58, 3, v57')
        E('v_lshlrev_b32 v58, 10, v58')
        E('v_add_u32 v58, 12288, v58')
        E('v_lshlrev_b32 v57, 10, v57')
        E('v_cndmask_b32 v57, v57, v58, vcc')
        E('v_add_u32 v%d, v57, v55' % (27 + qt))
    E('s_waitcnt lgkmcnt(0)')
    def srd(d, lo, size):
        E('s_mov_b32 s%d, s%d' % (d, lo))
        E('s_and_b32 s%d, s%d, 0xffff' % (d + 1, lo + 1))
        E('s_mov_b32 s%d, 0x%x' % (d + 2, size))
        E('s_mov_b32 s%d, 0x20000' % (d + 3))
    srd(8, 40, 786432)
    srd(12, 42, 16777216)
    srd(16, 44, 16777216)
    srd(20, 46, 4194304)
    srd(24, 48, 4194304)
    srd(28, 54, WS_SIZE)

    stamp(True)
    for n in range(KFIRST):
        E('s_add_u32 s7, s%d, %d' % (64 + n // 8, (n % 8) * 1024))
        E('buffer_load_dwordx4 a[%d:%d], v12, s[12:15], s7 offen' % (n * 4, n * 4 + 3), tag='K%d' % (n // 8))
    E('s_mul_i32 s4, s3, 12288')
    for i in range(12):
        E('s_mul_i32 s5, s3, 12')
        E('s_add_u32 s5, s5, %d' % i)
        E('s_and_b32 s5, s5, 15')
        E('s_lshl_b32 s5, s5, 4')
        E('v_xor_b32 v%d, s5, v11' % (60 + (i & 1)))
        E('s_add_u32 s5, s4, %d' % (XB + i * 1024))
        E('s_mov_b32 m0, s5')
        E('s_add_u32 s6, s33, %d' % (i * 1024))
        E('buffer_load_dwordx4 v%d, s[8:11], s6 offen lds' % (60 + (i & 1)), tag='x')

    def wq_dma(c):
        out = []
        for m in range(4):
            def f(m=m):
                E('s_add_u32 s5, s35, %d' % ((c % NSLOT) * 4096 + m * 1024))
                E('s_mov_b32 m0, s5')
                E('s_add_u32 s6, s34, %d' % (c * 262144))
                E('buffer_load_dwordx4 v%d, s[20:23], s6 offen lds' % (3 + m), tag='wq%d' % c)
            out.append(f)
        return out

    def wq_reg(c):
        if c < 8:
            return 'v', 168 + (c - 3) * 16
        return 'a', 128 + (c - 8) * 16

    def wq_load(c):
        out = []
        fl, r = wq_reg(c)
        for m in range(4):
            def f(m=m):
                E('s_add_u32 s6, s34, %d' % (c * 262144))
                E('buffer_load_dwordx4 %s[%d:%d], v%d, s[20:23], s6 offen' % (fl, r + 4 * m, r + 4 * m + 3, 3 + m), tag='wq%d' % c)
            out.append(f)
        return out

    def wq_write(c):
        out = []
        fl, r = wq_reg(c)
        out.append(lambda: e.wait(vm='wq%d' % c))
        for m in range(4):
            out.append(lambda m=m: E('ds_write_b128 v59, %s[%d:%d] offset:%d' % (fl, r + 4 * m, r + 4 * m + 3, (c % NSLOT) * 4096 + m * 1024)))
        return out

    ACC = 64
    AF = [112, 128]
    BF = [144, 156]

    def p1_reads(c):
        out = []
        bu = c & 1
        sl = c % NSLOT
        out.append(lambda: E('v_xor_b32 v%d, %d, v2' % (60 + bu, c * 64)))
        for st in range(3):
            out.append(lambda st=st: E('ds_read_b128 v[%d:%d], v%d offset:%d' % (BF[bu] + 4 * st, BF[bu] + 4 * st + 3, 60 + bu, XB + st * 16384), tag='p1r%d' % c))
        for t in range(4):
            for hh in range(2):
                out.append(lambda t=t, hh=hh: E('ds_read_b64_tr_b16 v[%d:%d], v%d offset:%d' % (
                    AF[bu] + 4 * t + 2 * hh, AF[bu] + 4 * t + 2 * hh + 1, 7 + t, sl * 4096 + hh * 512), tag='p1r%d' % c))
        return out

    def kload(n):
        def f():
            E('s_add_u32 s7, s%d, %d' % (64 + n // 8, (n % 8) * 1024))
            E('buffer_load_dwordx4 a[%d:%d], v12, s[12:15], s7 offen%s' % (n * 4, n * 4 + 3, KVPOL), tag='K%d' % (n // 8))
        return f

    def v_chunk(t):
        out = []
        for mm in range(8):
            def f(mm=mm):
                E('s_lshl_b32 s5, s3, 13')
                E('s_add_u32 s5, s5, %d' % (VS[t] + mm * 1024))
                E('s_mov_b32 m0, s5')
                E('s_add_u32 s6, s%d, %d' % (64 + t, mm * 1024))
                E('buffer_load_dwordx4 v13, s[16:19], s6 offen%s lds' % KVPOL, tag='V%d' % t)
            out.append(f)
        return out

    def v_regs(t):
        out = []
        for mm in range(8):
            def f(mm=mm):
                r = 192 + (t - 2) * 32 + mm * 4
                E('s_add_u32 s6, s%d, %d' % (64 + t, mm * 1024))
                E('buffer_load_dwordx4 v[%d:%d], v12, s[16:19], s6 offen%s' % (r, r + 3, KVPOL), tag='V%d' % t)
            out.append(f)
        return out
    E('v_add_u32 v59, s35, v11')
    seq = []
    if KORD:
        slow = [kload(n) for n in range(KFIRST, 32)] + v_chunk(0) + v_chunk(1) + v_regs(2) + v_regs(3)
    else:
        slow = [kload(n) for n in range(KFIRST, 16)] + v_chunk(0) + v_chunk(1) + [kload(n) for n in range(16, 32)] + v_regs(2) + v_regs(3)
    for c in range(3):
        seq += wq_dma(c)
    for c in range(3, 16):
        seq += wq_load(c)
        if c >= CI:
            seq += slow[:KI]
            slow = slow[KI:]
    nfast = len(seq)
    seq += slow
    LEFT = {'K0': 56, 'K1': 48, 'V0': 40, 'V1': 32, 'K2': 24, 'K3': 16, 'V2': 8, 'V3': 0}
    if KORD:
        LEFT = {'K0': 56, 'K1': 48, 'K2': 40, 'K3': 32, 'V0': 24, 'V1': 16, 'V2': 8, 'V3': 0}
    def vwait(tag):
        nf = 0
        while len(seq) > LEFT[tag]:
            issue(SLOWCOST); nf += 1
        if nf:
            print('forced issue of %d loads for %s' % (nf, tag))
        e.wait(vm=tag)
    issued = [0]
    def issue(maxn=1000):
        n = 0
        while seq and len(e.vmq) < 62 and n < maxn:
            seq.pop(0)()
            n += 1 if issued[0] < nfast else SLOWCOST
            issued[0] += 1
    stamp()
    issue(PRO0)
    stamp()
    e.wait(vm='wq0')
    stamp()
    E('s_barrier')
    stamp()
    issue(PRO1)
    for f in p1_reads(0):
        f()
    for c in range(16):
        bu = c & 1
        e.wait(lds='p1r%d' % c)
        if c in (2, 4, 6, 8, 12):
            stamp()
        rd = []
        if c + 1 < 16:
            if c + 1 < 3:
                rd.append(lambda c=c: e.wait(vm='wq%d' % (c + 1)))
            rd += p1_reads(c + 1)
        rd2 = []
        if 3 <= c + 2 < 16:
            rd2 = wq_write(c + 2)
        rd2.append(lambda: issue(STEPN))
        mf = []
        for nt in range(4):
            for st in range(3):
                a = ACC + (nt * 3 + st) * 4
                src = 'v[%d:%d]' % (a, a + 3) if c > 0 else '0'
                mf.append(lambda a=a, nt=nt, st=st, src=src: E('v_mfma_f32_16x16x32_bf16 v[%d:%d], v[%d:%d], v[%d:%d], %s' % (
                    a, a + 3, AF[bu] + 4 * nt, AF[bu] + 4 * nt + 3, BF[bu] + 4 * st, BF[bu] + 4 * st + 3, src)))
        for f in merge(mf[:6], rd) + merge(mf[6:], rd2):
            f()
    for nt in range(4):
        for st in range(3):
            a = ACC + (nt * 3 + st) * 4
            E('v_cvt_pk_bf16_f32 v%d, v%d, v%d' % (a, a, a + 1))
            E('v_cvt_pk_bf16_f32 v%d, v%d, v%d' % (a + 1, a + 2, a + 3))
    stamp(True)
    E('s_barrier')
    for nt in range(4):
        for st in range(3):
            a = ACC + (nt * 3 + st) * 4
            E('ds_write_b64 v%d, v[%d:%d] offset:%d' % (16 + st, a, a + 1, nt * 1024))

    while len(seq) > NV_LATE:
        issue(SLOWCOST)
    if NOLOAD:
        del seq[:]
    e.wait(lds='all')
    E('s_barrier')
    QF = 128
    for qt in range(3):
        for ks in range(8):
            r = QF + (qt * 8 + ks) * 4
            E('ds_read_b128 a[%d:%d], v11 offset:%d' % (r, r + 3, QB + (qt * 8 + ks) * 1024), tag='Q')
    E('s_lshl_b32 s4, s3, 13')
    E('s_add_u32 s4, s4, 0xC000')
    E('v_and_b32 v46, 15, v1')
    E('v_lshrrev_b32 v47, 4, v1')
    E('v_xor_b32 v48, v46, v47')
    for jj in range(4):
        E('v_xor_b32 v49, %d, v48' % (4 * jj))
        E('v_lshlrev_b32 v49, 4, v49')
        E('v_lshl_add_u32 v49, v47, 8, v49')
        E('v_add_u32 v%d, s4, v49' % (6 + jj))
    E('v_and_b32 v46, 31, v1')
    E('v_lshrrev_b32 v47, 5, v1')
    E('v_and_b32 v48, 15, v1')
    E('v_xor_b32 v48, v48, v47')
    E('v_lshlrev_b32 v48, 4, v48')
    E('v_lshl_add_u32 v48, v46, 8, v48')
    E('v_add_u32 v54, s4, v48')
    E('v_add_u32 v60, 0x%x, v19' % STATS)
    E('v_add_u32 v61, 0x%x, v20' % STATS)
    def ktr(kt):
        w_ = lambda: vwait('K%d' % kt)
        w_.cost = 0
        out = [w_]
        for m in range(8):
            r = (kt * 8 + m) * 4
            out.append(lambda m=m, r=r: E('ds_write_b128 v%d, a[%d:%d] offset:%d' % (6 + (m & 3), r, r + 3, m * 1024)))
        for ks in range(8):
            r = (kt * 8 + ks) * 4
            def f(ks=ks, r=r):
                E('v_xor_b32 v%d, %d, v54' % (55 + (ks & 1), ks * 32))
                E('ds_read_b128 a[%d:%d], v%d' % (r, r + 3, 55 + (ks & 1)), tag='kt%d' % kt)
            out.append(f)
        return out
    SB = [64, 128]
    MX = 62
    def sreg(u, kt):
        return SB[u & 1] + (kt & 1) * 16
    def max_ops(u, kt):
        out = []
        for i in range(8):
            s_ = sreg(u, kt) + 2 * i
            if (kt & 1) == 0 and i == 0:
                out.append(lambda s_=s_: E('v_max_f32 v%d, v%d, v%d' % (MX, s_, s_ + 1)))
            else:
                out.append(lambda s_=s_: E('v_max3_f32 v%d, v%d, v%d, v%d' % (MX, s_, s_ + 1, MX)))
        return out
    def s_mf(u, kt):
        q = u % 3
        mf = []
        for ks in range(8):
            s_ = sreg(u, kt)
            src = 'v[%d:%d]' % (s_, s_ + 15) if ks > 0 else '0'
            kr = (kt * 8 + ks) * 4
            qr = QF + (q * 8 + ks) * 4
            mf.append(lambda s_=s_, kr=kr, qr=qr, src=src: E('v_mfma_f32_32x32x16_bf16 v[%d:%d], a[%d:%d], a[%d:%d], %s' % (
                s_, s_ + 15, kr, kr + 3, qr, qr + 3, src)))
        return mf
    PK = [30, 34, 38, 42]
    pkc = [0]
    OA = [0, 64]
    PSL = {(0, 0): 0, (0, 1): 8192, (1, 0): 16384, (1, 1): 24576, (2, 0): 32768, (2, 1): 40960,
           (0, 2): 49152, (0, 3): 57344, (1, 2): 0, (1, 3): 16384, (2, 2): 32768, (2, 3): 8192}
    def exp_ops(u, kt):
        q = u % 3
        out = []
        s0 = sreg(u, kt)
        for hf in range(2):
            pk = PK[pkc[0] % 4]; pkc[0] += 1
            regs = [s0 + 8 * hf + i for i in range(8)]
            for r in regs:
                out.append(lambda r=r: E('v_fma_f32 v%d, v%d, s36, -v%d' % (r, r, 21 + q)))
            for r in regs:
                out.append(lambda r=r: E('v_exp_f32 v%d, v%d' % (r, r)))
            for k, r in enumerate(regs):
                if kt == 0 and hf == 0 and k == 0:
                    out.append(lambda r=r: E('v_add_f32 v%d, v%d, v%d' % (24 + q, r, r + 1)))
                elif kt == 0 and hf == 0 and k == 1:
                    pass
                else:
                    out.append(lambda r=r: E('v_add_f32 v%d, v%d, v%d' % (24 + q, r, 24 + q)))
                if k & 1:
                    out.append(lambda r=r, pk=pk, k=k: E('v_cvt_pk_bf16_f32 v%d, v%d, v%d' % (pk + k // 2, r - 1, r)))
            off = PSL[(q, kt)] + hf * 1024
            out.append(lambda pk=pk, off=off: E('ds_write_b128 v15, v[%d:%d] offset:%d' % (pk, pk + 3, off)))
        return out
    def exchange(u):
        h, q = u // 3, u % 3
        E('ds_write_b32 v60, v%d offset:%d' % (MX, q * 1024))
        e.wait(lds='all')
        stamp()
        E('s_barrier')
        E('ds_read_b128 v[46:49], v61 offset:%d' % (q * 1024), tag='st')
        E('ds_read_b128 v[50:53], v61 offset:%d' % (q * 1024 + 16), tag='st')
        e.wait(lds='st')
        E('v_max3_f32 v46, v46, v47, v48')
        E('v_max3_f32 v50, v50, v51, v52')
        E('v_max3_f32 v46, v46, v49, v53')
        E('v_max_f32 v46, v46, v50')
        if h == 0:
            E('v_mul_f32 v%d, s36, v46' % (21 + q))
        else:
            E('v_mul_f32 v46, s36, v46')
            E('v_max_f32 v46, v46, v%d' % (21 + q))
            E('v_sub_f32 v47, v%d, v46' % (21 + q))
            E('v_exp_f32 v%d, v47' % (57 + q))
            E('v_mov_b32 v%d, v46' % (21 + q))
            E('v_mul_f32 v%d, v%d, v%d' % (24 + q, 24 + q, 57 + q))

    PB4 = [96, 112, 160, 176]
    pvc = [0]
    def C(cost, fn):
        fn.cost = cost
        return fn
    def pv_anchors(lst):
        steps = []
        for (t, qs, first) in lst:
            for n in range(8):
                steps.append((t, qs, first, n))
        base = pvc[0]
        pvc[0] += len(steps)
        def reads(i):
            t, qs, first, n = steps[i]
            u, hf = n // 2, n % 2
            b = PB4[(base + i) & 3]
            vb = 14 if (t & 1) == 0 else 10
            tag = 'pv%d' % (base + i)
            out = []
            for ee in range(2):
                out.append(lambda ee=ee: E('ds_read_b64_tr_b16 v[%d:%d], v%d offset:%d' % (
                    b + 2 * ee, b + 2 * ee + 1, vb, (32 * u + 16 * hf + 8 * ee) * 256), tag=tag))
            for qt in qs:
                off = PSL[(qt, t)] + u * 2048 + hf * 1024
                out.append(lambda qt=qt, off=off: E('ds_read_b128 v[%d:%d], v11 offset:%d' % (
                    b + 4 + 4 * qt, b + 7 + 4 * qt, off), tag=tag))
            return out
        pro = reads(0) + reads(1)
        anc = []
        for i, (t, qs, first, n) in enumerate(steps):
            b = PB4[(base + i) & 3]
            rd = reads(i + 2) if i + 2 < len(steps) else []
            k = len(qs)
            for x, qt in enumerate(qs):
                o = OA[t >> 1] + 16 * qt
                src = '0' if (first and n == 0) else 'a[%d:%d]' % (o, o + 15)
                fn = (lambda o=o, b=b, qt=qt, src=src: E('v_mfma_f32_32x32x16_bf16 a[%d:%d], v[%d:%d], v[%d:%d], %s' % (
                    o, o + 15, b, b + 3, b + 4 + 4 * qt, b + 7 + 4 * qt, src)))
                pre = [lambda i=i: e.wait(lds='pv%d' % (base + i))] if x == 0 else []
                post = rd[len(rd) * x // k: len(rd) * (x + 1) // k]
                anc.append((pre, fn, post))
        return pro, anc

    WOR = 240
    def wo_loads():
        out = []
        def pre():
            E('s_lshr_b32 s4, s2, 2')
            E('s_lshl_b32 s4, s4, 16')
            E('s_and_b32 s5, s2, 3')
            E('s_lshl_b32 s5, s5, 8')
            E('s_add_u32 s4, s4, s5')
            E('s_lshl_b32 s5, s3, 14')
            E('s_add_u32 s56, s4, s5')
            E('v_lshrrev_b32 v3, 4, v1')
            E('v_and_b32 v4, 15, v1')
            E('v_lshlrev_b32 v3, 10, v3')
            E('v_lshl_add_u32 v3, v4, 4, v3')
        out.append(pre)
        for m in range(4):
            def f(m=m):
                E('s_add_u32 s6, s56, %d' % (m * 4096))
                E('buffer_load_dwordx4 a[%d:%d], v3, s[24:27], s6 offen' % (WOR + 4 * m, WOR + 4 * m + 3), tag='WO')
            out.append(f)
        return out
    def v_store(t):
        out = [C(0, lambda: vwait('V%d' % t))]
        def pre():
            E('s_lshl_b32 s4, s3, 13')
            E('s_add_u32 s4, s4, %d' % VS[t])
            E('v_add_u32 v55, s4, v13')
        out.append(pre)
        for mm in range(8):
            r = 192 + (t - 2) * 32 + mm * 4
            out.append(lambda r=r, mm=mm: E('ds_write_b128 v55, v[%d:%d] offset:%d' % (r, r + 3, mm * 1024)))
        return out
    def iss(n):
        return [C(20, lambda: issue(SLOWCOST))] * n

    E('v_add_u32 v10, 0x%x, v14' % (VS[1] - VS[0]))
    for f in ktr(0):
        f()
    e.wait(lds='kt0')
    stamp()
    for u in range(6):
        h, q = u // 3, u % 3
        t0, t1 = 2 * h, 2 * h + 1
        sa = [([], f, []) for f in s_mf(u, t0)] + [([], f, []) for f in s_mf(u, t1)]
        if q == 0:
            sa[8] = ([lambda t1=t1: e.wait(lds='kt%d' % t1)], sa[8][1], [])
        pro = []
        if u in (4, 5):
            pro, pa = pv_anchors([(u - 4, (0, 1, 2), u == 4)])
            anc = sa[:2] + merge(sa[2:], pa[:PVS]) + pa[PVS:]
        else:
            anc = sa
        i7 = [k for k, a in enumerate(anc) if a[1] is sa[7][1]][0]
        i15 = [k for k, a in enumerate(anc) if a[1] is sa[15][1]][0]
        s0, s1 = [], []
        if u > 0:
            pu = u - 1
            s0 = exp_ops(pu, 2 * (pu // 3))
            s1 = exp_ops(pu, 2 * (pu // 3) + 1)
        if q == 0:
            s0 = ktr(t1) + s0 if KTF else merge(s0, ktr(t1))
        if u == 2:
            s1 = merge(s1, ktr(2))
        if u == 5:
            s1 = merge(s1, v_store(2))
        if u == 4:
            s1 = merge(s1, wo_loads())
        s0 = merge(s0, iss(NV_S[u][0]))
        s1 = merge(s1, iss(NV_S[u][1]))
        cons = [(i7 + 1, f) for f in max_ops(u, t0)] + [(i15 + 1, f) for f in max_ops(u, t1)]
        for f in pro:
            f()
        if q == 0:
            sched(e, anc[:8], s0)
            sched(e, anc[8:], s1, [(m - 8, f) for m, f in cons])
        else:
            sched(e, anc, s0 + s1, cons)
        if u == 3:
            vwait('V0')
        if u == 4:
            vwait('V1')
        exchange(u)
        if u == 2:
            stamp(True)
    tail = exp_ops(5, 2) + exp_ops(5, 3)
    tail = merge(tail, v_store(3))
    for qt in range(3):
        tail.append(lambda qt=qt: E('ds_write_b32 v60, v%d offset:%d' % (24 + qt, LSTAT - STATS + qt * 1024)))
    def stg():
        e.wait(vm='WO')
        E('s_lshl_b32 s4, s3, 12')
        E('s_add_u32 s4, s4, %d' % WOST)
        E('v_add_u32 v56, s4, v13')
        for m in range(4):
            E('ds_write_b128 v56, a[%d:%d] offset:%d' % (WOR + 4 * m, WOR + 4 * m + 3, m * 1024))
    tail.append(stg)
    pro, pa = pv_anchors([(2, (0, 1), True)])
    for f in pro:
        f()
    sched(e, pa, tail, lead=100)
    e.wait(lds='all')
    stamp()
    E('s_barrier')
    stamp(True)
    b = []
    TB = [64, 80, 128]
    for qt in range(3):
        def ls(qt=qt):
            E('ds_read_b128 v[46:49], v61 offset:%d' % (LSTAT - STATS + qt * 1024), tag='ls%d' % qt)
            E('ds_read_b128 v[50:53], v61 offset:%d' % (LSTAT - STATS + qt * 1024 + 16), tag='ls%d' % qt)
            e.wait(lds='ls%d' % qt)
            E('v_add_f32 v46, v46, v47')
            E('v_add_f32 v48, v48, v49')
            E('v_add_f32 v50, v50, v51')
            E('v_add_f32 v52, v52, v53')
            E('v_add_f32 v46, v46, v48')
            E('v_add_f32 v50, v50, v52')
            E('v_add_f32 v46, v46, v50')
            E('v_rcp_f32 v%d, v46' % (24 + qt))
            E('v_mul_f32 v%d, v%d, v%d' % (57 + qt, 57 + qt, 24 + qt))
        b.append(ls)
        for r in range(16):
            def f(qt=qt, r=r):
                E('v_accvgpr_read_b32 v%d, a%d' % (TB[qt] + r, OA[0] + 16 * qt + r))
                E('v_mul_f32 v%d, v%d, v%d' % (TB[qt] + r, TB[qt] + r, 57 + qt))
            b.append(f)
    def wt_addr():
        E('v_lshrrev_b32 v46, 4, v1')
        E('v_lshrrev_b32 v47, 2, v1')
        E('v_and_b32 v47, 3, v47')
        E('v_and_b32 v48, 3, v1')
        E('v_lshl_add_u32 v49, v46, 3, v47')
        E('v_lshlrev_b32 v49, 8, v49')
        E('v_xor_b32 v50, s3, v47')
        E('v_lshl_add_u32 v49, v50, 6, v49')
        E('v_lshl_add_u32 v49, v48, 3, v49')
        E('v_add_u32 v49, 0x%x, v49' % WOST)
        for kk in range(2):
            for nn in range(2):
                for hh in range(2):
                    r = 30 + (kk * 2 + nn) * 4 + 2 * hh
                    E('ds_read_b64_tr_b16 v[%d:%d], v49 offset:%d' % (r, r + 1, (32 * kk + 4 * hh) * 256 + nn * 32), tag='wt')
    b.append(wt_addr)
    pro, pa = pv_anchors([(2, (2,), True), (3, (0, 1, 2), False)])
    for f in pro:
        f()
    sched(e, pa, b, lead=60)
    stamp()
    E('s_mul_i32 s4, s37, 393216')
    E('s_lshl_b32 s5, s39, 2')
    E('s_add_u32 s5, s5, s3')
    E('s_mul_i32 s5, s5, 3072')
    E('s_add_u32 s57, s4, s5')
    for qt in range(3):
        T = TB[qt]
        U = 96 + (qt & 1) * 16
        for r in range(16):
            E('v_accvgpr_read_b32 v%d, a%d' % (U + r, OA[1] + 16 * qt + r))
        for r in range(16):
            E('v_fma_f32 v%d, v%d, v%d, v%d' % (T + r, U + r, 24 + qt, T + r))
        for k in range(8):
            E('v_cvt_pk_bf16_f32 v%d, v%d, v%d' % (T + k, T + 2 * k, T + 2 * k + 1))
        for k in (0, 2):
            E('v_permlane32_swap_b32 v%d, v%d' % (T + 2 * k, T + 2 * k + 2))
            E('v_permlane32_swap_b32 v%d, v%d' % (T + 2 * k + 1, T + 2 * k + 3))
            E('buffer_store_dwordx4 v[%d:%d], v%d, s[28:31], s57 offen offset:%d%s' % (T + 2 * k, T + 2 * k + 3, 27 + qt, k * 256, STPOL))
    E('s_and_b32 s4, s2, 3')
    E('s_lshl_b32 s4, s4, 3')
    E('s_lshl_b32 s5, s3, 1')
    E('s_add_u32 s4, s4, s5')
    E('s_lshl_b32 s4, s4, 17')
    E('s_lshr_b32 s5, s2, 2')
    E('s_lshl_b32 s5, s5, 11')
    E('s_add_u32 s4, s4, s5')
    E('s_add_u32 s4, s4, 0x%x' % WOT_OFF)
    E('s_add_u32 s5, s4, 0x20000')
    e.wait(lds='wt')
    for kk in range(2):
        for nn in range(2):
            r = 30 + (kk * 2 + nn) * 4
            E('buffer_store_dwordx4 v[%d:%d], v11, s[28:31], s%d offen offset:%d%s' % (r, r + 3, 4 + nn, kk * 1024, STPOL))
    stamp(True)
    e.label('L_a_done')
    E('s_endpgm')
    return e


def kernel_b():
    e = Emitter()
    E = e
    e.raw('.p2align 8')
    e.raw('.globl %s' % KB)
    e.raw('.type %s,@function' % KB)
    e.label(KB)
    E('s_cmp_ge_u32 s2, 256')
    E('s_cbranch_scc1 L_b_done')
    E('s_load_dwordx2 s[40:41], s[0:1], 40')
    E('s_load_dwordx2 s[42:43], s[0:1], 56')
    E('v_and_b32 v1, 63, v0')
    E('v_lshrrev_b32 v2, 6, v0')
    E('s_nop 0')
    E('v_readfirstlane_b32 s3, v2')
    E('s_and_b32 s4, s2, 7')
    E('s_lshr_b32 s5, s2, 3')
    E('s_lshr_b32 s6, s4, 1')
    E('s_lshl_b32 s6, s6, 2')
    E('s_lshr_b32 s7, s5, 3')
    E('s_add_u32 s37, s6, s7')
    E('s_and_b32 s6, s4, 1')
    E('s_lshl_b32 s6, s6, 3')
    E('s_and_b32 s7, s5, 7')
    E('s_add_u32 s38, s6, s7')
    E('v_lshlrev_b32 v11, 4, v1')
    E('s_mul_i32 s32, s37, 393216')
    E('s_mul_i32 s4, s3, 49152')
    E('s_add_u32 s32, s32, s4')
    E('s_lshl_b32 s33, s38, 18')
    E('s_lshl_b32 s4, s3, 14')
    E('s_add_u32 s33, s33, s4')
    E('s_add_u32 s33, s33, 0x%x' % WOT_OFF)
    E('s_add_u32 s34, s33, 0x20000')
    E('s_waitcnt lgkmcnt(0)')
    E('s_mov_b32 s8, s40')
    E('s_and_b32 s9, s41, 0xffff')
    E('s_mov_b32 s10, 786432')
    E('s_mov_b32 s11, 0x20000')
    E('s_mov_b32 s28, s42')
    E('s_and_b32 s29, s43, 0xffff')
    E('s_mov_b32 s30, 0x%x' % WS_SIZE)
    E('s_mov_b32 s31, 0x20000')
    D = 5
    ACC = 16
    FR = 40
    def loads(i):
        base = FR + (i % D) * 20
        E('s_add_u32 s5, s32, %d' % (i * 3072))
        for st in range(3):
            E('buffer_load_dwordx4 v[%d:%d], v11, s[28:31], s5 offen offset:%d' % (base + 4 * st, base + 4 * st + 3, st * 1024), tag='k%d' % i)
        E('s_add_u32 s6, s33, %d' % (i * 1024))
        E('s_add_u32 s7, s34, %d' % (i * 1024))
        E('buffer_load_dwordx4 v[%d:%d], v11, s[28:31], s6 offen' % (base + 12, base + 15), tag='k%d' % i)
        E('buffer_load_dwordx4 v[%d:%d], v11, s[28:31], s7 offen' % (base + 16, base + 19), tag='k%d' % i)
    for i in range(D):
        loads(i)
    for i in range(16):
        base = FR + (i % D) * 20
        e.wait(vm='k%d' % i)
        for nn in range(2):
            for st in range(3):
                a = ACC + (nn * 3 + st) * 4
                src = 'v[%d:%d]' % (a, a + 3) if i > 0 else '0'
                E('v_mfma_f32_16x16x32_bf16 v[%d:%d], v[%d:%d], v[%d:%d], %s' % (
                    a, a + 3, base + 12 + 4 * nn, base + 15 + 4 * nn, base + 4 * st, base + 4 * st + 3, src))
        if i + D < 16:
            loads(i + D)
    E('s_mul_i32 s4, s3, 6144')
    E('v_add_u32 v12, s4, v11')
    for tl in range(6):
        E('ds_write_b128 v12, v[%d:%d] offset:%d' % (ACC + 4 * tl, ACC + 4 * tl + 3, tl * 1024))
    e.wait(lds='all')
    E('s_barrier')
    E('s_cmp_ge_u32 s3, 6')
    E('s_cbranch_scc1 L_b_done')
    E('s_lshl_b32 s4, s3, 10')
    E('v_add_u32 v12, s4, v11')
    for wv in range(8):
        E('ds_read_b128 v[%d:%d], v12 offset:%d' % (FR + 4 * wv, FR + 4 * wv + 3, wv * 6144), tag='r%d' % wv)
    e.wait(lds='r1')
    for r in range(4):
        E('v_add_f32 v%d, v%d, v%d' % (16 + r, FR + r, FR + 4 + r))
    for wv in range(2, 8):
        e.wait(lds='r%d' % wv)
        for r in range(4):
            E('v_add_f32 v%d, v%d, v%d' % (16 + r, 16 + r, FR + 4 * wv + r))
    E('v_cvt_pk_bf16_f32 v20, v16, v17')
    E('v_cvt_pk_bf16_f32 v21, v18, v19')
    E('s_cmp_ge_u32 s3, 3')
    E('s_cselect_b32 s4, 1, 0')
    E('s_mul_i32 s5, s4, 3')
    E('s_sub_u32 s5, s3, s5')
    E('s_mul_i32 s6, s37, 49152')
    E('s_lshl_b32 s5, s5, 14')
    E('s_add_u32 s6, s6, s5')
    E('s_lshl_b32 s5, s38, 6')
    E('s_add_u32 s6, s6, s5')
    E('s_lshl_b32 s4, s4, 5')
    E('s_add_u32 s6, s6, s4')
    E('v_and_b32 v2, 15, v1')
    E('v_lshrrev_b32 v3, 4, v1')
    E('v_lshlrev_b32 v2, 10, v2')
    E('v_lshl_add_u32 v2, v3, 3, v2')
    E('buffer_store_dwordx2 v[20:21], v2, s[8:11], s6 offen')
    e.label('L_b_done')
    E('s_endpgm')
    return e


def kd(name, vgpr, accum, sgpr=72):
    return '''.p2align 6
.amdhsa_kernel %s
  .amdhsa_next_free_vgpr %d
  .amdhsa_next_free_sgpr %d
  .amdhsa_accum_offset %d
  .amdhsa_group_segment_fixed_size 0
  .amdhsa_kernarg_size 64
  .amdhsa_user_sgpr_count 2
  .amdhsa_user_sgpr_kernarg_segment_ptr 1
  .amdhsa_system_sgpr_workgroup_id_x 1
.end_amdhsa_kernel
''' % (name, vgpr, sgpr, accum)


def main():
    global DIAG
    global DIAG_ALL
    if len(sys.argv) > 2 and sys.argv[2].startswith('diag'):
        DIAG = True
        DIAG_ALL = sys.argv[2] == 'diag'
    for kv in sys.argv[3:]:
        k, v = kv.split('=', 1)
        globals()[k] = eval(v)
    ref = open('cdna_kernels/%s.s.ref' % NAME).read().splitlines()
    head = [l for l in ref if l.startswith(';') and '@launch' not in l and 'launch geometry' not in l and 'grid=ceil' not in l]
    a = kernel_a()
    b = kernel_b()
    out = '\n'.join(head) + '\n'
    out += '; @launch kernel=%s grid=(256,1,1) block=(256,1,1) lds=%d\n' % (KA, LDS_A)
    out += '; @launch kernel=%s grid=(256,1,1) block=(512,1,1) lds=49152\n' % KB
    out += '.amdgcn_target "amdgcn-amd-amdhsa--gfx950"\n.text\n'
    out += a.text() + b.text()
    out += '.section .rodata,"a"\n'
    out += kd(KA, 512, 256) + kd(KB, 144, 144)
    path = sys.argv[1] if len(sys.argv) > 1 else 'cdna_kernels/%s.s' % NAME
    open(path, 'w').write(out)
    print('nops inserted: A %d  B %d; lines %d' % (a.nops_inserted, b.nops_inserted, out.count('\n')))


if __name__ == '__main__':
    main()
```

```python
import sys
src, dst = sys.argv[1], sys.argv[2]
s=open(src).read()
s=s.replace("  s_load_dwordx16 s[40:55], s[0:1], 0\n","  s_load_dwordx16 s[40:55], s[0:1], 0\n  s_memtime s[68:69]\n  s_memrealtime s[70:71]\n",1)
endA='''  s_waitcnt vmcnt(0) lgkmcnt(0)
  s_memtime s[60:61]
  s_memrealtime s[62:63]
  s_waitcnt lgkmcnt(0)
  s_cmp_lg_u32 s3, 0
  s_cbranch_scc1 L_a_done
  s_and_b32 s4, s2, 63
  s_cmp_lg_u32 s4, 0
  s_cbranch_scc1 L_a_done
  s_lshr_b32 s4, s2, 6
  s_lshl_b32 s4, s4, 4
  s_add_u32 s4, s4, 0xD00000
  s_sub_u32 s60, s60, s68
  s_sub_u32 s62, s62, s70
  v_mov_b32 v0, s60
  v_mov_b32 v1, s62
  v_mov_b32 v2, s70
  v_mov_b32 v3, 0
  v_mov_b32 v4, 0
  s_nop 4
  buffer_store_dwordx4 v[0:3], v4, s[28:31], s4 offen
L_a_done:
'''
s=s.replace("L_a_done:\n",endA,1)
s=s.replace("  s_load_dwordx2 s[42:43], s[0:1], 56\n","  s_load_dwordx2 s[42:43], s[0:1], 56\n  s_load_dwordx2 s[44:45], s[0:1], 48\n  s_memtime s[68:69]\n  s_memrealtime s[70:71]\n",1)
endB='''  s_cmp_lg_u32 s2, 0
  s_cbranch_scc1 L_b_done
  s_cmp_lg_u32 s3, 0
  s_cbranch_scc1 L_b_done
  s_waitcnt vmcnt(0) lgkmcnt(0)
  s_memtime s[60:61]
  s_memrealtime s[62:63]
  s_waitcnt lgkmcnt(0)
  s_sub_u32 s60, s60, s68
  s_sub_u32 s62, s62, s70
  s_mov_b32 s12, s44
  s_and_b32 s13, s45, 0xffff
  s_mov_b32 s14, 64
  s_mov_b32 s15, 0x20000
  v_lshlrev_b32 v4, 2, v1
  s_mov_b32 s4, 0xD00000
  s_nop 4
  buffer_load_dword v5, v4, s[28:31], s4 offen
  s_waitcnt vmcnt(0)
  buffer_store_dword v5, v4, s[12:15], 0 offen
  s_waitcnt vmcnt(0)
  v_mov_b32 v0, s60
  v_mov_b32 v1, s62
  v_mov_b32 v2, s70
  v_mov_b32 v3, 0
  v_mov_b32 v4, 0
  s_nop 4
  buffer_store_dwordx4 v[0:3], v4, s[12:15], 0 offen offset:48
L_b_done:
'''
s=s.replace("L_b_done:\n",endB,1)
open(dst,'w').write(s)
```

```python
import struct, sys, math
from emit import Emitter, merge, sched

NAME = 'standalone__gqa_block_cached__near_ridge'
KA = 'gqa_attn_kernel'
KB = 'gqa_oproj_kernel'

def f32bits(x):
    return struct.unpack('<I', struct.pack('<f', x))[0]

XB = 0
QB = 24576
PB = [0, 24576]
RING = 49152
RING_W = 12288
NSLOT = 3
VS = [98304, 131072, 98304, 131072]
STATS = 81920
LSTAT = 86016
WOST = 65536
LDS_A = 163840

WOT_OFF = 0x800000
WS_SIZE = 0x1000000


DIAG = False
DIAG_ALL = True
PRO0, PRO1, STEPN, SLOWCOST = 12, 8, 8, 6
KFIRST = 0
WQPF = 1
KORD = 1
KVPOL = ''
STPOL = ''
PVS = 16
KTF = 0
NOLOAD = 0
ROT = 0
CI, KI = 3, 0
NV_LATE = 40
NV_S = [[4, 4], [4, 4], [4, 4], [4, 4], [4, 4], [0, 0]]
def kernel_a():
    e = Emitter()
    E = e
    stampc = [0]
    def stamp(key=False):
        if not DIAG or not (DIAG_ALL or key):
            return
        i = stampc[0]; stampc[0] += 1
        E('s_memtime s[60:61]')
        E('s_waitcnt lgkmcnt(0)')
        E('s_lshl_b32 s58, s2, 2')
        E('s_add_u32 s58, s58, s3')
        E('s_lshl_b32 s58, s58, 8')
        E('s_add_u32 s58, s58, 0x%x' % (0xC00000 + i * 8))
        E('v_mov_b32 v63, 0')
        E('v_mov_b32 v0, s60')
        E('buffer_store_dword v0, v63, s[28:31], s58 offen', tag='stamp')
        E('v_mov_b32 v0, s61')
        E('buffer_store_dword v0, v63, s[28:31], s58 offen offset:4', tag='stamp')
    e.raw('.p2align 8')
    e.raw('.globl %s' % KA)
    e.raw('.type %s,@function' % KA)
    e.label(KA)
    E('s_cmp_ge_u32 s2, 256')
    E('s_cbranch_scc1 L_a_done')
    E('s_load_dwordx16 s[40:55], s[0:1], 0')
    E('v_and_b32 v1, 63, v0')
    E('v_lshrrev_b32 v2, 6, v0')
    E('s_nop 0')
    E('v_readfirstlane_b32 s3, v2')
    E('s_and_b32 s38, s2, 7')
    E('s_lshr_b32 s4, s2, 3')
    E('s_lshr_b32 s37, s4, 1')
    E('s_and_b32 s4, s4, 1')
    E('s_lshl_b32 s39, s38, 2')
    E('s_lshl_b32 s4, s4, 1')
    E('s_add_u32 s39, s39, s4')
    E('s_lshl_b32 s4, s37, 3')
    E('s_add_u32 s4, s4, s38')
    E('s_lshl_b32 s32, s4, 17')
    E('s_lshl_b32 s5, s3, 15')
    E('s_add_u32 s32, s32, s5')
    E('s_lshr_b32 s5, s2, 3')
    E('s_and_b32 s5, s5, 1')
    E('s_mul_i32 s5, s5, %d' % ROT)
    for kt in range(4):
        E('s_add_u32 s6, s5, %d' % kt)
        E('s_and_b32 s6, s6, 3')
        E('s_lshl_b32 s6, s6, 13')
        E('s_add_u32 s%d, s32, s6' % (64 + kt))
    E('s_mul_i32 s33, s37, 49152')
    E('s_mul_i32 s5, s3, 12288')
    E('s_add_u32 s33, s33, s5')
    E('s_lshl_b32 s34, s39, 8')
    E('s_lshl_b32 s5, s3, 7')
    E('s_add_u32 s34, s34, s5')
    E('s_mul_i32 s35, s3, %d' % RING_W)
    E('s_add_u32 s35, s35, %d' % RING)
    E('s_mov_b32 s36, 0x%08x' % f32bits(math.log2(math.e) / math.sqrt(128.0)))
    E('v_and_b32 v46, 15, v1')
    E('v_lshrrev_b32 v47, 4, v1')
    E('v_xor_b32 v2, v46, v47')
    E('v_lshlrev_b32 v2, 4, v2')
    E('v_lshl_add_u32 v2, v46, 10, v2')
    E('v_lshlrev_b32 v11, 4, v1')
    E('v_lshrrev_b32 v48, 3, v1')
    E('v_and_b32 v49, 7, v1')
    E('v_lshrrev_b32 v50, 1, v49')
    E('v_and_b32 v51, 1, v47')
    E('v_xor_b32 v50, v50, v51')
    E('v_and_b32 v52, 1, v49')
    E('v_lshlrev_b32 v52, 4, v52')
    E('v_lshl_add_u32 v53, v48, 13, v52')
    E('v_lshl_add_u32 v3, v50, 5, v53')
    E('v_xor_b32 v50, 2, v50')
    E('v_lshl_add_u32 v4, v50, 5, v53')
    E('v_add_u32 v4, 0x10000, v4')
    E('v_add_u32 v5, 0x20000, v3')
    E('v_add_u32 v6, 0x20000, v4')
    E('v_lshrrev_b32 v48, 2, v1')
    E('v_and_b32 v48, 3, v48')
    E('v_and_b32 v49, 3, v1')
    E('v_lshrrev_b32 v50, 1, v48')
    E('v_lshlrev_b32 v51, 1, v51')
    E('v_or_b32 v50, v50, v51')
    E('v_lshl_add_u32 v52, v47, 3, v48')
    E('v_lshlrev_b32 v52, 7, v52')
    E('v_lshl_add_u32 v52, v49, 3, v52')
    E('v_add_u32 v52, s35, v52')
    for t in range(4):
        E('v_xor_b32 v53, %d, v50' % t)
        E('v_lshl_add_u32 v%d, v53, 5, v52' % (7 + t))
    E('v_and_b32 v53, 31, v1')
    E('v_lshrrev_b32 v54, 5, v1')
    E('v_lshlrev_b32 v12, 4, v46')
    E('v_lshl_add_u32 v12, v47, 8, v12')
    E('v_lshlrev_b32 v55, 2, v47')
    E('v_xor_b32 v55, v55, v46')
    E('v_lshlrev_b32 v55, 4, v55')
    E('v_lshl_add_u32 v13, v47, 8, v55')
    E('v_lshl_add_u32 v55, v54, 2, v48')
    E('v_lshlrev_b32 v55, 8, v55')
    E('v_xor_b32 v56, s3, v48')
    E('v_lshl_add_u32 v55, v56, 6, v55')
    E('v_and_b32 v56, 1, v47')
    E('v_lshl_add_u32 v55, v56, 5, v55')
    E('v_lshl_add_u32 v14, v49, 3, v55')
    E('v_add_u32 v14, %d, v14' % VS[0])
    E('s_lshl_b32 s4, s3, 11')
    E('v_add_u32 v15, s4, v11')
    E('v_lshlrev_b32 v55, 4, v46')
    E('v_lshl_add_u32 v55, v54, 9, v55')
    E('v_lshl_add_u32 v55, v56, 3, v55')
    E('s_lshr_b32 s4, s3, 1')
    E('s_mul_i32 s4, s4, 3')
    E('s_and_b32 s5, s3, 1')
    E('s_lshl_b32 s5, s5, 12')
    E('s_add_u32 s5, s5, %d' % QB)
    for st in range(3):
        E('s_add_u32 s6, s4, %d' % st)
        E('s_lshr_b32 s7, s6, 1')
        E('s_lshl_b32 s7, s7, 13')
        E('s_and_b32 s6, s6, 1')
        E('s_lshl_b32 s6, s6, 8')
        E('s_add_u32 s6, s6, s7')
        E('s_add_u32 s6, s6, s5')
        E('v_add_u32 v%d, s6, v55' % (16 + st))
    E('v_lshlrev_b32 v20, 5, v53')
    E('v_lshl_add_u32 v19, v54, 2, v20')
    E('s_lshl_b32 s4, s3, 3')
    E('v_add_u32 v19, s4, v19')
    E('v_lshlrev_b32 v55, 4, v46')
    E('v_lshl_add_u32 v55, v54, 8, v55')
    for qt in range(3):
        E('v_add_u32 v57, %d, v56' % (2 * qt))
        E('v_cmp_le_u32 vcc, 3, v57')
        E('v_subrev_u32 v58, 3, v57')
        E('v_lshlrev_b32 v58, 10, v58')
        E('v_add_u32 v58, 12288, v58')
        E('v_lshlrev_b32 v57, 10, v57')
        E('v_cndmask_b32 v57, v57, v58, vcc')
        E('v_add_u32 v%d, v57, v55' % (27 + qt))
    E('s_waitcnt lgkmcnt(0)')
    def srd(d, lo, size):
        E('s_mov_b32 s%d, s%d' % (d, lo))
        E('s_and_b32 s%d, s%d, 0xffff' % (d + 1, lo + 1))
        E('s_mov_b32 s%d, 0x%x' % (d + 2, size))
        E('s_mov_b32 s%d, 0x20000' % (d + 3))
    srd(8, 40, 786432)
    srd(12, 42, 16777216)
    srd(16, 44, 16777216)
    srd(20, 46, 4194304)
    srd(24, 48, 4194304)
    srd(28, 54, WS_SIZE)

    stamp(True)
    if WQPF:
        E('s_lshr_b32 s4, s2, 3')
        E('s_lshl_b32 s4, s4, 2')
        E('s_add_u32 s4, s4, s3')
        E('s_lshl_b32 s4, s4, 15')
        E('s_lshl_b32 s5, s38, 10')
        E('s_add_u32 s4, s4, s5')
        E('v_lshrrev_b32 v62, 4, v1')
        E('v_lshlrev_b32 v62, 13, v62')
        E('v_and_b32 v63, 15, v1')
        E('v_lshl_add_u32 v62, v63, 6, v62')
        E('buffer_load_dword v62, v62, s[20:23], s4 offen', tag='pf')
    for n in range(KFIRST):
        E('s_add_u32 s7, s%d, %d' % (64 + n // 8, (n % 8) * 1024))
        E('buffer_load_dwordx4 a[%d:%d], v12, s[12:15], s7 offen' % (n * 4, n * 4 + 3), tag='K%d' % (n // 8))
    E('s_mul_i32 s4, s3, 12288')
    for i in range(12):
        E('s_mul_i32 s5, s3, 12')
        E('s_add_u32 s5, s5, %d' % i)
        E('s_and_b32 s5, s5, 15')
        E('s_lshl_b32 s5, s5, 4')
        E('v_xor_b32 v%d, s5, v11' % (60 + (i & 1)))
        E('s_add_u32 s5, s4, %d' % (XB + i * 1024))
        E('s_mov_b32 m0, s5')
        E('s_add_u32 s6, s33, %d' % (i * 1024))
        E('buffer_load_dwordx4 v%d, s[8:11], s6 offen lds' % (60 + (i & 1)), tag='x')

    def wq_dma(c):
        out = []
        for m in range(4):
            def f(m=m):
                E('s_add_u32 s5, s35, %d' % ((c % NSLOT) * 4096 + m * 1024))
                E('s_mov_b32 m0, s5')
                E('s_add_u32 s6, s34, %d' % (c * 262144))
                E('buffer_load_dwordx4 v%d, s[20:23], s6 offen lds' % (3 + m), tag='wq%d' % c)
            out.append(f)
        return out

    def wq_reg(c):
        if c < 8:
            return 'v', 168 + (c - 3) * 16
        return 'a', 128 + (c - 8) * 16

    def wq_load(c):
        out = []
        fl, r = wq_reg(c)
        for m in range(4):
            def f(m=m):
                E('s_add_u32 s6, s34, %d' % (c * 262144))
                E('buffer_load_dwordx4 %s[%d:%d], v%d, s[20:23], s6 offen' % (fl, r + 4 * m, r + 4 * m + 3, 3 + m), tag='wq%d' % c)
            out.append(f)
        return out

    def wq_write(c):
        out = []
        fl, r = wq_reg(c)
        out.append(lambda: e.wait(vm='wq%d' % c))
        for m in range(4):
            out.append(lambda m=m: E('ds_write_b128 v59, %s[%d:%d] offset:%d' % (fl, r + 4 * m, r + 4 * m + 3, (c % NSLOT) * 4096 + m * 1024)))
        return out

    ACC = 64
    AF = [112, 128]
    BF = [144, 156]

    def p1_reads(c):
        out = []
        bu = c & 1
        sl = c % NSLOT
        out.append(lambda: E('v_xor_b32 v%d, %d, v2' % (60 + bu, c * 64)))
        for st in range(3):
            out.append(lambda st=st: E('ds_read_b128 v[%d:%d], v%d offset:%d' % (BF[bu] + 4 * st, BF[bu] + 4 * st + 3, 60 + bu, XB + st * 16384), tag='p1r%d' % c))
        for t in range(4):
            for hh in range(2):
                out.append(lambda t=t, hh=hh: E('ds_read_b64_tr_b16 v[%d:%d], v%d offset:%d' % (
                    AF[bu] + 4 * t + 2 * hh, AF[bu] + 4 * t + 2 * hh + 1, 7 + t, sl * 4096 + hh * 512), tag='p1r%d' % c))
        return out

    def kload(n):
        def f():
            E('s_add_u32 s7, s%d, %d' % (64 + n // 8, (n % 8) * 1024))
            E('buffer_load_dwordx4 a[%d:%d], v12, s[12:15], s7 offen%s' % (n * 4, n * 4 + 3, KVPOL), tag='K%d' % (n // 8))
        return f

    def v_chunk(t):
        out = []
        for mm in range(8):
            def f(mm=mm):
                E('s_lshl_b32 s5, s3, 13')
                E('s_add_u32 s5, s5, %d' % (VS[t] + mm * 1024))
                E('s_mov_b32 m0, s5')
                E('s_add_u32 s6, s%d, %d' % (64 + t, mm * 1024))
                E('buffer_load_dwordx4 v13, s[16:19], s6 offen%s lds' % KVPOL, tag='V%d' % t)
            out.append(f)
        return out

    def v_regs(t):
        out = []
        for mm in range(8):
            def f(mm=mm):
                r = 192 + (t - 2) * 32 + mm * 4
                E('s_add_u32 s6, s%d, %d' % (64 + t, mm * 1024))
                E('buffer_load_dwordx4 v[%d:%d], v12, s[16:19], s6 offen%s' % (r, r + 3, KVPOL), tag='V%d' % t)
            out.append(f)
        return out
    E('v_add_u32 v59, s35, v11')
    seq = []
    if KORD:
        slow = [kload(n) for n in range(KFIRST, 32)] + v_chunk(0) + v_chunk(1) + v_regs(2) + v_regs(3)
    else:
        slow = [kload(n) for n in range(KFIRST, 16)] + v_chunk(0) + v_chunk(1) + [kload(n) for n in range(16, 32)] + v_regs(2) + v_regs(3)
    for c in range(3):
        seq += wq_dma(c)
    for c in range(3, 16):
        seq += wq_load(c)
        if c >= CI:
            seq += slow[:KI]
            slow = slow[KI:]
    nfast = len(seq)
    seq += slow
    LEFT = {'K0': 56, 'K1': 48, 'V0': 40, 'V1': 32, 'K2': 24, 'K3': 16, 'V2': 8, 'V3': 0}
    if KORD:
        LEFT = {'K0': 56, 'K1': 48, 'K2': 40, 'K3': 32, 'V0': 24, 'V1': 16, 'V2': 8, 'V3': 0}
    def vwait(tag):
        nf = 0
        while len(seq) > LEFT[tag]:
            issue(SLOWCOST); nf += 1
        if nf:
            print('forced issue of %d loads for %s' % (nf, tag))
        e.wait(vm=tag)
    issued = [0]
    def issue(maxn=1000):
        n = 0
        while seq and len(e.vmq) < 62 and n < maxn:
            seq.pop(0)()
            n += 1 if issued[0] < nfast else SLOWCOST
            issued[0] += 1
    stamp()
    issue(PRO0)
    stamp()
    e.wait(vm='wq0')
    stamp()
    E('s_barrier')
    stamp()
    issue(PRO1)
    for f in p1_reads(0):
        f()
    for c in range(16):
        bu = c & 1
        e.wait(lds='p1r%d' % c)
        if c in (2, 4, 6, 8, 12):
            stamp()
        rd = []
        if c + 1 < 16:
            if c + 1 < 3:
                rd.append(lambda c=c: e.wait(vm='wq%d' % (c + 1)))
            rd += p1_reads(c + 1)
        rd2 = []
        if 3 <= c + 2 < 16:
            rd2 = wq_write(c + 2)
        rd2.append(lambda: issue(STEPN))
        mf = []
        for nt in range(4):
            for st in range(3):
                a = ACC + (nt * 3 + st) * 4
                src = 'v[%d:%d]' % (a, a + 3) if c > 0 else '0'
                mf.append(lambda a=a, nt=nt, st=st, src=src: E('v_mfma_f32_16x16x32_bf16 v[%d:%d], v[%d:%d], v[%d:%d], %s' % (
                    a, a + 3, AF[bu] + 4 * nt, AF[bu] + 4 * nt + 3, BF[bu] + 4 * st, BF[bu] + 4 * st + 3, src)))
        for f in merge(mf[:6], rd) + merge(mf[6:], rd2):
            f()
    for nt in range(4):
        for st in range(3):
            a = ACC + (nt * 3 + st) * 4
            E('v_cvt_pk_bf16_f32 v%d, v%d, v%d' % (a, a, a + 1))
            E('v_cvt_pk_bf16_f32 v%d, v%d, v%d' % (a + 1, a + 2, a + 3))
    stamp(True)
    E('s_barrier')
    for nt in range(4):
        for st in range(3):
            a = ACC + (nt * 3 + st) * 4
            E('ds_write_b64 v%d, v[%d:%d] offset:%d' % (16 + st, a, a + 1, nt * 1024))

    while len(seq) > NV_LATE:
        issue(SLOWCOST)
    if NOLOAD:
        del seq[:]
    e.wait(lds='all')
    E('s_barrier')
    QF = 128
    for qt in range(3):
        for ks in range(8):
            r = QF + (qt * 8 + ks) * 4
            E('ds_read_b128 a[%d:%d], v11 offset:%d' % (r, r + 3, QB + (qt * 8 + ks) * 1024), tag='Q')
    E('s_lshl_b32 s4, s3, 13')
    E('s_add_u32 s4, s4, 0xC000')
    E('v_and_b32 v46, 15, v1')
    E('v_lshrrev_b32 v47, 4, v1')
    E('v_xor_b32 v48, v46, v47')
    for jj in range(4):
        E('v_xor_b32 v49, %d, v48' % (4 * jj))
        E('v_lshlrev_b32 v49, 4, v49')
        E('v_lshl_add_u32 v49, v47, 8, v49')
        E('v_add_u32 v%d, s4, v49' % (6 + jj))
    E('v_and_b32 v46, 31, v1')
    E('v_lshrrev_b32 v47, 5, v1')
    E('v_and_b32 v48, 15, v1')
    E('v_xor_b32 v48, v48, v47')
    E('v_lshlrev_b32 v48, 4, v48')
    E('v_lshl_add_u32 v48, v46, 8, v48')
    E('v_add_u32 v54, s4, v48')
    E('v_add_u32 v60, 0x%x, v19' % STATS)
    E('v_add_u32 v61, 0x%x, v20' % STATS)
    def ktr(kt):
        w_ = lambda: vwait('K%d' % kt)
        w_.cost = 0
        out = [w_]
        for m in range(8):
            r = (kt * 8 + m) * 4
            out.append(lambda m=m, r=r: E('ds_write_b128 v%d, a[%d:%d] offset:%d' % (6 + (m & 3), r, r + 3, m * 1024)))
        for ks in range(8):
            r = (kt * 8 + ks) * 4
            def f(ks=ks, r=r):
                E('v_xor_b32 v%d, %d, v54' % (55 + (ks & 1), ks * 32))
                E('ds_read_b128 a[%d:%d], v%d' % (r, r + 3, 55 + (ks & 1)), tag='kt%d' % kt)
            out.append(f)
        return out
    SB = [64, 128]
    MX = 62
    def sreg(u, kt):
        return SB[u & 1] + (kt & 1) * 16
    def max_ops(u, kt):
        out = []
        for i in range(8):
            s_ = sreg(u, kt) + 2 * i
            if (kt & 1) == 0 and i == 0:
                out.append(lambda s_=s_: E('v_max_f32 v%d, v%d, v%d' % (MX, s_, s_ + 1)))
            else:
                out.append(lambda s_=s_: E('v_max3_f32 v%d, v%d, v%d, v%d' % (MX, s_, s_ + 1, MX)))
        return out
    def s_mf(u, kt):
        q = u % 3
        mf = []
        for ks in range(8):
            s_ = sreg(u, kt)
            src = 'v[%d:%d]' % (s_, s_ + 15) if ks > 0 else '0'
            kr = (kt * 8 + ks) * 4
            qr = QF + (q * 8 + ks) * 4
            mf.append(lambda s_=s_, kr=kr, qr=qr, src=src: E('v_mfma_f32_32x32x16_bf16 v[%d:%d], a[%d:%d], a[%d:%d], %s' % (
                s_, s_ + 15, kr, kr + 3, qr, qr + 3, src)))
        return mf
    PK = [30, 34, 38, 42]
    pkc = [0]
    OA = [0, 64]
    PSL = {(0, 0): 0, (0, 1): 8192, (1, 0): 16384, (1, 1): 24576, (2, 0): 32768, (2, 1): 40960,
           (0, 2): 49152, (0, 3): 57344, (1, 2): 0, (1, 3): 16384, (2, 2): 32768, (2, 3): 8192}
    def exp_ops(u, kt):
        q = u % 3
        out = []
        s0 = sreg(u, kt)
        for hf in range(2):
            pk = PK[pkc[0] % 4]; pkc[0] += 1
            regs = [s0 + 8 * hf + i for i in range(8)]
            for r in regs:
                out.append(lambda r=r: E('v_fma_f32 v%d, v%d, s36, -v%d' % (r, r, 21 + q)))
            for r in regs:
                out.append(lambda r=r: E('v_exp_f32 v%d, v%d' % (r, r)))
            for k, r in enumerate(regs):
                if kt == 0 and hf == 0 and k == 0:
                    out.append(lambda r=r: E('v_add_f32 v%d, v%d, v%d' % (24 + q, r, r + 1)))
                elif kt == 0 and hf == 0 and k == 1:
                    pass
                else:
                    out.append(lambda r=r: E('v_add_f32 v%d, v%d, v%d' % (24 + q, r, 24 + q)))
                if k & 1:
                    out.append(lambda r=r, pk=pk, k=k: E('v_cvt_pk_bf16_f32 v%d, v%d, v%d' % (pk + k // 2, r - 1, r)))
            off = PSL[(q, kt)] + hf * 1024
            out.append(lambda pk=pk, off=off: E('ds_write_b128 v15, v[%d:%d] offset:%d' % (pk, pk + 3, off)))
        return out
    def exchange(u):
        h, q = u // 3, u % 3
        E('ds_write_b32 v60, v%d offset:%d' % (MX, q * 1024))
        e.wait(lds='all')
        stamp()
        E('s_barrier')
        E('ds_read_b128 v[46:49], v61 offset:%d' % (q * 1024), tag='st')
        E('ds_read_b128 v[50:53], v61 offset:%d' % (q * 1024 + 16), tag='st')
        e.wait(lds='st')
        E('v_max3_f32 v46, v46, v47, v48')
        E('v_max3_f32 v50, v50, v51, v52')
        E('v_max3_f32 v46, v46, v49, v53')
        E('v_max_f32 v46, v46, v50')
        if h == 0:
            E('v_mul_f32 v%d, s36, v46' % (21 + q))
        else:
            E('v_mul_f32 v46, s36, v46')
            E('v_max_f32 v46, v46, v%d' % (21 + q))
            E('v_sub_f32 v47, v%d, v46' % (21 + q))
            E('v_exp_f32 v%d, v47' % (57 + q))
            E('v_mov_b32 v%d, v46' % (21 + q))
            E('v_mul_f32 v%d, v%d, v%d' % (24 + q, 24 + q, 57 + q))

    PB4 = [96, 112, 160, 176]
    pvc = [0]
    def C(cost, fn):
        fn.cost = cost
        return fn
    def pv_anchors(lst):
        steps = []
        for (t, qs, first) in lst:
            for n in range(8):
                steps.append((t, qs, first, n))
        base = pvc[0]
        pvc[0] += len(steps)
        def reads(i):
            t, qs, first, n = steps[i]
            u, hf = n // 2, n % 2
            b = PB4[(base + i) & 3]
            vb = 14 if (t & 1) == 0 else 10
            tag = 'pv%d' % (base + i)
            out = []
            for ee in range(2):
                out.append(lambda ee=ee: E('ds_read_b64_tr_b16 v[%d:%d], v%d offset:%d' % (
                    b + 2 * ee, b + 2 * ee + 1, vb, (32 * u + 16 * hf + 8 * ee) * 256), tag=tag))
            for qt in qs:
                off = PSL[(qt, t)] + u * 2048 + hf * 1024
                out.append(lambda qt=qt, off=off: E('ds_read_b128 v[%d:%d], v11 offset:%d' % (
                    b + 4 + 4 * qt, b + 7 + 4 * qt, off), tag=tag))
            return out
        pro = reads(0) + reads(1)
        anc = []
        for i, (t, qs, first, n) in enumerate(steps):
            b = PB4[(base + i) & 3]
            rd = reads(i + 2) if i + 2 < len(steps) else []
            k = len(qs)
            for x, qt in enumerate(qs):
                o = OA[t >> 1] + 16 * qt
                src = '0' if (first and n == 0) else 'a[%d:%d]' % (o, o + 15)
                fn = (lambda o=o, b=b, qt=qt, src=src: E('v_mfma_f32_32x32x16_bf16 a[%d:%d], v[%d:%d], v[%d:%d], %s' % (
                    o, o + 15, b, b + 3, b + 4 + 4 * qt, b + 7 + 4 * qt, src)))
                pre = [lambda i=i: e.wait(lds='pv%d' % (base + i))] if x == 0 else []
                post = rd[len(rd) * x // k: len(rd) * (x + 1) // k]
                anc.append((pre, fn, post))
        return pro, anc

    WOR = 240
    def wo_loads():
        out = []
        def pre():
            E('s_lshr_b32 s4, s2, 2')
            E('s_lshl_b32 s4, s4, 16')
            E('s_and_b32 s5, s2, 3')
            E('s_lshl_b32 s5, s5, 8')
            E('s_add_u32 s4, s4, s5')
            E('s_lshl_b32 s5, s3, 14')
            E('s_add_u32 s56, s4, s5')
            E('v_lshrrev_b32 v3, 4, v1')
            E('v_and_b32 v4, 15, v1')
            E('v_lshlrev_b32 v3, 10, v3')
            E('v_lshl_add_u32 v3, v4, 4, v3')
        out.append(pre)
        for m in range(4):
            def f(m=m):
                E('s_add_u32 s6, s56, %d' % (m * 4096))
                E('buffer_load_dwordx4 a[%d:%d], v3, s[24:27], s6 offen' % (WOR + 4 * m, WOR + 4 * m + 3), tag='WO')
            out.append(f)
        return out
    def v_store(t):
        out = [C(0, lambda: vwait('V%d' % t))]
        def pre():
            E('s_lshl_b32 s4, s3, 13')
            E('s_add_u32 s4, s4, %d' % VS[t])
            E('v_add_u32 v55, s4, v13')
        out.append(pre)
        for mm in range(8):
            r = 192 + (t - 2) * 32 + mm * 4
            out.append(lambda r=r, mm=mm: E('ds_write_b128 v55, v[%d:%d] offset:%d' % (r, r + 3, mm * 1024)))
        return out
    def iss(n):
        return [C(20, lambda: issue(SLOWCOST))] * n

    E('v_add_u32 v10, 0x%x, v14' % (VS[1] - VS[0]))
    for f in ktr(0):
        f()
    e.wait(lds='kt0')
    stamp()
    for u in range(6):
        h, q = u // 3, u % 3
        t0, t1 = 2 * h, 2 * h + 1
        sa = [([], f, []) for f in s_mf(u, t0)] + [([], f, []) for f in s_mf(u, t1)]
        if q == 0:
            sa[8] = ([lambda t1=t1: e.wait(lds='kt%d' % t1)], sa[8][1], [])
        pro = []
        if u in (4, 5):
            pro, pa = pv_anchors([(u - 4, (0, 1, 2), u == 4)])
            anc = sa[:2] + merge(sa[2:], pa[:PVS]) + pa[PVS:]
        else:
            anc = sa
        i7 = [k for k, a in enumerate(anc) if a[1] is sa[7][1]][0]
        i15 = [k for k, a in enumerate(anc) if a[1] is sa[15][1]][0]
        s0, s1 = [], []
        if u > 0:
            pu = u - 1
            s0 = exp_ops(pu, 2 * (pu // 3))
            s1 = exp_ops(pu, 2 * (pu // 3) + 1)
        if q == 0:
            s0 = ktr(t1) + s0 if KTF else merge(s0, ktr(t1))
        if u == 2:
            s1 = merge(s1, ktr(2))
        if u == 5:
            s1 = merge(s1, v_store(2))
        if u == 4:
            s1 = merge(s1, wo_loads())
        s0 = merge(s0, iss(NV_S[u][0]))
        s1 = merge(s1, iss(NV_S[u][1]))
        cons = [(i7 + 1, f) for f in max_ops(u, t0)] + [(i15 + 1, f) for f in max_ops(u, t1)]
        for f in pro:
            f()
        if q == 0:
            sched(e, anc[:8], s0)
            sched(e, anc[8:], s1, [(m - 8, f) for m, f in cons])
        else:
            sched(e, anc, s0 + s1, cons)
        if u == 3:
            vwait('V0')
        if u == 4:
            vwait('V1')
        exchange(u)
        if u == 2:
            stamp(True)
    tail = exp_ops(5, 2) + exp_ops(5, 3)
    tail = merge(tail, v_store(3))
    for qt in range(3):
        tail.append(lambda qt=qt: E('ds_write_b32 v60, v%d offset:%d' % (24 + qt, LSTAT - STATS + qt * 1024)))
    def stg():
        e.wait(vm='WO')
        E('s_lshl_b32 s4, s3, 12')
        E('s_add_u32 s4, s4, %d' % WOST)
        E('v_add_u32 v56, s4, v13')
        for m in range(4):
            E('ds_write_b128 v56, a[%d:%d] offset:%d' % (WOR + 4 * m, WOR + 4 * m + 3, m * 1024))
    tail.append(stg)
    pro, pa = pv_anchors([(2, (0, 1), True)])
    for f in pro:
        f()
    sched(e, pa, tail, lead=100)
    e.wait(lds='all')
    stamp()
    E('s_barrier')
    stamp(True)
    b = []
    TB = [64, 80, 128]
    for qt in range(3):
        def ls(qt=qt):
            E('ds_read_b128 v[46:49], v61 offset:%d' % (LSTAT - STATS + qt * 1024), tag='ls%d' % qt)
            E('ds_read_b128 v[50:53], v61 offset:%d' % (LSTAT - STATS + qt * 1024 + 16), tag='ls%d' % qt)
            e.wait(lds='ls%d' % qt)
            E('v_add_f32 v46, v46, v47')
            E('v_add_f32 v48, v48, v49')
            E('v_add_f32 v50, v50, v51')
            E('v_add_f32 v52, v52, v53')
            E('v_add_f32 v46, v46, v48')
            E('v_add_f32 v50, v50, v52')
            E('v_add_f32 v46, v46, v50')
            E('v_rcp_f32 v%d, v46' % (24 + qt))
            E('v_mul_f32 v%d, v%d, v%d' % (57 + qt, 57 + qt, 24 + qt))
        b.append(ls)
        for r in range(16):
            def f(qt=qt, r=r):
                E('v_accvgpr_read_b32 v%d, a%d' % (TB[qt] + r, OA[0] + 16 * qt + r))
                E('v_mul_f32 v%d, v%d, v%d' % (TB[qt] + r, TB[qt] + r, 57 + qt))
            b.append(f)
    def wt_addr():
        E('v_lshrrev_b32 v46, 4, v1')
        E('v_lshrrev_b32 v47, 2, v1')
        E('v_and_b32 v47, 3, v47')
        E('v_and_b32 v48, 3, v1')
        E('v_lshl_add_u32 v49, v46, 3, v47')
        E('v_lshlrev_b32 v49, 8, v49')
        E('v_xor_b32 v50, s3, v47')
        E('v_lshl_add_u32 v49, v50, 6, v49')
        E('v_lshl_add_u32 v49, v48, 3, v49')
        E('v_add_u32 v49, 0x%x, v49' % WOST)
        for kk in range(2):
            for nn in range(2):
                for hh in range(2):
                    r = 30 + (kk * 2 + nn) * 4 + 2 * hh
                    E('ds_read_b64_tr_b16 v[%d:%d], v49 offset:%d' % (r, r + 1, (32 * kk + 4 * hh) * 256 + nn * 32), tag='wt')
    b.append(wt_addr)
    pro, pa = pv_anchors([(2, (2,), True), (3, (0, 1, 2), False)])
    for f in pro:
        f()
    sched(e, pa, b, lead=60)
    stamp()
    E('s_mul_i32 s4, s37, 393216')
    E('s_lshl_b32 s5, s39, 2')
    E('s_add_u32 s5, s5, s3')
    E('s_mul_i32 s5, s5, 3072')
    E('s_add_u32 s57, s4, s5')
    for qt in range(3):
        T = TB[qt]
        U = 96 + (qt & 1) * 16
        for r in range(16):
            E('v_accvgpr_read_b32 v%d, a%d' % (U + r, OA[1] + 16 * qt + r))
        for r in range(16):
            E('v_fma_f32 v%d, v%d, v%d, v%d' % (T + r, U + r, 24 + qt, T + r))
        for k in range(8):
            E('v_cvt_pk_bf16_f32 v%d, v%d, v%d' % (T + k, T + 2 * k, T + 2 * k + 1))
        for k in (0, 2):
            E('v_permlane32_swap_b32 v%d, v%d' % (T + 2 * k, T + 2 * k + 2))
            E('v_permlane32_swap_b32 v%d, v%d' % (T + 2 * k + 1, T + 2 * k + 3))
            E('buffer_store_dwordx4 v[%d:%d], v%d, s[28:31], s57 offen offset:%d%s' % (T + 2 * k, T + 2 * k + 3, 27 + qt, k * 256, STPOL))
    E('s_and_b32 s4, s2, 3')
    E('s_lshl_b32 s4, s4, 3')
    E('s_lshl_b32 s5, s3, 1')
    E('s_add_u32 s4, s4, s5')
    E('s_lshl_b32 s4, s4, 17')
    E('s_lshr_b32 s5, s2, 2')
    E('s_lshl_b32 s5, s5, 11')
    E('s_add_u32 s4, s4, s5')
    E('s_add_u32 s4, s4, 0x%x' % WOT_OFF)
    E('s_add_u32 s5, s4, 0x20000')
    e.wait(lds='wt')
    for kk in range(2):
        for nn in range(2):
            r = 30 + (kk * 2 + nn) * 4
            E('buffer_store_dwordx4 v[%d:%d], v11, s[28:31], s%d offen offset:%d%s' % (r, r + 3, 4 + nn, kk * 1024, STPOL))
    stamp(True)
    e.label('L_a_done')
    E('s_endpgm')
    return e


def kernel_b():
    e = Emitter()
    E = e
    e.raw('.p2align 8')
    e.raw('.globl %s' % KB)
    e.raw('.type %s,@function' % KB)
    e.label(KB)
    E('s_cmp_ge_u32 s2, 256')
    E('s_cbranch_scc1 L_b_done')
    E('s_load_dwordx2 s[40:41], s[0:1], 40')
    E('s_load_dwordx2 s[42:43], s[0:1], 56')
    E('v_and_b32 v1, 63, v0')
    E('v_lshrrev_b32 v2, 6, v0')
    E('s_nop 0')
    E('v_readfirstlane_b32 s3, v2')
    E('s_and_b32 s4, s2, 7')
    E('s_lshr_b32 s5, s2, 3')
    E('s_lshr_b32 s6, s4, 1')
    E('s_lshl_b32 s6, s6, 2')
    E('s_lshr_b32 s7, s5, 3')
    E('s_add_u32 s37, s6, s7')
    E('s_and_b32 s6, s4, 1')
    E('s_lshl_b32 s6, s6, 3')
    E('s_and_b32 s7, s5, 7')
    E('s_add_u32 s38, s6, s7')
    E('v_lshlrev_b32 v11, 4, v1')
    E('s_mul_i32 s32, s37, 393216')
    E('s_mul_i32 s4, s3, 49152')
    E('s_add_u32 s32, s32, s4')
    E('s_lshl_b32 s33, s38, 18')
    E('s_lshl_b32 s4, s3, 14')
    E('s_add_u32 s33, s33, s4')
    E('s_add_u32 s33, s33, 0x%x' % WOT_OFF)
    E('s_add_u32 s34, s33, 0x20000')
    E('s_waitcnt lgkmcnt(0)')
    E('s_mov_b32 s8, s40')
    E('s_and_b32 s9, s41, 0xffff')
    E('s_mov_b32 s10, 786432')
    E('s_mov_b32 s11, 0x20000')
    E('s_mov_b32 s28, s42')
    E('s_and_b32 s29, s43, 0xffff')
    E('s_mov_b32 s30, 0x%x' % WS_SIZE)
    E('s_mov_b32 s31, 0x20000')
    D = 5
    ACC = 16
    FR = 40
    stc = [0]
    def stampb():
        if not DIAG:
            return
        i = stc[0]; stc[0] += 1
        E('s_memtime s[60:61]')
        E('s_waitcnt lgkmcnt(0)')
        E('s_lshl_b32 s58, s2, 3')
        E('s_add_u32 s58, s58, s3')
        E('s_lshl_b32 s58, s58, 8')
        E('s_add_u32 s58, s58, 0x%x' % (0xD00000 + i * 8))
        E('v_mov_b32 v143, 0')
        E('v_mov_b32 v0, s60')
        E('buffer_store_dword v0, v143, s[28:31], s58 offen', tag='stamp')
        E('v_mov_b32 v0, s61')
        E('buffer_store_dword v0, v143, s[28:31], s58 offen offset:4', tag='stamp')
    stampb()
    def loads(i):
        base = FR + (i % D) * 20
        E('s_add_u32 s5, s32, %d' % (i * 3072))
        for st in range(3):
            E('buffer_load_dwordx4 v[%d:%d], v11, s[28:31], s5 offen offset:%d' % (base + 4 * st, base + 4 * st + 3, st * 1024), tag='k%d' % i)
        E('s_add_u32 s6, s33, %d' % (i * 1024))
        E('s_add_u32 s7, s34, %d' % (i * 1024))
        E('buffer_load_dwordx4 v[%d:%d], v11, s[28:31], s6 offen' % (base + 12, base + 15), tag='k%d' % i)
        E('buffer_load_dwordx4 v[%d:%d], v11, s[28:31], s7 offen' % (base + 16, base + 19), tag='k%d' % i)
    for i in range(D):
        loads(i)
    for i in range(16):
        base = FR + (i % D) * 20
        e.wait(vm='k%d' % i)
        if i in (0, 4, 8, 12, 15):
            stampb()
        for nn in range(2):
            for st in range(3):
                a = ACC + (nn * 3 + st) * 4
                src = 'v[%d:%d]' % (a, a + 3) if i > 0 else '0'
                E('v_mfma_f32_16x16x32_bf16 v[%d:%d], v[%d:%d], v[%d:%d], %s' % (
                    a, a + 3, base + 12 + 4 * nn, base + 15 + 4 * nn, base + 4 * st, base + 4 * st + 3, src))
        if i + D < 16:
            loads(i + D)
    E('s_mul_i32 s4, s3, 6144')
    E('v_add_u32 v12, s4, v11')
    for tl in range(6):
        E('ds_write_b128 v12, v[%d:%d] offset:%d' % (ACC + 4 * tl, ACC + 4 * tl + 3, tl * 1024))
    e.wait(lds='all')
    E('s_barrier')
    E('s_cmp_ge_u32 s3, 6')
    E('s_cbranch_scc1 L_b_done')
    E('s_lshl_b32 s4, s3, 10')
    E('v_add_u32 v12, s4, v11')
    for wv in range(8):
        E('ds_read_b128 v[%d:%d], v12 offset:%d' % (FR + 4 * wv, FR + 4 * wv + 3, wv * 6144), tag='r%d' % wv)
    e.wait(lds='r1')
    for r in range(4):
        E('v_add_f32 v%d, v%d, v%d' % (16 + r, FR + r, FR + 4 + r))
    for wv in range(2, 8):
        e.wait(lds='r%d' % wv)
        for r in range(4):
            E('v_add_f32 v%d, v%d, v%d' % (16 + r, 16 + r, FR + 4 * wv + r))
    E('v_cvt_pk_bf16_f32 v20, v16, v17')
    E('v_cvt_pk_bf16_f32 v21, v18, v19')
    E('s_cmp_ge_u32 s3, 3')
    E('s_cselect_b32 s4, 1, 0')
    E('s_mul_i32 s5, s4, 3')
    E('s_sub_u32 s5, s3, s5')
    E('s_mul_i32 s6, s37, 49152')
    E('s_lshl_b32 s5, s5, 14')
    E('s_add_u32 s6, s6, s5')
    E('s_lshl_b32 s5, s38, 6')
    E('s_add_u32 s6, s6, s5')
    E('s_lshl_b32 s4, s4, 5')
    E('s_add_u32 s6, s6, s4')
    E('v_and_b32 v2, 15, v1')
    E('v_lshrrev_b32 v3, 4, v1')
    E('v_lshlrev_b32 v2, 10, v2')
    E('v_lshl_add_u32 v2, v3, 3, v2')
    E('buffer_store_dwordx2 v[20:21], v2, s[8:11], s6 offen')
    stampb()
    e.label('L_b_done')
    E('s_endpgm')
    return e


def kd(name, vgpr, accum, sgpr=72):
    return '''.p2align 6
.amdhsa_kernel %s
  .amdhsa_next_free_vgpr %d
  .amdhsa_next_free_sgpr %d
  .amdhsa_accum_offset %d
  .amdhsa_group_segment_fixed_size 0
  .amdhsa_kernarg_size 64
  .amdhsa_user_sgpr_count 2
  .amdhsa_user_sgpr_kernarg_segment_ptr 1
  .amdhsa_system_sgpr_workgroup_id_x 1
.end_amdhsa_kernel
''' % (name, vgpr, sgpr, accum)


def main():
    global DIAG
    global DIAG_ALL
    if len(sys.argv) > 2 and sys.argv[2].startswith('diag'):
        DIAG = True
        DIAG_ALL = sys.argv[2] == 'diag'
    for kv in sys.argv[3:]:
        k, v = kv.split('=', 1)
        globals()[k] = eval(v)
    ref = open('cdna_kernels/%s.s.ref' % NAME).read().splitlines()
    head = [l for l in ref if l.startswith(';') and '@launch' not in l and 'launch geometry' not in l and 'grid=ceil' not in l]
    a = kernel_a()
    b = kernel_b()
    out = '\n'.join(head) + '\n'
    out += '; @launch kernel=%s grid=(256,1,1) block=(256,1,1) lds=%d\n' % (KA, LDS_A)
    out += '; @launch kernel=%s grid=(256,1,1) block=(512,1,1) lds=49152\n' % KB
    out += '.amdgcn_target "amdgcn-amd-amdhsa--gfx950"\n.text\n'
    out += a.text() + b.text()
    out += '.section .rodata,"a"\n'
    out += kd(KA, 512, 256) + kd(KB, 144, 144)
    path = sys.argv[1] if len(sys.argv) > 1 else 'cdna_kernels/%s.s' % NAME
    open(path, 'w').write(out)
    print('nops inserted: A %d  B %d; lines %d' % (a.nops_inserted, b.nops_inserted, out.count('\n')))


if __name__ == '__main__':
    main()
```

```python
import struct, sys, math
from emit import Emitter, merge, sched

NAME = 'standalone__gqa_block_cached__near_ridge'
KA = 'gqa_attn_kernel'
KB = 'gqa_oproj_kernel'

def f32bits(x):
    return struct.unpack('<I', struct.pack('<f', x))[0]

XB = 0
QB = 24576
PB = [0, 24576]
RING = 49152
RING_W = 12288
NSLOT = 3
VS = [98304, 131072, 98304, 131072]
STATS = 81920
LSTAT = 86016
WOST = 65536
LDS_A = 163840

WOT_OFF = 0x800000
WS_SIZE = 0x1000000


DIAG = False
DIAG_ALL = True
PRO0, PRO1, STEPN, SLOWCOST = 12, 8, 8, 6
KFIRST = 0
EPO = 1
BURST = 2
XDEF = 1
WQPF = 1
KORD = 1
KVPOL = ''
STPOL = ''
PVS = 16
KTF = 0
NOLOAD = 0
ROT = 0
CI, KI = 3, 0
NV_LATE = 40
NV_S = [[4, 4], [4, 4], [4, 4], [4, 4], [4, 4], [0, 0]]
def kernel_a():
    e = Emitter()
    E = e
    stampc = [0]
    def stamp(key=False):
        if not DIAG or not (DIAG_ALL or key):
            return
        i = stampc[0]; stampc[0] += 1
        E('s_memtime s[60:61]')
        E('s_waitcnt lgkmcnt(0)')
        E('s_lshl_b32 s58, s2, 2')
        E('s_add_u32 s58, s58, s3')
        E('s_lshl_b32 s58, s58, 8')
        E('s_add_u32 s58, s58, 0x%x' % (0xC00000 + i * 8))
        E('v_mov_b32 v63, 0')
        E('v_mov_b32 v0, s60')
        E('buffer_store_dword v0, v63, s[28:31], s58 offen', tag='stamp')
        E('v_mov_b32 v0, s61')
        E('buffer_store_dword v0, v63, s[28:31], s58 offen offset:4', tag='stamp')
    e.raw('.p2align 8')
    e.raw('.globl %s' % KA)
    e.raw('.type %s,@function' % KA)
    e.label(KA)
    E('s_cmp_ge_u32 s2, 256')
    E('s_cbranch_scc1 L_a_done')
    E('s_load_dwordx16 s[40:55], s[0:1], 0')
    E('v_and_b32 v1, 63, v0')
    E('v_lshrrev_b32 v2, 6, v0')
    E('s_nop 0')
    E('v_readfirstlane_b32 s3, v2')
    E('s_and_b32 s38, s2, 7')
    E('s_lshr_b32 s4, s2, 3')
    E('s_lshr_b32 s37, s4, 1')
    E('s_and_b32 s4, s4, 1')
    E('s_lshl_b32 s39, s38, 2')
    E('s_lshl_b32 s4, s4, 1')
    E('s_add_u32 s39, s39, s4')
    E('s_lshl_b32 s4, s37, 3')
    E('s_add_u32 s4, s4, s38')
    E('s_lshl_b32 s32, s4, 17')
    E('s_lshl_b32 s5, s3, 15')
    E('s_add_u32 s32, s32, s5')
    E('s_lshr_b32 s5, s2, 3')
    E('s_and_b32 s5, s5, 1')
    E('s_mul_i32 s5, s5, %d' % ROT)
    for kt in range(4):
        E('s_add_u32 s6, s5, %d' % kt)
        E('s_and_b32 s6, s6, 3')
        E('s_lshl_b32 s6, s6, 13')
        E('s_add_u32 s%d, s32, s6' % (64 + kt))
    E('s_mul_i32 s33, s37, 49152')
    E('s_mul_i32 s5, s3, 12288')
    E('s_add_u32 s33, s33, s5')
    E('s_lshl_b32 s34, s39, 8')
    E('s_lshl_b32 s5, s3, 7')
    E('s_add_u32 s34, s34, s5')
    E('s_mul_i32 s35, s3, %d' % RING_W)
    E('s_add_u32 s35, s35, %d' % RING)
    E('s_mov_b32 s36, 0x%08x' % f32bits(math.log2(math.e) / math.sqrt(128.0)))
    E('v_and_b32 v46, 15, v1')
    E('v_lshrrev_b32 v47, 4, v1')
    E('v_xor_b32 v2, v46, v47')
    E('v_lshlrev_b32 v2, 4, v2')
    E('v_lshl_add_u32 v2, v46, 10, v2')
    E('v_lshlrev_b32 v11, 4, v1')
    E('v_lshrrev_b32 v48, 3, v1')
    E('v_and_b32 v49, 7, v1')
    E('v_lshrrev_b32 v50, 1, v49')
    E('v_and_b32 v51, 1, v47')
    E('v_xor_b32 v50, v50, v51')
    E('v_and_b32 v52, 1, v49')
    E('v_lshlrev_b32 v52, 4, v52')
    E('v_lshl_add_u32 v53, v48, 13, v52')
    E('v_lshl_add_u32 v3, v50, 5, v53')
    E('v_xor_b32 v50, 2, v50')
    E('v_lshl_add_u32 v4, v50, 5, v53')
    E('v_add_u32 v4, 0x10000, v4')
    E('v_add_u32 v5, 0x20000, v3')
    E('v_add_u32 v6, 0x20000, v4')
    E('v_lshrrev_b32 v48, 2, v1')
    E('v_and_b32 v48, 3, v48')
    E('v_and_b32 v49, 3, v1')
    E('v_lshrrev_b32 v50, 1, v48')
    E('v_lshlrev_b32 v51, 1, v51')
    E('v_or_b32 v50, v50, v51')
    E('v_lshl_add_u32 v52, v47, 3, v48')
    E('v_lshlrev_b32 v52, 7, v52')
    E('v_lshl_add_u32 v52, v49, 3, v52')
    E('v_add_u32 v52, s35, v52')
    for t in range(4):
        E('v_xor_b32 v53, %d, v50' % t)
        E('v_lshl_add_u32 v%d, v53, 5, v52' % (7 + t))
    E('v_and_b32 v53, 31, v1')
    E('v_lshrrev_b32 v54, 5, v1')
    E('v_lshlrev_b32 v12, 4, v46')
    E('v_lshl_add_u32 v12, v47, 8, v12')
    E('v_lshlrev_b32 v55, 2, v47')
    E('v_xor_b32 v55, v55, v46')
    E('v_lshlrev_b32 v55, 4, v55')
    E('v_lshl_add_u32 v13, v47, 8, v55')
    E('v_lshl_add_u32 v55, v54, 2, v48')
    E('v_lshlrev_b32 v55, 8, v55')
    E('v_xor_b32 v56, s3, v48')
    E('v_lshl_add_u32 v55, v56, 6, v55')
    E('v_and_b32 v56, 1, v47')
    E('v_lshl_add_u32 v55, v56, 5, v55')
    E('v_lshl_add_u32 v14, v49, 3, v55')
    E('v_add_u32 v14, %d, v14' % VS[0])
    E('s_lshl_b32 s4, s3, 11')
    E('v_add_u32 v15, s4, v11')
    E('v_lshlrev_b32 v55, 4, v46')
    E('v_lshl_add_u32 v55, v54, 9, v55')
    E('v_lshl_add_u32 v55, v56, 3, v55')
    E('s_lshr_b32 s4, s3, 1')
    E('s_mul_i32 s4, s4, 3')
    E('s_and_b32 s5, s3, 1')
    E('s_lshl_b32 s5, s5, 12')
    E('s_add_u32 s5, s5, %d' % QB)
    for st in range(3):
        E('s_add_u32 s6, s4, %d' % st)
        E('s_lshr_b32 s7, s6, 1')
        E('s_lshl_b32 s7, s7, 13')
        E('s_and_b32 s6, s6, 1')
        E('s_lshl_b32 s6, s6, 8')
        E('s_add_u32 s6, s6, s7')
        E('s_add_u32 s6, s6, s5')
        E('v_add_u32 v%d, s6, v55' % (16 + st))
    E('v_lshlrev_b32 v20, 5, v53')
    E('v_lshl_add_u32 v19, v54, 2, v20')
    E('s_lshl_b32 s4, s3, 3')
    E('v_add_u32 v19, s4, v19')
    E('v_lshlrev_b32 v55, 4, v46')
    E('v_lshl_add_u32 v55, v54, 8, v55')
    for qt in range(3):
        E('v_add_u32 v57, %d, v56' % (2 * qt))
        E('v_cmp_le_u32 vcc, 3, v57')
        E('v_subrev_u32 v58, 3, v57')
        E('v_lshlrev_b32 v58, 10, v58')
        E('v_add_u32 v58, 12288, v58')
        E('v_lshlrev_b32 v57, 10, v57')
        E('v_cndmask_b32 v57, v57, v58, vcc')
        E('v_add_u32 v%d, v57, v55' % (27 + qt))
    E('s_waitcnt lgkmcnt(0)')
    def srd(d, lo, size):
        E('s_mov_b32 s%d, s%d' % (d, lo))
        E('s_and_b32 s%d, s%d, 0xffff' % (d + 1, lo + 1))
        E('s_mov_b32 s%d, 0x%x' % (d + 2, size))
        E('s_mov_b32 s%d, 0x20000' % (d + 3))
    srd(8, 40, 786432)
    srd(12, 42, 16777216)
    srd(16, 44, 16777216)
    srd(20, 46, 4194304)
    srd(24, 48, 4194304)
    srd(28, 54, WS_SIZE)

    stamp(True)
    if WQPF:
        E('s_lshr_b32 s4, s2, 3')
        E('s_lshl_b32 s4, s4, 2')
        E('s_add_u32 s4, s4, s3')
        E('s_lshl_b32 s4, s4, 15')
        E('s_lshl_b32 s5, s38, 10')
        E('s_add_u32 s4, s4, s5')
        E('v_lshrrev_b32 v62, 4, v1')
        E('v_lshlrev_b32 v62, 13, v62')
        E('v_and_b32 v63, 15, v1')
        E('v_lshl_add_u32 v62, v63, 6, v62')
        E('buffer_load_dword v62, v62, s[20:23], s4 offen', tag='pf')
    for n in range(KFIRST):
        E('s_add_u32 s7, s%d, %d' % (64 + n // 8, (n % 8) * 1024))
        E('buffer_load_dwordx4 a[%d:%d], v12, s[12:15], s7 offen' % (n * 4, n * 4 + 3), tag='K%d' % (n // 8))
    E('s_mul_i32 s4, s3, 12288')
    for i in range(12):
        E('s_mul_i32 s5, s3, 12')
        E('s_add_u32 s5, s5, %d' % i)
        E('s_and_b32 s5, s5, 15')
        E('s_lshl_b32 s5, s5, 4')
        E('v_xor_b32 v%d, s5, v11' % (60 + (i & 1)))
        E('s_add_u32 s5, s4, %d' % (XB + i * 1024))
        E('s_mov_b32 m0, s5')
        E('s_add_u32 s6, s33, %d' % (i * 1024))
        E('buffer_load_dwordx4 v%d, s[8:11], s6 offen lds' % (60 + (i & 1)), tag='x')

    def wq_dma(c):
        out = []
        for m in range(4):
            def f(m=m):
                E('s_add_u32 s5, s35, %d' % ((c % NSLOT) * 4096 + m * 1024))
                E('s_mov_b32 m0, s5')
                E('s_add_u32 s6, s34, %d' % (c * 262144))
                E('buffer_load_dwordx4 v%d, s[20:23], s6 offen lds' % (3 + m), tag='wq%d' % c)
            out.append(f)
        return out

    def wq_reg(c):
        if c < 8:
            return 'v', 168 + (c - 3) * 16
        return 'a', 128 + (c - 8) * 16

    def wq_load(c):
        out = []
        fl, r = wq_reg(c)
        for m in range(4):
            def f(m=m):
                E('s_add_u32 s6, s34, %d' % (c * 262144))
                E('buffer_load_dwordx4 %s[%d:%d], v%d, s[20:23], s6 offen' % (fl, r + 4 * m, r + 4 * m + 3, 3 + m), tag='wq%d' % c)
            out.append(f)
        return out

    def wq_write(c):
        out = []
        fl, r = wq_reg(c)
        out.append(lambda: e.wait(vm='wq%d' % c))
        for m in range(4):
            out.append(lambda m=m: E('ds_write_b128 v59, %s[%d:%d] offset:%d' % (fl, r + 4 * m, r + 4 * m + 3, (c % NSLOT) * 4096 + m * 1024)))
        return out

    ACC = 64
    AF = [112, 128]
    BF = [144, 156]

    def p1_reads(c):
        out = []
        bu = c & 1
        sl = c % NSLOT
        out.append(lambda: E('v_xor_b32 v%d, %d, v2' % (60 + bu, c * 64)))
        for st in range(3):
            out.append(lambda st=st: E('ds_read_b128 v[%d:%d], v%d offset:%d' % (BF[bu] + 4 * st, BF[bu] + 4 * st + 3, 60 + bu, XB + st * 16384), tag='p1r%d' % c))
        for t in range(4):
            for hh in range(2):
                out.append(lambda t=t, hh=hh: E('ds_read_b64_tr_b16 v[%d:%d], v%d offset:%d' % (
                    AF[bu] + 4 * t + 2 * hh, AF[bu] + 4 * t + 2 * hh + 1, 7 + t, sl * 4096 + hh * 512), tag='p1r%d' % c))
        return out

    def kload(n):
        def f():
            E('s_add_u32 s7, s%d, %d' % (64 + n // 8, (n % 8) * 1024))
            E('buffer_load_dwordx4 a[%d:%d], v12, s[12:15], s7 offen%s' % (n * 4, n * 4 + 3, KVPOL), tag='K%d' % (n // 8))
        return f

    def v_chunk(t):
        out = []
        for mm in range(8):
            def f(mm=mm):
                E('s_lshl_b32 s5, s3, 13')
                E('s_add_u32 s5, s5, %d' % (VS[t] + mm * 1024))
                E('s_mov_b32 m0, s5')
                E('s_add_u32 s6, s%d, %d' % (64 + t, mm * 1024))
                E('buffer_load_dwordx4 v13, s[16:19], s6 offen%s lds' % KVPOL, tag='V%d' % t)
            out.append(f)
        return out

    def v_regs(t):
        out = []
        for mm in range(8):
            def f(mm=mm):
                r = 192 + (t - 2) * 32 + mm * 4
                E('s_add_u32 s6, s%d, %d' % (64 + t, mm * 1024))
                E('buffer_load_dwordx4 v[%d:%d], v12, s[16:19], s6 offen%s' % (r, r + 3, KVPOL), tag='V%d' % t)
            out.append(f)
        return out
    E('v_add_u32 v59, s35, v11')
    seq = []
    if KORD:
        slow = [kload(n) for n in range(KFIRST, 32)] + v_chunk(0) + v_chunk(1) + v_regs(2) + v_regs(3)
    else:
        slow = [kload(n) for n in range(KFIRST, 16)] + v_chunk(0) + v_chunk(1) + [kload(n) for n in range(16, 32)] + v_regs(2) + v_regs(3)
    for c in range(3):
        seq += wq_dma(c)
    for c in range(3, 16):
        seq += wq_load(c)
        if c >= CI:
            seq += slow[:KI]
            slow = slow[KI:]
    nfast = len(seq)
    seq += slow
    LEFT = {'K0': 56, 'K1': 48, 'V0': 40, 'V1': 32, 'K2': 24, 'K3': 16, 'V2': 8, 'V3': 0}
    if KORD:
        LEFT = {'K0': 56, 'K1': 48, 'K2': 40, 'K3': 32, 'V0': 24, 'V1': 16, 'V2': 8, 'V3': 0}
    def vwait(tag):
        nf = 0
        while len(seq) > LEFT[tag]:
            issue(SLOWCOST); nf += 1
        if nf:
            print('forced issue of %d loads for %s' % (nf, tag))
        e.wait(vm=tag)
    issued = [0]
    def issue(maxn=1000):
        n = 0
        while seq and len(e.vmq) < 62 and n < maxn:
            seq.pop(0)()
            n += 1 if issued[0] < nfast else SLOWCOST
            issued[0] += 1
    stamp()
    issue(PRO0)
    stamp()
    e.wait(vm='wq0')
    stamp()
    E('s_barrier')
    stamp()
    issue(PRO1)
    for f in p1_reads(0):
        f()
    for c in range(16):
        bu = c & 1
        e.wait(lds='p1r%d' % c)
        if c in (2, 4, 6, 8, 12):
            stamp()
        rd = []
        if c + 1 < 16:
            if c + 1 < 3:
                rd.append(lambda c=c: e.wait(vm='wq%d' % (c + 1)))
            rd += p1_reads(c + 1)
        rd2 = []
        if 3 <= c + 2 < 16:
            rd2 = wq_write(c + 2)
        rd2.append(lambda: issue(STEPN))
        mf = []
        for nt in range(4):
            for st in range(3):
                a = ACC + (nt * 3 + st) * 4
                src = 'v[%d:%d]' % (a, a + 3) if c > 0 else '0'
                mf.append(lambda a=a, nt=nt, st=st, src=src: E('v_mfma_f32_16x16x32_bf16 v[%d:%d], v[%d:%d], v[%d:%d], %s' % (
                    a, a + 3, AF[bu] + 4 * nt, AF[bu] + 4 * nt + 3, BF[bu] + 4 * st, BF[bu] + 4 * st + 3, src)))
        for f in merge(mf[:6], rd) + merge(mf[6:], rd2):
            f()
    for nt in range(4):
        for st in range(3):
            a = ACC + (nt * 3 + st) * 4
            E('v_cvt_pk_bf16_f32 v%d, v%d, v%d' % (a, a, a + 1))
            E('v_cvt_pk_bf16_f32 v%d, v%d, v%d' % (a + 1, a + 2, a + 3))
    stamp(True)
    E('s_barrier')
    for nt in range(4):
        for st in range(3):
            a = ACC + (nt * 3 + st) * 4
            E('ds_write_b64 v%d, v[%d:%d] offset:%d' % (16 + st, a, a + 1, nt * 1024))

    while len(seq) > NV_LATE:
        issue(SLOWCOST)
    if NOLOAD:
        del seq[:]
    e.wait(lds='all')
    E('s_barrier')
    QF = 128
    for qt in range(3):
        for ks in range(8):
            r = QF + (qt * 8 + ks) * 4
            E('ds_read_b128 a[%d:%d], v11 offset:%d' % (r, r + 3, QB + (qt * 8 + ks) * 1024), tag='Q')
    E('s_lshl_b32 s4, s3, 13')
    E('s_add_u32 s4, s4, 0xC000')
    E('v_and_b32 v46, 15, v1')
    E('v_lshrrev_b32 v47, 4, v1')
    E('v_xor_b32 v48, v46, v47')
    for jj in range(4):
        E('v_xor_b32 v49, %d, v48' % (4 * jj))
        E('v_lshlrev_b32 v49, 4, v49')
        E('v_lshl_add_u32 v49, v47, 8, v49')
        E('v_add_u32 v%d, s4, v49' % (6 + jj))
    E('v_and_b32 v46, 31, v1')
    E('v_lshrrev_b32 v47, 5, v1')
    E('v_and_b32 v48, 15, v1')
    E('v_xor_b32 v48, v48, v47')
    E('v_lshlrev_b32 v48, 4, v48')
    E('v_lshl_add_u32 v48, v46, 8, v48')
    E('v_add_u32 v54, s4, v48')
    E('v_add_u32 v60, 0x%x, v19' % STATS)
    E('v_add_u32 v61, 0x%x, v20' % STATS)
    def ktr(kt):
        w_ = lambda: vwait('K%d' % kt)
        w_.cost = 0
        out = [w_]
        for m in range(8):
            r = (kt * 8 + m) * 4
            out.append(lambda m=m, r=r: E('ds_write_b128 v%d, a[%d:%d] offset:%d' % (6 + (m & 3), r, r + 3, m * 1024)))
        for ks in range(8):
            r = (kt * 8 + ks) * 4
            def f(ks=ks, r=r):
                E('v_xor_b32 v%d, %d, v54' % (55 + (ks & 1), ks * 32))
                E('ds_read_b128 a[%d:%d], v%d' % (r, r + 3, 55 + (ks & 1)), tag='kt%d' % kt)
            out.append(f)
        return out
    SB = [64, 128]
    MX = 62
    def sreg(u, kt):
        return SB[u & 1] + (kt & 1) * 16
    def max_ops(u, kt):
        out = []
        for i in range(8):
            s_ = sreg(u, kt) + 2 * i
            if (kt & 1) == 0 and i == 0:
                out.append(lambda s_=s_: E('v_max_f32 v%d, v%d, v%d' % (MX, s_, s_ + 1)))
            else:
                out.append(lambda s_=s_: E('v_max3_f32 v%d, v%d, v%d, v%d' % (MX, s_, s_ + 1, MX)))
        return out
    def s_mf(u, kt):
        q = u % 3
        mf = []
        for ks in range(8):
            s_ = sreg(u, kt)
            src = 'v[%d:%d]' % (s_, s_ + 15) if ks > 0 else '0'
            kr = (kt * 8 + ks) * 4
            qr = QF + (q * 8 + ks) * 4
            mf.append(lambda s_=s_, kr=kr, qr=qr, src=src: E('v_mfma_f32_32x32x16_bf16 v[%d:%d], a[%d:%d], a[%d:%d], %s' % (
                s_, s_ + 15, kr, kr + 3, qr, qr + 3, src)))
        return mf
    PK = [30, 34, 38, 42]
    pkc = [0]
    OA = [0, 64]
    PSL = {(0, 0): 0, (0, 1): 8192, (1, 0): 16384, (1, 1): 24576, (2, 0): 32768, (2, 1): 40960,
           (0, 2): 49152, (0, 3): 57344, (1, 2): 0, (1, 3): 16384, (2, 2): 32768, (2, 3): 8192}
    def exp_ops(u, kt):
        q = u % 3
        out = []
        s0 = sreg(u, kt)
        for hf in range(2):
            pk = PK[pkc[0] % 4]; pkc[0] += 1
            regs = [s0 + 8 * hf + i for i in range(8)]
            for r in regs:
                out.append(lambda r=r: E('v_fma_f32 v%d, v%d, s36, -v%d' % (r, r, 21 + q)))
            for r in regs:
                out.append(lambda r=r: E('v_exp_f32 v%d, v%d' % (r, r)))
            for k, r in enumerate(regs):
                if kt == 0 and hf == 0 and k == 0:
                    out.append(lambda r=r: E('v_add_f32 v%d, v%d, v%d' % (24 + q, r, r + 1)))
                elif kt == 0 and hf == 0 and k == 1:
                    pass
                else:
                    out.append(lambda r=r: E('v_add_f32 v%d, v%d, v%d' % (24 + q, r, 24 + q)))
                if k & 1:
                    out.append(lambda r=r, pk=pk, k=k: E('v_cvt_pk_bf16_f32 v%d, v%d, v%d' % (pk + k // 2, r - 1, r)))
            off = PSL[(q, kt)] + hf * 1024
            out.append(lambda pk=pk, off=off: E('ds_write_b128 v15, v[%d:%d] offset:%d' % (pk, pk + 3, off)))
        return out
    def exchange(u):
        h, q = u // 3, u % 3
        E('ds_write_b32 v60, v%d offset:%d' % (MX, q * 1024))
        e.wait(lds='all')
        stamp()
        E('s_barrier')
        E('ds_read_b128 v[46:49], v61 offset:%d' % (q * 1024), tag='st')
        E('ds_read_b128 v[50:53], v61 offset:%d' % (q * 1024 + 16), tag='st')
        out = [lambda: e.wait(lds='st')]
        ops = ['v_max3_f32 v46, v46, v47, v48', 'v_max3_f32 v50, v50, v51, v52', 'v_max3_f32 v46, v46, v49, v53', 'v_max_f32 v46, v46, v50']
        if h == 0:
            ops += ['v_mul_f32 v%d, s36, v46' % (21 + q)]
        else:
            ops += ['v_mul_f32 v46, s36, v46', 'v_max_f32 v46, v46, v%d' % (21 + q), 'v_sub_f32 v47, v%d, v46' % (21 + q),
                    'v_exp_f32 v%d, v47' % (57 + q), 'v_mov_b32 v%d, v46' % (21 + q), 'v_mul_f32 v%d, v%d, v%d' % (24 + q, 24 + q, 57 + q)]
        out += [(lambda o=o: E(o)) for o in ops]
        if not XDEF:
            for f in out:
                f()
            out = []
        return out

    PB4 = [96, 112, 160, 176]
    pvc = [0]
    def C(cost, fn):
        fn.cost = cost
        return fn
    def pv_anchors(lst):
        steps = []
        for (t, qs, first) in lst:
            for n in range(8):
                steps.append((t, qs, first, n))
        base = pvc[0]
        pvc[0] += len(steps)
        def reads(i):
            t, qs, first, n = steps[i]
            u, hf = n // 2, n % 2
            b = PB4[(base + i) & 3]
            vb = 14 if (t & 1) == 0 else 10
            tag = 'pv%d' % (base + i)
            out = []
            for ee in range(2):
                out.append(lambda ee=ee: E('ds_read_b64_tr_b16 v[%d:%d], v%d offset:%d' % (
                    b + 2 * ee, b + 2 * ee + 1, vb, (32 * u + 16 * hf + 8 * ee) * 256), tag=tag))
            for qt in qs:
                off = PSL[(qt, t)] + u * 2048 + hf * 1024
                out.append(lambda qt=qt, off=off: E('ds_read_b128 v[%d:%d], v11 offset:%d' % (
                    b + 4 + 4 * qt, b + 7 + 4 * qt, off), tag=tag))
            return out
        pro = reads(0) + reads(1)
        anc = []
        for i, (t, qs, first, n) in enumerate(steps):
            b = PB4[(base + i) & 3]
            rd = reads(i + 2) if i + 2 < len(steps) else []
            k = len(qs)
            for x, qt in enumerate(qs):
                o = OA[t >> 1] + 16 * qt
                src = '0' if (first and n == 0) else 'a[%d:%d]' % (o, o + 15)
                fn = (lambda o=o, b=b, qt=qt, src=src: E('v_mfma_f32_32x32x16_bf16 a[%d:%d], v[%d:%d], v[%d:%d], %s' % (
                    o, o + 15, b, b + 3, b + 4 + 4 * qt, b + 7 + 4 * qt, src)))
                pre = [lambda i=i: e.wait(lds='pv%d' % (base + i))] if x == 0 else []
                post = rd[len(rd) * x // k: len(rd) * (x + 1) // k]
                anc.append((pre, fn, post))
        return pro, anc

    WOR = 240
    def wo_loads():
        out = []
        def pre():
            E('s_lshr_b32 s4, s2, 2')
            E('s_lshl_b32 s4, s4, 16')
            E('s_and_b32 s5, s2, 3')
            E('s_lshl_b32 s5, s5, 8')
            E('s_add_u32 s4, s4, s5')
            E('s_lshl_b32 s5, s3, 14')
            E('s_add_u32 s56, s4, s5')
            E('v_lshrrev_b32 v3, 4, v1')
            E('v_and_b32 v4, 15, v1')
            E('v_lshlrev_b32 v3, 10, v3')
            E('v_lshl_add_u32 v3, v4, 4, v3')
        out.append(pre)
        for m in range(4):
            def f(m=m):
                E('s_add_u32 s6, s56, %d' % (m * 4096))
                E('buffer_load_dwordx4 a[%d:%d], v3, s[24:27], s6 offen' % (WOR + 4 * m, WOR + 4 * m + 3), tag='WO')
            out.append(f)
        return out
    def v_store(t):
        out = [C(0, lambda: vwait('V%d' % t))]
        def pre():
            E('s_lshl_b32 s4, s3, 13')
            E('s_add_u32 s4, s4, %d' % VS[t])
            E('v_add_u32 v55, s4, v13')
        out.append(pre)
        for mm in range(8):
            r = 192 + (t - 2) * 32 + mm * 4
            out.append(lambda r=r, mm=mm: E('ds_write_b128 v55, v[%d:%d] offset:%d' % (r, r + 3, mm * 1024)))
        return out
    def iss(n):
        return [C(20, lambda: issue(SLOWCOST))] * n

    E('v_add_u32 v10, 0x%x, v14' % (VS[1] - VS[0]))
    for f in ktr(0):
        f()
    e.wait(lds='kt0')
    stamp()
    xpost = []
    for u in range(6):
        h, q = u // 3, u % 3
        t0, t1 = 2 * h, 2 * h + 1
        sa = [([], f, []) for f in s_mf(u, t0)] + [([], f, []) for f in s_mf(u, t1)]
        if q == 0:
            sa[8] = ([lambda t1=t1: e.wait(lds='kt%d' % t1)], sa[8][1], [])
        pro = []
        if u in (4, 5):
            pro, pa = pv_anchors([(u - 4, (0, 1, 2), u == 4)])
            anc = sa[:2] + merge(sa[2:], pa[:PVS]) + pa[PVS:]
        else:
            anc = sa
        i7 = [k for k, a in enumerate(anc) if a[1] is sa[7][1]][0]
        i15 = [k for k, a in enumerate(anc) if a[1] is sa[15][1]][0]
        s0, s1 = [], []
        if u > 0:
            pu = u - 1
            s0 = exp_ops(pu, 2 * (pu // 3))
            s1 = exp_ops(pu, 2 * (pu // 3) + 1)
        if q == 0:
            s0 = ktr(t1) + s0 if KTF else merge(s0, ktr(t1))
        if u == 2:
            s1 = merge(s1, ktr(2))
        if u == 5:
            s1 = merge(s1, v_store(2))
        if u == 4:
            s1 = merge(s1, wo_loads())
        s0 = xpost + merge(s0, iss(NV_S[u][0]))
        s1 = merge(s1, iss(NV_S[u][1]))
        cons = [(i7 + 1, f) for f in max_ops(u, t0)] + [(i15 + 1, f) for f in max_ops(u, t1)]
        for f in pro:
            f()
        if q == 0:
            sched(e, anc[:8], s0, burst=BURST if u else 0)
            sched(e, anc[8:], s1, [(m - 8, f) for m, f in cons])
        else:
            sched(e, anc, s0 + s1, cons, burst=BURST)
        if u == 3:
            vwait('V0')
        if u == 4:
            vwait('V1')
        xpost = exchange(u)
        if u == 2:
            stamp(True)
    tail = exp_ops(5, 2) + exp_ops(5, 3)
    tail = xpost + merge(tail, v_store(3))
    for qt in range(3):
        tail.append(lambda qt=qt: E('ds_write_b32 v60, v%d offset:%d' % (24 + qt, LSTAT - STATS + qt * 1024)))
    def stg():
        e.wait(vm='WO')
        E('s_lshl_b32 s4, s3, 12')
        E('s_add_u32 s4, s4, %d' % WOST)
        E('v_add_u32 v56, s4, v13')
        for m in range(4):
            E('ds_write_b128 v56, a[%d:%d] offset:%d' % (WOR + 4 * m, WOR + 4 * m + 3, m * 1024))
    tail.append(stg)
    pro, pa = pv_anchors([(2, (0, 1), True)])
    for f in pro:
        f()
    sched(e, pa, tail, lead=100)
    e.wait(lds='all')
    stamp()
    E('s_barrier')
    stamp(True)
    b = []
    TB = [64, 80, 128]
    for qt in range(3):
        def ls(qt=qt):
            E('ds_read_b128 v[46:49], v61 offset:%d' % (LSTAT - STATS + qt * 1024), tag='ls%d' % qt)
            E('ds_read_b128 v[50:53], v61 offset:%d' % (LSTAT - STATS + qt * 1024 + 16), tag='ls%d' % qt)
            e.wait(lds='ls%d' % qt)
            E('v_add_f32 v46, v46, v47')
            E('v_add_f32 v48, v48, v49')
            E('v_add_f32 v50, v50, v51')
            E('v_add_f32 v52, v52, v53')
            E('v_add_f32 v46, v46, v48')
            E('v_add_f32 v50, v50, v52')
            E('v_add_f32 v46, v46, v50')
            E('v_rcp_f32 v%d, v46' % (24 + qt))
            E('v_mul_f32 v%d, v%d, v%d' % (57 + qt, 57 + qt, 24 + qt))
        b.append(ls)
        for r in range(16):
            def f(qt=qt, r=r):
                E('v_accvgpr_read_b32 v%d, a%d' % (TB[qt] + r, OA[0] + 16 * qt + r))
                E('v_mul_f32 v%d, v%d, v%d' % (TB[qt] + r, TB[qt] + r, 57 + qt))
            b.append(f)
    def wt_addr():
        E('v_lshrrev_b32 v46, 4, v1')
        E('v_lshrrev_b32 v47, 2, v1')
        E('v_and_b32 v47, 3, v47')
        E('v_and_b32 v48, 3, v1')
        E('v_lshl_add_u32 v49, v46, 3, v47')
        E('v_lshlrev_b32 v49, 8, v49')
        E('v_xor_b32 v50, s3, v47')
        E('v_lshl_add_u32 v49, v50, 6, v49')
        E('v_lshl_add_u32 v49, v48, 3, v49')
        E('v_add_u32 v49, 0x%x, v49' % WOST)
        for kk in range(2):
            for nn in range(2):
                for hh in range(2):
                    r = 30 + (kk * 2 + nn) * 4 + 2 * hh
                    E('ds_read_b64_tr_b16 v[%d:%d], v49 offset:%d' % (r, r + 1, (32 * kk + 4 * hh) * 256 + nn * 32), tag='wt')
    b.append(wt_addr)
    def epi(qt):
        out = []
        T = TB[qt]
        U = 192 + (qt & 1) * 16
        for r in range(16):
            out.append(lambda r=r: E('v_accvgpr_read_b32 v%d, a%d' % (U + r, OA[1] + 16 * qt + r)))
        for r in range(16):
            out.append(lambda r=r: E('v_fma_f32 v%d, v%d, v%d, v%d' % (T + r, U + r, 24 + qt, T + r)))
        for k in range(8):
            out.append(lambda k=k: E('v_cvt_pk_bf16_f32 v%d, v%d, v%d' % (T + k, T + 2 * k, T + 2 * k + 1)))
        for k in (0, 2):
            def f(k=k):
                E('v_permlane32_swap_b32 v%d, v%d' % (T + 2 * k, T + 2 * k + 2))
                E('v_permlane32_swap_b32 v%d, v%d' % (T + 2 * k + 1, T + 2 * k + 3))
                E('buffer_store_dwordx4 v[%d:%d], v%d, s[28:31], s57 offen offset:%d%s' % (T + 2 * k, T + 2 * k + 3, 27 + qt, k * 256, STPOL))
            out.append(f)
        return out
    E('s_mul_i32 s4, s37, 393216')
    E('s_lshl_b32 s5, s39, 2')
    E('s_add_u32 s5, s5, s3')
    E('s_mul_i32 s5, s5, 3072')
    E('s_add_u32 s57, s4, s5')
    if EPO:
        pro, pa = pv_anchors([(3, (0, 1), False), (2, (2,), True), (3, (2,), False)])
        for f in pro:
            f()
        sched(e, pa[:16], b, lead=60)
        sched(e, pa[16:], epi(0) + epi(1), burst=1)
        stamp()
        for f in epi(2):
            f()
    else:
        pro, pa = pv_anchors([(2, (2,), True), (3, (0, 1, 2), False)])
        for f in pro:
            f()
        sched(e, pa, b, lead=60)
        stamp()
        for qt in range(3):
            for f in epi(qt):
                f()
    E('s_and_b32 s4, s2, 3')
    E('s_lshl_b32 s4, s4, 3')
    E('s_lshl_b32 s5, s3, 1')
    E('s_add_u32 s4, s4, s5')
    E('s_lshl_b32 s4, s4, 17')
    E('s_lshr_b32 s5, s2, 2')
    E('s_lshl_b32 s5, s5, 11')
    E('s_add_u32 s4, s4, s5')
    E('s_add_u32 s4, s4, 0x%x' % WOT_OFF)
    E('s_add_u32 s5, s4, 0x20000')
    e.wait(lds='wt')
    for kk in range(2):
        for nn in range(2):
            r = 30 + (kk * 2 + nn) * 4
            E('buffer_store_dwordx4 v[%d:%d], v11, s[28:31], s%d offen offset:%d%s' % (r, r + 3, 4 + nn, kk * 1024, STPOL))
    stamp(True)
    e.label('L_a_done')
    E('s_endpgm')
    return e


def kernel_b():
    e = Emitter()
    E = e
    e.raw('.p2align 8')
    e.raw('.globl %s' % KB)
    e.raw('.type %s,@function' % KB)
    e.label(KB)
    E('s_cmp_ge_u32 s2, 256')
    E('s_cbranch_scc1 L_b_done')
    E('s_load_dwordx2 s[40:41], s[0:1], 40')
    E('s_load_dwordx2 s[42:43], s[0:1], 56')
    E('v_and_b32 v1, 63, v0')
    E('v_lshrrev_b32 v2, 6, v0')
    E('s_nop 0')
    E('v_readfirstlane_b32 s3, v2')
    E('s_and_b32 s4, s2, 7')
    E('s_lshr_b32 s5, s2, 3')
    E('s_lshr_b32 s6, s4, 1')
    E('s_lshl_b32 s6, s6, 2')
    E('s_lshr_b32 s7, s5, 3')
    E('s_add_u32 s37, s6, s7')
    E('s_and_b32 s6, s4, 1')
    E('s_lshl_b32 s6, s6, 3')
    E('s_and_b32 s7, s5, 7')
    E('s_add_u32 s38, s6, s7')
    E('v_lshlrev_b32 v11, 4, v1')
    E('s_mul_i32 s32, s37, 393216')
    E('s_mul_i32 s4, s3, 49152')
    E('s_add_u32 s32, s32, s4')
    E('s_lshl_b32 s33, s38, 18')
    E('s_lshl_b32 s4, s3, 14')
    E('s_add_u32 s33, s33, s4')
    E('s_add_u32 s33, s33, 0x%x' % WOT_OFF)
    E('s_add_u32 s34, s33, 0x20000')
    E('s_waitcnt lgkmcnt(0)')
    E('s_mov_b32 s8, s40')
    E('s_and_b32 s9, s41, 0xffff')
    E('s_mov_b32 s10, 786432')
    E('s_mov_b32 s11, 0x20000')
    E('s_mov_b32 s28, s42')
    E('s_and_b32 s29, s43, 0xffff')
    E('s_mov_b32 s30, 0x%x' % WS_SIZE)
    E('s_mov_b32 s31, 0x20000')
    D = 5
    ACC = 16
    FR = 40
    stc = [0]
    def stampb():
        if not DIAG:
            return
        i = stc[0]; stc[0] += 1
        E('s_memtime s[60:61]')
        E('s_waitcnt lgkmcnt(0)')
        E('s_lshl_b32 s58, s2, 3')
        E('s_add_u32 s58, s58, s3')
        E('s_lshl_b32 s58, s58, 8')
        E('s_add_u32 s58, s58, 0x%x' % (0xD00000 + i * 8))
        E('v_mov_b32 v143, 0')
        E('v_mov_b32 v0, s60')
        E('buffer_store_dword v0, v143, s[28:31], s58 offen', tag='stamp')
        E('v_mov_b32 v0, s61')
        E('buffer_store_dword v0, v143, s[28:31], s58 offen offset:4', tag='stamp')
    stampb()
    def loads(i):
        base = FR + (i % D) * 20
        E('s_add_u32 s5, s32, %d' % (i * 3072))
        for st in range(3):
            E('buffer_load_dwordx4 v[%d:%d], v11, s[28:31], s5 offen offset:%d' % (base + 4 * st, base + 4 * st + 3, st * 1024), tag='k%d' % i)
        E('s_add_u32 s6, s33, %d' % (i * 1024))
        E('s_add_u32 s7, s34, %d' % (i * 1024))
        E('buffer_load_dwordx4 v[%d:%d], v11, s[28:31], s6 offen' % (base + 12, base + 15), tag='k%d' % i)
        E('buffer_load_dwordx4 v[%d:%d], v11, s[28:31], s7 offen' % (base + 16, base + 19), tag='k%d' % i)
    for i in range(D):
        loads(i)
    for i in range(16):
        base = FR + (i % D) * 20
        e.wait(vm='k%d' % i)
        if i in (0, 4, 8, 12, 15):
            stampb()
        for nn in range(2):
            for st in range(3):
                a = ACC + (nn * 3 + st) * 4
                src = 'v[%d:%d]' % (a, a + 3) if i > 0 else '0'
                E('v_mfma_f32_16x16x32_bf16 v[%d:%d], v[%d:%d], v[%d:%d], %s' % (
                    a, a + 3, base + 12 + 4 * nn, base + 15 + 4 * nn, base + 4 * st, base + 4 * st + 3, src))
        if i + D < 16:
            loads(i + D)
    E('s_mul_i32 s4, s3, 6144')
    E('v_add_u32 v12, s4, v11')
    for tl in range(6):
        E('ds_write_b128 v12, v[%d:%d] offset:%d' % (ACC + 4 * tl, ACC + 4 * tl + 3, tl * 1024))
    e.wait(lds='all')
    E('s_barrier')
    E('s_cmp_ge_u32 s3, 6')
    E('s_cbranch_scc1 L_b_done')
    E('s_lshl_b32 s4, s3, 10')
    E('v_add_u32 v12, s4, v11')
    for wv in range(8):
        E('ds_read_b128 v[%d:%d], v12 offset:%d' % (FR + 4 * wv, FR + 4 * wv + 3, wv * 6144), tag='r%d' % wv)
    e.wait(lds='r1')
    for r in range(4):
        E('v_add_f32 v%d, v%d, v%d' % (16 + r, FR + r, FR + 4 + r))
    for wv in range(2, 8):
        e.wait(lds='r%d' % wv)
        for r in range(4):
            E('v_add_f32 v%d, v%d, v%d' % (16 + r, 16 + r, FR + 4 * wv + r))
    E('v_cvt_pk_bf16_f32 v20, v16, v17')
    E('v_cvt_pk_bf16_f32 v21, v18, v19')
    E('s_cmp_ge_u32 s3, 3')
    E('s_cselect_b32 s4, 1, 0')
    E('s_mul_i32 s5, s4, 3')
    E('s_sub_u32 s5, s3, s5')
    E('s_mul_i32 s6, s37, 49152')
    E('s_lshl_b32 s5, s5, 14')
    E('s_add_u32 s6, s6, s5')
    E('s_lshl_b32 s5, s38, 6')
    E('s_add_u32 s6, s6, s5')
    E('s_lshl_b32 s4, s4, 5')
    E('s_add_u32 s6, s6, s4')
    E('v_and_b32 v2, 15, v1')
    E('v_lshrrev_b32 v3, 4, v1')
    E('v_lshlrev_b32 v2, 10, v2')
    E('v_lshl_add_u32 v2, v3, 3, v2')
    E('buffer_store_dwordx2 v[20:21], v2, s[8:11], s6 offen')
    stampb()
    e.label('L_b_done')
    E('s_endpgm')
    return e


def kd(name, vgpr, accum, sgpr=72):
    return '''.p2align 6
.amdhsa_kernel %s
  .amdhsa_next_free_vgpr %d
  .amdhsa_next_free_sgpr %d
  .amdhsa_accum_offset %d
  .amdhsa_group_segment_fixed_size 0
  .amdhsa_kernarg_size 64
  .amdhsa_user_sgpr_count 2
  .amdhsa_user_sgpr_kernarg_segment_ptr 1
  .amdhsa_system_sgpr_workgroup_id_x 1
.end_amdhsa_kernel
''' % (name, vgpr, sgpr, accum)


def main():
    global DIAG
    global DIAG_ALL
    if len(sys.argv) > 2 and sys.argv[2].startswith('diag'):
        DIAG = True
        DIAG_ALL = sys.argv[2] == 'diag'
    for kv in sys.argv[3:]:
        k, v = kv.split('=', 1)
        globals()[k] = eval(v)
    ref = open('cdna_kernels/%s.s.ref' % NAME).read().splitlines()
    head = [l for l in ref if l.startswith(';') and '@launch' not in l and 'launch geometry' not in l and 'grid=ceil' not in l]
    a = kernel_a()
    b = kernel_b()
    out = '\n'.join(head) + '\n'
    out += '; @launch kernel=%s grid=(256,1,1) block=(256,1,1) lds=%d\n' % (KA, LDS_A)
    out += '; @launch kernel=%s grid=(256,1,1) block=(512,1,1) lds=49152\n' % KB
    out += '.amdgcn_target "amdgcn-amd-amdhsa--gfx950"\n.text\n'
    out += a.text() + b.text()
    out += '.section .rodata,"a"\n'
    out += kd(KA, 512, 256) + kd(KB, 144, 144)
    path = sys.argv[1] if len(sys.argv) > 1 else 'cdna_kernels/%s.s' % NAME
    open(path, 'w').write(out)
    print('nops inserted: A %d  B %d; lines %d' % (a.nops_inserted, b.nops_inserted, out.count('\n')))


if __name__ == '__main__':
    main()
```

```python
import struct, sys, math
from emit import Emitter, merge, sched

NAME = 'standalone__gqa_block_cached__near_ridge'
KA = 'gqa_attn_kernel'
KB = 'gqa_oproj_kernel'

def f32bits(x):
    return struct.unpack('<I', struct.pack('<f', x))[0]

XB = 0
QB = 24576
PB = [0, 24576]
RING = 49152
RING_W = 12288
NSLOT = 3
VS = [98304, 131072, 98304, 131072]
STATS = 81920
LSTAT = 86016
WOST = 65536
LDS_A = 163840

WOT_OFF = 0x800000
WS_SIZE = 0x1000000


DIAG = False
DIAG_ALL = True
PRO0, PRO1, STEPN, SLOWCOST = 12, 8, 8, 6
KFIRST = 0
TOUCH = 0
EPO = 0
BURST = 2
XDEF = 1
WQPF = 1
KORD = 1
KVPOL = ''
STPOL = ''
PVS = 16
KTF = 0
NOLOAD = 0
ROT = 0
CI, KI = 3, 0
NV_LATE = 40
NV_S = [[4, 4], [4, 4], [4, 4], [4, 4], [4, 4], [0, 0]]
def kernel_a():
    e = Emitter()
    E = e
    stampc = [0]
    def stamp(key=False):
        if not DIAG or not (DIAG_ALL or key):
            return
        i = stampc[0]; stampc[0] += 1
        E('s_memtime s[60:61]')
        E('s_waitcnt lgkmcnt(0)')
        E('s_lshl_b32 s58, s2, 2')
        E('s_add_u32 s58, s58, s3')
        E('s_lshl_b32 s58, s58, 8')
        E('s_add_u32 s58, s58, 0x%x' % (0xC00000 + i * 8))
        E('v_mov_b32 v63, 0')
        E('v_mov_b32 v0, s60')
        E('buffer_store_dword v0, v63, s[28:31], s58 offen', tag='stamp')
        E('v_mov_b32 v0, s61')
        E('buffer_store_dword v0, v63, s[28:31], s58 offen offset:4', tag='stamp')
    e.raw('.p2align 8')
    e.raw('.globl %s' % KA)
    e.raw('.type %s,@function' % KA)
    e.label(KA)
    E('s_cmp_ge_u32 s2, 256')
    E('s_cbranch_scc1 L_a_done')
    E('s_load_dwordx16 s[40:55], s[0:1], 0')
    E('v_and_b32 v1, 63, v0')
    E('v_lshrrev_b32 v2, 6, v0')
    E('s_nop 0')
    E('v_readfirstlane_b32 s3, v2')
    E('s_and_b32 s38, s2, 7')
    E('s_lshr_b32 s4, s2, 3')
    E('s_lshr_b32 s37, s4, 1')
    E('s_and_b32 s4, s4, 1')
    E('s_lshl_b32 s39, s38, 2')
    E('s_lshl_b32 s4, s4, 1')
    E('s_add_u32 s39, s39, s4')
    E('s_lshl_b32 s4, s37, 3')
    E('s_add_u32 s4, s4, s38')
    E('s_lshl_b32 s32, s4, 17')
    E('s_lshl_b32 s5, s3, 15')
    E('s_add_u32 s32, s32, s5')
    E('s_lshr_b32 s5, s2, 3')
    E('s_and_b32 s5, s5, 1')
    E('s_mul_i32 s5, s5, %d' % ROT)
    for kt in range(4):
        E('s_add_u32 s6, s5, %d' % kt)
        E('s_and_b32 s6, s6, 3')
        E('s_lshl_b32 s6, s6, 13')
        E('s_add_u32 s%d, s32, s6' % (64 + kt))
    E('s_mul_i32 s33, s37, 49152')
    E('s_mul_i32 s5, s3, 12288')
    E('s_add_u32 s33, s33, s5')
    E('s_lshl_b32 s34, s39, 8')
    E('s_lshl_b32 s5, s3, 7')
    E('s_add_u32 s34, s34, s5')
    E('s_mul_i32 s35, s3, %d' % RING_W)
    E('s_add_u32 s35, s35, %d' % RING)
    E('s_mov_b32 s36, 0x%08x' % f32bits(math.log2(math.e) / math.sqrt(128.0)))
    E('v_and_b32 v46, 15, v1')
    E('v_lshrrev_b32 v47, 4, v1')
    E('v_xor_b32 v2, v46, v47')
    E('v_lshlrev_b32 v2, 4, v2')
    E('v_lshl_add_u32 v2, v46, 10, v2')
    E('v_lshlrev_b32 v11, 4, v1')
    E('v_lshrrev_b32 v48, 3, v1')
    E('v_and_b32 v49, 7, v1')
    E('v_lshrrev_b32 v50, 1, v49')
    E('v_and_b32 v51, 1, v47')
    E('v_xor_b32 v50, v50, v51')
    E('v_and_b32 v52, 1, v49')
    E('v_lshlrev_b32 v52, 4, v52')
    E('v_lshl_add_u32 v53, v48, 13, v52')
    E('v_lshl_add_u32 v3, v50, 5, v53')
    E('v_xor_b32 v50, 2, v50')
    E('v_lshl_add_u32 v4, v50, 5, v53')
    E('v_add_u32 v4, 0x10000, v4')
    E('v_add_u32 v5, 0x20000, v3')
    E('v_add_u32 v6, 0x20000, v4')
    E('v_lshrrev_b32 v48, 2, v1')
    E('v_and_b32 v48, 3, v48')
    E('v_and_b32 v49, 3, v1')
    E('v_lshrrev_b32 v50, 1, v48')
    E('v_lshlrev_b32 v51, 1, v51')
    E('v_or_b32 v50, v50, v51')
    E('v_lshl_add_u32 v52, v47, 3, v48')
    E('v_lshlrev_b32 v52, 7, v52')
    E('v_lshl_add_u32 v52, v49, 3, v52')
    E('v_add_u32 v52, s35, v52')
    for t in range(4):
        E('v_xor_b32 v53, %d, v50' % t)
        E('v_lshl_add_u32 v%d, v53, 5, v52' % (7 + t))
    E('v_and_b32 v53, 31, v1')
    E('v_lshrrev_b32 v54, 5, v1')
    E('v_lshlrev_b32 v12, 4, v46')
    E('v_lshl_add_u32 v12, v47, 8, v12')
    E('v_lshlrev_b32 v55, 2, v47')
    E('v_xor_b32 v55, v55, v46')
    E('v_lshlrev_b32 v55, 4, v55')
    E('v_lshl_add_u32 v13, v47, 8, v55')
    E('v_lshl_add_u32 v55, v54, 2, v48')
    E('v_lshlrev_b32 v55, 8, v55')
    E('v_xor_b32 v56, s3, v48')
    E('v_lshl_add_u32 v55, v56, 6, v55')
    E('v_and_b32 v56, 1, v47')
    E('v_lshl_add_u32 v55, v56, 5, v55')
    E('v_lshl_add_u32 v14, v49, 3, v55')
    E('v_add_u32 v14, %d, v14' % VS[0])
    E('s_lshl_b32 s4, s3, 11')
    E('v_add_u32 v15, s4, v11')
    E('v_lshlrev_b32 v55, 4, v46')
    E('v_lshl_add_u32 v55, v54, 9, v55')
    E('v_lshl_add_u32 v55, v56, 3, v55')
    E('s_lshr_b32 s4, s3, 1')
    E('s_mul_i32 s4, s4, 3')
    E('s_and_b32 s5, s3, 1')
    E('s_lshl_b32 s5, s5, 12')
    E('s_add_u32 s5, s5, %d' % QB)
    for st in range(3):
        E('s_add_u32 s6, s4, %d' % st)
        E('s_lshr_b32 s7, s6, 1')
        E('s_lshl_b32 s7, s7, 13')
        E('s_and_b32 s6, s6, 1')
        E('s_lshl_b32 s6, s6, 8')
        E('s_add_u32 s6, s6, s7')
        E('s_add_u32 s6, s6, s5')
        E('v_add_u32 v%d, s6, v55' % (16 + st))
    E('v_lshlrev_b32 v20, 5, v53')
    E('v_lshl_add_u32 v19, v54, 2, v20')
    E('s_lshl_b32 s4, s3, 3')
    E('v_add_u32 v19, s4, v19')
    E('v_lshlrev_b32 v55, 4, v46')
    E('v_lshl_add_u32 v55, v54, 8, v55')
    for qt in range(3):
        E('v_add_u32 v57, %d, v56' % (2 * qt))
        E('v_cmp_le_u32 vcc, 3, v57')
        E('v_subrev_u32 v58, 3, v57')
        E('v_lshlrev_b32 v58, 10, v58')
        E('v_add_u32 v58, 12288, v58')
        E('v_lshlrev_b32 v57, 10, v57')
        E('v_cndmask_b32 v57, v57, v58, vcc')
        E('v_add_u32 v%d, v57, v55' % (27 + qt))
    E('s_waitcnt lgkmcnt(0)')
    def srd(d, lo, size):
        E('s_mov_b32 s%d, s%d' % (d, lo))
        E('s_and_b32 s%d, s%d, 0xffff' % (d + 1, lo + 1))
        E('s_mov_b32 s%d, 0x%x' % (d + 2, size))
        E('s_mov_b32 s%d, 0x20000' % (d + 3))
    srd(8, 40, 786432)
    srd(12, 42, 16777216)
    srd(16, 44, 16777216)
    srd(20, 46, 4194304)
    srd(24, 48, 4194304)
    srd(28, 54, WS_SIZE)

    stamp(True)
    if WQPF:
        E('s_lshr_b32 s4, s2, 3')
        E('s_lshl_b32 s4, s4, 2')
        E('s_add_u32 s4, s4, s3')
        E('s_lshl_b32 s4, s4, 15')
        E('s_lshl_b32 s5, s38, 10')
        E('s_add_u32 s4, s4, s5')
        E('v_lshrrev_b32 v62, 4, v1')
        E('v_lshlrev_b32 v62, 13, v62')
        E('v_and_b32 v63, 15, v1')
        E('v_lshl_add_u32 v62, v63, 6, v62')
        E('buffer_load_dword v62, v62, s[20:23], s4 offen', tag='pf')
    if TOUCH:
        E('v_mov_b32 v63, 0')
        E('s_mul_i32 s4, s37, 393216')
        E('s_lshl_b32 s5, s39, 2')
        E('s_add_u32 s5, s5, s3')
        E('s_mul_i32 s5, s5, 3072')
        E('s_add_u32 s4, s4, s5')
        E('buffer_load_dword v248, v63, s[28:31], s4 offen', tag='pf')
        E('s_and_b32 s4, s2, 3')
        E('s_lshl_b32 s4, s4, 20')
        E('s_add_u32 s4, s4, 0x%x' % WOT_OFF)
        E('buffer_load_dword v249, v63, s[28:31], s4 offen', tag='pf')
        if TOUCH > 1:
            E('buffer_load_dword v250, v63, s[12:15], s64 offen', tag='pf')
            E('buffer_load_dword v251, v63, s[16:19], s64 offen', tag='pf')
            E('s_lshl_b32 s4, s2, 14')
            E('buffer_load_dword v252, v63, s[24:27], s4 offen', tag='pf')
    for n in range(KFIRST):
        E('s_add_u32 s7, s%d, %d' % (64 + n // 8, (n % 8) * 1024))
        E('buffer_load_dwordx4 a[%d:%d], v12, s[12:15], s7 offen' % (n * 4, n * 4 + 3), tag='K%d' % (n // 8))
    E('s_mul_i32 s4, s3, 12288')
    for i in range(12):
        E('s_mul_i32 s5, s3, 12')
        E('s_add_u32 s5, s5, %d' % i)
        E('s_and_b32 s5, s5, 15')
        E('s_lshl_b32 s5, s5, 4')
        E('v_xor_b32 v%d, s5, v11' % (60 + (i & 1)))
        E('s_add_u32 s5, s4, %d' % (XB + i * 1024))
        E('s_mov_b32 m0, s5')
        E('s_add_u32 s6, s33, %d' % (i * 1024))
        E('buffer_load_dwordx4 v%d, s[8:11], s6 offen lds' % (60 + (i & 1)), tag='x')

    def wq_dma(c):
        out = []
        for m in range(4):
            def f(m=m):
                E('s_add_u32 s5, s35, %d' % ((c % NSLOT) * 4096 + m * 1024))
                E('s_mov_b32 m0, s5')
                E('s_add_u32 s6, s34, %d' % (c * 262144))
                E('buffer_load_dwordx4 v%d, s[20:23], s6 offen lds' % (3 + m), tag='wq%d' % c)
            out.append(f)
        return out

    def wq_reg(c):
        if c < 8:
            return 'v', 168 + (c - 3) * 16
        return 'a', 128 + (c - 8) * 16

    def wq_load(c):
        out = []
        fl, r = wq_reg(c)
        for m in range(4):
            def f(m=m):
                E('s_add_u32 s6, s34, %d' % (c * 262144))
                E('buffer_load_dwordx4 %s[%d:%d], v%d, s[20:23], s6 offen' % (fl, r + 4 * m, r + 4 * m + 3, 3 + m), tag='wq%d' % c)
            out.append(f)
        return out

    def wq_write(c):
        out = []
        fl, r = wq_reg(c)
        out.append(lambda: e.wait(vm='wq%d' % c))
        for m in range(4):
            out.append(lambda m=m: E('ds_write_b128 v59, %s[%d:%d] offset:%d' % (fl, r + 4 * m, r + 4 * m + 3, (c % NSLOT) * 4096 + m * 1024)))
        return out

    ACC = 64
    AF = [112, 128]
    BF = [144, 156]

    def p1_reads(c):
        out = []
        bu = c & 1
        sl = c % NSLOT
        out.append(lambda: E('v_xor_b32 v%d, %d, v2' % (60 + bu, c * 64)))
        for st in range(3):
            out.append(lambda st=st: E('ds_read_b128 v[%d:%d], v%d offset:%d' % (BF[bu] + 4 * st, BF[bu] + 4 * st + 3, 60 + bu, XB + st * 16384), tag='p1r%d' % c))
        for t in range(4):
            for hh in range(2):
                out.append(lambda t=t, hh=hh: E('ds_read_b64_tr_b16 v[%d:%d], v%d offset:%d' % (
                    AF[bu] + 4 * t + 2 * hh, AF[bu] + 4 * t + 2 * hh + 1, 7 + t, sl * 4096 + hh * 512), tag='p1r%d' % c))
        return out

    def kload(n):
        def f():
            E('s_add_u32 s7, s%d, %d' % (64 + n // 8, (n % 8) * 1024))
            E('buffer_load_dwordx4 a[%d:%d], v12, s[12:15], s7 offen%s' % (n * 4, n * 4 + 3, KVPOL), tag='K%d' % (n // 8))
        return f

    def v_chunk(t):
        out = []
        for mm in range(8):
            def f(mm=mm):
                E('s_lshl_b32 s5, s3, 13')
                E('s_add_u32 s5, s5, %d' % (VS[t] + mm * 1024))
                E('s_mov_b32 m0, s5')
                E('s_add_u32 s6, s%d, %d' % (64 + t, mm * 1024))
                E('buffer_load_dwordx4 v13, s[16:19], s6 offen%s lds' % KVPOL, tag='V%d' % t)
            out.append(f)
        return out

    def v_regs(t):
        out = []
        for mm in range(8):
            def f(mm=mm):
                r = 192 + (t - 2) * 32 + mm * 4
                E('s_add_u32 s6, s%d, %d' % (64 + t, mm * 1024))
                E('buffer_load_dwordx4 v[%d:%d], v12, s[16:19], s6 offen%s' % (r, r + 3, KVPOL), tag='V%d' % t)
            out.append(f)
        return out
    E('v_add_u32 v59, s35, v11')
    seq = []
    if KORD:
        slow = [kload(n) for n in range(KFIRST, 32)] + v_chunk(0) + v_chunk(1) + v_regs(2) + v_regs(3)
    else:
        slow = [kload(n) for n in range(KFIRST, 16)] + v_chunk(0) + v_chunk(1) + [kload(n) for n in range(16, 32)] + v_regs(2) + v_regs(3)
    for c in range(3):
        seq += wq_dma(c)
    for c in range(3, 16):
        seq += wq_load(c)
        if c >= CI:
            seq += slow[:KI]
            slow = slow[KI:]
    nfast = len(seq)
    seq += slow
    LEFT = {'K0': 56, 'K1': 48, 'V0': 40, 'V1': 32, 'K2': 24, 'K3': 16, 'V2': 8, 'V3': 0}
    if KORD:
        LEFT = {'K0': 56, 'K1': 48, 'K2': 40, 'K3': 32, 'V0': 24, 'V1': 16, 'V2': 8, 'V3': 0}
    def vwait(tag):
        nf = 0
        while len(seq) > LEFT[tag]:
            issue(SLOWCOST); nf += 1
        if nf:
            print('forced issue of %d loads for %s' % (nf, tag))
        e.wait(vm=tag)
    issued = [0]
    def issue(maxn=1000):
        n = 0
        while seq and len(e.vmq) < 62 and n < maxn:
            seq.pop(0)()
            n += 1 if issued[0] < nfast else SLOWCOST
            issued[0] += 1
    stamp()
    issue(PRO0)
    stamp()
    e.wait(vm='wq0')
    stamp()
    E('s_barrier')
    stamp()
    issue(PRO1)
    for f in p1_reads(0):
        f()
    for c in range(16):
        bu = c & 1
        e.wait(lds='p1r%d' % c)
        if c in (2, 4, 6, 8, 12):
            stamp()
        rd = []
        if c + 1 < 16:
            if c + 1 < 3:
                rd.append(lambda c=c: e.wait(vm='wq%d' % (c + 1)))
            rd += p1_reads(c + 1)
        rd2 = []
        if 3 <= c + 2 < 16:
            rd2 = wq_write(c + 2)
        rd2.append(lambda: issue(STEPN))
        mf = []
        for nt in range(4):
            for st in range(3):
                a = ACC + (nt * 3 + st) * 4
                src = 'v[%d:%d]' % (a, a + 3) if c > 0 else '0'
                mf.append(lambda a=a, nt=nt, st=st, src=src: E('v_mfma_f32_16x16x32_bf16 v[%d:%d], v[%d:%d], v[%d:%d], %s' % (
                    a, a + 3, AF[bu] + 4 * nt, AF[bu] + 4 * nt + 3, BF[bu] + 4 * st, BF[bu] + 4 * st + 3, src)))
        for f in merge(mf[:6], rd) + merge(mf[6:], rd2):
            f()
    for nt in range(4):
        for st in range(3):
            a = ACC + (nt * 3 + st) * 4
            E('v_cvt_pk_bf16_f32 v%d, v%d, v%d' % (a, a, a + 1))
            E('v_cvt_pk_bf16_f32 v%d, v%d, v%d' % (a + 1, a + 2, a + 3))
    stamp(True)
    E('s_barrier')
    for nt in range(4):
        for st in range(3):
            a = ACC + (nt * 3 + st) * 4
            E('ds_write_b64 v%d, v[%d:%d] offset:%d' % (16 + st, a, a + 1, nt * 1024))

    while len(seq) > NV_LATE:
        issue(SLOWCOST)
    if NOLOAD:
        del seq[:]
    e.wait(lds='all')
    E('s_barrier')
    QF = 128
    for qt in range(3):
        for ks in range(8):
            r = QF + (qt * 8 + ks) * 4
            E('ds_read_b128 a[%d:%d], v11 offset:%d' % (r, r + 3, QB + (qt * 8 + ks) * 1024), tag='Q')
    E('s_lshl_b32 s4, s3, 13')
    E('s_add_u32 s4, s4, 0xC000')
    E('v_and_b32 v46, 15, v1')
    E('v_lshrrev_b32 v47, 4, v1')
    E('v_xor_b32 v48, v46, v47')
    for jj in range(4):
        E('v_xor_b32 v49, %d, v48' % (4 * jj))
        E('v_lshlrev_b32 v49, 4, v49')
        E('v_lshl_add_u32 v49, v47, 8, v49')
        E('v_add_u32 v%d, s4, v49' % (6 + jj))
    E('v_and_b32 v46, 31, v1')
    E('v_lshrrev_b32 v47, 5, v1')
    E('v_and_b32 v48, 15, v1')
    E('v_xor_b32 v48, v48, v47')
    E('v_lshlrev_b32 v48, 4, v48')
    E('v_lshl_add_u32 v48, v46, 8, v48')
    E('v_add_u32 v54, s4, v48')
    E('v_add_u32 v60, 0x%x, v19' % STATS)
    E('v_add_u32 v61, 0x%x, v20' % STATS)
    def ktr(kt):
        w_ = lambda: vwait('K%d' % kt)
        w_.cost = 0
        out = [w_]
        for m in range(8):
            r = (kt * 8 + m) * 4
            out.append(lambda m=m, r=r: E('ds_write_b128 v%d, a[%d:%d] offset:%d' % (6 + (m & 3), r, r + 3, m * 1024)))
        for ks in range(8):
            r = (kt * 8 + ks) * 4
            def f(ks=ks, r=r):
                E('v_xor_b32 v%d, %d, v54' % (55 + (ks & 1), ks * 32))
                E('ds_read_b128 a[%d:%d], v%d' % (r, r + 3, 55 + (ks & 1)), tag='kt%d' % kt)
            out.append(f)
        return out
    SB = [64, 128]
    MX = 62
    def sreg(u, kt):
        return SB[u & 1] + (kt & 1) * 16
    def max_ops(u, kt):
        out = []
        for i in range(8):
            s_ = sreg(u, kt) + 2 * i
            if (kt & 1) == 0 and i == 0:
                out.append(lambda s_=s_: E('v_max_f32 v%d, v%d, v%d' % (MX, s_, s_ + 1)))
            else:
                out.append(lambda s_=s_: E('v_max3_f32 v%d, v%d, v%d, v%d' % (MX, s_, s_ + 1, MX)))
        return out
    def s_mf(u, kt):
        q = u % 3
        mf = []
        for ks in range(8):
            s_ = sreg(u, kt)
            src = 'v[%d:%d]' % (s_, s_ + 15) if ks > 0 else '0'
            kr = (kt * 8 + ks) * 4
            qr = QF + (q * 8 + ks) * 4
            mf.append(lambda s_=s_, kr=kr, qr=qr, src=src: E('v_mfma_f32_32x32x16_bf16 v[%d:%d], a[%d:%d], a[%d:%d], %s' % (
                s_, s_ + 15, kr, kr + 3, qr, qr + 3, src)))
        return mf
    PK = [30, 34, 38, 42]
    pkc = [0]
    OA = [0, 64]
    PSL = {(0, 0): 0, (0, 1): 8192, (1, 0): 16384, (1, 1): 24576, (2, 0): 32768, (2, 1): 40960,
           (0, 2): 49152, (0, 3): 57344, (1, 2): 0, (1, 3): 16384, (2, 2): 32768, (2, 3): 8192}
    def exp_ops(u, kt):
        q = u % 3
        out = []
        s0 = sreg(u, kt)
        for hf in range(2):
            pk = PK[pkc[0] % 4]; pkc[0] += 1
            regs = [s0 + 8 * hf + i for i in range(8)]
            for r in regs:
                out.append(lambda r=r: E('v_fma_f32 v%d, v%d, s36, -v%d' % (r, r, 21 + q)))
            for r in regs:
                out.append(lambda r=r: E('v_exp_f32 v%d, v%d' % (r, r)))
            for k, r in enumerate(regs):
                if kt == 0 and hf == 0 and k == 0:
                    out.append(lambda r=r: E('v_add_f32 v%d, v%d, v%d' % (24 + q, r, r + 1)))
                elif kt == 0 and hf == 0 and k == 1:
                    pass
                else:
                    out.append(lambda r=r: E('v_add_f32 v%d, v%d, v%d' % (24 + q, r, 24 + q)))
                if k & 1:
                    out.append(lambda r=r, pk=pk, k=k: E('v_cvt_pk_bf16_f32 v%d, v%d, v%d' % (pk + k // 2, r - 1, r)))
            off = PSL[(q, kt)] + hf * 1024
            out.append(lambda pk=pk, off=off: E('ds_write_b128 v15, v[%d:%d] offset:%d' % (pk, pk + 3, off)))
        return out
    def exchange(u):
        h, q = u // 3, u % 3
        E('ds_write_b32 v60, v%d offset:%d' % (MX, q * 1024))
        e.wait(lds='all')
        stamp()
        E('s_barrier')
        E('ds_read_b128 v[46:49], v61 offset:%d' % (q * 1024), tag='st')
        E('ds_read_b128 v[50:53], v61 offset:%d' % (q * 1024 + 16), tag='st')
        out = [lambda: e.wait(lds='st')]
        ops = ['v_max3_f32 v46, v46, v47, v48', 'v_max3_f32 v50, v50, v51, v52', 'v_max3_f32 v46, v46, v49, v53', 'v_max_f32 v46, v46, v50']
        if h == 0:
            ops += ['v_mul_f32 v%d, s36, v46' % (21 + q)]
        else:
            ops += ['v_mul_f32 v46, s36, v46', 'v_max_f32 v46, v46, v%d' % (21 + q), 'v_sub_f32 v47, v%d, v46' % (21 + q),
                    'v_exp_f32 v%d, v47' % (57 + q), 'v_mov_b32 v%d, v46' % (21 + q), 'v_mul_f32 v%d, v%d, v%d' % (24 + q, 24 + q, 57 + q)]
        out += [(lambda o=o: E(o)) for o in ops]
        if not XDEF:
            for f in out:
                f()
            out = []
        return out

    PB4 = [96, 112, 160, 176]
    pvc = [0]
    def C(cost, fn):
        fn.cost = cost
        return fn
    def pv_anchors(lst):
        steps = []
        for (t, qs, first) in lst:
            for n in range(8):
                steps.append((t, qs, first, n))
        base = pvc[0]
        pvc[0] += len(steps)
        def reads(i):
            t, qs, first, n = steps[i]
            u, hf = n // 2, n % 2
            b = PB4[(base + i) & 3]
            vb = 14 if (t & 1) == 0 else 10
            tag = 'pv%d' % (base + i)
            out = []
            for ee in range(2):
                out.append(lambda ee=ee: E('ds_read_b64_tr_b16 v[%d:%d], v%d offset:%d' % (
                    b + 2 * ee, b + 2 * ee + 1, vb, (32 * u + 16 * hf + 8 * ee) * 256), tag=tag))
            for qt in qs:
                off = PSL[(qt, t)] + u * 2048 + hf * 1024
                out.append(lambda qt=qt, off=off: E('ds_read_b128 v[%d:%d], v11 offset:%d' % (
                    b + 4 + 4 * qt, b + 7 + 4 * qt, off), tag=tag))
            return out
        pro = reads(0) + reads(1)
        anc = []
        for i, (t, qs, first, n) in enumerate(steps):
            b = PB4[(base + i) & 3]
            rd = reads(i + 2) if i + 2 < len(steps) else []
            k = len(qs)
            for x, qt in enumerate(qs):
                o = OA[t >> 1] + 16 * qt
                src = '0' if (first and n == 0) else 'a[%d:%d]' % (o, o + 15)
                fn = (lambda o=o, b=b, qt=qt, src=src: E('v_mfma_f32_32x32x16_bf16 a[%d:%d], v[%d:%d], v[%d:%d], %s' % (
                    o, o + 15, b, b + 3, b + 4 + 4 * qt, b + 7 + 4 * qt, src)))
                pre = [lambda i=i: e.wait(lds='pv%d' % (base + i))] if x == 0 else []
                post = rd[len(rd) * x // k: len(rd) * (x + 1) // k]
                anc.append((pre, fn, post))
        return pro, anc

    WOR = 240
    def wo_loads():
        out = []
        def pre():
            E('s_lshr_b32 s4, s2, 2')
            E('s_lshl_b32 s4, s4, 16')
            E('s_and_b32 s5, s2, 3')
            E('s_lshl_b32 s5, s5, 8')
            E('s_add_u32 s4, s4, s5')
            E('s_lshl_b32 s5, s3, 14')
            E('s_add_u32 s56, s4, s5')
            E('v_lshrrev_b32 v3, 4, v1')
            E('v_and_b32 v4, 15, v1')
            E('v_lshlrev_b32 v3, 10, v3')
            E('v_lshl_add_u32 v3, v4, 4, v3')
        out.append(pre)
        for m in range(4):
            def f(m=m):
                E('s_add_u32 s6, s56, %d' % (m * 4096))
                E('buffer_load_dwordx4 a[%d:%d], v3, s[24:27], s6 offen' % (WOR + 4 * m, WOR + 4 * m + 3), tag='WO')
            out.append(f)
        return out
    def v_store(t):
        out = [C(0, lambda: vwait('V%d' % t))]
        def pre():
            E('s_lshl_b32 s4, s3, 13')
            E('s_add_u32 s4, s4, %d' % VS[t])
            E('v_add_u32 v55, s4, v13')
        out.append(pre)
        for mm in range(8):
            r = 192 + (t - 2) * 32 + mm * 4
            out.append(lambda r=r, mm=mm: E('ds_write_b128 v55, v[%d:%d] offset:%d' % (r, r + 3, mm * 1024)))
        return out
    def iss(n):
        return [C(20, lambda: issue(SLOWCOST))] * n

    E('v_add_u32 v10, 0x%x, v14' % (VS[1] - VS[0]))
    for f in ktr(0):
        f()
    e.wait(lds='kt0')
    stamp()
    xpost = []
    for u in range(6):
        h, q = u // 3, u % 3
        t0, t1 = 2 * h, 2 * h + 1
        sa = [([], f, []) for f in s_mf(u, t0)] + [([], f, []) for f in s_mf(u, t1)]
        if q == 0:
            sa[8] = ([lambda t1=t1: e.wait(lds='kt%d' % t1)], sa[8][1], [])
        pro = []
        if u in (4, 5):
            pro, pa = pv_anchors([(u - 4, (0, 1, 2), u == 4)])
            anc = sa[:2] + merge(sa[2:], pa[:PVS]) + pa[PVS:]
        else:
            anc = sa
        i7 = [k for k, a in enumerate(anc) if a[1] is sa[7][1]][0]
        i15 = [k for k, a in enumerate(anc) if a[1] is sa[15][1]][0]
        s0, s1 = [], []
        if u > 0:
            pu = u - 1
            s0 = exp_ops(pu, 2 * (pu // 3))
            s1 = exp_ops(pu, 2 * (pu // 3) + 1)
        if q == 0:
            s0 = ktr(t1) + s0 if KTF else merge(s0, ktr(t1))
        if u == 2:
            s1 = merge(s1, ktr(2))
        if u == 5:
            s1 = merge(s1, v_store(2))
        if u == 4:
            s1 = merge(s1, wo_loads())
        s0 = xpost + merge(s0, iss(NV_S[u][0]))
        s1 = merge(s1, iss(NV_S[u][1]))
        cons = [(i7 + 1, f) for f in max_ops(u, t0)] + [(i15 + 1, f) for f in max_ops(u, t1)]
        for f in pro:
            f()
        if q == 0:
            sched(e, anc[:8], s0, burst=BURST if u else 0)
            sched(e, anc[8:], s1, [(m - 8, f) for m, f in cons])
        else:
            sched(e, anc, s0 + s1, cons, burst=BURST)
        if u == 3:
            vwait('V0')
        if u == 4:
            vwait('V1')
        xpost = exchange(u)
        if u == 2:
            stamp(True)
    tail = exp_ops(5, 2) + exp_ops(5, 3)
    tail = xpost + merge(tail, v_store(3))
    for qt in range(3):
        tail.append(lambda qt=qt: E('ds_write_b32 v60, v%d offset:%d' % (24 + qt, LSTAT - STATS + qt * 1024)))
    def stg():
        e.wait(vm='WO')
        E('s_lshl_b32 s4, s3, 12')
        E('s_add_u32 s4, s4, %d' % WOST)
        E('v_add_u32 v56, s4, v13')
        for m in range(4):
            E('ds_write_b128 v56, a[%d:%d] offset:%d' % (WOR + 4 * m, WOR + 4 * m + 3, m * 1024))
    tail.append(stg)
    pro, pa = pv_anchors([(2, (0, 1), True)])
    for f in pro:
        f()
    sched(e, pa, tail, lead=100)
    e.wait(lds='all')
    stamp()
    E('s_barrier')
    stamp(True)
    b = []
    TB = [64, 80, 128]
    for qt in range(3):
        def ls(qt=qt):
            E('ds_read_b128 v[46:49], v61 offset:%d' % (LSTAT - STATS + qt * 1024), tag='ls%d' % qt)
            E('ds_read_b128 v[50:53], v61 offset:%d' % (LSTAT - STATS + qt * 1024 + 16), tag='ls%d' % qt)
            e.wait(lds='ls%d' % qt)
            E('v_add_f32 v46, v46, v47')
            E('v_add_f32 v48, v48, v49')
            E('v_add_f32 v50, v50, v51')
            E('v_add_f32 v52, v52, v53')
            E('v_add_f32 v46, v46, v48')
            E('v_add_f32 v50, v50, v52')
            E('v_add_f32 v46, v46, v50')
            E('v_rcp_f32 v%d, v46' % (24 + qt))
            E('v_mul_f32 v%d, v%d, v%d' % (57 + qt, 57 + qt, 24 + qt))
        b.append(ls)
        for r in range(16):
            def f(qt=qt, r=r):
                E('v_accvgpr_read_b32 v%d, a%d' % (TB[qt] + r, OA[0] + 16 * qt + r))
                E('v_mul_f32 v%d, v%d, v%d' % (TB[qt] + r, TB[qt] + r, 57 + qt))
            b.append(f)
    def wt_addr():
        E('v_lshrrev_b32 v46, 4, v1')
        E('v_lshrrev_b32 v47, 2, v1')
        E('v_and_b32 v47, 3, v47')
        E('v_and_b32 v48, 3, v1')
        E('v_lshl_add_u32 v49, v46, 3, v47')
        E('v_lshlrev_b32 v49, 8, v49')
        E('v_xor_b32 v50, s3, v47')
        E('v_lshl_add_u32 v49, v50, 6, v49')
        E('v_lshl_add_u32 v49, v48, 3, v49')
        E('v_add_u32 v49, 0x%x, v49' % WOST)
        for kk in range(2):
            for nn in range(2):
                for hh in range(2):
                    r = 30 + (kk * 2 + nn) * 4 + 2 * hh
                    E('ds_read_b64_tr_b16 v[%d:%d], v49 offset:%d' % (r, r + 1, (32 * kk + 4 * hh) * 256 + nn * 32), tag='wt')
    b.append(wt_addr)
    def epi(qt):
        out = []
        T = TB[qt]
        U = 192 + (qt & 1) * 16
        for r in range(16):
            out.append(lambda r=r: E('v_accvgpr_read_b32 v%d, a%d' % (U + r, OA[1] + 16 * qt + r)))
        for r in range(16):
            out.append(lambda r=r: E('v_fma_f32 v%d, v%d, v%d, v%d' % (T + r, U + r, 24 + qt, T + r)))
        for k in range(8):
            out.append(lambda k=k: E('v_cvt_pk_bf16_f32 v%d, v%d, v%d' % (T + k, T + 2 * k, T + 2 * k + 1)))
        for k in (0, 2):
            def f(k=k):
                E('v_permlane32_swap_b32 v%d, v%d' % (T + 2 * k, T + 2 * k + 2))
                E('v_permlane32_swap_b32 v%d, v%d' % (T + 2 * k + 1, T + 2 * k + 3))
                E('buffer_store_dwordx4 v[%d:%d], v%d, s[28:31], s57 offen offset:%d%s' % (T + 2 * k, T + 2 * k + 3, 27 + qt, k * 256, STPOL))
            out.append(f)
        return out
    E('s_mul_i32 s4, s37, 393216')
    E('s_lshl_b32 s5, s39, 2')
    E('s_add_u32 s5, s5, s3')
    E('s_mul_i32 s5, s5, 3072')
    E('s_add_u32 s57, s4, s5')
    if EPO:
        pro, pa = pv_anchors([(3, (0, 1), False), (2, (2,), True), (3, (2,), False)])
        for f in pro:
            f()
        sched(e, pa[:16], b, lead=60)
        sched(e, pa[16:], epi(0) + epi(1), burst=1)
        stamp()
        for f in epi(2):
            f()
    else:
        pro, pa = pv_anchors([(2, (2,), True), (3, (0, 1, 2), False)])
        for f in pro:
            f()
        sched(e, pa, b, lead=60)
        stamp()
        for qt in range(3):
            for f in epi(qt):
                f()
    E('s_and_b32 s4, s2, 3')
    E('s_lshl_b32 s4, s4, 3')
    E('s_lshl_b32 s5, s3, 1')
    E('s_add_u32 s4, s4, s5')
    E('s_lshl_b32 s4, s4, 17')
    E('s_lshr_b32 s5, s2, 2')
    E('s_lshl_b32 s5, s5, 11')
    E('s_add_u32 s4, s4, s5')
    E('s_add_u32 s4, s4, 0x%x' % WOT_OFF)
    E('s_add_u32 s5, s4, 0x20000')
    e.wait(lds='wt')
    for kk in range(2):
        for nn in range(2):
            r = 30 + (kk * 2 + nn) * 4
            E('buffer_store_dwordx4 v[%d:%d], v11, s[28:31], s%d offen offset:%d%s' % (r, r + 3, 4 + nn, kk * 1024, STPOL))
    stamp(True)
    e.label('L_a_done')
    E('s_endpgm')
    return e


def kernel_b():
    e = Emitter()
    E = e
    e.raw('.p2align 8')
    e.raw('.globl %s' % KB)
    e.raw('.type %s,@function' % KB)
    e.label(KB)
    E('s_cmp_ge_u32 s2, 256')
    E('s_cbranch_scc1 L_b_done')
    E('s_load_dwordx2 s[40:41], s[0:1], 40')
    E('s_load_dwordx2 s[42:43], s[0:1], 56')
    E('v_and_b32 v1, 63, v0')
    E('v_lshrrev_b32 v2, 6, v0')
    E('s_nop 0')
    E('v_readfirstlane_b32 s3, v2')
    E('s_and_b32 s4, s2, 7')
    E('s_lshr_b32 s5, s2, 3')
    E('s_lshr_b32 s6, s4, 1')
    E('s_lshl_b32 s6, s6, 2')
    E('s_lshr_b32 s7, s5, 3')
    E('s_add_u32 s37, s6, s7')
    E('s_and_b32 s6, s4, 1')
    E('s_lshl_b32 s6, s6, 3')
    E('s_and_b32 s7, s5, 7')
    E('s_add_u32 s38, s6, s7')
    E('v_lshlrev_b32 v11, 4, v1')
    E('s_mul_i32 s32, s37, 393216')
    E('s_mul_i32 s4, s3, 49152')
    E('s_add_u32 s32, s32, s4')
    E('s_lshl_b32 s33, s38, 18')
    E('s_lshl_b32 s4, s3, 14')
    E('s_add_u32 s33, s33, s4')
    E('s_add_u32 s33, s33, 0x%x' % WOT_OFF)
    E('s_add_u32 s34, s33, 0x20000')
    E('s_waitcnt lgkmcnt(0)')
    E('s_mov_b32 s8, s40')
    E('s_and_b32 s9, s41, 0xffff')
    E('s_mov_b32 s10, 786432')
    E('s_mov_b32 s11, 0x20000')
    E('s_mov_b32 s28, s42')
    E('s_and_b32 s29, s43, 0xffff')
    E('s_mov_b32 s30, 0x%x' % WS_SIZE)
    E('s_mov_b32 s31, 0x20000')
    D = 5
    ACC = 16
    FR = 40
    stc = [0]
    def stampb():
        if not DIAG:
            return
        i = stc[0]; stc[0] += 1
        E('s_memtime s[60:61]')
        E('s_waitcnt lgkmcnt(0)')
        E('s_lshl_b32 s58, s2, 3')
        E('s_add_u32 s58, s58, s3')
        E('s_lshl_b32 s58, s58, 8')
        E('s_add_u32 s58, s58, 0x%x' % (0xD00000 + i * 8))
        E('v_mov_b32 v143, 0')
        E('v_mov_b32 v0, s60')
        E('buffer_store_dword v0, v143, s[28:31], s58 offen', tag='stamp')
        E('v_mov_b32 v0, s61')
        E('buffer_store_dword v0, v143, s[28:31], s58 offen offset:4', tag='stamp')
    stampb()
    def loads(i):
        base = FR + (i % D) * 20
        E('s_add_u32 s5, s32, %d' % (i * 3072))
        for st in range(3):
            E('buffer_load_dwordx4 v[%d:%d], v11, s[28:31], s5 offen offset:%d' % (base + 4 * st, base + 4 * st + 3, st * 1024), tag='k%d' % i)
        E('s_add_u32 s6, s33, %d' % (i * 1024))
        E('s_add_u32 s7, s34, %d' % (i * 1024))
        E('buffer_load_dwordx4 v[%d:%d], v11, s[28:31], s6 offen' % (base + 12, base + 15), tag='k%d' % i)
        E('buffer_load_dwordx4 v[%d:%d], v11, s[28:31], s7 offen' % (base + 16, base + 19), tag='k%d' % i)
    for i in range(D):
        loads(i)
    for i in range(16):
        base = FR + (i % D) * 20
        e.wait(vm='k%d' % i)
        if i in (0, 4, 8, 12, 15):
            stampb()
        for nn in range(2):
            for st in range(3):
                a = ACC + (nn * 3 + st) * 4
                src = 'v[%d:%d]' % (a, a + 3) if i > 0 else '0'
                E('v_mfma_f32_16x16x32_bf16 v[%d:%d], v[%d:%d], v[%d:%d], %s' % (
                    a, a + 3, base + 12 + 4 * nn, base + 15 + 4 * nn, base + 4 * st, base + 4 * st + 3, src))
        if i + D < 16:
            loads(i + D)
    E('s_mul_i32 s4, s3, 6144')
    E('v_add_u32 v12, s4, v11')
    for tl in range(6):
        E('ds_write_b128 v12, v[%d:%d] offset:%d' % (ACC + 4 * tl, ACC + 4 * tl + 3, tl * 1024))
    e.wait(lds='all')
    E('s_barrier')
    E('s_cmp_ge_u32 s3, 6')
    E('s_cbranch_scc1 L_b_done')
    E('s_lshl_b32 s4, s3, 10')
    E('v_add_u32 v12, s4, v11')
    for wv in range(8):
        E('ds_read_b128 v[%d:%d], v12 offset:%d' % (FR + 4 * wv, FR + 4 * wv + 3, wv * 6144), tag='r%d' % wv)
    e.wait(lds='r1')
    for r in range(4):
        E('v_add_f32 v%d, v%d, v%d' % (16 + r, FR + r, FR + 4 + r))
    for wv in range(2, 8):
        e.wait(lds='r%d' % wv)
        for r in range(4):
            E('v_add_f32 v%d, v%d, v%d' % (16 + r, 16 + r, FR + 4 * wv + r))
    E('v_cvt_pk_bf16_f32 v20, v16, v17')
    E('v_cvt_pk_bf16_f32 v21, v18, v19')
    E('s_cmp_ge_u32 s3, 3')
    E('s_cselect_b32 s4, 1, 0')
    E('s_mul_i32 s5, s4, 3')
    E('s_sub_u32 s5, s3, s5')
    E('s_mul_i32 s6, s37, 49152')
    E('s_lshl_b32 s5, s5, 14')
    E('s_add_u32 s6, s6, s5')
    E('s_lshl_b32 s5, s38, 6')
    E('s_add_u32 s6, s6, s5')
    E('s_lshl_b32 s4, s4, 5')
    E('s_add_u32 s6, s6, s4')
    E('v_and_b32 v2, 15, v1')
    E('v_lshrrev_b32 v3, 4, v1')
    E('v_lshlrev_b32 v2, 10, v2')
    E('v_lshl_add_u32 v2, v3, 3, v2')
    E('buffer_store_dwordx2 v[20:21], v2, s[8:11], s6 offen')
    stampb()
    e.label('L_b_done')
    E('s_endpgm')
    return e


def kd(name, vgpr, accum, sgpr=72):
    return '''.p2align 6
.amdhsa_kernel %s
  .amdhsa_next_free_vgpr %d
  .amdhsa_next_free_sgpr %d
  .amdhsa_accum_offset %d
  .amdhsa_group_segment_fixed_size 0
  .amdhsa_kernarg_size 64
  .amdhsa_user_sgpr_count 2
  .amdhsa_user_sgpr_kernarg_segment_ptr 1
  .amdhsa_system_sgpr_workgroup_id_x 1
.end_amdhsa_kernel
''' % (name, vgpr, sgpr, accum)


def main():
    global DIAG
    global DIAG_ALL
    if len(sys.argv) > 2 and sys.argv[2].startswith('diag'):
        DIAG = True
        DIAG_ALL = sys.argv[2] == 'diag'
    for kv in sys.argv[3:]:
        k, v = kv.split('=', 1)
        globals()[k] = eval(v)
    ref = open('cdna_kernels/%s.s.ref' % NAME).read().splitlines()
    head = [l for l in ref if l.startswith(';') and '@launch' not in l and 'launch geometry' not in l and 'grid=ceil' not in l]
    a = kernel_a()
    b = kernel_b()
    out = '\n'.join(head) + '\n'
    out += '; @launch kernel=%s grid=(256,1,1) block=(256,1,1) lds=%d\n' % (KA, LDS_A)
    out += '; @launch kernel=%s grid=(256,1,1) block=(512,1,1) lds=49152\n' % KB
    out += '.amdgcn_target "amdgcn-amd-amdhsa--gfx950"\n.text\n'
    out += a.text() + b.text()
    out += '.section .rodata,"a"\n'
    out += kd(KA, 512, 256) + kd(KB, 144, 144)
    path = sys.argv[1] if len(sys.argv) > 1 else 'cdna_kernels/%s.s' % NAME
    open(path, 'w').write(out)
    print('nops inserted: A %d  B %d; lines %d' % (a.nops_inserted, b.nops_inserted, out.count('\n')))


if __name__ == '__main__':
    main()
```

```python
import struct, sys, math
from emit import Emitter, merge, sched

NAME = 'standalone__gqa_block_cached__near_ridge'
KA = 'gqa_attn_kernel'
KB = 'gqa_oproj_kernel'

def f32bits(x):
    return struct.unpack('<I', struct.pack('<f', x))[0]

XB = 0
QB = 24576
PB = [0, 24576]
RING = 49152
RING_W = 12288
NSLOT = 3
VS = [98304, 131072, 98304, 131072]
STATS = 81920
LSTAT = 86016
WOST = 65536
LDS_A = 163840

WOT_OFF = 0x800000
WS_SIZE = 0x1000000


DIAG = False
DIAG_ALL = True
PRO0, PRO1, STEPN, SLOWCOST = 12, 8, 8, 6
KFIRST = 0
FUSE = 0
P3D = 8
TOUCH = 0
EPO = 0
BURST = 2
XDEF = 1
WQPF = 1
KORD = 1
KVPOL = ''
STPOL = ''
PVS = 16
KTF = 0
NOLOAD = 0
ROT = 0
CI, KI = 3, 0
NV_LATE = 40
NV_S = [[4, 4], [4, 4], [4, 4], [4, 4], [4, 4], [0, 0]]
def kernel_a():
    e = Emitter()
    E = e
    stampc = [0]
    def stamp(key=False):
        if not DIAG or not (DIAG_ALL or key):
            return
        i = stampc[0]; stampc[0] += 1
        E('s_memtime s[60:61]')
        E('s_waitcnt lgkmcnt(0)')
        E('s_lshl_b32 s58, s2, 2')
        E('s_add_u32 s58, s58, s3')
        E('s_lshl_b32 s58, s58, 8')
        E('s_add_u32 s58, s58, 0x%x' % (0xC00000 + i * 8))
        E('v_mov_b32 v63, 0')
        E('v_mov_b32 v0, s60')
        E('buffer_store_dword v0, v63, s[28:31], s58 offen', tag='stamp')
        E('v_mov_b32 v0, s61')
        E('buffer_store_dword v0, v63, s[28:31], s58 offen offset:4', tag='stamp')
    e.raw('.p2align 8')
    e.raw('.globl %s' % KA)
    e.raw('.type %s,@function' % KA)
    e.label(KA)
    E('s_cmp_ge_u32 s2, 256')
    E('s_cbranch_scc1 L_a_done')
    E('s_load_dwordx16 s[40:55], s[0:1], 0')
    E('v_and_b32 v1, 63, v0')
    E('v_lshrrev_b32 v2, 6, v0')
    E('s_nop 0')
    E('v_readfirstlane_b32 s3, v2')
    if FUSE:
        E('s_lshr_b32 s4, s2, 3')
        E('s_and_b32 s38, s2, 3')
        E('s_lshl_b32 s38, s38, 1')
        E('s_and_b32 s5, s4, 1')
        E('s_add_u32 s38, s38, s5')
        E('s_bfe_u32 s37, s2, 0x10002')
        E('s_lshl_b32 s37, s37, 3')
        E('s_lshr_b32 s5, s4, 2')
        E('s_add_u32 s37, s37, s5')
        E('s_bfe_u32 s4, s4, 0x10001')
    else:
        E('s_and_b32 s38, s2, 7')
        E('s_lshr_b32 s4, s2, 3')
        E('s_lshr_b32 s37, s4, 1')
        E('s_and_b32 s4, s4, 1')
    E('s_lshl_b32 s39, s38, 2')
    E('s_lshl_b32 s4, s4, 1')
    E('s_add_u32 s39, s39, s4')
    E('s_lshl_b32 s4, s37, 3')
    E('s_add_u32 s4, s4, s38')
    E('s_lshl_b32 s32, s4, 17')
    E('s_lshl_b32 s5, s3, 15')
    E('s_add_u32 s32, s32, s5')
    E('s_lshr_b32 s5, s2, 3')
    E('s_and_b32 s5, s5, 1')
    E('s_mul_i32 s5, s5, %d' % ROT)
    for kt in range(4):
        E('s_add_u32 s6, s5, %d' % kt)
        E('s_and_b32 s6, s6, 3')
        E('s_lshl_b32 s6, s6, 13')
        E('s_add_u32 s%d, s32, s6' % (64 + kt))
    E('s_mul_i32 s33, s37, 49152')
    E('s_mul_i32 s5, s3, 12288')
    E('s_add_u32 s33, s33, s5')
    E('s_lshl_b32 s34, s39, 8')
    E('s_lshl_b32 s5, s3, 7')
    E('s_add_u32 s34, s34, s5')
    E('s_mul_i32 s35, s3, %d' % RING_W)
    E('s_add_u32 s35, s35, %d' % RING)
    E('s_mov_b32 s36, 0x%08x' % f32bits(math.log2(math.e) / math.sqrt(128.0)))
    E('v_and_b32 v46, 15, v1')
    E('v_lshrrev_b32 v47, 4, v1')
    E('v_xor_b32 v2, v46, v47')
    E('v_lshlrev_b32 v2, 4, v2')
    E('v_lshl_add_u32 v2, v46, 10, v2')
    E('v_lshlrev_b32 v11, 4, v1')
    E('v_lshrrev_b32 v48, 3, v1')
    E('v_and_b32 v49, 7, v1')
    E('v_lshrrev_b32 v50, 1, v49')
    E('v_and_b32 v51, 1, v47')
    E('v_xor_b32 v50, v50, v51')
    E('v_and_b32 v52, 1, v49')
    E('v_lshlrev_b32 v52, 4, v52')
    E('v_lshl_add_u32 v53, v48, 13, v52')
    E('v_lshl_add_u32 v3, v50, 5, v53')
    E('v_xor_b32 v50, 2, v50')
    E('v_lshl_add_u32 v4, v50, 5, v53')
    E('v_add_u32 v4, 0x10000, v4')
    E('v_add_u32 v5, 0x20000, v3')
    E('v_add_u32 v6, 0x20000, v4')
    E('v_lshrrev_b32 v48, 2, v1')
    E('v_and_b32 v48, 3, v48')
    E('v_and_b32 v49, 3, v1')
    E('v_lshrrev_b32 v50, 1, v48')
    E('v_lshlrev_b32 v51, 1, v51')
    E('v_or_b32 v50, v50, v51')
    E('v_lshl_add_u32 v52, v47, 3, v48')
    E('v_lshlrev_b32 v52, 7, v52')
    E('v_lshl_add_u32 v52, v49, 3, v52')
    E('v_add_u32 v52, s35, v52')
    for t in range(4):
        E('v_xor_b32 v53, %d, v50' % t)
        E('v_lshl_add_u32 v%d, v53, 5, v52' % (7 + t))
    E('v_and_b32 v53, 31, v1')
    E('v_lshrrev_b32 v54, 5, v1')
    E('v_lshlrev_b32 v12, 4, v46')
    E('v_lshl_add_u32 v12, v47, 8, v12')
    E('v_lshlrev_b32 v55, 2, v47')
    E('v_xor_b32 v55, v55, v46')
    E('v_lshlrev_b32 v55, 4, v55')
    E('v_lshl_add_u32 v13, v47, 8, v55')
    E('v_lshl_add_u32 v55, v54, 2, v48')
    E('v_lshlrev_b32 v55, 8, v55')
    E('v_xor_b32 v56, s3, v48')
    E('v_lshl_add_u32 v55, v56, 6, v55')
    E('v_and_b32 v56, 1, v47')
    E('v_lshl_add_u32 v55, v56, 5, v55')
    E('v_lshl_add_u32 v14, v49, 3, v55')
    E('v_add_u32 v14, %d, v14' % VS[0])
    E('s_lshl_b32 s4, s3, 11')
    E('v_add_u32 v15, s4, v11')
    E('v_lshlrev_b32 v55, 4, v46')
    E('v_lshl_add_u32 v55, v54, 9, v55')
    E('v_lshl_add_u32 v55, v56, 3, v55')
    E('s_lshr_b32 s4, s3, 1')
    E('s_mul_i32 s4, s4, 3')
    E('s_and_b32 s5, s3, 1')
    E('s_lshl_b32 s5, s5, 12')
    E('s_add_u32 s5, s5, %d' % QB)
    for st in range(3):
        E('s_add_u32 s6, s4, %d' % st)
        E('s_lshr_b32 s7, s6, 1')
        E('s_lshl_b32 s7, s7, 13')
        E('s_and_b32 s6, s6, 1')
        E('s_lshl_b32 s6, s6, 8')
        E('s_add_u32 s6, s6, s7')
        E('s_add_u32 s6, s6, s5')
        E('v_add_u32 v%d, s6, v55' % (16 + st))
    E('v_lshlrev_b32 v20, 5, v53')
    E('v_lshl_add_u32 v19, v54, 2, v20')
    E('s_lshl_b32 s4, s3, 3')
    E('v_add_u32 v19, s4, v19')
    E('v_lshlrev_b32 v55, 4, v46')
    E('v_lshl_add_u32 v55, v54, 8, v55')
    for qt in range(3):
        E('v_add_u32 v57, %d, v56' % (2 * qt))
        E('v_cmp_le_u32 vcc, 3, v57')
        E('v_subrev_u32 v58, 3, v57')
        E('v_lshlrev_b32 v58, 10, v58')
        E('v_add_u32 v58, 12288, v58')
        E('v_lshlrev_b32 v57, 10, v57')
        E('v_cndmask_b32 v57, v57, v58, vcc')
        E('v_add_u32 v%d, v57, v55' % (27 + qt))
    E('s_waitcnt lgkmcnt(0)')
    def srd(d, lo, size):
        E('s_mov_b32 s%d, s%d' % (d, lo))
        E('s_and_b32 s%d, s%d, 0xffff' % (d + 1, lo + 1))
        E('s_mov_b32 s%d, 0x%x' % (d + 2, size))
        E('s_mov_b32 s%d, 0x20000' % (d + 3))
    srd(8, 40, 786432)
    srd(12, 42, 16777216)
    srd(16, 44, 16777216)
    srd(20, 46, 4194304)
    srd(24, 48, 4194304)
    srd(28, 54, WS_SIZE)

    stamp(True)
    if WQPF:
        E('s_lshr_b32 s4, s2, 3')
        E('s_lshl_b32 s4, s4, 2')
        E('s_add_u32 s4, s4, s3')
        E('s_lshl_b32 s4, s4, 15')
        if FUSE:
            E('s_and_b32 s5, s2, 3')
            E('s_lshl_b32 s5, s5, 11')
        else:
            E('s_lshl_b32 s5, s38, 10')
        E('s_add_u32 s4, s4, s5')
        E('v_lshrrev_b32 v62, 4, v1')
        E('v_lshlrev_b32 v62, 13, v62')
        E('v_and_b32 v63, 15, v1')
        E('v_lshl_add_u32 v62, v63, %d, v62' % (7 if FUSE else 6))
        E('buffer_load_dword v62, v62, s[20:23], s4 offen', tag='pf')
    if TOUCH:
        E('v_mov_b32 v63, 0')
        E('s_mul_i32 s4, s37, 393216')
        E('s_lshl_b32 s5, s39, 2')
        E('s_add_u32 s5, s5, s3')
        E('s_mul_i32 s5, s5, 3072')
        E('s_add_u32 s4, s4, s5')
        E('buffer_load_dword v248, v63, s[28:31], s4 offen', tag='pf')
        E('s_and_b32 s4, s2, 3')
        E('s_lshl_b32 s4, s4, 20')
        E('s_add_u32 s4, s4, 0x%x' % WOT_OFF)
        E('buffer_load_dword v249, v63, s[28:31], s4 offen', tag='pf')
        if TOUCH > 1:
            E('buffer_load_dword v250, v63, s[12:15], s64 offen', tag='pf')
            E('buffer_load_dword v251, v63, s[16:19], s64 offen', tag='pf')
            E('s_lshl_b32 s4, s2, 14')
            E('buffer_load_dword v252, v63, s[24:27], s4 offen', tag='pf')
    for n in range(KFIRST):
        E('s_add_u32 s7, s%d, %d' % (64 + n // 8, (n % 8) * 1024))
        E('buffer_load_dwordx4 a[%d:%d], v12, s[12:15], s7 offen' % (n * 4, n * 4 + 3), tag='K%d' % (n // 8))
    E('s_mul_i32 s4, s3, 12288')
    for i in range(12):
        E('s_mul_i32 s5, s3, 12')
        E('s_add_u32 s5, s5, %d' % i)
        E('s_and_b32 s5, s5, 15')
        E('s_lshl_b32 s5, s5, 4')
        E('v_xor_b32 v%d, s5, v11' % (60 + (i & 1)))
        E('s_add_u32 s5, s4, %d' % (XB + i * 1024))
        E('s_mov_b32 m0, s5')
        E('s_add_u32 s6, s33, %d' % (i * 1024))
        E('buffer_load_dwordx4 v%d, s[8:11], s6 offen lds' % (60 + (i & 1)), tag='x')

    def wq_dma(c):
        out = []
        for m in range(4):
            def f(m=m):
                E('s_add_u32 s5, s35, %d' % ((c % NSLOT) * 4096 + m * 1024))
                E('s_mov_b32 m0, s5')
                E('s_add_u32 s6, s34, %d' % (c * 262144))
                E('buffer_load_dwordx4 v%d, s[20:23], s6 offen lds' % (3 + m), tag='wq%d' % c)
            out.append(f)
        return out

    def wq_reg(c):
        if c < 8:
            return 'v', 168 + (c - 3) * 16
        return 'a', 128 + (c - 8) * 16

    def wq_load(c):
        out = []
        fl, r = wq_reg(c)
        for m in range(4):
            def f(m=m):
                E('s_add_u32 s6, s34, %d' % (c * 262144))
                E('buffer_load_dwordx4 %s[%d:%d], v%d, s[20:23], s6 offen' % (fl, r + 4 * m, r + 4 * m + 3, 3 + m), tag='wq%d' % c)
            out.append(f)
        return out

    def wq_write(c):
        out = []
        fl, r = wq_reg(c)
        out.append(lambda: e.wait(vm='wq%d' % c))
        for m in range(4):
            out.append(lambda m=m: E('ds_write_b128 v59, %s[%d:%d] offset:%d' % (fl, r + 4 * m, r + 4 * m + 3, (c % NSLOT) * 4096 + m * 1024)))
        return out

    ACC = 64
    AF = [112, 128]
    BF = [144, 156]

    def p1_reads(c):
        out = []
        bu = c & 1
        sl = c % NSLOT
        out.append(lambda: E('v_xor_b32 v%d, %d, v2' % (60 + bu, c * 64)))
        for st in range(3):
            out.append(lambda st=st: E('ds_read_b128 v[%d:%d], v%d offset:%d' % (BF[bu] + 4 * st, BF[bu] + 4 * st + 3, 60 + bu, XB + st * 16384), tag='p1r%d' % c))
        for t in range(4):
            for hh in range(2):
                out.append(lambda t=t, hh=hh: E('ds_read_b64_tr_b16 v[%d:%d], v%d offset:%d' % (
                    AF[bu] + 4 * t + 2 * hh, AF[bu] + 4 * t + 2 * hh + 1, 7 + t, sl * 4096 + hh * 512), tag='p1r%d' % c))
        return out

    def kload(n):
        def f():
            E('s_add_u32 s7, s%d, %d' % (64 + n // 8, (n % 8) * 1024))
            E('buffer_load_dwordx4 a[%d:%d], v12, s[12:15], s7 offen%s' % (n * 4, n * 4 + 3, KVPOL), tag='K%d' % (n // 8))
        return f

    def v_chunk(t):
        out = []
        for mm in range(8):
            def f(mm=mm):
                E('s_lshl_b32 s5, s3, 13')
                E('s_add_u32 s5, s5, %d' % (VS[t] + mm * 1024))
                E('s_mov_b32 m0, s5')
                E('s_add_u32 s6, s%d, %d' % (64 + t, mm * 1024))
                E('buffer_load_dwordx4 v13, s[16:19], s6 offen%s lds' % KVPOL, tag='V%d' % t)
            out.append(f)
        return out

    def v_regs(t):
        out = []
        for mm in range(8):
            def f(mm=mm):
                r = 192 + (t - 2) * 32 + mm * 4
                E('s_add_u32 s6, s%d, %d' % (64 + t, mm * 1024))
                E('buffer_load_dwordx4 v[%d:%d], v12, s[16:19], s6 offen%s' % (r, r + 3, KVPOL), tag='V%d' % t)
            out.append(f)
        return out
    E('v_add_u32 v59, s35, v11')
    seq = []
    if KORD:
        slow = [kload(n) for n in range(KFIRST, 32)] + v_chunk(0) + v_chunk(1) + v_regs(2) + v_regs(3)
    else:
        slow = [kload(n) for n in range(KFIRST, 16)] + v_chunk(0) + v_chunk(1) + [kload(n) for n in range(16, 32)] + v_regs(2) + v_regs(3)
    for c in range(3):
        seq += wq_dma(c)
    for c in range(3, 16):
        seq += wq_load(c)
        if c >= CI:
            seq += slow[:KI]
            slow = slow[KI:]
    nfast = len(seq)
    seq += slow
    LEFT = {'K0': 56, 'K1': 48, 'V0': 40, 'V1': 32, 'K2': 24, 'K3': 16, 'V2': 8, 'V3': 0}
    if KORD:
        LEFT = {'K0': 56, 'K1': 48, 'K2': 40, 'K3': 32, 'V0': 24, 'V1': 16, 'V2': 8, 'V3': 0}
    def vwait(tag):
        nf = 0
        while len(seq) > LEFT[tag]:
            issue(SLOWCOST); nf += 1
        if nf:
            print('forced issue of %d loads for %s' % (nf, tag))
        e.wait(vm=tag)
    issued = [0]
    def issue(maxn=1000):
        n = 0
        while seq and len(e.vmq) < 62 and n < maxn:
            seq.pop(0)()
            n += 1 if issued[0] < nfast else SLOWCOST
            issued[0] += 1
    stamp()
    issue(PRO0)
    stamp()
    e.wait(vm='wq0')
    stamp()
    E('s_barrier')
    stamp()
    issue(PRO1)
    for f in p1_reads(0):
        f()
    for c in range(16):
        bu = c & 1
        e.wait(lds='p1r%d' % c)
        if c in (2, 4, 6, 8, 12):
            stamp()
        rd = []
        if c + 1 < 16:
            if c + 1 < 3:
                rd.append(lambda c=c: e.wait(vm='wq%d' % (c + 1)))
            rd += p1_reads(c + 1)
        rd2 = []
        if 3 <= c + 2 < 16:
            rd2 = wq_write(c + 2)
        rd2.append(lambda: issue(STEPN))
        mf = []
        for nt in range(4):
            for st in range(3):
                a = ACC + (nt * 3 + st) * 4
                src = 'v[%d:%d]' % (a, a + 3) if c > 0 else '0'
                mf.append(lambda a=a, nt=nt, st=st, src=src: E('v_mfma_f32_16x16x32_bf16 v[%d:%d], v[%d:%d], v[%d:%d], %s' % (
                    a, a + 3, AF[bu] + 4 * nt, AF[bu] + 4 * nt + 3, BF[bu] + 4 * st, BF[bu] + 4 * st + 3, src)))
        for f in merge(mf[:6], rd) + merge(mf[6:], rd2):
            f()
    for nt in range(4):
        for st in range(3):
            a = ACC + (nt * 3 + st) * 4
            E('v_cvt_pk_bf16_f32 v%d, v%d, v%d' % (a, a, a + 1))
            E('v_cvt_pk_bf16_f32 v%d, v%d, v%d' % (a + 1, a + 2, a + 3))
    stamp(True)
    E('s_barrier')
    for nt in range(4):
        for st in range(3):
            a = ACC + (nt * 3 + st) * 4
            E('ds_write_b64 v%d, v[%d:%d] offset:%d' % (16 + st, a, a + 1, nt * 1024))

    while len(seq) > NV_LATE:
        issue(SLOWCOST)
    if NOLOAD:
        del seq[:]
    e.wait(lds='all')
    E('s_barrier')
    QF = 128
    for qt in range(3):
        for ks in range(8):
            r = QF + (qt * 8 + ks) * 4
            E('ds_read_b128 a[%d:%d], v11 offset:%d' % (r, r + 3, QB + (qt * 8 + ks) * 1024), tag='Q')
    E('s_lshl_b32 s4, s3, 13')
    E('s_add_u32 s4, s4, 0xC000')
    E('v_and_b32 v46, 15, v1')
    E('v_lshrrev_b32 v47, 4, v1')
    E('v_xor_b32 v48, v46, v47')
    for jj in range(4):
        E('v_xor_b32 v49, %d, v48' % (4 * jj))
        E('v_lshlrev_b32 v49, 4, v49')
        E('v_lshl_add_u32 v49, v47, 8, v49')
        E('v_add_u32 v%d, s4, v49' % (6 + jj))
    E('v_and_b32 v46, 31, v1')
    E('v_lshrrev_b32 v47, 5, v1')
    E('v_and_b32 v48, 15, v1')
    E('v_xor_b32 v48, v48, v47')
    E('v_lshlrev_b32 v48, 4, v48')
    E('v_lshl_add_u32 v48, v46, 8, v48')
    E('v_add_u32 v54, s4, v48')
    E('v_add_u32 v60, 0x%x, v19' % STATS)
    E('v_add_u32 v61, 0x%x, v20' % STATS)
    def ktr(kt):
        w_ = lambda: vwait('K%d' % kt)
        w_.cost = 0
        out = [w_]
        for m in range(8):
            r = (kt * 8 + m) * 4
            out.append(lambda m=m, r=r: E('ds_write_b128 v%d, a[%d:%d] offset:%d' % (6 + (m & 3), r, r + 3, m * 1024)))
        for ks in range(8):
            r = (kt * 8 + ks) * 4
            def f(ks=ks, r=r):
                E('v_xor_b32 v%d, %d, v54' % (55 + (ks & 1), ks * 32))
                E('ds_read_b128 a[%d:%d], v%d' % (r, r + 3, 55 + (ks & 1)), tag='kt%d' % kt)
            out.append(f)
        return out
    SB = [64, 128]
    MX = 62
    def sreg(u, kt):
        return SB[u & 1] + (kt & 1) * 16
    def max_ops(u, kt):
        out = []
        for i in range(8):
            s_ = sreg(u, kt) + 2 * i
            if (kt & 1) == 0 and i == 0:
                out.append(lambda s_=s_: E('v_max_f32 v%d, v%d, v%d' % (MX, s_, s_ + 1)))
            else:
                out.append(lambda s_=s_: E('v_max3_f32 v%d, v%d, v%d, v%d' % (MX, s_, s_ + 1, MX)))
        return out
    def s_mf(u, kt):
        q = u % 3
        mf = []
        for ks in range(8):
            s_ = sreg(u, kt)
            src = 'v[%d:%d]' % (s_, s_ + 15) if ks > 0 else '0'
            kr = (kt * 8 + ks) * 4
            qr = QF + (q * 8 + ks) * 4
            mf.append(lambda s_=s_, kr=kr, qr=qr, src=src: E('v_mfma_f32_32x32x16_bf16 v[%d:%d], a[%d:%d], a[%d:%d], %s' % (
                s_, s_ + 15, kr, kr + 3, qr, qr + 3, src)))
        return mf
    PK = [30, 34, 38, 42]
    pkc = [0]
    OA = [0, 64]
    PSL = {(0, 0): 0, (0, 1): 8192, (1, 0): 16384, (1, 1): 24576, (2, 0): 32768, (2, 1): 40960,
           (0, 2): 49152, (0, 3): 57344, (1, 2): 0, (1, 3): 16384, (2, 2): 32768, (2, 3): 8192}
    def exp_ops(u, kt):
        q = u % 3
        out = []
        s0 = sreg(u, kt)
        for hf in range(2):
            pk = PK[pkc[0] % 4]; pkc[0] += 1
            regs = [s0 + 8 * hf + i for i in range(8)]
            for r in regs:
                out.append(lambda r=r: E('v_fma_f32 v%d, v%d, s36, -v%d' % (r, r, 21 + q)))
            for r in regs:
                out.append(lambda r=r: E('v_exp_f32 v%d, v%d' % (r, r)))
            for k, r in enumerate(regs):
                if kt == 0 and hf == 0 and k == 0:
                    out.append(lambda r=r: E('v_add_f32 v%d, v%d, v%d' % (24 + q, r, r + 1)))
                elif kt == 0 and hf == 0 and k == 1:
                    pass
                else:
                    out.append(lambda r=r: E('v_add_f32 v%d, v%d, v%d' % (24 + q, r, 24 + q)))
                if k & 1:
                    out.append(lambda r=r, pk=pk, k=k: E('v_cvt_pk_bf16_f32 v%d, v%d, v%d' % (pk + k // 2, r - 1, r)))
            off = PSL[(q, kt)] + hf * 1024
            out.append(lambda pk=pk, off=off: E('ds_write_b128 v15, v[%d:%d] offset:%d' % (pk, pk + 3, off)))
        return out
    def exchange(u):
        h, q = u // 3, u % 3
        E('ds_write_b32 v60, v%d offset:%d' % (MX, q * 1024))
        e.wait(lds='all')
        stamp()
        E('s_barrier')
        E('ds_read_b128 v[46:49], v61 offset:%d' % (q * 1024), tag='st')
        E('ds_read_b128 v[50:53], v61 offset:%d' % (q * 1024 + 16), tag='st')
        out = [lambda: e.wait(lds='st')]
        ops = ['v_max3_f32 v46, v46, v47, v48', 'v_max3_f32 v50, v50, v51, v52', 'v_max3_f32 v46, v46, v49, v53', 'v_max_f32 v46, v46, v50']
        if h == 0:
            ops += ['v_mul_f32 v%d, s36, v46' % (21 + q)]
        else:
            ops += ['v_mul_f32 v46, s36, v46', 'v_max_f32 v46, v46, v%d' % (21 + q), 'v_sub_f32 v47, v%d, v46' % (21 + q),
                    'v_exp_f32 v%d, v47' % (57 + q), 'v_mov_b32 v%d, v46' % (21 + q), 'v_mul_f32 v%d, v%d, v%d' % (24 + q, 24 + q, 57 + q)]
        out += [(lambda o=o: E(o)) for o in ops]
        if not XDEF:
            for f in out:
                f()
            out = []
        return out

    PB4 = [96, 112, 160, 176]
    pvc = [0]
    def C(cost, fn):
        fn.cost = cost
        return fn
    def pv_anchors(lst):
        steps = []
        for (t, qs, first) in lst:
            for n in range(8):
                steps.append((t, qs, first, n))
        base = pvc[0]
        pvc[0] += len(steps)
        def reads(i):
            t, qs, first, n = steps[i]
            u, hf = n // 2, n % 2
            b = PB4[(base + i) & 3]
            vb = 14 if (t & 1) == 0 else 10
            tag = 'pv%d' % (base + i)
            out = []
            for ee in range(2):
                out.append(lambda ee=ee: E('ds_read_b64_tr_b16 v[%d:%d], v%d offset:%d' % (
                    b + 2 * ee, b + 2 * ee + 1, vb, (32 * u + 16 * hf + 8 * ee) * 256), tag=tag))
            for qt in qs:
                off = PSL[(qt, t)] + u * 2048 + hf * 1024
                out.append(lambda qt=qt, off=off: E('ds_read_b128 v[%d:%d], v11 offset:%d' % (
                    b + 4 + 4 * qt, b + 7 + 4 * qt, off), tag=tag))
            return out
        pro = reads(0) + reads(1)
        anc = []
        for i, (t, qs, first, n) in enumerate(steps):
            b = PB4[(base + i) & 3]
            rd = reads(i + 2) if i + 2 < len(steps) else []
            k = len(qs)
            for x, qt in enumerate(qs):
                o = OA[t >> 1] + 16 * qt
                src = '0' if (first and n == 0) else 'a[%d:%d]' % (o, o + 15)
                fn = (lambda o=o, b=b, qt=qt, src=src: E('v_mfma_f32_32x32x16_bf16 a[%d:%d], v[%d:%d], v[%d:%d], %s' % (
                    o, o + 15, b, b + 3, b + 4 + 4 * qt, b + 7 + 4 * qt, src)))
                pre = [lambda i=i: e.wait(lds='pv%d' % (base + i))] if x == 0 else []
                post = rd[len(rd) * x // k: len(rd) * (x + 1) // k]
                anc.append((pre, fn, post))
        return pro, anc

    WOR = 240
    def wo_loads():
        out = []
        def pre():
            E('s_lshr_b32 s4, s2, 2')
            E('s_lshl_b32 s4, s4, 16')
            E('s_and_b32 s5, s2, 3')
            E('s_lshl_b32 s5, s5, 8')
            E('s_add_u32 s4, s4, s5')
            E('s_lshl_b32 s5, s3, 14')
            E('s_add_u32 s56, s4, s5')
            E('v_lshrrev_b32 v3, 4, v1')
            E('v_and_b32 v4, 15, v1')
            E('v_lshlrev_b32 v3, 10, v3')
            E('v_lshl_add_u32 v3, v4, 4, v3')
        out.append(pre)
        for m in range(4):
            def f(m=m):
                E('s_add_u32 s6, s56, %d' % (m * 4096))
                E('buffer_load_dwordx4 a[%d:%d], v3, s[24:27], s6 offen' % (WOR + 4 * m, WOR + 4 * m + 3), tag='WO')
            out.append(f)
        return out
    def v_store(t):
        out = [C(0, lambda: vwait('V%d' % t))]
        def pre():
            E('s_lshl_b32 s4, s3, 13')
            E('s_add_u32 s4, s4, %d' % VS[t])
            E('v_add_u32 v55, s4, v13')
        out.append(pre)
        for mm in range(8):
            r = 192 + (t - 2) * 32 + mm * 4
            out.append(lambda r=r, mm=mm: E('ds_write_b128 v55, v[%d:%d] offset:%d' % (r, r + 3, mm * 1024)))
        return out
    def iss(n):
        return [C(20, lambda: issue(SLOWCOST))] * n

    E('v_add_u32 v10, 0x%x, v14' % (VS[1] - VS[0]))
    for f in ktr(0):
        f()
    e.wait(lds='kt0')
    stamp()
    xpost = []
    for u in range(6):
        h, q = u // 3, u % 3
        t0, t1 = 2 * h, 2 * h + 1
        sa = [([], f, []) for f in s_mf(u, t0)] + [([], f, []) for f in s_mf(u, t1)]
        if q == 0:
            sa[8] = ([lambda t1=t1: e.wait(lds='kt%d' % t1)], sa[8][1], [])
        pro = []
        if u in (4, 5):
            pro, pa = pv_anchors([(u - 4, (0, 1, 2), u == 4)])
            anc = sa[:2] + merge(sa[2:], pa[:PVS]) + pa[PVS:]
        else:
            anc = sa
        i7 = [k for k, a in enumerate(anc) if a[1] is sa[7][1]][0]
        i15 = [k for k, a in enumerate(anc) if a[1] is sa[15][1]][0]
        s0, s1 = [], []
        if u > 0:
            pu = u - 1
            s0 = exp_ops(pu, 2 * (pu // 3))
            s1 = exp_ops(pu, 2 * (pu // 3) + 1)
        if q == 0:
            s0 = ktr(t1) + s0 if KTF else merge(s0, ktr(t1))
        if u == 2:
            s1 = merge(s1, ktr(2))
        if u == 5:
            s1 = merge(s1, v_store(2))
        if u == 4 and not FUSE:
            s1 = merge(s1, wo_loads())
        s0 = xpost + merge(s0, iss(NV_S[u][0]))
        s1 = merge(s1, iss(NV_S[u][1]))
        cons = [(i7 + 1, f) for f in max_ops(u, t0)] + [(i15 + 1, f) for f in max_ops(u, t1)]
        for f in pro:
            f()
        if q == 0:
            sched(e, anc[:8], s0, burst=BURST if u else 0)
            sched(e, anc[8:], s1, [(m - 8, f) for m, f in cons])
        else:
            sched(e, anc, s0 + s1, cons, burst=BURST)
        if u == 3:
            vwait('V0')
        if u == 4:
            vwait('V1')
        xpost = exchange(u)
        if u == 2:
            stamp(True)
    tail = exp_ops(5, 2) + exp_ops(5, 3)
    tail = xpost + merge(tail, v_store(3))
    for qt in range(3):
        tail.append(lambda qt=qt: E('ds_write_b32 v60, v%d offset:%d' % (24 + qt, LSTAT - STATS + qt * 1024)))
    def stg():
        e.wait(vm='WO')
        E('s_lshl_b32 s4, s3, 12')
        E('s_add_u32 s4, s4, %d' % WOST)
        E('v_add_u32 v56, s4, v13')
        for m in range(4):
            E('ds_write_b128 v56, a[%d:%d] offset:%d' % (WOR + 4 * m, WOR + 4 * m + 3, m * 1024))
    if not FUSE:
        tail.append(stg)
    pro, pa = pv_anchors([(2, (0, 1), True)])
    for f in pro:
        f()
    sched(e, pa, tail, lead=100)
    e.wait(lds='all')
    stamp()
    E('s_barrier')
    stamp(True)
    b = []
    TB = [64, 80, 128]
    for qt in range(3):
        def ls(qt=qt):
            E('ds_read_b128 v[46:49], v61 offset:%d' % (LSTAT - STATS + qt * 1024), tag='ls%d' % qt)
            E('ds_read_b128 v[50:53], v61 offset:%d' % (LSTAT - STATS + qt * 1024 + 16), tag='ls%d' % qt)
            e.wait(lds='ls%d' % qt)
            E('v_add_f32 v46, v46, v47')
            E('v_add_f32 v48, v48, v49')
            E('v_add_f32 v50, v50, v51')
            E('v_add_f32 v52, v52, v53')
            E('v_add_f32 v46, v46, v48')
            E('v_add_f32 v50, v50, v52')
            E('v_add_f32 v46, v46, v50')
            E('v_rcp_f32 v%d, v46' % (24 + qt))
            E('v_mul_f32 v%d, v%d, v%d' % (57 + qt, 57 + qt, 24 + qt))
        b.append(ls)
        for r in range(16):
            def f(qt=qt, r=r):
                E('v_accvgpr_read_b32 v%d, a%d' % (TB[qt] + r, OA[0] + 16 * qt + r))
                E('v_mul_f32 v%d, v%d, v%d' % (TB[qt] + r, TB[qt] + r, 57 + qt))
            b.append(f)
    def wt_addr():
        E('v_lshrrev_b32 v46, 4, v1')
        E('v_lshrrev_b32 v47, 2, v1')
        E('v_and_b32 v47, 3, v47')
        E('v_and_b32 v48, 3, v1')
        E('v_lshl_add_u32 v49, v46, 3, v47')
        E('v_lshlrev_b32 v49, 8, v49')
        E('v_xor_b32 v50, s3, v47')
        E('v_lshl_add_u32 v49, v50, 6, v49')
        E('v_lshl_add_u32 v49, v48, 3, v49')
        E('v_add_u32 v49, 0x%x, v49' % WOST)
        for kk in range(2):
            for nn in range(2):
                for hh in range(2):
                    r = 30 + (kk * 2 + nn) * 4 + 2 * hh
                    E('ds_read_b64_tr_b16 v[%d:%d], v49 offset:%d' % (r, r + 1, (32 * kk + 4 * hh) * 256 + nn * 32), tag='wt')
    if not FUSE:
        b.append(wt_addr)
    def epi(qt):
        out = []
        T = TB[qt]
        U = 192 + (qt & 1) * 16
        for r in range(16):
            out.append(lambda r=r: E('v_accvgpr_read_b32 v%d, a%d' % (U + r, OA[1] + 16 * qt + r)))
        for r in range(16):
            out.append(lambda r=r: E('v_fma_f32 v%d, v%d, v%d, v%d' % (T + r, U + r, 24 + qt, T + r)))
        for k in range(8):
            out.append(lambda k=k: E('v_cvt_pk_bf16_f32 v%d, v%d, v%d' % (T + k, T + 2 * k, T + 2 * k + 1)))
        for k in (0, 2):
            def f(k=k):
                E('v_permlane32_swap_b32 v%d, v%d' % (T + 2 * k, T + 2 * k + 2))
                E('v_permlane32_swap_b32 v%d, v%d' % (T + 2 * k + 1, T + 2 * k + 3))
                E('buffer_store_dwordx4 v[%d:%d], v%d, s[28:31], s57 offen offset:%d%s' % (T + 2 * k, T + 2 * k + 3, 27 + qt, k * 256, STPOL))
            out.append(f)
        return out
    E('s_mul_i32 s4, s37, 393216')
    E('s_lshl_b32 s5, s39, 2')
    E('s_add_u32 s5, s5, s3')
    E('s_mul_i32 s5, s5, 3072')
    E('s_add_u32 s57, s4, s5')
    if EPO:
        pro, pa = pv_anchors([(3, (0, 1), False), (2, (2,), True), (3, (2,), False)])
        for f in pro:
            f()
        sched(e, pa[:16], b, lead=60)
        sched(e, pa[16:], epi(0) + epi(1), burst=1)
        stamp()
        for f in epi(2):
            f()
    else:
        pro, pa = pv_anchors([(2, (2,), True), (3, (0, 1, 2), False)])
        for f in pro:
            f()
        sched(e, pa, b, lead=60)
        stamp()
        for qt in range(3):
            for f in epi(qt):
                f()
    if FUSE:
        phase3(e, stamp)
    else:
        E('s_and_b32 s4, s2, 3')
        E('s_lshl_b32 s4, s4, 3')
        E('s_lshl_b32 s5, s3, 1')
        E('s_add_u32 s4, s4, s5')
        E('s_lshl_b32 s4, s4, 17')
        E('s_lshr_b32 s5, s2, 2')
        E('s_lshl_b32 s5, s5, 11')
        E('s_add_u32 s4, s4, s5')
        E('s_add_u32 s4, s4, 0x%x' % WOT_OFF)
        E('s_add_u32 s5, s4, 0x20000')
        e.wait(lds='wt')
        for kk in range(2):
            for nn in range(2):
                r = 30 + (kk * 2 + nn) * 4
                E('buffer_store_dwordx4 v[%d:%d], v11, s[28:31], s%d offen offset:%d%s' % (r, r + 3, 4 + nn, kk * 1024, STPOL))
    stamp(True)
    e.label('L_a_done')
    E('s_endpgm')
    return e


def phase3(e, stamp):
    E = e
    e.wait(vm='all', lds='all')
    E('s_barrier')
    E('s_mov_b32 s20, s52')
    E('s_and_b32 s21, s53, 0xffff')
    E('s_mov_b32 s22, 256')
    E('s_mov_b32 s23, 0x20000')
    E('s_mov_b32 s8, s50')
    E('s_and_b32 s9, s51, 0xffff')
    E('s_mov_b32 s10, 786432')
    E('s_mov_b32 s11, 0x20000')
    E('s_lshl_b32 s62, s37, 2')
    E('v_mov_b32 v2, 1')
    E('v_mov_b32 v3, 0')
    E('s_cmp_lg_u32 s3, 0')
    E('s_cbranch_scc1 L_nopub')
    E('s_mov_b64 exec, 1')
    E('buffer_atomic_add v2, v3, s[20:23], s62 offen sc1')
    E('s_mov_b64 exec, -1')
    e.label('L_nopub')
    e.vmq = []
    stamp()
    E('v_lshrrev_b32 v4, 2, v1')
    E('v_lshrrev_b32 v5, 5, v1')
    E('v_lshlrev_b32 v5, 1, v5')
    E('v_and_b32 v6, 3, v1')
    E('v_xor_b32 v5, v5, v6')
    E('v_lshlrev_b32 v5, 4, v5')
    E('v_lshl_add_u32 v4, v4, 10, v5')
    E('s_lshl_b32 s56, s3, 20')
    E('s_lshl_b32 s5, s39, 5')
    E('s_add_u32 s56, s56, s5')
    E('s_mul_i32 s63, s3, 40960')
    E('v_lshrrev_b32 v46, 4, v1')
    E('v_lshrrev_b32 v47, 2, v1')
    E('v_and_b32 v47, 3, v47')
    E('v_lshl_add_u32 v48, v46, 3, v47')
    E('v_lshlrev_b32 v48, 6, v48')
    E('v_lshl_add_u32 v48, v6, 3, v48')
    E('v_and_b32 v46, 1, v46')
    E('v_lshl_add_u32 v48, v46, 5, v48')
    E('v_add_u32 v7, s63, v48')
    E('v_xor_b32 v8, 32, v7')
    def dma(step, slot):
        for k in range(2):
            E('s_add_u32 s5, s63, %d' % (slot * 2048 + k * 1024))
            E('s_mov_b32 m0, s5')
            E('s_add_u32 s6, s56, %d' % ((step * 2 + k) * 16384))
            E('buffer_load_dwordx4 v4, s[24:27], s6 offen lds', tag='w%d' % step)
    def trd(step, slot):
        for nt in range(2):
            for hh in range(2):
                r = (step * 2 + nt) * 4 + 2 * hh
                E('ds_read_b64_tr_b16 a[%d:%d], v%d offset:%d' % (r, r + 1, 7 + nt, slot * 2048 + hh * 256), tag='t%d' % step)
    for st in range(20):
        dma(st, st)
    for st in range(32):
        e.wait(vm='w%d' % st)
        trd(st, st % 20)
        if st == 12:
            e.wait(lds='t11')
            for s2_ in range(20, 32):
                dma(s2_, s2_ - 20)
    stamp()
    e.wait(vm='all', lds='all')
    E('s_mov_b32 s7, 0')
    e.label('L_poll')
    E('buffer_load_dword v2, v3, s[20:23], s62 offen sc0 sc1')
    E('s_waitcnt vmcnt(0)')
    E('v_readfirstlane_b32 s4, v2')
    E('s_cmp_ge_u32 s4, 16')
    E('s_cbranch_scc1 L_go')
    E('s_sleep 4')
    E('s_add_u32 s7, s7, 1')
    E('s_cmp_lt_u32 s7, 0x10000')
    E('s_cbranch_scc1 L_poll')
    e.label('L_go')
    e.vmq = []
    stamp()
    E('s_mul_i32 s32, s37, 393216')
    E('s_mul_i32 s4, s3, 98304')
    E('s_add_u32 s32, s32, s4')
    D = P3D
    ACC = 64
    FR = 96
    def loads(i):
        base = FR + (i % D) * 12
        E('s_add_u32 s5, s32, %d' % (i * 3072))
        for st in range(3):
            E('buffer_load_dwordx4 v[%d:%d], v11, s[28:31], s5 offen offset:%d' % (base + 4 * st, base + 4 * st + 3, st * 1024), tag='k%d' % i)
    for i in range(D):
        loads(i)
    for i in range(32):
        base = FR + (i % D) * 12
        e.wait(vm='k%d' % i)
        for nn in range(2):
            for st in range(3):
                a = ACC + (nn * 3 + st) * 4
                wr = (i * 2 + nn) * 4
                src = 'v[%d:%d]' % (a, a + 3) if i > 0 else '0'
                E('v_mfma_f32_16x16x32_bf16 v[%d:%d], a[%d:%d], v[%d:%d], %s' % (
                    a, a + 3, wr, wr + 3, base + 4 * st, base + 4 * st + 3, src))
        if i + D < 32:
            loads(i + D)
    stamp()
    E('v_add_u32 v12, s63, v11')
    for tl in range(6):
        E('ds_write_b128 v12, v[%d:%d] offset:%d' % (ACC + 4 * tl, ACC + 4 * tl + 3, tl * 1024))
    e.wait(lds='all')
    E('s_barrier')
    E('v_and_b32 v2, 15, v1')
    E('v_lshrrev_b32 v3, 4, v1')
    E('v_lshlrev_b32 v2, 10, v2')
    E('v_lshl_add_u32 v2, v3, 3, v2')
    E('s_mul_i32 s6, s37, 49152')
    E('s_lshl_b32 s5, s39, 5')
    E('s_add_u32 s6, s6, s5')
    def red(rnd):
        E('s_add_u32 s4, s3, %d' % (4 * rnd))
        E('s_lshl_b32 s5, s4, 10')
        E('v_add_u32 v12, s5, v11')
        E('v_add_u32 v13, 0x14000, v12')
        b0 = 96 + 32 * rnd
        E('ds_read_b128 v[%d:%d], v12' % (b0, b0 + 3), tag='r')
        E('ds_read_b128 v[%d:%d], v12 offset:40960' % (b0 + 4, b0 + 7), tag='r')
        E('ds_read_b128 v[%d:%d], v13' % (b0 + 8, b0 + 11), tag='r')
        E('ds_read_b128 v[%d:%d], v13 offset:40960' % (b0 + 12, b0 + 15), tag='r')
        E('s_cmp_ge_u32 s4, 3')
        E('s_cselect_b32 s7, 1, 0')
        E('s_mul_i32 s5, s7, 3')
        E('s_sub_u32 s5, s4, s5')
        E('s_lshl_b32 s5, s5, 14')
        E('s_lshl_b32 s7, s7, 5')
        E('s_add_u32 s5, s5, s7')
        E('s_add_u32 s5, s5, s6')
        e.wait(lds='r')
        for r in range(4):
            E('v_add_f32 v%d, v%d, v%d' % (b0 + r, b0 + r, b0 + 4 + r))
            E('v_add_f32 v%d, v%d, v%d' % (b0 + 8 + r, b0 + 8 + r, b0 + 12 + r))
        for r in range(4):
            E('v_add_f32 v%d, v%d, v%d' % (b0 + r, b0 + r, b0 + 8 + r))
        E('v_cvt_pk_bf16_f32 v%d, v%d, v%d' % (b0 + 16, b0, b0 + 1))
        E('v_cvt_pk_bf16_f32 v%d, v%d, v%d' % (b0 + 17, b0 + 2, b0 + 3))
        E('buffer_store_dwordx2 v[%d:%d], v2, s[8:11], s5 offen' % (b0 + 16, b0 + 17))
    red(0)
    E('s_cmp_ge_u32 s3, 2')
    E('s_cbranch_scc1 L_a_done')
    red(1)


def kernel_b():
    e = Emitter()
    E = e
    e.raw('.p2align 8')
    e.raw('.globl %s' % KB)
    e.raw('.type %s,@function' % KB)
    e.label(KB)
    E('s_cmp_ge_u32 s2, 256')
    E('s_cbranch_scc1 L_b_done')
    E('s_load_dwordx2 s[40:41], s[0:1], 40')
    E('s_load_dwordx2 s[42:43], s[0:1], 56')
    E('v_and_b32 v1, 63, v0')
    E('v_lshrrev_b32 v2, 6, v0')
    E('s_nop 0')
    E('v_readfirstlane_b32 s3, v2')
    E('s_and_b32 s4, s2, 7')
    E('s_lshr_b32 s5, s2, 3')
    E('s_lshr_b32 s6, s4, 1')
    E('s_lshl_b32 s6, s6, 2')
    E('s_lshr_b32 s7, s5, 3')
    E('s_add_u32 s37, s6, s7')
    E('s_and_b32 s6, s4, 1')
    E('s_lshl_b32 s6, s6, 3')
    E('s_and_b32 s7, s5, 7')
    E('s_add_u32 s38, s6, s7')
    E('v_lshlrev_b32 v11, 4, v1')
    E('s_mul_i32 s32, s37, 393216')
    E('s_mul_i32 s4, s3, 49152')
    E('s_add_u32 s32, s32, s4')
    E('s_lshl_b32 s33, s38, 18')
    E('s_lshl_b32 s4, s3, 14')
    E('s_add_u32 s33, s33, s4')
    E('s_add_u32 s33, s33, 0x%x' % WOT_OFF)
    E('s_add_u32 s34, s33, 0x20000')
    E('s_waitcnt lgkmcnt(0)')
    E('s_mov_b32 s8, s40')
    E('s_and_b32 s9, s41, 0xffff')
    E('s_mov_b32 s10, 786432')
    E('s_mov_b32 s11, 0x20000')
    E('s_mov_b32 s28, s42')
    E('s_and_b32 s29, s43, 0xffff')
    E('s_mov_b32 s30, 0x%x' % WS_SIZE)
    E('s_mov_b32 s31, 0x20000')
    D = 5
    ACC = 16
    FR = 40
    stc = [0]
    def stampb():
        if not DIAG:
            return
        i = stc[0]; stc[0] += 1
        E('s_memtime s[60:61]')
        E('s_waitcnt lgkmcnt(0)')
        E('s_lshl_b32 s58, s2, 3')
        E('s_add_u32 s58, s58, s3')
        E('s_lshl_b32 s58, s58, 8')
        E('s_add_u32 s58, s58, 0x%x' % (0xD00000 + i * 8))
        E('v_mov_b32 v143, 0')
        E('v_mov_b32 v0, s60')
        E('buffer_store_dword v0, v143, s[28:31], s58 offen', tag='stamp')
        E('v_mov_b32 v0, s61')
        E('buffer_store_dword v0, v143, s[28:31], s58 offen offset:4', tag='stamp')
    stampb()
    def loads(i):
        base = FR + (i % D) * 20
        E('s_add_u32 s5, s32, %d' % (i * 3072))
        for st in range(3):
            E('buffer_load_dwordx4 v[%d:%d], v11, s[28:31], s5 offen offset:%d' % (base + 4 * st, base + 4 * st + 3, st * 1024), tag='k%d' % i)
        E('s_add_u32 s6, s33, %d' % (i * 1024))
        E('s_add_u32 s7, s34, %d' % (i * 1024))
        E('buffer_load_dwordx4 v[%d:%d], v11, s[28:31], s6 offen' % (base + 12, base + 15), tag='k%d' % i)
        E('buffer_load_dwordx4 v[%d:%d], v11, s[28:31], s7 offen' % (base + 16, base + 19), tag='k%d' % i)
    for i in range(D):
        loads(i)
    for i in range(16):
        base = FR + (i % D) * 20
        e.wait(vm='k%d' % i)
        if i in (0, 4, 8, 12, 15):
            stampb()
        for nn in range(2):
            for st in range(3):
                a = ACC + (nn * 3 + st) * 4
                src = 'v[%d:%d]' % (a, a + 3) if i > 0 else '0'
                E('v_mfma_f32_16x16x32_bf16 v[%d:%d], v[%d:%d], v[%d:%d], %s' % (
                    a, a + 3, base + 12 + 4 * nn, base + 15 + 4 * nn, base + 4 * st, base + 4 * st + 3, src))
        if i + D < 16:
            loads(i + D)
    E('s_mul_i32 s4, s3, 6144')
    E('v_add_u32 v12, s4, v11')
    for tl in range(6):
        E('ds_write_b128 v12, v[%d:%d] offset:%d' % (ACC + 4 * tl, ACC + 4 * tl + 3, tl * 1024))
    e.wait(lds='all')
    E('s_barrier')
    E('s_cmp_ge_u32 s3, 6')
    E('s_cbranch_scc1 L_b_done')
    E('s_lshl_b32 s4, s3, 10')
    E('v_add_u32 v12, s4, v11')
    for wv in range(8):
        E('ds_read_b128 v[%d:%d], v12 offset:%d' % (FR + 4 * wv, FR + 4 * wv + 3, wv * 6144), tag='r%d' % wv)
    e.wait(lds='r1')
    for r in range(4):
        E('v_add_f32 v%d, v%d, v%d' % (16 + r, FR + r, FR + 4 + r))
    for wv in range(2, 8):
        e.wait(lds='r%d' % wv)
        for r in range(4):
            E('v_add_f32 v%d, v%d, v%d' % (16 + r, 16 + r, FR + 4 * wv + r))
    E('v_cvt_pk_bf16_f32 v20, v16, v17')
    E('v_cvt_pk_bf16_f32 v21, v18, v19')
    E('s_cmp_ge_u32 s3, 3')
    E('s_cselect_b32 s4, 1, 0')
    E('s_mul_i32 s5, s4, 3')
    E('s_sub_u32 s5, s3, s5')
    E('s_mul_i32 s6, s37, 49152')
    E('s_lshl_b32 s5, s5, 14')
    E('s_add_u32 s6, s6, s5')
    E('s_lshl_b32 s5, s38, 6')
    E('s_add_u32 s6, s6, s5')
    E('s_lshl_b32 s4, s4, 5')
    E('s_add_u32 s6, s6, s4')
    E('v_and_b32 v2, 15, v1')
    E('v_lshrrev_b32 v3, 4, v1')
    E('v_lshlrev_b32 v2, 10, v2')
    E('v_lshl_add_u32 v2, v3, 3, v2')
    E('buffer_store_dwordx2 v[20:21], v2, s[8:11], s6 offen')
    stampb()
    e.label('L_b_done')
    E('s_endpgm')
    return e


def kd(name, vgpr, accum, sgpr=72):
    return '''.p2align 6
.amdhsa_kernel %s
  .amdhsa_next_free_vgpr %d
  .amdhsa_next_free_sgpr %d
  .amdhsa_accum_offset %d
  .amdhsa_group_segment_fixed_size 0
  .amdhsa_kernarg_size 64
  .amdhsa_user_sgpr_count 2
  .amdhsa_user_sgpr_kernarg_segment_ptr 1
  .amdhsa_system_sgpr_workgroup_id_x 1
.end_amdhsa_kernel
''' % (name, vgpr, sgpr, accum)


def main():
    global DIAG
    global DIAG_ALL
    if len(sys.argv) > 2 and sys.argv[2].startswith('diag'):
        DIAG = True
        DIAG_ALL = sys.argv[2] == 'diag'
    for kv in sys.argv[3:]:
        k, v = kv.split('=', 1)
        globals()[k] = eval(v)
    ref = open('cdna_kernels/%s.s.ref' % NAME).read().splitlines()
    head = [l for l in ref if l.startswith(';') and '@launch' not in l and 'launch geometry' not in l and 'grid=ceil' not in l]
    a = kernel_a()
    b = kernel_b()
    out = '\n'.join(head) + '\n'
    out += '; @launch kernel=%s grid=(256,1,1) block=(256,1,1) lds=%d\n' % (KA, LDS_A)
    if not FUSE:
        out += '; @launch kernel=%s grid=(256,1,1) block=(512,1,1) lds=49152\n' % KB
    out += '.amdgcn_target "amdgcn-amd-amdhsa--gfx950"\n.text\n'
    out += a.text() + ('' if FUSE else b.text())
    out += '.section .rodata,"a"\n'
    out += kd(KA, 512, 256) + ('' if FUSE else kd(KB, 144, 144))
    path = sys.argv[1] if len(sys.argv) > 1 else 'cdna_kernels/%s.s' % NAME
    open(path, 'w').write(out)
    print('nops inserted: A %d  B %d; lines %d' % (a.nops_inserted, b.nops_inserted, out.count('\n')))


if __name__ == '__main__':
    main()
```

```python
import struct, sys, math
from emit import Emitter, merge, sched

NAME = 'standalone__gqa_block_cached__near_ridge'
KA = 'gqa_attn_kernel'
KB = 'gqa_oproj_kernel'

def f32bits(x):
    return struct.unpack('<I', struct.pack('<f', x))[0]

XB = 0
QB = 24576
PB = [0, 24576]
RING = 49152
RING_W = 12288
NSLOT = 3
VS = [98304, 131072, 98304, 131072]
STATS = 81920
LSTAT = 86016
WOST = 65536
LDS_A = 163840

WOT_OFF = 0x800000
WS_SIZE = 0x1000000


DIAG = False
DIAG_ALL = True
PRO0, PRO1, STEPN, SLOWCOST = 12, 8, 8, 6
KFIRST = 0
FUSE = 0
P3D = 8
TOUCH = 0
EPO = 0
BURST = 2
XDEF = 1
WQPF = 1
KORD = 1
KVPOL = ''
STPOL = ''
PVS = 16
KTF = 0
NOLOAD = 0
ROT = 0
CI, KI = 3, 0
NV_LATE = 40
NV_S = [[4, 4], [4, 4], [4, 4], [4, 4], [4, 4], [0, 0]]
def kernel_a():
    e = Emitter()
    E = e
    stampc = [0]
    def stamp(key=False):
        if not DIAG or not (DIAG_ALL or key):
            return
        i = stampc[0]; stampc[0] += 1
        E('s_memtime s[60:61]')
        E('s_waitcnt lgkmcnt(0)')
        E('s_lshl_b32 s58, s2, 2')
        E('s_add_u32 s58, s58, s3')
        E('s_lshl_b32 s58, s58, 8')
        E('s_add_u32 s58, s58, 0x%x' % (0xC00000 + i * 8))
        E('v_mov_b32 v63, 0')
        E('v_mov_b32 v0, s60')
        E('buffer_store_dword v0, v63, s[28:31], s58 offen', tag='stamp')
        E('v_mov_b32 v0, s61')
        E('buffer_store_dword v0, v63, s[28:31], s58 offen offset:4', tag='stamp')
    e.raw('.p2align 8')
    e.raw('.globl %s' % KA)
    e.raw('.type %s,@function' % KA)
    e.label(KA)
    E('s_cmp_ge_u32 s2, 256')
    E('s_cbranch_scc1 L_a_done')
    E('s_load_dwordx16 s[40:55], s[0:1], 0')
    E('v_and_b32 v1, 63, v0')
    E('v_lshrrev_b32 v2, 6, v0')
    E('s_nop 0')
    E('v_readfirstlane_b32 s3, v2')
    if FUSE:
        E('s_lshr_b32 s4, s2, 3')
        E('s_and_b32 s38, s2, 3')
        E('s_lshl_b32 s38, s38, 1')
        E('s_and_b32 s5, s4, 1')
        E('s_add_u32 s38, s38, s5')
        E('s_bfe_u32 s37, s2, 0x10002')
        E('s_lshl_b32 s37, s37, 3')
        E('s_lshr_b32 s5, s4, 2')
        E('s_add_u32 s37, s37, s5')
        E('s_bfe_u32 s4, s4, 0x10001')
    else:
        E('s_and_b32 s38, s2, 7')
        E('s_lshr_b32 s4, s2, 3')
        E('s_lshr_b32 s37, s4, 1')
        E('s_and_b32 s4, s4, 1')
    E('s_lshl_b32 s39, s38, 2')
    E('s_lshl_b32 s4, s4, 1')
    E('s_add_u32 s39, s39, s4')
    E('s_lshl_b32 s4, s37, 3')
    E('s_add_u32 s4, s4, s38')
    E('s_lshl_b32 s32, s4, 17')
    E('s_lshl_b32 s5, s3, 15')
    E('s_add_u32 s32, s32, s5')
    E('s_lshr_b32 s5, s2, 3')
    E('s_and_b32 s5, s5, 1')
    E('s_mul_i32 s5, s5, %d' % ROT)
    for kt in range(4):
        E('s_add_u32 s6, s5, %d' % kt)
        E('s_and_b32 s6, s6, 3')
        E('s_lshl_b32 s6, s6, 13')
        E('s_add_u32 s%d, s32, s6' % (64 + kt))
    E('s_mul_i32 s33, s37, 49152')
    E('s_mul_i32 s5, s3, 12288')
    E('s_add_u32 s33, s33, s5')
    E('s_lshl_b32 s34, s39, 8')
    E('s_lshl_b32 s5, s3, 7')
    E('s_add_u32 s34, s34, s5')
    E('s_mul_i32 s35, s3, %d' % RING_W)
    E('s_add_u32 s35, s35, %d' % RING)
    E('s_mov_b32 s36, 0x%08x' % f32bits(math.log2(math.e) / math.sqrt(128.0)))
    E('v_and_b32 v46, 15, v1')
    E('v_lshrrev_b32 v47, 4, v1')
    E('v_xor_b32 v2, v46, v47')
    E('v_lshlrev_b32 v2, 4, v2')
    E('v_lshl_add_u32 v2, v46, 10, v2')
    E('v_lshlrev_b32 v11, 4, v1')
    E('v_lshrrev_b32 v48, 3, v1')
    E('v_and_b32 v49, 7, v1')
    E('v_lshrrev_b32 v50, 1, v49')
    E('v_and_b32 v51, 1, v47')
    E('v_xor_b32 v50, v50, v51')
    E('v_and_b32 v52, 1, v49')
    E('v_lshlrev_b32 v52, 4, v52')
    E('v_lshl_add_u32 v53, v48, 13, v52')
    E('v_lshl_add_u32 v3, v50, 5, v53')
    E('v_xor_b32 v50, 2, v50')
    E('v_lshl_add_u32 v4, v50, 5, v53')
    E('v_add_u32 v4, 0x10000, v4')
    E('v_add_u32 v5, 0x20000, v3')
    E('v_add_u32 v6, 0x20000, v4')
    E('v_lshrrev_b32 v48, 2, v1')
    E('v_and_b32 v48, 3, v48')
    E('v_and_b32 v49, 3, v1')
    E('v_lshrrev_b32 v50, 1, v48')
    E('v_lshlrev_b32 v51, 1, v51')
    E('v_or_b32 v50, v50, v51')
    E('v_lshl_add_u32 v52, v47, 3, v48')
    E('v_lshlrev_b32 v52, 7, v52')
    E('v_lshl_add_u32 v52, v49, 3, v52')
    E('v_add_u32 v52, s35, v52')
    for t in range(4):
        E('v_xor_b32 v53, %d, v50' % t)
        E('v_lshl_add_u32 v%d, v53, 5, v52' % (7 + t))
    E('v_and_b32 v53, 31, v1')
    E('v_lshrrev_b32 v54, 5, v1')
    E('v_lshlrev_b32 v12, 4, v46')
    E('v_lshl_add_u32 v12, v47, 8, v12')
    E('v_lshlrev_b32 v55, 2, v47')
    E('v_xor_b32 v55, v55, v46')
    E('v_lshlrev_b32 v55, 4, v55')
    E('v_lshl_add_u32 v13, v47, 8, v55')
    E('v_lshl_add_u32 v55, v54, 2, v48')
    E('v_lshlrev_b32 v55, 8, v55')
    E('v_xor_b32 v56, s3, v48')
    E('v_lshl_add_u32 v55, v56, 6, v55')
    E('v_and_b32 v56, 1, v47')
    E('v_lshl_add_u32 v55, v56, 5, v55')
    E('v_lshl_add_u32 v14, v49, 3, v55')
    E('v_add_u32 v14, %d, v14' % VS[0])
    E('s_lshl_b32 s4, s3, 11')
    E('v_add_u32 v15, s4, v11')
    E('v_lshlrev_b32 v55, 4, v46')
    E('v_lshl_add_u32 v55, v54, 9, v55')
    E('v_lshl_add_u32 v55, v56, 3, v55')
    E('s_lshr_b32 s4, s3, 1')
    E('s_mul_i32 s4, s4, 3')
    E('s_and_b32 s5, s3, 1')
    E('s_lshl_b32 s5, s5, 12')
    E('s_add_u32 s5, s5, %d' % QB)
    for st in range(3):
        E('s_add_u32 s6, s4, %d' % st)
        E('s_lshr_b32 s7, s6, 1')
        E('s_lshl_b32 s7, s7, 13')
        E('s_and_b32 s6, s6, 1')
        E('s_lshl_b32 s6, s6, 8')
        E('s_add_u32 s6, s6, s7')
        E('s_add_u32 s6, s6, s5')
        E('v_add_u32 v%d, s6, v55' % (16 + st))
    E('v_lshlrev_b32 v20, 5, v53')
    E('v_lshl_add_u32 v19, v54, 2, v20')
    E('s_lshl_b32 s4, s3, 3')
    E('v_add_u32 v19, s4, v19')
    E('v_lshlrev_b32 v55, 4, v46')
    E('v_lshl_add_u32 v55, v54, 8, v55')
    for qt in range(3):
        E('v_add_u32 v57, %d, v56' % (2 * qt))
        E('v_cmp_le_u32 vcc, 3, v57')
        E('v_subrev_u32 v58, 3, v57')
        E('v_lshlrev_b32 v58, 10, v58')
        E('v_add_u32 v58, 12288, v58')
        E('v_lshlrev_b32 v57, 10, v57')
        E('v_cndmask_b32 v57, v57, v58, vcc')
        E('v_add_u32 v%d, v57, v55' % (27 + qt))
    E('s_waitcnt lgkmcnt(0)')
    def srd(d, lo, size):
        E('s_mov_b32 s%d, s%d' % (d, lo))
        E('s_and_b32 s%d, s%d, 0xffff' % (d + 1, lo + 1))
        E('s_mov_b32 s%d, 0x%x' % (d + 2, size))
        E('s_mov_b32 s%d, 0x20000' % (d + 3))
    srd(8, 40, 786432)
    srd(12, 42, 16777216)
    srd(16, 44, 16777216)
    srd(20, 46, 4194304)
    srd(24, 48, 4194304)
    srd(28, 54, WS_SIZE)

    stamp(True)
    def wqpf():
        E('s_lshr_b32 s4, s2, 3')
        E('s_lshl_b32 s4, s4, 2')
        E('s_add_u32 s4, s4, s3')
        E('s_lshl_b32 s4, s4, 15')
        if FUSE:
            E('s_and_b32 s5, s2, 3')
            E('s_lshl_b32 s5, s5, 11')
        else:
            E('s_lshl_b32 s5, s38, 10')
        E('s_add_u32 s4, s4, s5')
        E('v_lshrrev_b32 v62, 4, v1')
        E('v_lshlrev_b32 v62, 13, v62')
        E('v_and_b32 v63, 15, v1')
        E('v_lshl_add_u32 v62, v63, %d, v62' % (7 if FUSE else 6))
        E('buffer_load_dword v62, v62, s[20:23], s4 offen', tag='pf')
    if WQPF == 1:
        wqpf()
    if TOUCH:
        E('v_mov_b32 v63, 0')
        E('s_mul_i32 s4, s37, 393216')
        E('s_lshl_b32 s5, s39, 2')
        E('s_add_u32 s5, s5, s3')
        E('s_mul_i32 s5, s5, 3072')
        E('s_add_u32 s4, s4, s5')
        E('buffer_load_dword v248, v63, s[28:31], s4 offen', tag='pf')
        E('s_and_b32 s4, s2, 3')
        E('s_lshl_b32 s4, s4, 20')
        E('s_add_u32 s4, s4, 0x%x' % WOT_OFF)
        E('buffer_load_dword v249, v63, s[28:31], s4 offen', tag='pf')
        if TOUCH > 1:
            E('buffer_load_dword v250, v63, s[12:15], s64 offen', tag='pf')
            E('buffer_load_dword v251, v63, s[16:19], s64 offen', tag='pf')
            E('s_lshl_b32 s4, s2, 14')
            E('buffer_load_dword v252, v63, s[24:27], s4 offen', tag='pf')
    for n in range(KFIRST):
        E('s_add_u32 s7, s%d, %d' % (64 + n // 8, (n % 8) * 1024))
        E('buffer_load_dwordx4 a[%d:%d], v12, s[12:15], s7 offen' % (n * 4, n * 4 + 3), tag='K%d' % (n // 8))
    E('s_mul_i32 s4, s3, 12288')
    for i in range(12):
        E('s_mul_i32 s5, s3, 12')
        E('s_add_u32 s5, s5, %d' % i)
        E('s_and_b32 s5, s5, 15')
        E('s_lshl_b32 s5, s5, 4')
        E('v_xor_b32 v%d, s5, v11' % (60 + (i & 1)))
        E('s_add_u32 s5, s4, %d' % (XB + i * 1024))
        E('s_mov_b32 m0, s5')
        E('s_add_u32 s6, s33, %d' % (i * 1024))
        E('buffer_load_dwordx4 v%d, s[8:11], s6 offen lds' % (60 + (i & 1)), tag='x')

    def wq_dma(c):
        out = []
        for m in range(4):
            def f(m=m):
                E('s_add_u32 s5, s35, %d' % ((c % NSLOT) * 4096 + m * 1024))
                E('s_mov_b32 m0, s5')
                E('s_add_u32 s6, s34, %d' % (c * 262144))
                E('buffer_load_dwordx4 v%d, s[20:23], s6 offen lds' % (3 + m), tag='wq%d' % c)
            out.append(f)
        return out

    def wq_reg(c):
        if c < 8:
            return 'v', 168 + (c - 3) * 16
        return 'a', 128 + (c - 8) * 16

    def wq_load(c):
        out = []
        fl, r = wq_reg(c)
        for m in range(4):
            def f(m=m):
                E('s_add_u32 s6, s34, %d' % (c * 262144))
                E('buffer_load_dwordx4 %s[%d:%d], v%d, s[20:23], s6 offen' % (fl, r + 4 * m, r + 4 * m + 3, 3 + m), tag='wq%d' % c)
            out.append(f)
        return out

    def wq_write(c):
        out = []
        fl, r = wq_reg(c)
        out.append(lambda: e.wait(vm='wq%d' % c))
        for m in range(4):
            out.append(lambda m=m: E('ds_write_b128 v59, %s[%d:%d] offset:%d' % (fl, r + 4 * m, r + 4 * m + 3, (c % NSLOT) * 4096 + m * 1024)))
        return out

    ACC = 64
    AF = [112, 128]
    BF = [144, 156]

    def p1_reads(c):
        out = []
        bu = c & 1
        sl = c % NSLOT
        out.append(lambda: E('v_xor_b32 v%d, %d, v2' % (60 + bu, c * 64)))
        for st in range(3):
            out.append(lambda st=st: E('ds_read_b128 v[%d:%d], v%d offset:%d' % (BF[bu] + 4 * st, BF[bu] + 4 * st + 3, 60 + bu, XB + st * 16384), tag='p1r%d' % c))
        for t in range(4):
            for hh in range(2):
                out.append(lambda t=t, hh=hh: E('ds_read_b64_tr_b16 v[%d:%d], v%d offset:%d' % (
                    AF[bu] + 4 * t + 2 * hh, AF[bu] + 4 * t + 2 * hh + 1, 7 + t, sl * 4096 + hh * 512), tag='p1r%d' % c))
        return out

    def kload(n):
        def f():
            E('s_add_u32 s7, s%d, %d' % (64 + n // 8, (n % 8) * 1024))
            E('buffer_load_dwordx4 a[%d:%d], v12, s[12:15], s7 offen%s' % (n * 4, n * 4 + 3, KVPOL), tag='K%d' % (n // 8))
        return f

    def v_chunk(t):
        out = []
        for mm in range(8):
            def f(mm=mm):
                E('s_lshl_b32 s5, s3, 13')
                E('s_add_u32 s5, s5, %d' % (VS[t] + mm * 1024))
                E('s_mov_b32 m0, s5')
                E('s_add_u32 s6, s%d, %d' % (64 + t, mm * 1024))
                E('buffer_load_dwordx4 v13, s[16:19], s6 offen%s lds' % KVPOL, tag='V%d' % t)
            out.append(f)
        return out

    def v_regs(t):
        out = []
        for mm in range(8):
            def f(mm=mm):
                r = 192 + (t - 2) * 32 + mm * 4
                E('s_add_u32 s6, s%d, %d' % (64 + t, mm * 1024))
                E('buffer_load_dwordx4 v[%d:%d], v12, s[16:19], s6 offen%s' % (r, r + 3, KVPOL), tag='V%d' % t)
            out.append(f)
        return out
    E('v_add_u32 v59, s35, v11')
    def wo_early():
        out = []
        def pre():
            E('s_lshr_b32 s4, s2, 2')
            E('s_lshl_b32 s4, s4, 16')
            E('s_and_b32 s5, s2, 3')
            E('s_lshl_b32 s5, s5, 8')
            E('s_add_u32 s4, s4, s5')
            E('s_lshl_b32 s5, s3, 14')
            E('s_add_u32 s56, s4, s5')
            E('v_lshrrev_b32 v160, 4, v1')
            E('v_and_b32 v161, 15, v1')
            E('v_lshlrev_b32 v160, 10, v160')
            E('v_lshl_add_u32 v160, v161, 4, v160')
            E('buffer_load_dwordx4 a[96:99], v160, s[24:27], s56 offen', tag='WO')
        out.append(pre)
        for m in range(1, 4):
            def f(m=m):
                E('s_add_u32 s6, s56, %d' % (m * 4096))
                E('buffer_load_dwordx4 a[%d:%d], v160, s[24:27], s6 offen' % (96 + 4 * m, 99 + 4 * m), tag='WO')
            out.append(f)
        return out
    seq = []
    if KORD:
        slow = [kload(n) for n in range(KFIRST, 32)] + v_chunk(0) + v_chunk(1) + v_regs(2) + v_regs(3)
    else:
        slow = [kload(n) for n in range(KFIRST, 16)] + v_chunk(0) + v_chunk(1) + [kload(n) for n in range(16, 32)] + v_regs(2) + v_regs(3)
    for c in range(3):
        seq += wq_dma(c)
    for c in range(3, 16):
        seq += wq_load(c)
        if c >= CI:
            seq += slow[:KI]
            slow = slow[KI:]
    if FUSE > 1:
        seq += wo_early()
    nfast = len(seq)
    seq += slow
    LEFT = {'K0': 56, 'K1': 48, 'V0': 40, 'V1': 32, 'K2': 24, 'K3': 16, 'V2': 8, 'V3': 0}
    if KORD:
        LEFT = {'K0': 56, 'K1': 48, 'K2': 40, 'K3': 32, 'V0': 24, 'V1': 16, 'V2': 8, 'V3': 0}
    def vwait(tag):
        nf = 0
        while len(seq) > LEFT[tag]:
            issue(SLOWCOST); nf += 1
        if nf:
            print('forced issue of %d loads for %s' % (nf, tag))
        e.wait(vm=tag)
    issued = [0]
    def issue(maxn=1000):
        n = 0
        while seq and len(e.vmq) < 62 and n < maxn:
            seq.pop(0)()
            n += 1 if issued[0] < nfast else SLOWCOST
            issued[0] += 1
    stamp()
    issue(PRO0)
    if WQPF == 2:
        wqpf()
    stamp()
    e.wait(vm='wq0')
    stamp()
    E('s_barrier')
    stamp()
    issue(PRO1)
    for f in p1_reads(0):
        f()
    for c in range(16):
        bu = c & 1
        e.wait(lds='p1r%d' % c)
        if c in (2, 4, 6, 8, 12):
            stamp()
        rd = []
        if c + 1 < 16:
            if c + 1 < 3:
                rd.append(lambda c=c: e.wait(vm='wq%d' % (c + 1)))
            rd += p1_reads(c + 1)
        rd2 = []
        if 3 <= c + 2 < 16:
            rd2 = wq_write(c + 2)
        rd2.append(lambda: issue(STEPN))
        if FUSE > 1 and c == 14:
            def stg0():
                e.wait(vm='WO')
                E('s_lshl_b32 s4, s3, 12')
                E('s_add_u32 s4, s4, %d' % VS[1])
                E('v_add_u32 v162, s4, v13')
                for m in range(4):
                    E('ds_write_b128 v162, a[%d:%d] offset:%d' % (96 + 4 * m, 99 + 4 * m, m * 1024))
            rd2.append(stg0)
        mf = []
        for nt in range(4):
            for st in range(3):
                a = ACC + (nt * 3 + st) * 4
                src = 'v[%d:%d]' % (a, a + 3) if c > 0 else '0'
                mf.append(lambda a=a, nt=nt, st=st, src=src: E('v_mfma_f32_16x16x32_bf16 v[%d:%d], v[%d:%d], v[%d:%d], %s' % (
                    a, a + 3, AF[bu] + 4 * nt, AF[bu] + 4 * nt + 3, BF[bu] + 4 * st, BF[bu] + 4 * st + 3, src)))
        for f in merge(mf[:6], rd) + merge(mf[6:], rd2):
            f()
    for nt in range(4):
        for st in range(3):
            a = ACC + (nt * 3 + st) * 4
            E('v_cvt_pk_bf16_f32 v%d, v%d, v%d' % (a, a, a + 1))
            E('v_cvt_pk_bf16_f32 v%d, v%d, v%d' % (a + 1, a + 2, a + 3))
    if FUSE > 1:
        e.wait(lds='all')
    stamp(True)
    E('s_barrier')
    for nt in range(4):
        for st in range(3):
            a = ACC + (nt * 3 + st) * 4
            E('ds_write_b64 v%d, v[%d:%d] offset:%d' % (16 + st, a, a + 1, nt * 1024))

    if FUSE > 1:
        E('v_lshrrev_b32 v46, 4, v1')
        E('v_lshrrev_b32 v47, 2, v1')
        E('v_and_b32 v47, 3, v47')
        E('v_and_b32 v48, 3, v1')
        E('v_lshl_add_u32 v49, v46, 3, v47')
        E('v_lshlrev_b32 v49, 8, v49')
        E('v_xor_b32 v50, s3, v47')
        E('v_lshl_add_u32 v49, v50, 6, v49')
        E('v_lshl_add_u32 v49, v48, 3, v49')
        E('v_add_u32 v49, 0x%x, v49' % VS[1])
        for kk in range(2):
            for nn in range(2):
                for hh in range(2):
                    r = 30 + (kk * 2 + nn) * 4 + 2 * hh
                    E('ds_read_b64_tr_b16 v[%d:%d], v49 offset:%d' % (r, r + 1, (32 * kk + 4 * hh) * 256 + nn * 32), tag='wt')
        E('s_and_b32 s4, s2, 3')
        E('s_lshl_b32 s4, s4, 3')
        E('s_lshl_b32 s5, s3, 1')
        E('s_add_u32 s4, s4, s5')
        E('s_lshl_b32 s4, s4, 17')
        E('s_lshr_b32 s5, s2, 2')
        E('s_lshl_b32 s5, s5, 11')
        E('s_add_u32 s4, s4, s5')
        E('s_add_u32 s62, s4, 0x%x' % WOT_OFF)
        E('s_add_u32 s63, s62, 0x20000')
        E('s_mov_b32 s20, s52')
        E('s_and_b32 s21, s53, 0xffff')
        E('s_mov_b32 s22, 256')
        E('s_mov_b32 s23, 0x20000')
    while len(seq) > NV_LATE:
        issue(SLOWCOST)
    if NOLOAD:
        del seq[:]
    e.wait(lds='all')
    if FUSE > 1:
        for kk in range(2):
            for nn in range(2):
                r = 30 + (kk * 2 + nn) * 4
                E('buffer_store_dwordx4 v[%d:%d], v11, s[28:31], s%d offen offset:%d sc1' % (r, r + 3, 62 + nn, kk * 1024), tag='wst')
    E('s_barrier')
    QF = 128
    for qt in range(3):
        for ks in range(8):
            r = QF + (qt * 8 + ks) * 4
            E('ds_read_b128 a[%d:%d], v11 offset:%d' % (r, r + 3, QB + (qt * 8 + ks) * 1024), tag='Q')
    E('s_lshl_b32 s4, s3, 13')
    E('s_add_u32 s4, s4, 0xC000')
    E('v_and_b32 v46, 15, v1')
    E('v_lshrrev_b32 v47, 4, v1')
    E('v_xor_b32 v48, v46, v47')
    for jj in range(4):
        E('v_xor_b32 v49, %d, v48' % (4 * jj))
        E('v_lshlrev_b32 v49, 4, v49')
        E('v_lshl_add_u32 v49, v47, 8, v49')
        E('v_add_u32 v%d, s4, v49' % (6 + jj))
    E('v_and_b32 v46, 31, v1')
    E('v_lshrrev_b32 v47, 5, v1')
    E('v_and_b32 v48, 15, v1')
    E('v_xor_b32 v48, v48, v47')
    E('v_lshlrev_b32 v48, 4, v48')
    E('v_lshl_add_u32 v48, v46, 8, v48')
    E('v_add_u32 v54, s4, v48')
    E('v_add_u32 v60, 0x%x, v19' % STATS)
    E('v_add_u32 v61, 0x%x, v20' % STATS)
    def ktr(kt):
        w_ = lambda: vwait('K%d' % kt)
        w_.cost = 0
        out = [w_]
        for m in range(8):
            r = (kt * 8 + m) * 4
            out.append(lambda m=m, r=r: E('ds_write_b128 v%d, a[%d:%d] offset:%d' % (6 + (m & 3), r, r + 3, m * 1024)))
        for ks in range(8):
            r = (kt * 8 + ks) * 4
            def f(ks=ks, r=r):
                E('v_xor_b32 v%d, %d, v54' % (55 + (ks & 1), ks * 32))
                E('ds_read_b128 a[%d:%d], v%d' % (r, r + 3, 55 + (ks & 1)), tag='kt%d' % kt)
            out.append(f)
        return out
    SB = [64, 128]
    MX = 62
    def sreg(u, kt):
        return SB[u & 1] + (kt & 1) * 16
    def max_ops(u, kt):
        out = []
        for i in range(8):
            s_ = sreg(u, kt) + 2 * i
            if (kt & 1) == 0 and i == 0:
                out.append(lambda s_=s_: E('v_max_f32 v%d, v%d, v%d' % (MX, s_, s_ + 1)))
            else:
                out.append(lambda s_=s_: E('v_max3_f32 v%d, v%d, v%d, v%d' % (MX, s_, s_ + 1, MX)))
        return out
    def s_mf(u, kt):
        q = u % 3
        mf = []
        for ks in range(8):
            s_ = sreg(u, kt)
            src = 'v[%d:%d]' % (s_, s_ + 15) if ks > 0 else '0'
            kr = (kt * 8 + ks) * 4
            qr = QF + (q * 8 + ks) * 4
            mf.append(lambda s_=s_, kr=kr, qr=qr, src=src: E('v_mfma_f32_32x32x16_bf16 v[%d:%d], a[%d:%d], a[%d:%d], %s' % (
                s_, s_ + 15, kr, kr + 3, qr, qr + 3, src)))
        return mf
    PK = [30, 34, 38, 42]
    pkc = [0]
    OA = [0, 64]
    PSL = {(0, 0): 0, (0, 1): 8192, (1, 0): 16384, (1, 1): 24576, (2, 0): 32768, (2, 1): 40960,
           (0, 2): 49152, (0, 3): 57344, (1, 2): 0, (1, 3): 16384, (2, 2): 32768, (2, 3): 8192}
    def exp_ops(u, kt):
        q = u % 3
        out = []
        s0 = sreg(u, kt)
        for hf in range(2):
            pk = PK[pkc[0] % 4]; pkc[0] += 1
            regs = [s0 + 8 * hf + i for i in range(8)]
            for r in regs:
                out.append(lambda r=r: E('v_fma_f32 v%d, v%d, s36, -v%d' % (r, r, 21 + q)))
            for r in regs:
                out.append(lambda r=r: E('v_exp_f32 v%d, v%d' % (r, r)))
            for k, r in enumerate(regs):
                if kt == 0 and hf == 0 and k == 0:
                    out.append(lambda r=r: E('v_add_f32 v%d, v%d, v%d' % (24 + q, r, r + 1)))
                elif kt == 0 and hf == 0 and k == 1:
                    pass
                else:
                    out.append(lambda r=r: E('v_add_f32 v%d, v%d, v%d' % (24 + q, r, 24 + q)))
                if k & 1:
                    out.append(lambda r=r, pk=pk, k=k: E('v_cvt_pk_bf16_f32 v%d, v%d, v%d' % (pk + k // 2, r - 1, r)))
            off = PSL[(q, kt)] + hf * 1024
            out.append(lambda pk=pk, off=off: E('ds_write_b128 v15, v[%d:%d] offset:%d' % (pk, pk + 3, off)))
        return out
    def exchange(u):
        h, q = u // 3, u % 3
        E('ds_write_b32 v60, v%d offset:%d' % (MX, q * 1024))
        e.wait(lds='all')
        stamp()
        E('s_barrier')
        E('ds_read_b128 v[46:49], v61 offset:%d' % (q * 1024), tag='st')
        E('ds_read_b128 v[50:53], v61 offset:%d' % (q * 1024 + 16), tag='st')
        out = [lambda: e.wait(lds='st')]
        ops = ['v_max3_f32 v46, v46, v47, v48', 'v_max3_f32 v50, v50, v51, v52', 'v_max3_f32 v46, v46, v49, v53', 'v_max_f32 v46, v46, v50']
        if h == 0:
            ops += ['v_mul_f32 v%d, s36, v46' % (21 + q)]
        else:
            ops += ['v_mul_f32 v46, s36, v46', 'v_max_f32 v46, v46, v%d' % (21 + q), 'v_sub_f32 v47, v%d, v46' % (21 + q),
                    'v_exp_f32 v%d, v47' % (57 + q), 'v_mov_b32 v%d, v46' % (21 + q), 'v_mul_f32 v%d, v%d, v%d' % (24 + q, 24 + q, 57 + q)]
        out += [(lambda o=o: E(o)) for o in ops]
        if not XDEF:
            for f in out:
                f()
            out = []
        return out

    PB4 = [96, 112, 160, 176]
    pvc = [0]
    def C(cost, fn):
        fn.cost = cost
        return fn
    def pv_anchors(lst):
        steps = []
        for (t, qs, first) in lst:
            for n in range(8):
                steps.append((t, qs, first, n))
        base = pvc[0]
        pvc[0] += len(steps)
        def reads(i):
            t, qs, first, n = steps[i]
            u, hf = n // 2, n % 2
            b = PB4[(base + i) & 3]
            vb = 14 if (t & 1) == 0 else 10
            tag = 'pv%d' % (base + i)
            out = []
            for ee in range(2):
                out.append(lambda ee=ee: E('ds_read_b64_tr_b16 v[%d:%d], v%d offset:%d' % (
                    b + 2 * ee, b + 2 * ee + 1, vb, (32 * u + 16 * hf + 8 * ee) * 256), tag=tag))
            for qt in qs:
                off = PSL[(qt, t)] + u * 2048 + hf * 1024
                out.append(lambda qt=qt, off=off: E('ds_read_b128 v[%d:%d], v11 offset:%d' % (
                    b + 4 + 4 * qt, b + 7 + 4 * qt, off), tag=tag))
            return out
        pro = reads(0) + reads(1)
        anc = []
        for i, (t, qs, first, n) in enumerate(steps):
            b = PB4[(base + i) & 3]
            rd = reads(i + 2) if i + 2 < len(steps) else []
            k = len(qs)
            for x, qt in enumerate(qs):
                o = OA[t >> 1] + 16 * qt
                src = '0' if (first and n == 0) else 'a[%d:%d]' % (o, o + 15)
                fn = (lambda o=o, b=b, qt=qt, src=src: E('v_mfma_f32_32x32x16_bf16 a[%d:%d], v[%d:%d], v[%d:%d], %s' % (
                    o, o + 15, b, b + 3, b + 4 + 4 * qt, b + 7 + 4 * qt, src)))
                pre = [lambda i=i: e.wait(lds='pv%d' % (base + i))] if x == 0 else []
                post = rd[len(rd) * x // k: len(rd) * (x + 1) // k]
                anc.append((pre, fn, post))
        return pro, anc

    WOR = 240
    def wo_loads():
        out = []
        def pre():
            E('s_lshr_b32 s4, s2, 2')
            E('s_lshl_b32 s4, s4, 16')
            E('s_and_b32 s5, s2, 3')
            E('s_lshl_b32 s5, s5, 8')
            E('s_add_u32 s4, s4, s5')
            E('s_lshl_b32 s5, s3, 14')
            E('s_add_u32 s56, s4, s5')
            E('v_lshrrev_b32 v3, 4, v1')
            E('v_and_b32 v4, 15, v1')
            E('v_lshlrev_b32 v3, 10, v3')
            E('v_lshl_add_u32 v3, v4, 4, v3')
        out.append(pre)
        for m in range(4):
            def f(m=m):
                E('s_add_u32 s6, s56, %d' % (m * 4096))
                E('buffer_load_dwordx4 a[%d:%d], v3, s[24:27], s6 offen' % (WOR + 4 * m, WOR + 4 * m + 3), tag='WO')
            out.append(f)
        return out
    def v_store(t):
        out = [C(0, lambda: vwait('V%d' % t))]
        def pre():
            E('s_lshl_b32 s4, s3, 13')
            E('s_add_u32 s4, s4, %d' % VS[t])
            E('v_add_u32 v55, s4, v13')
        out.append(pre)
        for mm in range(8):
            r = 192 + (t - 2) * 32 + mm * 4
            out.append(lambda r=r, mm=mm: E('ds_write_b128 v55, v[%d:%d] offset:%d' % (r, r + 3, mm * 1024)))
        return out
    def iss(n):
        return [C(20, lambda: issue(SLOWCOST))] * n

    E('v_add_u32 v10, 0x%x, v14' % (VS[1] - VS[0]))
    for f in ktr(0):
        f()
    e.wait(lds='kt0')
    stamp()
    xpost = []
    for u in range(6):
        h, q = u // 3, u % 3
        t0, t1 = 2 * h, 2 * h + 1
        sa = [([], f, []) for f in s_mf(u, t0)] + [([], f, []) for f in s_mf(u, t1)]
        if q == 0:
            sa[8] = ([lambda t1=t1: e.wait(lds='kt%d' % t1)], sa[8][1], [])
        pro = []
        if u in (4, 5):
            pro, pa = pv_anchors([(u - 4, (0, 1, 2), u == 4)])
            anc = sa[:2] + merge(sa[2:], pa[:PVS]) + pa[PVS:]
        else:
            anc = sa
        i7 = [k for k, a in enumerate(anc) if a[1] is sa[7][1]][0]
        i15 = [k for k, a in enumerate(anc) if a[1] is sa[15][1]][0]
        s0, s1 = [], []
        if u > 0:
            pu = u - 1
            s0 = exp_ops(pu, 2 * (pu // 3))
            s1 = exp_ops(pu, 2 * (pu // 3) + 1)
        if q == 0:
            s0 = ktr(t1) + s0 if KTF else merge(s0, ktr(t1))
        if u == 2:
            s1 = merge(s1, ktr(2))
        if u == 5:
            s1 = merge(s1, v_store(2))
        if u == 4 and not FUSE:
            s1 = merge(s1, wo_loads())
        s0 = xpost + merge(s0, iss(NV_S[u][0]))
        s1 = merge(s1, iss(NV_S[u][1]))
        cons = [(i7 + 1, f) for f in max_ops(u, t0)] + [(i15 + 1, f) for f in max_ops(u, t1)]
        if FUSE > 1 and u == 4:
            E('s_and_b32 s4, s2, 3')
            E('s_lshl_b32 s4, s4, 2')
            E('s_add_u32 s4, s4, 64')
            E('v_mov_b32 v4, 1')
            E('v_mov_b32 v3, 0')
            E('s_cmp_eq_u32 s3, 0')
            E('s_cselect_b32 s58, 1, 0')
            E('s_mov_b32 s59, 0')
            E('s_mov_b64 exec, s[58:59]')
            E('buffer_atomic_add v4, v3, s[20:23], s4 offen sc1')
            E('s_mov_b64 exec, -1')
        for f in pro:
            f()
        if q == 0:
            sched(e, anc[:8], s0, burst=BURST if u else 0)
            sched(e, anc[8:], s1, [(m - 8, f) for m, f in cons])
        else:
            sched(e, anc, s0 + s1, cons, burst=BURST)
        if u == 3:
            vwait('V0')
        if u == 4:
            vwait('V1')
        xpost = exchange(u)
        if u == 2:
            stamp(True)
    tail = exp_ops(5, 2) + exp_ops(5, 3)
    tail = xpost + merge(tail, v_store(3))
    for qt in range(3):
        tail.append(lambda qt=qt: E('ds_write_b32 v60, v%d offset:%d' % (24 + qt, LSTAT - STATS + qt * 1024)))
    def stg():
        e.wait(vm='WO')
        E('s_lshl_b32 s4, s3, 12')
        E('s_add_u32 s4, s4, %d' % WOST)
        E('v_add_u32 v56, s4, v13')
        for m in range(4):
            E('ds_write_b128 v56, a[%d:%d] offset:%d' % (WOR + 4 * m, WOR + 4 * m + 3, m * 1024))
    if not FUSE:
        tail.append(stg)
    if FUSE > 1:
        E('s_lshr_b32 s4, s39, 3')
        E('s_lshl_b32 s4, s4, 2')
        E('s_add_u32 s4, s4, 64')
        E('buffer_load_dword v5, v3, s[20:23], s4 offen sc0 sc1', tag='rdy')
    pro, pa = pv_anchors([(2, (0, 1), True)])
    for f in pro:
        f()
    sched(e, pa, tail, lead=100)
    e.wait(lds='all')
    stamp()
    E('s_barrier')
    stamp(True)
    b = []
    TB = [64, 80, 128]
    for qt in range(3):
        def ls(qt=qt):
            E('ds_read_b128 v[46:49], v61 offset:%d' % (LSTAT - STATS + qt * 1024), tag='ls%d' % qt)
            E('ds_read_b128 v[50:53], v61 offset:%d' % (LSTAT - STATS + qt * 1024 + 16), tag='ls%d' % qt)
            e.wait(lds='ls%d' % qt)
            E('v_add_f32 v46, v46, v47')
            E('v_add_f32 v48, v48, v49')
            E('v_add_f32 v50, v50, v51')
            E('v_add_f32 v52, v52, v53')
            E('v_add_f32 v46, v46, v48')
            E('v_add_f32 v50, v50, v52')
            E('v_add_f32 v46, v46, v50')
            E('v_rcp_f32 v%d, v46' % (24 + qt))
            E('v_mul_f32 v%d, v%d, v%d' % (57 + qt, 57 + qt, 24 + qt))
        b.append(ls)
        for r in range(16):
            def f(qt=qt, r=r):
                E('v_accvgpr_read_b32 v%d, a%d' % (TB[qt] + r, OA[0] + 16 * qt + r))
                E('v_mul_f32 v%d, v%d, v%d' % (TB[qt] + r, TB[qt] + r, 57 + qt))
            b.append(f)
    def wt_addr():
        E('v_lshrrev_b32 v46, 4, v1')
        E('v_lshrrev_b32 v47, 2, v1')
        E('v_and_b32 v47, 3, v47')
        E('v_and_b32 v48, 3, v1')
        E('v_lshl_add_u32 v49, v46, 3, v47')
        E('v_lshlrev_b32 v49, 8, v49')
        E('v_xor_b32 v50, s3, v47')
        E('v_lshl_add_u32 v49, v50, 6, v49')
        E('v_lshl_add_u32 v49, v48, 3, v49')
        E('v_add_u32 v49, 0x%x, v49' % WOST)
        for kk in range(2):
            for nn in range(2):
                for hh in range(2):
                    r = 30 + (kk * 2 + nn) * 4 + 2 * hh
                    E('ds_read_b64_tr_b16 v[%d:%d], v49 offset:%d' % (r, r + 1, (32 * kk + 4 * hh) * 256 + nn * 32), tag='wt')
    if not FUSE:
        b.append(wt_addr)
    def epi(qt):
        out = []
        T = TB[qt]
        U = 192 + (qt & 1) * 16
        for r in range(16):
            out.append(lambda r=r: E('v_accvgpr_read_b32 v%d, a%d' % (U + r, OA[1] + 16 * qt + r)))
        for r in range(16):
            out.append(lambda r=r: E('v_fma_f32 v%d, v%d, v%d, v%d' % (T + r, U + r, 24 + qt, T + r)))
        for k in range(8):
            out.append(lambda k=k: E('v_cvt_pk_bf16_f32 v%d, v%d, v%d' % (T + k, T + 2 * k, T + 2 * k + 1)))
        for k in (0, 2):
            def f(k=k):
                E('v_permlane32_swap_b32 v%d, v%d' % (T + 2 * k, T + 2 * k + 2))
                E('v_permlane32_swap_b32 v%d, v%d' % (T + 2 * k + 1, T + 2 * k + 3))
                E('buffer_store_dwordx4 v[%d:%d], v%d, s[28:31], s57 offen offset:%d%s' % (T + 2 * k, T + 2 * k + 3, 27 + qt, k * 256, STPOL))
            out.append(f)
        return out
    E('s_mul_i32 s4, s37, 393216')
    E('s_lshl_b32 s5, s39, 2')
    E('s_add_u32 s5, s5, s3')
    E('s_mul_i32 s5, s5, 3072')
    E('s_add_u32 s57, s4, s5')
    if EPO:
        pro, pa = pv_anchors([(3, (0, 1), False), (2, (2,), True), (3, (2,), False)])
        for f in pro:
            f()
        sched(e, pa[:16], b, lead=60)
        sched(e, pa[16:], epi(0) + epi(1), burst=1)
        stamp()
        for f in epi(2):
            f()
    else:
        pro, pa = pv_anchors([(2, (2,), True), (3, (0, 1, 2), False)])
        for f in pro:
            f()
        sched(e, pa, b, lead=60)
        stamp()
        for qt in range(3):
            for f in epi(qt):
                f()
    if FUSE:
        phase3(e, stamp)
    else:
        E('s_and_b32 s4, s2, 3')
        E('s_lshl_b32 s4, s4, 3')
        E('s_lshl_b32 s5, s3, 1')
        E('s_add_u32 s4, s4, s5')
        E('s_lshl_b32 s4, s4, 17')
        E('s_lshr_b32 s5, s2, 2')
        E('s_lshl_b32 s5, s5, 11')
        E('s_add_u32 s4, s4, s5')
        E('s_add_u32 s4, s4, 0x%x' % WOT_OFF)
        E('s_add_u32 s5, s4, 0x20000')
        e.wait(lds='wt')
        for kk in range(2):
            for nn in range(2):
                r = 30 + (kk * 2 + nn) * 4
                E('buffer_store_dwordx4 v[%d:%d], v11, s[28:31], s%d offen offset:%d%s' % (r, r + 3, 4 + nn, kk * 1024, STPOL))
    stamp(True)
    e.label('L_a_done')
    E('s_endpgm')
    return e


def phase3(e, stamp):
    E = e
    E('s_mov_b32 s20, s52')
    E('s_and_b32 s21, s53, 0xffff')
    E('s_mov_b32 s22, 256')
    E('s_mov_b32 s23, 0x20000')
    E('s_mov_b32 s8, s50')
    E('s_and_b32 s9, s51, 0xffff')
    E('s_mov_b32 s10, 786432')
    E('s_mov_b32 s11, 0x20000')
    E('s_lshl_b32 s62, s37, 2')
    E('s_mul_i32 s63, s3, 40960')
    E('v_mov_b32 v2, 1')
    E('v_mov_b32 v3, 0')
    E('s_cmp_eq_u32 s3, 0')
    E('s_cselect_b32 s58, 1, 0')
    E('s_mov_b32 s59, 0')
    def pub():
        E('s_barrier')
        E('s_mov_b64 exec, s[58:59]')
        E('buffer_atomic_add v2, v3, s[20:23], s62 offen sc1')
        E('s_mov_b64 exec, -1')
    if FUSE > 1:
        e.wait(vm='rdy')
        E('v_readfirstlane_b32 s4, v5')
        E('s_cmp_ge_u32 s4, 64')
        E('s_cbranch_scc0 L_slow')
        q0 = list(e.vmq)
        E('s_lshl_b32 s56, s39, 17')
        E('s_lshl_b32 s5, s3, 15')
        E('s_add_u32 s56, s56, s5')
        E('s_add_u32 s56, s56, 0x%x' % WOT_OFF)
        E('s_add_u32 s57, s56, 0x20000')
        for n in range(64):
            i, nn = n // 2, n % 2
            if n == 40:
                e.wait(vm=q0[-1], lds='all')
                pub()
            if n == 60:
                e.wait(vm='wf3')
            E('buffer_load_dwordx4 a[%d:%d], v11, s[28:31], s%d offen offset:%d' % (n * 4, n * 4 + 3, 56 + nn, (i % 4) * 1024), tag='wf%d' % n)
            if n % 8 == 7:
                E('s_add_u32 s56, s56, 4096')
                E('s_add_u32 s57, s57, 4096')
        E('s_branch L_join')
        e.label('L_slow')
        e.vmq = q0
    e.wait(vm='all', lds='all')
    pub()
    e.vmq = []
    stamp()
    E('v_lshrrev_b32 v4, 2, v1')
    E('v_lshrrev_b32 v5, 5, v1')
    E('v_lshlrev_b32 v5, 1, v5')
    E('v_and_b32 v6, 3, v1')
    E('v_xor_b32 v5, v5, v6')
    E('v_lshlrev_b32 v5, 4, v5')
    E('v_lshl_add_u32 v4, v4, 10, v5')
    E('s_lshl_b32 s56, s3, 20')
    E('s_lshl_b32 s5, s39, 5')
    E('s_add_u32 s56, s56, s5')
    E('v_lshrrev_b32 v46, 4, v1')
    E('v_lshrrev_b32 v47, 2, v1')
    E('v_and_b32 v47, 3, v47')
    E('v_lshl_add_u32 v48, v46, 3, v47')
    E('v_lshlrev_b32 v48, 6, v48')
    E('v_lshl_add_u32 v48, v6, 3, v48')
    E('v_and_b32 v46, 1, v46')
    E('v_lshl_add_u32 v48, v46, 5, v48')
    E('v_add_u32 v7, s63, v48')
    E('v_xor_b32 v8, 32, v7')
    def dma(step, slot):
        for k in range(2):
            E('s_add_u32 s5, s63, %d' % (slot * 2048 + k * 1024))
            E('s_mov_b32 m0, s5')
            E('s_add_u32 s6, s56, %d' % ((step * 2 + k) * 16384))
            E('buffer_load_dwordx4 v4, s[24:27], s6 offen lds', tag='w%d' % step)
    def trd(step, slot):
        for nt in range(2):
            for hh in range(2):
                r = (step * 2 + nt) * 4 + 2 * hh
                E('ds_read_b64_tr_b16 a[%d:%d], v%d offset:%d' % (r, r + 1, 7 + nt, slot * 2048 + hh * 256), tag='t%d' % step)
    for st in range(20):
        dma(st, st)
    for st in range(32):
        e.wait(vm='w%d' % st)
        trd(st, st % 20)
        if st == 12:
            e.wait(lds='t11')
            for s2_ in range(20, 32):
                dma(s2_, s2_ - 20)
    stamp()
    e.wait(vm='all', lds='all')
    e.label('L_join')
    E('s_mov_b32 s7, 0')
    e.label('L_poll')
    E('buffer_load_dword v2, v3, s[20:23], s62 offen sc0 sc1')
    E('s_waitcnt vmcnt(0)')
    E('v_readfirstlane_b32 s4, v2')
    E('s_cmp_ge_u32 s4, 16')
    E('s_cbranch_scc1 L_go')
    E('s_sleep 4')
    E('s_add_u32 s7, s7, 1')
    E('s_cmp_lt_u32 s7, 0x10000')
    E('s_cbranch_scc1 L_poll')
    e.label('L_go')
    e.vmq = []
    stamp()
    E('s_mul_i32 s32, s37, 393216')
    E('s_mul_i32 s4, s3, 98304')
    E('s_add_u32 s32, s32, s4')
    D = P3D
    ACC = 64
    FR = 96
    def loads(i):
        base = FR + (i % D) * 12
        E('s_add_u32 s5, s32, %d' % (i * 3072))
        for st in range(3):
            E('buffer_load_dwordx4 v[%d:%d], v11, s[28:31], s5 offen offset:%d' % (base + 4 * st, base + 4 * st + 3, st * 1024), tag='k%d' % i)
    for i in range(D):
        loads(i)
    for i in range(32):
        base = FR + (i % D) * 12
        e.wait(vm='k%d' % i)
        for nn in range(2):
            for st in range(3):
                a = ACC + (nn * 3 + st) * 4
                wr = (i * 2 + nn) * 4
                src = 'v[%d:%d]' % (a, a + 3) if i > 0 else '0'
                E('v_mfma_f32_16x16x32_bf16 v[%d:%d], a[%d:%d], v[%d:%d], %s' % (
                    a, a + 3, wr, wr + 3, base + 4 * st, base + 4 * st + 3, src))
        if i + D < 32:
            loads(i + D)
    stamp()
    E('v_add_u32 v12, s63, v11')
    for tl in range(6):
        E('ds_write_b128 v12, v[%d:%d] offset:%d' % (ACC + 4 * tl, ACC + 4 * tl + 3, tl * 1024))
    e.wait(lds='all')
    E('s_barrier')
    E('v_and_b32 v2, 15, v1')
    E('v_lshrrev_b32 v3, 4, v1')
    E('v_lshlrev_b32 v2, 10, v2')
    E('v_lshl_add_u32 v2, v3, 3, v2')
    E('s_mul_i32 s6, s37, 49152')
    E('s_lshl_b32 s5, s39, 5')
    E('s_add_u32 s6, s6, s5')
    def red(rnd):
        E('s_add_u32 s4, s3, %d' % (4 * rnd))
        E('s_lshl_b32 s5, s4, 10')
        E('v_add_u32 v12, s5, v11')
        E('v_add_u32 v13, 0x14000, v12')
        b0 = 96 + 32 * rnd
        E('ds_read_b128 v[%d:%d], v12' % (b0, b0 + 3), tag='r')
        E('ds_read_b128 v[%d:%d], v12 offset:40960' % (b0 + 4, b0 + 7), tag='r')
        E('ds_read_b128 v[%d:%d], v13' % (b0 + 8, b0 + 11), tag='r')
        E('ds_read_b128 v[%d:%d], v13 offset:40960' % (b0 + 12, b0 + 15), tag='r')
        E('s_cmp_ge_u32 s4, 3')
        E('s_cselect_b32 s7, 1, 0')
        E('s_mul_i32 s5, s7, 3')
        E('s_sub_u32 s5, s4, s5')
        E('s_lshl_b32 s5, s5, 14')
        E('s_lshl_b32 s7, s7, 5')
        E('s_add_u32 s5, s5, s7')
        E('s_add_u32 s5, s5, s6')
        e.wait(lds='r')
        for r in range(4):
            E('v_add_f32 v%d, v%d, v%d' % (b0 + r, b0 + r, b0 + 4 + r))
            E('v_add_f32 v%d, v%d, v%d' % (b0 + 8 + r, b0 + 8 + r, b0 + 12 + r))
        for r in range(4):
            E('v_add_f32 v%d, v%d, v%d' % (b0 + r, b0 + r, b0 + 8 + r))
        E('v_cvt_pk_bf16_f32 v%d, v%d, v%d' % (b0 + 16, b0, b0 + 1))
        E('v_cvt_pk_bf16_f32 v%d, v%d, v%d' % (b0 + 17, b0 + 2, b0 + 3))
        E('buffer_store_dwordx2 v[%d:%d], v2, s[8:11], s5 offen' % (b0 + 16, b0 + 17))
    red(0)
    E('s_cmp_ge_u32 s3, 2')
    E('s_cbranch_scc1 L_a_done')
    red(1)


def kernel_b():
    e = Emitter()
    E = e
    e.raw('.p2align 8')
    e.raw('.globl %s' % KB)
    e.raw('.type %s,@function' % KB)
    e.label(KB)
    E('s_cmp_ge_u32 s2, 256')
    E('s_cbranch_scc1 L_b_done')
    E('s_load_dwordx2 s[40:41], s[0:1], 40')
    E('s_load_dwordx2 s[42:43], s[0:1], 56')
    E('v_and_b32 v1, 63, v0')
    E('v_lshrrev_b32 v2, 6, v0')
    E('s_nop 0')
    E('v_readfirstlane_b32 s3, v2')
    E('s_and_b32 s4, s2, 7')
    E('s_lshr_b32 s5, s2, 3')
    E('s_lshr_b32 s6, s4, 1')
    E('s_lshl_b32 s6, s6, 2')
    E('s_lshr_b32 s7, s5, 3')
    E('s_add_u32 s37, s6, s7')
    E('s_and_b32 s6, s4, 1')
    E('s_lshl_b32 s6, s6, 3')
    E('s_and_b32 s7, s5, 7')
    E('s_add_u32 s38, s6, s7')
    E('v_lshlrev_b32 v11, 4, v1')
    E('s_mul_i32 s32, s37, 393216')
    E('s_mul_i32 s4, s3, 49152')
    E('s_add_u32 s32, s32, s4')
    E('s_lshl_b32 s33, s38, 18')
    E('s_lshl_b32 s4, s3, 14')
    E('s_add_u32 s33, s33, s4')
    E('s_add_u32 s33, s33, 0x%x' % WOT_OFF)
    E('s_add_u32 s34, s33, 0x20000')
    E('s_waitcnt lgkmcnt(0)')
    E('s_mov_b32 s8, s40')
    E('s_and_b32 s9, s41, 0xffff')
    E('s_mov_b32 s10, 786432')
    E('s_mov_b32 s11, 0x20000')
    E('s_mov_b32 s28, s42')
    E('s_and_b32 s29, s43, 0xffff')
    E('s_mov_b32 s30, 0x%x' % WS_SIZE)
    E('s_mov_b32 s31, 0x20000')
    D = 5
    ACC = 16
    FR = 40
    stc = [0]
    def stampb():
        if not DIAG:
            return
        i = stc[0]; stc[0] += 1
        E('s_memtime s[60:61]')
        E('s_waitcnt lgkmcnt(0)')
        E('s_lshl_b32 s58, s2, 3')
        E('s_add_u32 s58, s58, s3')
        E('s_lshl_b32 s58, s58, 8')
        E('s_add_u32 s58, s58, 0x%x' % (0xD00000 + i * 8))
        E('v_mov_b32 v143, 0')
        E('v_mov_b32 v0, s60')
        E('buffer_store_dword v0, v143, s[28:31], s58 offen', tag='stamp')
        E('v_mov_b32 v0, s61')
        E('buffer_store_dword v0, v143, s[28:31], s58 offen offset:4', tag='stamp')
    stampb()
    def loads(i):
        base = FR + (i % D) * 20
        E('s_add_u32 s5, s32, %d' % (i * 3072))
        for st in range(3):
            E('buffer_load_dwordx4 v[%d:%d], v11, s[28:31], s5 offen offset:%d' % (base + 4 * st, base + 4 * st + 3, st * 1024), tag='k%d' % i)
        E('s_add_u32 s6, s33, %d' % (i * 1024))
        E('s_add_u32 s7, s34, %d' % (i * 1024))
        E('buffer_load_dwordx4 v[%d:%d], v11, s[28:31], s6 offen' % (base + 12, base + 15), tag='k%d' % i)
        E('buffer_load_dwordx4 v[%d:%d], v11, s[28:31], s7 offen' % (base + 16, base + 19), tag='k%d' % i)
    for i in range(D):
        loads(i)
    for i in range(16):
        base = FR + (i % D) * 20
        e.wait(vm='k%d' % i)
        if i in (0, 4, 8, 12, 15):
            stampb()
        for nn in range(2):
            for st in range(3):
                a = ACC + (nn * 3 + st) * 4
                src = 'v[%d:%d]' % (a, a + 3) if i > 0 else '0'
                E('v_mfma_f32_16x16x32_bf16 v[%d:%d], v[%d:%d], v[%d:%d], %s' % (
                    a, a + 3, base + 12 + 4 * nn, base + 15 + 4 * nn, base + 4 * st, base + 4 * st + 3, src))
        if i + D < 16:
            loads(i + D)
    E('s_mul_i32 s4, s3, 6144')
    E('v_add_u32 v12, s4, v11')
    for tl in range(6):
        E('ds_write_b128 v12, v[%d:%d] offset:%d' % (ACC + 4 * tl, ACC + 4 * tl + 3, tl * 1024))
    e.wait(lds='all')
    E('s_barrier')
    E('s_cmp_ge_u32 s3, 6')
    E('s_cbranch_scc1 L_b_done')
    E('s_lshl_b32 s4, s3, 10')
    E('v_add_u32 v12, s4, v11')
    for wv in range(8):
        E('ds_read_b128 v[%d:%d], v12 offset:%d' % (FR + 4 * wv, FR + 4 * wv + 3, wv * 6144), tag='r%d' % wv)
    e.wait(lds='r1')
    for r in range(4):
        E('v_add_f32 v%d, v%d, v%d' % (16 + r, FR + r, FR + 4 + r))
    for wv in range(2, 8):
        e.wait(lds='r%d' % wv)
        for r in range(4):
            E('v_add_f32 v%d, v%d, v%d' % (16 + r, 16 + r, FR + 4 * wv + r))
    E('v_cvt_pk_bf16_f32 v20, v16, v17')
    E('v_cvt_pk_bf16_f32 v21, v18, v19')
    E('s_cmp_ge_u32 s3, 3')
    E('s_cselect_b32 s4, 1, 0')
    E('s_mul_i32 s5, s4, 3')
    E('s_sub_u32 s5, s3, s5')
    E('s_mul_i32 s6, s37, 49152')
    E('s_lshl_b32 s5, s5, 14')
    E('s_add_u32 s6, s6, s5')
    E('s_lshl_b32 s5, s38, 6')
    E('s_add_u32 s6, s6, s5')
    E('s_lshl_b32 s4, s4, 5')
    E('s_add_u32 s6, s6, s4')
    E('v_and_b32 v2, 15, v1')
    E('v_lshrrev_b32 v3, 4, v1')
    E('v_lshlrev_b32 v2, 10, v2')
    E('v_lshl_add_u32 v2, v3, 3, v2')
    E('buffer_store_dwordx2 v[20:21], v2, s[8:11], s6 offen')
    stampb()
    e.label('L_b_done')
    E('s_endpgm')
    return e


def kd(name, vgpr, accum, sgpr=72):
    return '''.p2align 6
.amdhsa_kernel %s
  .amdhsa_next_free_vgpr %d
  .amdhsa_next_free_sgpr %d
  .amdhsa_accum_offset %d
  .amdhsa_group_segment_fixed_size 0
  .amdhsa_kernarg_size 64
  .amdhsa_user_sgpr_count 2
  .amdhsa_user_sgpr_kernarg_segment_ptr 1
  .amdhsa_system_sgpr_workgroup_id_x 1
.end_amdhsa_kernel
''' % (name, vgpr, sgpr, accum)


def main():
    global DIAG
    global DIAG_ALL
    if len(sys.argv) > 2 and sys.argv[2].startswith('diag'):
        DIAG = True
        DIAG_ALL = sys.argv[2] == 'diag'
    for kv in sys.argv[3:]:
        k, v = kv.split('=', 1)
        globals()[k] = eval(v)
    ref = open('cdna_kernels/%s.s.ref' % NAME).read().splitlines()
    head = [l for l in ref if l.startswith(';') and '@launch' not in l and 'launch geometry' not in l and 'grid=ceil' not in l]
    a = kernel_a()
    b = kernel_b()
    out = '\n'.join(head) + '\n'
    out += '; @launch kernel=%s grid=(256,1,1) block=(256,1,1) lds=%d\n' % (KA, LDS_A)
    if not FUSE:
        out += '; @launch kernel=%s grid=(256,1,1) block=(512,1,1) lds=49152\n' % KB
    out += '.amdgcn_target "amdgcn-amd-amdhsa--gfx950"\n.text\n'
    out += a.text() + ('' if FUSE else b.text())
    out += '.section .rodata,"a"\n'
    out += kd(KA, 512, 256) + ('' if FUSE else kd(KB, 144, 144))
    path = sys.argv[1] if len(sys.argv) > 1 else 'cdna_kernels/%s.s' % NAME
    open(path, 'w').write(out)
    print('nops inserted: A %d  B %d; lines %d' % (a.nops_inserted, b.nops_inserted, out.count('\n')))


if __name__ == '__main__':
    main()
```

```python
import struct, sys, math
from emit import Emitter, merge, sched

NAME = 'standalone__gqa_block_cached__near_ridge'
KA = 'gqa_attn_kernel'
KB = 'gqa_oproj_kernel'

def f32bits(x):
    return struct.unpack('<I', struct.pack('<f', x))[0]

XB = 0
QB = 24576
PB = [0, 24576]
RING = 49152
RING_W = 12288
NSLOT = 3
VS = [98304, 131072, 98304, 131072]
STATS = 81920
LSTAT = 86016
WOST = 65536
LDS_A = 163840

WOT_OFF = 0x800000
WS_SIZE = 0x1000000


DIAG = False
DIAG_ALL = True
PRO0, PRO1, STEPN, SLOWCOST = 12, 8, 8, 6
KFIRST = 0
FUSE = 0
P3D = 8
TOUCH = 0
EPO = 0
BURST = 2
XDEF = 1
WQPF = 1
KORD = 1
KVPOL = ''
STPOL = ''
PVS = 16
KTF = 0
NOLOAD = 0
ROT = 0
CI, KI = 3, 0
NV_LATE = 40
NV_S = [[4, 4], [4, 4], [4, 4], [4, 4], [4, 4], [0, 0]]
def kernel_a():
    e = Emitter()
    E = e
    stampc = [0]
    def stamp(key=False):
        if not DIAG or not (DIAG_ALL or key):
            return
        i = stampc[0]; stampc[0] += 1
        E('s_memtime s[60:61]')
        E('s_waitcnt lgkmcnt(0)')
        E('s_lshl_b32 s58, s2, 2')
        E('s_add_u32 s58, s58, s3')
        E('s_lshl_b32 s58, s58, 8')
        E('s_add_u32 s58, s58, 0x%x' % (0xC00000 + i * 8))
        E('v_mov_b32 v63, 0')
        E('v_mov_b32 v0, s60')
        E('buffer_store_dword v0, v63, s[28:31], s58 offen', tag='stamp')
        E('v_mov_b32 v0, s61')
        E('buffer_store_dword v0, v63, s[28:31], s58 offen offset:4', tag='stamp')
    e.raw('.p2align 8')
    e.raw('.globl %s' % KA)
    e.raw('.type %s,@function' % KA)
    e.label(KA)
    E('s_cmp_ge_u32 s2, 256')
    E('s_cbranch_scc1 L_a_done')
    E('s_load_dwordx16 s[40:55], s[0:1], 0')
    E('v_and_b32 v1, 63, v0')
    E('v_lshrrev_b32 v2, 6, v0')
    E('s_nop 0')
    E('v_readfirstlane_b32 s3, v2')
    if FUSE:
        E('s_lshr_b32 s4, s2, 3')
        E('s_and_b32 s38, s2, 3')
        E('s_lshl_b32 s38, s38, 1')
        E('s_and_b32 s5, s4, 1')
        E('s_add_u32 s38, s38, s5')
        E('s_bfe_u32 s37, s2, 0x10002')
        E('s_lshl_b32 s37, s37, 3')
        E('s_lshr_b32 s5, s4, 2')
        E('s_add_u32 s37, s37, s5')
        E('s_bfe_u32 s4, s4, 0x10001')
    else:
        E('s_and_b32 s38, s2, 7')
        E('s_lshr_b32 s4, s2, 3')
        E('s_lshr_b32 s37, s4, 1')
        E('s_and_b32 s4, s4, 1')
    E('s_lshl_b32 s39, s38, 2')
    E('s_lshl_b32 s4, s4, 1')
    E('s_add_u32 s39, s39, s4')
    E('s_lshl_b32 s4, s37, 3')
    E('s_add_u32 s4, s4, s38')
    E('s_lshl_b32 s32, s4, 17')
    E('s_lshl_b32 s5, s3, 15')
    E('s_add_u32 s32, s32, s5')
    E('s_lshr_b32 s5, s2, 3')
    E('s_and_b32 s5, s5, 1')
    E('s_mul_i32 s5, s5, %d' % ROT)
    for kt in range(4):
        E('s_add_u32 s6, s5, %d' % kt)
        E('s_and_b32 s6, s6, 3')
        E('s_lshl_b32 s6, s6, 13')
        E('s_add_u32 s%d, s32, s6' % (64 + kt))
    E('s_mul_i32 s33, s37, 49152')
    E('s_mul_i32 s5, s3, 12288')
    E('s_add_u32 s33, s33, s5')
    E('s_lshl_b32 s34, s39, 8')
    E('s_lshl_b32 s5, s3, 7')
    E('s_add_u32 s34, s34, s5')
    E('s_mul_i32 s35, s3, %d' % RING_W)
    E('s_add_u32 s35, s35, %d' % RING)
    E('s_mov_b32 s36, 0x%08x' % f32bits(math.log2(math.e) / math.sqrt(128.0)))
    E('v_and_b32 v46, 15, v1')
    E('v_lshrrev_b32 v47, 4, v1')
    E('v_xor_b32 v2, v46, v47')
    E('v_lshlrev_b32 v2, 4, v2')
    E('v_lshl_add_u32 v2, v46, 10, v2')
    E('v_lshlrev_b32 v11, 4, v1')
    E('v_lshrrev_b32 v48, 3, v1')
    E('v_and_b32 v49, 7, v1')
    E('v_lshrrev_b32 v50, 1, v49')
    E('v_and_b32 v51, 1, v47')
    E('v_xor_b32 v50, v50, v51')
    E('v_and_b32 v52, 1, v49')
    E('v_lshlrev_b32 v52, 4, v52')
    E('v_lshl_add_u32 v53, v48, 13, v52')
    E('v_lshl_add_u32 v3, v50, 5, v53')
    E('v_xor_b32 v50, 2, v50')
    E('v_lshl_add_u32 v4, v50, 5, v53')
    E('v_add_u32 v4, 0x10000, v4')
    E('v_add_u32 v5, 0x20000, v3')
    E('v_add_u32 v6, 0x20000, v4')
    E('v_lshrrev_b32 v48, 2, v1')
    E('v_and_b32 v48, 3, v48')
    E('v_and_b32 v49, 3, v1')
    E('v_lshrrev_b32 v50, 1, v48')
    E('v_lshlrev_b32 v51, 1, v51')
    E('v_or_b32 v50, v50, v51')
    E('v_lshl_add_u32 v52, v47, 3, v48')
    E('v_lshlrev_b32 v52, 7, v52')
    E('v_lshl_add_u32 v52, v49, 3, v52')
    E('v_add_u32 v52, s35, v52')
    for t in range(4):
        E('v_xor_b32 v53, %d, v50' % t)
        E('v_lshl_add_u32 v%d, v53, 5, v52' % (7 + t))
    E('v_and_b32 v53, 31, v1')
    E('v_lshrrev_b32 v54, 5, v1')
    E('v_lshlrev_b32 v12, 4, v46')
    E('v_lshl_add_u32 v12, v47, 8, v12')
    E('v_lshlrev_b32 v55, 2, v47')
    E('v_xor_b32 v55, v55, v46')
    E('v_lshlrev_b32 v55, 4, v55')
    E('v_lshl_add_u32 v13, v47, 8, v55')
    E('v_lshl_add_u32 v55, v54, 2, v48')
    E('v_lshlrev_b32 v55, 8, v55')
    E('v_xor_b32 v56, s3, v48')
    E('v_lshl_add_u32 v55, v56, 6, v55')
    E('v_and_b32 v56, 1, v47')
    E('v_lshl_add_u32 v55, v56, 5, v55')
    E('v_lshl_add_u32 v14, v49, 3, v55')
    E('v_add_u32 v14, %d, v14' % VS[0])
    E('s_lshl_b32 s4, s3, 11')
    E('v_add_u32 v15, s4, v11')
    E('v_lshlrev_b32 v55, 4, v46')
    E('v_lshl_add_u32 v55, v54, 9, v55')
    E('v_lshl_add_u32 v55, v56, 3, v55')
    E('s_lshr_b32 s4, s3, 1')
    E('s_mul_i32 s4, s4, 3')
    E('s_and_b32 s5, s3, 1')
    E('s_lshl_b32 s5, s5, 12')
    E('s_add_u32 s5, s5, %d' % QB)
    for st in range(3):
        E('s_add_u32 s6, s4, %d' % st)
        E('s_lshr_b32 s7, s6, 1')
        E('s_lshl_b32 s7, s7, 13')
        E('s_and_b32 s6, s6, 1')
        E('s_lshl_b32 s6, s6, 8')
        E('s_add_u32 s6, s6, s7')
        E('s_add_u32 s6, s6, s5')
        E('v_add_u32 v%d, s6, v55' % (16 + st))
    E('v_lshlrev_b32 v20, 5, v53')
    E('v_lshl_add_u32 v19, v54, 2, v20')
    E('s_lshl_b32 s4, s3, 3')
    E('v_add_u32 v19, s4, v19')
    E('v_lshlrev_b32 v55, 4, v46')
    E('v_lshl_add_u32 v55, v54, 8, v55')
    for qt in range(3):
        E('v_add_u32 v57, %d, v56' % (2 * qt))
        E('v_cmp_le_u32 vcc, 3, v57')
        E('v_subrev_u32 v58, 3, v57')
        E('v_lshlrev_b32 v58, 10, v58')
        E('v_add_u32 v58, 12288, v58')
        E('v_lshlrev_b32 v57, 10, v57')
        E('v_cndmask_b32 v57, v57, v58, vcc')
        E('v_add_u32 v%d, v57, v55' % (27 + qt))
    E('s_waitcnt lgkmcnt(0)')
    def srd(d, lo, size):
        E('s_mov_b32 s%d, s%d' % (d, lo))
        E('s_and_b32 s%d, s%d, 0xffff' % (d + 1, lo + 1))
        E('s_mov_b32 s%d, 0x%x' % (d + 2, size))
        E('s_mov_b32 s%d, 0x20000' % (d + 3))
    srd(8, 40, 786432)
    srd(12, 42, 16777216)
    srd(16, 44, 16777216)
    srd(20, 46, 4194304)
    srd(24, 48, 4194304)
    srd(28, 54, WS_SIZE)

    stamp(True)
    def wqpf():
        E('s_lshr_b32 s4, s2, 3')
        E('s_lshl_b32 s4, s4, 2')
        E('s_add_u32 s4, s4, s3')
        E('s_lshl_b32 s4, s4, 15')
        if FUSE:
            E('s_and_b32 s5, s2, 3')
            E('s_lshl_b32 s5, s5, 11')
        else:
            E('s_lshl_b32 s5, s38, 10')
        E('s_add_u32 s4, s4, s5')
        E('v_lshrrev_b32 v62, 4, v1')
        E('v_lshlrev_b32 v62, 13, v62')
        E('v_and_b32 v63, 15, v1')
        E('v_lshl_add_u32 v62, v63, %d, v62' % (7 if FUSE else 6))
        E('buffer_load_dword v62, v62, s[20:23], s4 offen', tag='pf')
    if WQPF == 1:
        wqpf()
    if TOUCH:
        E('v_mov_b32 v63, 0')
        E('s_mul_i32 s4, s37, 393216')
        E('s_lshl_b32 s5, s39, 2')
        E('s_add_u32 s5, s5, s3')
        E('s_mul_i32 s5, s5, 3072')
        E('s_add_u32 s4, s4, s5')
        E('buffer_load_dword v248, v63, s[28:31], s4 offen', tag='pf')
        E('s_and_b32 s4, s2, 3')
        E('s_lshl_b32 s4, s4, 20')
        E('s_add_u32 s4, s4, 0x%x' % WOT_OFF)
        E('buffer_load_dword v249, v63, s[28:31], s4 offen', tag='pf')
        if TOUCH > 1:
            E('buffer_load_dword v250, v63, s[12:15], s64 offen', tag='pf')
            E('buffer_load_dword v251, v63, s[16:19], s64 offen', tag='pf')
            E('s_lshl_b32 s4, s2, 14')
            E('buffer_load_dword v252, v63, s[24:27], s4 offen', tag='pf')
    for n in range(KFIRST):
        E('s_add_u32 s7, s%d, %d' % (64 + n // 8, (n % 8) * 1024))
        E('buffer_load_dwordx4 a[%d:%d], v12, s[12:15], s7 offen' % (n * 4, n * 4 + 3), tag='K%d' % (n // 8))
    E('s_mul_i32 s4, s3, 12288')
    for i in range(12):
        E('s_mul_i32 s5, s3, 12')
        E('s_add_u32 s5, s5, %d' % i)
        E('s_and_b32 s5, s5, 15')
        E('s_lshl_b32 s5, s5, 4')
        E('v_xor_b32 v%d, s5, v11' % (60 + (i & 1)))
        E('s_add_u32 s5, s4, %d' % (XB + i * 1024))
        E('s_mov_b32 m0, s5')
        E('s_add_u32 s6, s33, %d' % (i * 1024))
        E('buffer_load_dwordx4 v%d, s[8:11], s6 offen lds' % (60 + (i & 1)), tag='x')

    def wq_dma(c):
        out = []
        for m in range(4):
            def f(m=m):
                E('s_add_u32 s5, s35, %d' % ((c % NSLOT) * 4096 + m * 1024))
                E('s_mov_b32 m0, s5')
                E('s_add_u32 s6, s34, %d' % (c * 262144))
                E('buffer_load_dwordx4 v%d, s[20:23], s6 offen lds' % (3 + m), tag='wq%d' % c)
            out.append(f)
        return out

    def wq_reg(c):
        if c < 8:
            return 'v', 168 + (c - 3) * 16
        return 'a', 128 + (c - 8) * 16

    def wq_load(c):
        out = []
        fl, r = wq_reg(c)
        for m in range(4):
            def f(m=m):
                E('s_add_u32 s6, s34, %d' % (c * 262144))
                E('buffer_load_dwordx4 %s[%d:%d], v%d, s[20:23], s6 offen' % (fl, r + 4 * m, r + 4 * m + 3, 3 + m), tag='wq%d' % c)
            out.append(f)
        return out

    def wq_write(c):
        out = []
        fl, r = wq_reg(c)
        out.append(lambda: e.wait(vm='wq%d' % c))
        for m in range(4):
            out.append(lambda m=m: E('ds_write_b128 v59, %s[%d:%d] offset:%d' % (fl, r + 4 * m, r + 4 * m + 3, (c % NSLOT) * 4096 + m * 1024)))
        return out

    ACC = 64
    AF = [112, 128]
    BF = [144, 156]

    def p1_reads(c):
        out = []
        bu = c & 1
        sl = c % NSLOT
        out.append(lambda: E('v_xor_b32 v%d, %d, v2' % (60 + bu, c * 64)))
        for st in range(3):
            out.append(lambda st=st: E('ds_read_b128 v[%d:%d], v%d offset:%d' % (BF[bu] + 4 * st, BF[bu] + 4 * st + 3, 60 + bu, XB + st * 16384), tag='p1r%d' % c))
        for t in range(4):
            for hh in range(2):
                out.append(lambda t=t, hh=hh: E('ds_read_b64_tr_b16 v[%d:%d], v%d offset:%d' % (
                    AF[bu] + 4 * t + 2 * hh, AF[bu] + 4 * t + 2 * hh + 1, 7 + t, sl * 4096 + hh * 512), tag='p1r%d' % c))
        return out

    def kload(n):
        def f():
            E('s_add_u32 s7, s%d, %d' % (64 + n // 8, (n % 8) * 1024))
            E('buffer_load_dwordx4 a[%d:%d], v12, s[12:15], s7 offen%s' % (n * 4, n * 4 + 3, KVPOL), tag='K%d' % (n // 8))
        return f

    def v_chunk(t):
        out = []
        for mm in range(8):
            def f(mm=mm):
                E('s_lshl_b32 s5, s3, 13')
                E('s_add_u32 s5, s5, %d' % (VS[t] + mm * 1024))
                E('s_mov_b32 m0, s5')
                E('s_add_u32 s6, s%d, %d' % (64 + t, mm * 1024))
                E('buffer_load_dwordx4 v13, s[16:19], s6 offen%s lds' % KVPOL, tag='V%d' % t)
            out.append(f)
        return out

    def v_regs(t):
        out = []
        for mm in range(8):
            def f(mm=mm):
                r = 192 + (t - 2) * 32 + mm * 4
                E('s_add_u32 s6, s%d, %d' % (64 + t, mm * 1024))
                E('buffer_load_dwordx4 v[%d:%d], v12, s[16:19], s6 offen%s' % (r, r + 3, KVPOL), tag='V%d' % t)
            out.append(f)
        return out
    E('v_add_u32 v59, s35, v11')
    def wo_early():
        out = []
        def pre():
            E('s_lshr_b32 s4, s2, 2')
            E('s_lshl_b32 s4, s4, 16')
            E('s_and_b32 s5, s2, 3')
            E('s_lshl_b32 s5, s5, 8')
            E('s_add_u32 s4, s4, s5')
            E('s_lshl_b32 s5, s3, 14')
            E('s_add_u32 s56, s4, s5')
            E('v_lshrrev_b32 v248, 4, v1')
            E('v_and_b32 v249, 15, v1')
            E('v_lshlrev_b32 v248, 10, v248')
            E('v_lshl_add_u32 v248, v249, 4, v248')
            E('buffer_load_dwordx4 a[96:99], v248, s[24:27], s56 offen', tag='WO')
        out.append(pre)
        for m in range(1, 4):
            def f(m=m):
                E('s_add_u32 s6, s56, %d' % (m * 4096))
                E('buffer_load_dwordx4 a[%d:%d], v248, s[24:27], s6 offen' % (96 + 4 * m, 99 + 4 * m), tag='WO')
            out.append(f)
        return out
    seq = []
    if KORD:
        slow = [kload(n) for n in range(KFIRST, 32)] + v_chunk(0) + v_chunk(1) + v_regs(2) + v_regs(3)
    else:
        slow = [kload(n) for n in range(KFIRST, 16)] + v_chunk(0) + v_chunk(1) + [kload(n) for n in range(16, 32)] + v_regs(2) + v_regs(3)
    for c in range(3):
        seq += wq_dma(c)
    for c in range(3, 16):
        seq += wq_load(c)
        if c >= CI:
            seq += slow[:KI]
            slow = slow[KI:]
    if FUSE > 1:
        seq += wo_early()
    nfast = len(seq)
    seq += slow
    LEFT = {'K0': 56, 'K1': 48, 'V0': 40, 'V1': 32, 'K2': 24, 'K3': 16, 'V2': 8, 'V3': 0}
    if KORD:
        LEFT = {'K0': 56, 'K1': 48, 'K2': 40, 'K3': 32, 'V0': 24, 'V1': 16, 'V2': 8, 'V3': 0}
    def vwait(tag):
        nf = 0
        while len(seq) > LEFT[tag]:
            issue(SLOWCOST); nf += 1
        if nf:
            print('forced issue of %d loads for %s' % (nf, tag))
        e.wait(vm=tag)
    issued = [0]
    def issue(maxn=1000):
        n = 0
        while seq and len(e.vmq) < 62 and n < maxn:
            seq.pop(0)()
            n += 1 if issued[0] < nfast else SLOWCOST
            issued[0] += 1
    stamp()
    issue(PRO0)
    if WQPF == 2:
        wqpf()
    stamp()
    e.wait(vm='wq0')
    stamp()
    E('s_barrier')
    stamp()
    issue(PRO1)
    for f in p1_reads(0):
        f()
    for c in range(16):
        bu = c & 1
        e.wait(lds='p1r%d' % c)
        if c in (2, 4, 6, 8, 12):
            stamp()
        rd = []
        if c + 1 < 16:
            if c + 1 < 3:
                rd.append(lambda c=c: e.wait(vm='wq%d' % (c + 1)))
            rd += p1_reads(c + 1)
        rd2 = []
        if 3 <= c + 2 < 16:
            rd2 = wq_write(c + 2)
        rd2.append(lambda: issue(STEPN))
        if FUSE > 1 and c == 14:
            def stg0():
                e.wait(vm='WO')
                E('s_lshl_b32 s4, s3, 12')
                E('s_add_u32 s4, s4, %d' % VS[1])
                E('v_add_u32 v250, s4, v13')
                for m in range(4):
                    E('ds_write_b128 v250, a[%d:%d] offset:%d' % (96 + 4 * m, 99 + 4 * m, m * 1024))
            rd2.append(stg0)
        mf = []
        for nt in range(4):
            for st in range(3):
                a = ACC + (nt * 3 + st) * 4
                src = 'v[%d:%d]' % (a, a + 3) if c > 0 else '0'
                mf.append(lambda a=a, nt=nt, st=st, src=src: E('v_mfma_f32_16x16x32_bf16 v[%d:%d], v[%d:%d], v[%d:%d], %s' % (
                    a, a + 3, AF[bu] + 4 * nt, AF[bu] + 4 * nt + 3, BF[bu] + 4 * st, BF[bu] + 4 * st + 3, src)))
        for f in merge(mf[:6], rd) + merge(mf[6:], rd2):
            f()
    for nt in range(4):
        for st in range(3):
            a = ACC + (nt * 3 + st) * 4
            E('v_cvt_pk_bf16_f32 v%d, v%d, v%d' % (a, a, a + 1))
            E('v_cvt_pk_bf16_f32 v%d, v%d, v%d' % (a + 1, a + 2, a + 3))
    if FUSE > 1:
        e.wait(lds='all')
    stamp(True)
    E('s_barrier')
    for nt in range(4):
        for st in range(3):
            a = ACC + (nt * 3 + st) * 4
            E('ds_write_b64 v%d, v[%d:%d] offset:%d' % (16 + st, a, a + 1, nt * 1024))

    if FUSE > 1:
        E('v_lshrrev_b32 v46, 4, v1')
        E('v_lshrrev_b32 v47, 2, v1')
        E('v_and_b32 v47, 3, v47')
        E('v_and_b32 v48, 3, v1')
        E('v_lshl_add_u32 v49, v46, 3, v47')
        E('v_lshlrev_b32 v49, 8, v49')
        E('v_xor_b32 v50, s3, v47')
        E('v_lshl_add_u32 v49, v50, 6, v49')
        E('v_lshl_add_u32 v49, v48, 3, v49')
        E('v_add_u32 v49, 0x%x, v49' % VS[1])
        for kk in range(2):
            for nn in range(2):
                for hh in range(2):
                    r = 30 + (kk * 2 + nn) * 4 + 2 * hh
                    E('ds_read_b64_tr_b16 v[%d:%d], v49 offset:%d' % (r, r + 1, (32 * kk + 4 * hh) * 256 + nn * 32), tag='wt')
        E('s_and_b32 s4, s2, 3')
        E('s_lshl_b32 s4, s4, 3')
        E('s_lshl_b32 s5, s3, 1')
        E('s_add_u32 s4, s4, s5')
        E('s_lshl_b32 s4, s4, 17')
        E('s_lshr_b32 s5, s2, 2')
        E('s_lshl_b32 s5, s5, 11')
        E('s_add_u32 s4, s4, s5')
        E('s_add_u32 s62, s4, 0x%x' % WOT_OFF)
        E('s_add_u32 s63, s62, 0x20000')
        E('s_mov_b32 s20, s52')
        E('s_and_b32 s21, s53, 0xffff')
        E('s_mov_b32 s22, 256')
        E('s_mov_b32 s23, 0x20000')
    while len(seq) > NV_LATE:
        issue(SLOWCOST)
    if NOLOAD:
        del seq[:]
    e.wait(lds='all')
    if FUSE > 1:
        for kk in range(2):
            for nn in range(2):
                r = 30 + (kk * 2 + nn) * 4
                E('buffer_store_dwordx4 v[%d:%d], v11, s[28:31], s%d offen offset:%d sc1' % (r, r + 3, 62 + nn, kk * 1024), tag='wst')
    E('s_barrier')
    QF = 128
    for qt in range(3):
        for ks in range(8):
            r = QF + (qt * 8 + ks) * 4
            E('ds_read_b128 a[%d:%d], v11 offset:%d' % (r, r + 3, QB + (qt * 8 + ks) * 1024), tag='Q')
    E('s_lshl_b32 s4, s3, 13')
    E('s_add_u32 s4, s4, 0xC000')
    E('v_and_b32 v46, 15, v1')
    E('v_lshrrev_b32 v47, 4, v1')
    E('v_xor_b32 v48, v46, v47')
    for jj in range(4):
        E('v_xor_b32 v49, %d, v48' % (4 * jj))
        E('v_lshlrev_b32 v49, 4, v49')
        E('v_lshl_add_u32 v49, v47, 8, v49')
        E('v_add_u32 v%d, s4, v49' % (6 + jj))
    E('v_and_b32 v46, 31, v1')
    E('v_lshrrev_b32 v47, 5, v1')
    E('v_and_b32 v48, 15, v1')
    E('v_xor_b32 v48, v48, v47')
    E('v_lshlrev_b32 v48, 4, v48')
    E('v_lshl_add_u32 v48, v46, 8, v48')
    E('v_add_u32 v54, s4, v48')
    E('v_add_u32 v60, 0x%x, v19' % STATS)
    E('v_add_u32 v61, 0x%x, v20' % STATS)
    def ktr(kt):
        w_ = lambda: vwait('K%d' % kt)
        w_.cost = 0
        out = [w_]
        for m in range(8):
            r = (kt * 8 + m) * 4
            out.append(lambda m=m, r=r: E('ds_write_b128 v%d, a[%d:%d] offset:%d' % (6 + (m & 3), r, r + 3, m * 1024)))
        for ks in range(8):
            r = (kt * 8 + ks) * 4
            def f(ks=ks, r=r):
                E('v_xor_b32 v%d, %d, v54' % (55 + (ks & 1), ks * 32))
                E('ds_read_b128 a[%d:%d], v%d' % (r, r + 3, 55 + (ks & 1)), tag='kt%d' % kt)
            out.append(f)
        return out
    SB = [64, 128]
    MX = 62
    def sreg(u, kt):
        return SB[u & 1] + (kt & 1) * 16
    def max_ops(u, kt):
        out = []
        for i in range(8):
            s_ = sreg(u, kt) + 2 * i
            if (kt & 1) == 0 and i == 0:
                out.append(lambda s_=s_: E('v_max_f32 v%d, v%d, v%d' % (MX, s_, s_ + 1)))
            else:
                out.append(lambda s_=s_: E('v_max3_f32 v%d, v%d, v%d, v%d' % (MX, s_, s_ + 1, MX)))
        return out
    def s_mf(u, kt):
        q = u % 3
        mf = []
        for ks in range(8):
            s_ = sreg(u, kt)
            src = 'v[%d:%d]' % (s_, s_ + 15) if ks > 0 else '0'
            kr = (kt * 8 + ks) * 4
            qr = QF + (q * 8 + ks) * 4
            mf.append(lambda s_=s_, kr=kr, qr=qr, src=src: E('v_mfma_f32_32x32x16_bf16 v[%d:%d], a[%d:%d], a[%d:%d], %s' % (
                s_, s_ + 15, kr, kr + 3, qr, qr + 3, src)))
        return mf
    PK = [30, 34, 38, 42]
    pkc = [0]
    OA = [0, 64]
    PSL = {(0, 0): 0, (0, 1): 8192, (1, 0): 16384, (1, 1): 24576, (2, 0): 32768, (2, 1): 40960,
           (0, 2): 49152, (0, 3): 57344, (1, 2): 0, (1, 3): 16384, (2, 2): 32768, (2, 3): 8192}
    def exp_ops(u, kt):
        q = u % 3
        out = []
        s0 = sreg(u, kt)
        for hf in range(2):
            pk = PK[pkc[0] % 4]; pkc[0] += 1
            regs = [s0 + 8 * hf + i for i in range(8)]
            for r in regs:
                out.append(lambda r=r: E('v_fma_f32 v%d, v%d, s36, -v%d' % (r, r, 21 + q)))
            for r in regs:
                out.append(lambda r=r: E('v_exp_f32 v%d, v%d' % (r, r)))
            for k, r in enumerate(regs):
                if kt == 0 and hf == 0 and k == 0:
                    out.append(lambda r=r: E('v_add_f32 v%d, v%d, v%d' % (24 + q, r, r + 1)))
                elif kt == 0 and hf == 0 and k == 1:
                    pass
                else:
                    out.append(lambda r=r: E('v_add_f32 v%d, v%d, v%d' % (24 + q, r, 24 + q)))
                if k & 1:
                    out.append(lambda r=r, pk=pk, k=k: E('v_cvt_pk_bf16_f32 v%d, v%d, v%d' % (pk + k // 2, r - 1, r)))
            off = PSL[(q, kt)] + hf * 1024
            out.append(lambda pk=pk, off=off: E('ds_write_b128 v15, v[%d:%d] offset:%d' % (pk, pk + 3, off)))
        return out
    def exchange(u):
        h, q = u // 3, u % 3
        E('ds_write_b32 v60, v%d offset:%d' % (MX, q * 1024))
        e.wait(lds='all')
        stamp()
        E('s_barrier')
        E('ds_read_b128 v[46:49], v61 offset:%d' % (q * 1024), tag='st')
        E('ds_read_b128 v[50:53], v61 offset:%d' % (q * 1024 + 16), tag='st')
        out = [lambda: e.wait(lds='st')]
        ops = ['v_max3_f32 v46, v46, v47, v48', 'v_max3_f32 v50, v50, v51, v52', 'v_max3_f32 v46, v46, v49, v53', 'v_max_f32 v46, v46, v50']
        if h == 0:
            ops += ['v_mul_f32 v%d, s36, v46' % (21 + q)]
        else:
            ops += ['v_mul_f32 v46, s36, v46', 'v_max_f32 v46, v46, v%d' % (21 + q), 'v_sub_f32 v47, v%d, v46' % (21 + q),
                    'v_exp_f32 v%d, v47' % (57 + q), 'v_mov_b32 v%d, v46' % (21 + q), 'v_mul_f32 v%d, v%d, v%d' % (24 + q, 24 + q, 57 + q)]
        out += [(lambda o=o: E(o)) for o in ops]
        if not XDEF:
            for f in out:
                f()
            out = []
        return out

    PB4 = [96, 112, 160, 176]
    pvc = [0]
    def C(cost, fn):
        fn.cost = cost
        return fn
    def pv_anchors(lst):
        steps = []
        for (t, qs, first) in lst:
            for n in range(8):
                steps.append((t, qs, first, n))
        base = pvc[0]
        pvc[0] += len(steps)
        def reads(i):
            t, qs, first, n = steps[i]
            u, hf = n // 2, n % 2
            b = PB4[(base + i) & 3]
            vb = 14 if (t & 1) == 0 else 10
            tag = 'pv%d' % (base + i)
            out = []
            for ee in range(2):
                out.append(lambda ee=ee: E('ds_read_b64_tr_b16 v[%d:%d], v%d offset:%d' % (
                    b + 2 * ee, b + 2 * ee + 1, vb, (32 * u + 16 * hf + 8 * ee) * 256), tag=tag))
            for qt in qs:
                off = PSL[(qt, t)] + u * 2048 + hf * 1024
                out.append(lambda qt=qt, off=off: E('ds_read_b128 v[%d:%d], v11 offset:%d' % (
                    b + 4 + 4 * qt, b + 7 + 4 * qt, off), tag=tag))
            return out
        pro = reads(0) + reads(1)
        anc = []
        for i, (t, qs, first, n) in enumerate(steps):
            b = PB4[(base + i) & 3]
            rd = reads(i + 2) if i + 2 < len(steps) else []
            k = len(qs)
            for x, qt in enumerate(qs):
                o = OA[t >> 1] + 16 * qt
                src = '0' if (first and n == 0) else 'a[%d:%d]' % (o, o + 15)
                fn = (lambda o=o, b=b, qt=qt, src=src: E('v_mfma_f32_32x32x16_bf16 a[%d:%d], v[%d:%d], v[%d:%d], %s' % (
                    o, o + 15, b, b + 3, b + 4 + 4 * qt, b + 7 + 4 * qt, src)))
                pre = [lambda i=i: e.wait(lds='pv%d' % (base + i))] if x == 0 else []
                post = rd[len(rd) * x // k: len(rd) * (x + 1) // k]
                anc.append((pre, fn, post))
        return pro, anc

    WOR = 240
    def wo_loads():
        out = []
        def pre():
            E('s_lshr_b32 s4, s2, 2')
            E('s_lshl_b32 s4, s4, 16')
            E('s_and_b32 s5, s2, 3')
            E('s_lshl_b32 s5, s5, 8')
            E('s_add_u32 s4, s4, s5')
            E('s_lshl_b32 s5, s3, 14')
            E('s_add_u32 s56, s4, s5')
            E('v_lshrrev_b32 v3, 4, v1')
            E('v_and_b32 v4, 15, v1')
            E('v_lshlrev_b32 v3, 10, v3')
            E('v_lshl_add_u32 v3, v4, 4, v3')
        out.append(pre)
        for m in range(4):
            def f(m=m):
                E('s_add_u32 s6, s56, %d' % (m * 4096))
                E('buffer_load_dwordx4 a[%d:%d], v3, s[24:27], s6 offen' % (WOR + 4 * m, WOR + 4 * m + 3), tag='WO')
            out.append(f)
        return out
    def v_store(t):
        out = [C(0, lambda: vwait('V%d' % t))]
        def pre():
            E('s_lshl_b32 s4, s3, 13')
            E('s_add_u32 s4, s4, %d' % VS[t])
            E('v_add_u32 v55, s4, v13')
        out.append(pre)
        for mm in range(8):
            r = 192 + (t - 2) * 32 + mm * 4
            out.append(lambda r=r, mm=mm: E('ds_write_b128 v55, v[%d:%d] offset:%d' % (r, r + 3, mm * 1024)))
        return out
    def iss(n):
        return [C(20, lambda: issue(SLOWCOST))] * n

    E('v_add_u32 v10, 0x%x, v14' % (VS[1] - VS[0]))
    for f in ktr(0):
        f()
    e.wait(lds='kt0')
    stamp()
    xpost = []
    for u in range(6):
        h, q = u // 3, u % 3
        t0, t1 = 2 * h, 2 * h + 1
        sa = [([], f, []) for f in s_mf(u, t0)] + [([], f, []) for f in s_mf(u, t1)]
        if q == 0:
            sa[8] = ([lambda t1=t1: e.wait(lds='kt%d' % t1)], sa[8][1], [])
        pro = []
        if u in (4, 5):
            pro, pa = pv_anchors([(u - 4, (0, 1, 2), u == 4)])
            anc = sa[:2] + merge(sa[2:], pa[:PVS]) + pa[PVS:]
        else:
            anc = sa
        i7 = [k for k, a in enumerate(anc) if a[1] is sa[7][1]][0]
        i15 = [k for k, a in enumerate(anc) if a[1] is sa[15][1]][0]
        s0, s1 = [], []
        if u > 0:
            pu = u - 1
            s0 = exp_ops(pu, 2 * (pu // 3))
            s1 = exp_ops(pu, 2 * (pu // 3) + 1)
        if q == 0:
            s0 = ktr(t1) + s0 if KTF else merge(s0, ktr(t1))
        if u == 2:
            s1 = merge(s1, ktr(2))
        if u == 5:
            s1 = merge(s1, v_store(2))
        if u == 4 and not FUSE:
            s1 = merge(s1, wo_loads())
        s0 = xpost + merge(s0, iss(NV_S[u][0]))
        s1 = merge(s1, iss(NV_S[u][1]))
        cons = [(i7 + 1, f) for f in max_ops(u, t0)] + [(i15 + 1, f) for f in max_ops(u, t1)]
        if FUSE > 1 and u == 4:
            E('s_and_b32 s4, s2, 3')
            E('s_lshl_b32 s4, s4, 2')
            E('s_add_u32 s4, s4, 64')
            E('v_mov_b32 v4, 1')
            E('v_mov_b32 v3, 0')
            E('s_cmp_eq_u32 s3, 0')
            E('s_cselect_b32 s58, 1, 0')
            E('s_mov_b32 s59, 0')
            E('s_mov_b64 exec, s[58:59]')
            E('buffer_atomic_add v4, v3, s[20:23], s4 offen sc1')
            E('s_mov_b64 exec, -1')
        for f in pro:
            f()
        if q == 0:
            sched(e, anc[:8], s0, burst=BURST if u else 0)
            sched(e, anc[8:], s1, [(m - 8, f) for m, f in cons])
        else:
            sched(e, anc, s0 + s1, cons, burst=BURST)
        if u == 3:
            vwait('V0')
        if u == 4:
            vwait('V1')
        xpost = exchange(u)
        if u == 2:
            stamp(True)
    tail = exp_ops(5, 2) + exp_ops(5, 3)
    tail = xpost + merge(tail, v_store(3))
    for qt in range(3):
        tail.append(lambda qt=qt: E('ds_write_b32 v60, v%d offset:%d' % (24 + qt, LSTAT - STATS + qt * 1024)))
    def stg():
        e.wait(vm='WO')
        E('s_lshl_b32 s4, s3, 12')
        E('s_add_u32 s4, s4, %d' % WOST)
        E('v_add_u32 v56, s4, v13')
        for m in range(4):
            E('ds_write_b128 v56, a[%d:%d] offset:%d' % (WOR + 4 * m, WOR + 4 * m + 3, m * 1024))
    if not FUSE:
        tail.append(stg)
    if FUSE > 1:
        E('s_lshr_b32 s4, s39, 3')
        E('s_lshl_b32 s4, s4, 2')
        E('s_add_u32 s4, s4, 64')
        E('buffer_load_dword v5, v3, s[20:23], s4 offen sc0 sc1', tag='rdy')
    pro, pa = pv_anchors([(2, (0, 1), True)])
    for f in pro:
        f()
    sched(e, pa, tail, lead=100)
    e.wait(lds='all')
    stamp()
    E('s_barrier')
    stamp(True)
    b = []
    TB = [64, 80, 128]
    for qt in range(3):
        def ls(qt=qt):
            E('ds_read_b128 v[46:49], v61 offset:%d' % (LSTAT - STATS + qt * 1024), tag='ls%d' % qt)
            E('ds_read_b128 v[50:53], v61 offset:%d' % (LSTAT - STATS + qt * 1024 + 16), tag='ls%d' % qt)
            e.wait(lds='ls%d' % qt)
            E('v_add_f32 v46, v46, v47')
            E('v_add_f32 v48, v48, v49')
            E('v_add_f32 v50, v50, v51')
            E('v_add_f32 v52, v52, v53')
            E('v_add_f32 v46, v46, v48')
            E('v_add_f32 v50, v50, v52')
            E('v_add_f32 v46, v46, v50')
            E('v_rcp_f32 v%d, v46' % (24 + qt))
            E('v_mul_f32 v%d, v%d, v%d' % (57 + qt, 57 + qt, 24 + qt))
        b.append(ls)
        for r in range(16):
            def f(qt=qt, r=r):
                E('v_accvgpr_read_b32 v%d, a%d' % (TB[qt] + r, OA[0] + 16 * qt + r))
                E('v_mul_f32 v%d, v%d, v%d' % (TB[qt] + r, TB[qt] + r, 57 + qt))
            b.append(f)
    def wt_addr():
        E('v_lshrrev_b32 v46, 4, v1')
        E('v_lshrrev_b32 v47, 2, v1')
        E('v_and_b32 v47, 3, v47')
        E('v_and_b32 v48, 3, v1')
        E('v_lshl_add_u32 v49, v46, 3, v47')
        E('v_lshlrev_b32 v49, 8, v49')
        E('v_xor_b32 v50, s3, v47')
        E('v_lshl_add_u32 v49, v50, 6, v49')
        E('v_lshl_add_u32 v49, v48, 3, v49')
        E('v_add_u32 v49, 0x%x, v49' % WOST)
        for kk in range(2):
            for nn in range(2):
                for hh in range(2):
                    r = 30 + (kk * 2 + nn) * 4 + 2 * hh
                    E('ds_read_b64_tr_b16 v[%d:%d], v49 offset:%d' % (r, r + 1, (32 * kk + 4 * hh) * 256 + nn * 32), tag='wt')
    if not FUSE:
        b.append(wt_addr)
    def epi(qt):
        out = []
        T = TB[qt]
        U = 192 + (qt & 1) * 16
        for r in range(16):
            out.append(lambda r=r: E('v_accvgpr_read_b32 v%d, a%d' % (U + r, OA[1] + 16 * qt + r)))
        for r in range(16):
            out.append(lambda r=r: E('v_fma_f32 v%d, v%d, v%d, v%d' % (T + r, U + r, 24 + qt, T + r)))
        for k in range(8):
            out.append(lambda k=k: E('v_cvt_pk_bf16_f32 v%d, v%d, v%d' % (T + k, T + 2 * k, T + 2 * k + 1)))
        for k in (0, 2):
            def f(k=k):
                E('v_permlane32_swap_b32 v%d, v%d' % (T + 2 * k, T + 2 * k + 2))
                E('v_permlane32_swap_b32 v%d, v%d' % (T + 2 * k + 1, T + 2 * k + 3))
                E('buffer_store_dwordx4 v[%d:%d], v%d, s[28:31], s57 offen offset:%d%s' % (T + 2 * k, T + 2 * k + 3, 27 + qt, k * 256, STPOL))
            out.append(f)
        return out
    E('s_mul_i32 s4, s37, 393216')
    E('s_lshl_b32 s5, s39, 2')
    E('s_add_u32 s5, s5, s3')
    E('s_mul_i32 s5, s5, 3072')
    E('s_add_u32 s57, s4, s5')
    if EPO:
        pro, pa = pv_anchors([(3, (0, 1), False), (2, (2,), True), (3, (2,), False)])
        for f in pro:
            f()
        sched(e, pa[:16], b, lead=60)
        sched(e, pa[16:], epi(0) + epi(1), burst=1)
        stamp()
        for f in epi(2):
            f()
    else:
        pro, pa = pv_anchors([(2, (2,), True), (3, (0, 1, 2), False)])
        for f in pro:
            f()
        sched(e, pa, b, lead=60)
        stamp()
        for qt in range(3):
            for f in epi(qt):
                f()
    if FUSE:
        phase3(e, stamp)
    else:
        E('s_and_b32 s4, s2, 3')
        E('s_lshl_b32 s4, s4, 3')
        E('s_lshl_b32 s5, s3, 1')
        E('s_add_u32 s4, s4, s5')
        E('s_lshl_b32 s4, s4, 17')
        E('s_lshr_b32 s5, s2, 2')
        E('s_lshl_b32 s5, s5, 11')
        E('s_add_u32 s4, s4, s5')
        E('s_add_u32 s4, s4, 0x%x' % WOT_OFF)
        E('s_add_u32 s5, s4, 0x20000')
        e.wait(lds='wt')
        for kk in range(2):
            for nn in range(2):
                r = 30 + (kk * 2 + nn) * 4
                E('buffer_store_dwordx4 v[%d:%d], v11, s[28:31], s%d offen offset:%d%s' % (r, r + 3, 4 + nn, kk * 1024, STPOL))
    stamp(True)
    e.label('L_a_done')
    E('s_endpgm')
    return e


def phase3(e, stamp):
    E = e
    E('s_mov_b32 s20, s52')
    E('s_and_b32 s21, s53, 0xffff')
    E('s_mov_b32 s22, 256')
    E('s_mov_b32 s23, 0x20000')
    E('s_mov_b32 s8, s50')
    E('s_and_b32 s9, s51, 0xffff')
    E('s_mov_b32 s10, 786432')
    E('s_mov_b32 s11, 0x20000')
    E('s_lshl_b32 s62, s37, 2')
    E('s_mul_i32 s63, s3, 40960')
    E('v_mov_b32 v2, 1')
    E('v_mov_b32 v3, 0')
    E('s_cmp_eq_u32 s3, 0')
    E('s_cselect_b32 s58, 1, 0')
    E('s_mov_b32 s59, 0')
    def pub():
        E('s_barrier')
        E('s_mov_b64 exec, s[58:59]')
        E('buffer_atomic_add v2, v3, s[20:23], s62 offen sc1')
        E('s_mov_b64 exec, -1')
    if FUSE > 1:
        e.wait(vm='rdy')
        E('v_readfirstlane_b32 s4, v5')
        E('s_cmp_ge_u32 s4, 64')
        E('s_cbranch_scc0 L_slow')
        q0 = list(e.vmq)
        E('s_lshl_b32 s56, s39, 17')
        E('s_lshl_b32 s5, s3, 15')
        E('s_add_u32 s56, s56, s5')
        E('s_add_u32 s56, s56, 0x%x' % WOT_OFF)
        E('s_add_u32 s57, s56, 0x20000')
        for n in range(64):
            i, nn = n // 2, n % 2
            if n == 40:
                e.wait(vm=q0[-1], lds='all')
                pub()
            if n == 60:
                e.wait(vm='wf3')
            E('buffer_load_dwordx4 a[%d:%d], v11, s[28:31], s%d offen offset:%d' % (n * 4, n * 4 + 3, 56 + nn, (i % 4) * 1024), tag='wf%d' % n)
            if n % 8 == 7:
                E('s_add_u32 s56, s56, 4096')
                E('s_add_u32 s57, s57, 4096')
        E('s_branch L_join')
        e.label('L_slow')
        e.vmq = q0
    e.wait(vm='all', lds='all')
    pub()
    e.vmq = []
    stamp()
    E('v_lshrrev_b32 v4, 2, v1')
    E('v_lshrrev_b32 v5, 5, v1')
    E('v_lshlrev_b32 v5, 1, v5')
    E('v_and_b32 v6, 3, v1')
    E('v_xor_b32 v5, v5, v6')
    E('v_lshlrev_b32 v5, 4, v5')
    E('v_lshl_add_u32 v4, v4, 10, v5')
    E('s_lshl_b32 s56, s3, 20')
    E('s_lshl_b32 s5, s39, 5')
    E('s_add_u32 s56, s56, s5')
    E('v_lshrrev_b32 v46, 4, v1')
    E('v_lshrrev_b32 v47, 2, v1')
    E('v_and_b32 v47, 3, v47')
    E('v_lshl_add_u32 v48, v46, 3, v47')
    E('v_lshlrev_b32 v48, 6, v48')
    E('v_lshl_add_u32 v48, v6, 3, v48')
    E('v_and_b32 v46, 1, v46')
    E('v_lshl_add_u32 v48, v46, 5, v48')
    E('v_add_u32 v7, s63, v48')
    E('v_xor_b32 v8, 32, v7')
    def dma(step, slot):
        for k in range(2):
            E('s_add_u32 s5, s63, %d' % (slot * 2048 + k * 1024))
            E('s_mov_b32 m0, s5')
            E('s_add_u32 s6, s56, %d' % ((step * 2 + k) * 16384))
            E('buffer_load_dwordx4 v4, s[24:27], s6 offen lds', tag='w%d' % step)
    def trd(step, slot):
        for nt in range(2):
            for hh in range(2):
                r = (step * 2 + nt) * 4 + 2 * hh
                E('ds_read_b64_tr_b16 a[%d:%d], v%d offset:%d' % (r, r + 1, 7 + nt, slot * 2048 + hh * 256), tag='t%d' % step)
    for st in range(20):
        dma(st, st)
    for st in range(32):
        e.wait(vm='w%d' % st)
        trd(st, st % 20)
        if st == 12:
            e.wait(lds='t11')
            for s2_ in range(20, 32):
                dma(s2_, s2_ - 20)
    stamp()
    e.wait(vm='all', lds='all')
    e.label('L_join')
    E('s_mov_b32 s7, 0')
    e.label('L_poll')
    E('buffer_load_dword v2, v3, s[20:23], s62 offen sc0 sc1')
    E('s_waitcnt vmcnt(0)')
    E('v_readfirstlane_b32 s4, v2')
    E('s_cmp_ge_u32 s4, 16')
    E('s_cbranch_scc1 L_go')
    E('s_sleep 4')
    E('s_add_u32 s7, s7, 1')
    E('s_cmp_lt_u32 s7, 0x10000')
    E('s_cbranch_scc1 L_poll')
    e.label('L_go')
    e.vmq = []
    stamp()
    E('s_mul_i32 s32, s37, 393216')
    E('s_mul_i32 s4, s3, 98304')
    E('s_add_u32 s32, s32, s4')
    D = P3D
    ACC = 64
    FR = 96
    def loads(i):
        base = FR + (i % D) * 12
        E('s_add_u32 s5, s32, %d' % (i * 3072))
        for st in range(3):
            E('buffer_load_dwordx4 v[%d:%d], v11, s[28:31], s5 offen offset:%d' % (base + 4 * st, base + 4 * st + 3, st * 1024), tag='k%d' % i)
    for i in range(D):
        loads(i)
    for i in range(32):
        base = FR + (i % D) * 12
        e.wait(vm='k%d' % i)
        for nn in range(2):
            for st in range(3):
                a = ACC + (nn * 3 + st) * 4
                wr = (i * 2 + nn) * 4
                src = 'v[%d:%d]' % (a, a + 3) if i > 0 else '0'
                E('v_mfma_f32_16x16x32_bf16 v[%d:%d], a[%d:%d], v[%d:%d], %s' % (
                    a, a + 3, wr, wr + 3, base + 4 * st, base + 4 * st + 3, src))
        if i + D < 32:
            loads(i + D)
    stamp()
    E('v_add_u32 v12, s63, v11')
    for tl in range(6):
        E('ds_write_b128 v12, v[%d:%d] offset:%d' % (ACC + 4 * tl, ACC + 4 * tl + 3, tl * 1024))
    e.wait(lds='all')
    E('s_barrier')
    E('v_and_b32 v2, 15, v1')
    E('v_lshrrev_b32 v3, 4, v1')
    E('v_lshlrev_b32 v2, 10, v2')
    E('v_lshl_add_u32 v2, v3, 3, v2')
    E('s_mul_i32 s6, s37, 49152')
    E('s_lshl_b32 s5, s39, 5')
    E('s_add_u32 s6, s6, s5')
    def red(rnd):
        E('s_add_u32 s4, s3, %d' % (4 * rnd))
        E('s_lshl_b32 s5, s4, 10')
        E('v_add_u32 v12, s5, v11')
        E('v_add_u32 v13, 0x14000, v12')
        b0 = 96 + 32 * rnd
        E('ds_read_b128 v[%d:%d], v12' % (b0, b0 + 3), tag='r')
        E('ds_read_b128 v[%d:%d], v12 offset:40960' % (b0 + 4, b0 + 7), tag='r')
        E('ds_read_b128 v[%d:%d], v13' % (b0 + 8, b0 + 11), tag='r')
        E('ds_read_b128 v[%d:%d], v13 offset:40960' % (b0 + 12, b0 + 15), tag='r')
        E('s_cmp_ge_u32 s4, 3')
        E('s_cselect_b32 s7, 1, 0')
        E('s_mul_i32 s5, s7, 3')
        E('s_sub_u32 s5, s4, s5')
        E('s_lshl_b32 s5, s5, 14')
        E('s_lshl_b32 s7, s7, 5')
        E('s_add_u32 s5, s5, s7')
        E('s_add_u32 s5, s5, s6')
        e.wait(lds='r')
        for r in range(4):
            E('v_add_f32 v%d, v%d, v%d' % (b0 + r, b0 + r, b0 + 4 + r))
            E('v_add_f32 v%d, v%d, v%d' % (b0 + 8 + r, b0 + 8 + r, b0 + 12 + r))
        for r in range(4):
            E('v_add_f32 v%d, v%d, v%d' % (b0 + r, b0 + r, b0 + 8 + r))
        E('v_cvt_pk_bf16_f32 v%d, v%d, v%d' % (b0 + 16, b0, b0 + 1))
        E('v_cvt_pk_bf16_f32 v%d, v%d, v%d' % (b0 + 17, b0 + 2, b0 + 3))
        E('buffer_store_dwordx2 v[%d:%d], v2, s[8:11], s5 offen' % (b0 + 16, b0 + 17))
    red(0)
    E('s_cmp_ge_u32 s3, 2')
    E('s_cbranch_scc1 L_a_done')
    red(1)


def kernel_b():
    e = Emitter()
    E = e
    e.raw('.p2align 8')
    e.raw('.globl %s' % KB)
    e.raw('.type %s,@function' % KB)
    e.label(KB)
    E('s_cmp_ge_u32 s2, 256')
    E('s_cbranch_scc1 L_b_done')
    E('s_load_dwordx2 s[40:41], s[0:1], 40')
    E('s_load_dwordx2 s[42:43], s[0:1], 56')
    E('v_and_b32 v1, 63, v0')
    E('v_lshrrev_b32 v2, 6, v0')
    E('s_nop 0')
    E('v_readfirstlane_b32 s3, v2')
    E('s_and_b32 s4, s2, 7')
    E('s_lshr_b32 s5, s2, 3')
    E('s_lshr_b32 s6, s4, 1')
    E('s_lshl_b32 s6, s6, 2')
    E('s_lshr_b32 s7, s5, 3')
    E('s_add_u32 s37, s6, s7')
    E('s_and_b32 s6, s4, 1')
    E('s_lshl_b32 s6, s6, 3')
    E('s_and_b32 s7, s5, 7')
    E('s_add_u32 s38, s6, s7')
    E('v_lshlrev_b32 v11, 4, v1')
    E('s_mul_i32 s32, s37, 393216')
    E('s_mul_i32 s4, s3, 49152')
    E('s_add_u32 s32, s32, s4')
    E('s_lshl_b32 s33, s38, 18')
    E('s_lshl_b32 s4, s3, 14')
    E('s_add_u32 s33, s33, s4')
    E('s_add_u32 s33, s33, 0x%x' % WOT_OFF)
    E('s_add_u32 s34, s33, 0x20000')
    E('s_waitcnt lgkmcnt(0)')
    E('s_mov_b32 s8, s40')
    E('s_and_b32 s9, s41, 0xffff')
    E('s_mov_b32 s10, 786432')
    E('s_mov_b32 s11, 0x20000')
    E('s_mov_b32 s28, s42')
    E('s_and_b32 s29, s43, 0xffff')
    E('s_mov_b32 s30, 0x%x' % WS_SIZE)
    E('s_mov_b32 s31, 0x20000')
    D = 5
    ACC = 16
    FR = 40
    stc = [0]
    def stampb():
        if not DIAG:
            return
        i = stc[0]; stc[0] += 1
        E('s_memtime s[60:61]')
        E('s_waitcnt lgkmcnt(0)')
        E('s_lshl_b32 s58, s2, 3')
        E('s_add_u32 s58, s58, s3')
        E('s_lshl_b32 s58, s58, 8')
        E('s_add_u32 s58, s58, 0x%x' % (0xD00000 + i * 8))
        E('v_mov_b32 v143, 0')
        E('v_mov_b32 v0, s60')
        E('buffer_store_dword v0, v143, s[28:31], s58 offen', tag='stamp')
        E('v_mov_b32 v0, s61')
        E('buffer_store_dword v0, v143, s[28:31], s58 offen offset:4', tag='stamp')
    stampb()
    def loads(i):
        base = FR + (i % D) * 20
        E('s_add_u32 s5, s32, %d' % (i * 3072))
        for st in range(3):
            E('buffer_load_dwordx4 v[%d:%d], v11, s[28:31], s5 offen offset:%d' % (base + 4 * st, base + 4 * st + 3, st * 1024), tag='k%d' % i)
        E('s_add_u32 s6, s33, %d' % (i * 1024))
        E('s_add_u32 s7, s34, %d' % (i * 1024))
        E('buffer_load_dwordx4 v[%d:%d], v11, s[28:31], s6 offen' % (base + 12, base + 15), tag='k%d' % i)
        E('buffer_load_dwordx4 v[%d:%d], v11, s[28:31], s7 offen' % (base + 16, base + 19), tag='k%d' % i)
    for i in range(D):
        loads(i)
    for i in range(16):
        base = FR + (i % D) * 20
        e.wait(vm='k%d' % i)
        if i in (0, 4, 8, 12, 15):
            stampb()
        for nn in range(2):
            for st in range(3):
                a = ACC + (nn * 3 + st) * 4
                src = 'v[%d:%d]' % (a, a + 3) if i > 0 else '0'
                E('v_mfma_f32_16x16x32_bf16 v[%d:%d], v[%d:%d], v[%d:%d], %s' % (
                    a, a + 3, base + 12 + 4 * nn, base + 15 + 4 * nn, base + 4 * st, base + 4 * st + 3, src))
        if i + D < 16:
            loads(i + D)
    E('s_mul_i32 s4, s3, 6144')
    E('v_add_u32 v12, s4, v11')
    for tl in range(6):
        E('ds_write_b128 v12, v[%d:%d] offset:%d' % (ACC + 4 * tl, ACC + 4 * tl + 3, tl * 1024))
    e.wait(lds='all')
    E('s_barrier')
    E('s_cmp_ge_u32 s3, 6')
    E('s_cbranch_scc1 L_b_done')
    E('s_lshl_b32 s4, s3, 10')
    E('v_add_u32 v12, s4, v11')
    for wv in range(8):
        E('ds_read_b128 v[%d:%d], v12 offset:%d' % (FR + 4 * wv, FR + 4 * wv + 3, wv * 6144), tag='r%d' % wv)
    e.wait(lds='r1')
    for r in range(4):
        E('v_add_f32 v%d, v%d, v%d' % (16 + r, FR + r, FR + 4 + r))
    for wv in range(2, 8):
        e.wait(lds='r%d' % wv)
        for r in range(4):
            E('v_add_f32 v%d, v%d, v%d' % (16 + r, 16 + r, FR + 4 * wv + r))
    E('v_cvt_pk_bf16_f32 v20, v16, v17')
    E('v_cvt_pk_bf16_f32 v21, v18, v19')
    E('s_cmp_ge_u32 s3, 3')
    E('s_cselect_b32 s4, 1, 0')
    E('s_mul_i32 s5, s4, 3')
    E('s_sub_u32 s5, s3, s5')
    E('s_mul_i32 s6, s37, 49152')
    E('s_lshl_b32 s5, s5, 14')
    E('s_add_u32 s6, s6, s5')
    E('s_lshl_b32 s5, s38, 6')
    E('s_add_u32 s6, s6, s5')
    E('s_lshl_b32 s4, s4, 5')
    E('s_add_u32 s6, s6, s4')
    E('v_and_b32 v2, 15, v1')
    E('v_lshrrev_b32 v3, 4, v1')
    E('v_lshlrev_b32 v2, 10, v2')
    E('v_lshl_add_u32 v2, v3, 3, v2')
    E('buffer_store_dwordx2 v[20:21], v2, s[8:11], s6 offen')
    stampb()
    e.label('L_b_done')
    E('s_endpgm')
    return e


def kd(name, vgpr, accum, sgpr=72):
    return '''.p2align 6
.amdhsa_kernel %s
  .amdhsa_next_free_vgpr %d
  .amdhsa_next_free_sgpr %d
  .amdhsa_accum_offset %d
  .amdhsa_group_segment_fixed_size 0
  .amdhsa_kernarg_size 64
  .amdhsa_user_sgpr_count 2
  .amdhsa_user_sgpr_kernarg_segment_ptr 1
  .amdhsa_system_sgpr_workgroup_id_x 1
.end_amdhsa_kernel
''' % (name, vgpr, sgpr, accum)


def main():
    global DIAG
    global DIAG_ALL
    if len(sys.argv) > 2 and sys.argv[2].startswith('diag'):
        DIAG = True
        DIAG_ALL = sys.argv[2] == 'diag'
    for kv in sys.argv[3:]:
        k, v = kv.split('=', 1)
        globals()[k] = eval(v)
    ref = open('cdna_kernels/%s.s.ref' % NAME).read().splitlines()
    head = [l for l in ref if l.startswith(';') and '@launch' not in l and 'launch geometry' not in l and 'grid=ceil' not in l]
    a = kernel_a()
    b = kernel_b()
    out = '\n'.join(head) + '\n'
    out += '; @launch kernel=%s grid=(256,1,1) block=(256,1,1) lds=%d\n' % (KA, LDS_A)
    if not FUSE:
        out += '; @launch kernel=%s grid=(256,1,1) block=(512,1,1) lds=49152\n' % KB
    out += '.amdgcn_target "amdgcn-amd-amdhsa--gfx950"\n.text\n'
    out += a.text() + ('' if FUSE else b.text())
    out += '.section .rodata,"a"\n'
    out += kd(KA, 512, 256) + ('' if FUSE else kd(KB, 144, 144))
    path = sys.argv[1] if len(sys.argv) > 1 else 'cdna_kernels/%s.s' % NAME
    open(path, 'w').write(out)
    print('nops inserted: A %d  B %d; lines %d' % (a.nops_inserted, b.nops_inserted, out.count('\n')))


if __name__ == '__main__':
    main()
```

```python
import struct, sys, math
from emit import Emitter, merge, sched

NAME = 'standalone__gqa_block_cached__near_ridge'
KA = 'gqa_attn_kernel'
KB = 'gqa_oproj_kernel'

def f32bits(x):
    return struct.unpack('<I', struct.pack('<f', x))[0]

XB = 0
QB = 24576
PB = [0, 24576]
RING = 49152
RING_W = 12288
NSLOT = 3
VS = [98304, 131072, 98304, 131072]
STATS = 81920
LSTAT = 86016
WOST = 65536
LDS_A = 163840

WOT_OFF = 0x800000
WS_SIZE = 0x1000000


DIAG = False
DIAG_ALL = True
PRO0, PRO1, STEPN, SLOWCOST = 12, 8, 8, 6
KFIRST = 0
BD = 5
P3PF = 2
P3X = 0
P3ROT = 7
FUSE = 0
P3D = 8
TOUCH = 0
EPO = 0
BURST = 2
XDEF = 1
WQPF = 2
KORD = 1
KVPOL = ''
STPOL = ''
PVS = 16
KTF = 0
NOLOAD = 0
ROT = 0
CI, KI = 3, 0
NV_LATE = 40
NV_S = [[4, 4], [4, 4], [4, 4], [4, 4], [4, 4], [0, 0]]
def kernel_a():
    e = Emitter()
    E = e
    stampc = [0]
    def stamp(key=False):
        if not DIAG or not (DIAG_ALL or key):
            return
        i = stampc[0]; stampc[0] += 1
        E('s_memtime s[60:61]')
        E('s_waitcnt lgkmcnt(0)')
        E('s_lshl_b32 s58, s2, 2')
        E('s_add_u32 s58, s58, s3')
        E('s_lshl_b32 s58, s58, 8')
        E('s_add_u32 s58, s58, 0x%x' % (0xC00000 + i * 8))
        E('v_mov_b32 v63, 0')
        E('v_mov_b32 v0, s60')
        E('buffer_store_dword v0, v63, s[28:31], s58 offen', tag='stamp')
        E('v_mov_b32 v0, s61')
        E('buffer_store_dword v0, v63, s[28:31], s58 offen offset:4', tag='stamp')
    e.raw('.p2align 8')
    e.raw('.globl %s' % KA)
    e.raw('.type %s,@function' % KA)
    e.label(KA)
    E('s_cmp_ge_u32 s2, 256')
    E('s_cbranch_scc1 L_a_done')
    E('s_load_dwordx16 s[40:55], s[0:1], 0')
    E('v_and_b32 v1, 63, v0')
    E('v_lshrrev_b32 v2, 6, v0')
    E('s_nop 0')
    E('v_readfirstlane_b32 s3, v2')
    if FUSE:
        E('s_lshr_b32 s4, s2, 3')
        E('s_and_b32 s38, s2, 3')
        E('s_lshl_b32 s38, s38, 1')
        E('s_and_b32 s5, s4, 1')
        E('s_add_u32 s38, s38, s5')
        E('s_bfe_u32 s37, s2, 0x10002')
        E('s_lshl_b32 s37, s37, 3')
        E('s_lshr_b32 s5, s4, 2')
        E('s_add_u32 s37, s37, s5')
        E('s_bfe_u32 s4, s4, 0x10001')
    else:
        E('s_and_b32 s38, s2, 7')
        E('s_lshr_b32 s4, s2, 3')
        E('s_lshr_b32 s37, s4, 1')
        E('s_and_b32 s4, s4, 1')
    E('s_lshl_b32 s39, s38, 2')
    E('s_lshl_b32 s4, s4, 1')
    E('s_add_u32 s39, s39, s4')
    E('s_lshl_b32 s4, s37, 3')
    E('s_add_u32 s4, s4, s38')
    E('s_lshl_b32 s32, s4, 17')
    E('s_lshl_b32 s5, s3, 15')
    E('s_add_u32 s32, s32, s5')
    E('s_lshr_b32 s5, s2, 3')
    E('s_and_b32 s5, s5, 1')
    E('s_mul_i32 s5, s5, %d' % ROT)
    for kt in range(4):
        E('s_add_u32 s6, s5, %d' % kt)
        E('s_and_b32 s6, s6, 3')
        E('s_lshl_b32 s6, s6, 13')
        E('s_add_u32 s%d, s32, s6' % (64 + kt))
    E('s_mul_i32 s33, s37, 49152')
    E('s_mul_i32 s5, s3, 12288')
    E('s_add_u32 s33, s33, s5')
    E('s_lshl_b32 s34, s39, 8')
    E('s_lshl_b32 s5, s3, 7')
    E('s_add_u32 s34, s34, s5')
    E('s_mul_i32 s35, s3, %d' % RING_W)
    E('s_add_u32 s35, s35, %d' % RING)
    E('s_mov_b32 s36, 0x%08x' % f32bits(math.log2(math.e) / math.sqrt(128.0)))
    E('v_and_b32 v46, 15, v1')
    E('v_lshrrev_b32 v47, 4, v1')
    E('v_xor_b32 v2, v46, v47')
    E('v_lshlrev_b32 v2, 4, v2')
    E('v_lshl_add_u32 v2, v46, 10, v2')
    E('v_lshlrev_b32 v11, 4, v1')
    E('v_lshrrev_b32 v48, 3, v1')
    E('v_and_b32 v49, 7, v1')
    E('v_lshrrev_b32 v50, 1, v49')
    E('v_and_b32 v51, 1, v47')
    E('v_xor_b32 v50, v50, v51')
    E('v_and_b32 v52, 1, v49')
    E('v_lshlrev_b32 v52, 4, v52')
    E('v_lshl_add_u32 v53, v48, 13, v52')
    E('v_lshl_add_u32 v3, v50, 5, v53')
    E('v_xor_b32 v50, 2, v50')
    E('v_lshl_add_u32 v4, v50, 5, v53')
    E('v_add_u32 v4, 0x10000, v4')
    E('v_add_u32 v5, 0x20000, v3')
    E('v_add_u32 v6, 0x20000, v4')
    E('v_lshrrev_b32 v48, 2, v1')
    E('v_and_b32 v48, 3, v48')
    E('v_and_b32 v49, 3, v1')
    E('v_lshrrev_b32 v50, 1, v48')
    E('v_lshlrev_b32 v51, 1, v51')
    E('v_or_b32 v50, v50, v51')
    E('v_lshl_add_u32 v52, v47, 3, v48')
    E('v_lshlrev_b32 v52, 7, v52')
    E('v_lshl_add_u32 v52, v49, 3, v52')
    E('v_add_u32 v52, s35, v52')
    for t in range(4):
        E('v_xor_b32 v53, %d, v50' % t)
        E('v_lshl_add_u32 v%d, v53, 5, v52' % (7 + t))
    E('v_and_b32 v53, 31, v1')
    E('v_lshrrev_b32 v54, 5, v1')
    E('v_lshlrev_b32 v12, 4, v46')
    E('v_lshl_add_u32 v12, v47, 8, v12')
    E('v_lshlrev_b32 v55, 2, v47')
    E('v_xor_b32 v55, v55, v46')
    E('v_lshlrev_b32 v55, 4, v55')
    E('v_lshl_add_u32 v13, v47, 8, v55')
    E('v_lshl_add_u32 v55, v54, 2, v48')
    E('v_lshlrev_b32 v55, 8, v55')
    E('v_xor_b32 v56, s3, v48')
    E('v_lshl_add_u32 v55, v56, 6, v55')
    E('v_and_b32 v56, 1, v47')
    E('v_lshl_add_u32 v55, v56, 5, v55')
    E('v_lshl_add_u32 v14, v49, 3, v55')
    E('v_add_u32 v14, %d, v14' % VS[0])
    E('s_lshl_b32 s4, s3, 11')
    E('v_add_u32 v15, s4, v11')
    E('v_lshlrev_b32 v55, 4, v46')
    E('v_lshl_add_u32 v55, v54, 9, v55')
    E('v_lshl_add_u32 v55, v56, 3, v55')
    E('s_lshr_b32 s4, s3, 1')
    E('s_mul_i32 s4, s4, 3')
    E('s_and_b32 s5, s3, 1')
    E('s_lshl_b32 s5, s5, 12')
    E('s_add_u32 s5, s5, %d' % QB)
    for st in range(3):
        E('s_add_u32 s6, s4, %d' % st)
        E('s_lshr_b32 s7, s6, 1')
        E('s_lshl_b32 s7, s7, 13')
        E('s_and_b32 s6, s6, 1')
        E('s_lshl_b32 s6, s6, 8')
        E('s_add_u32 s6, s6, s7')
        E('s_add_u32 s6, s6, s5')
        E('v_add_u32 v%d, s6, v55' % (16 + st))
    E('v_lshlrev_b32 v20, 5, v53')
    E('v_lshl_add_u32 v19, v54, 2, v20')
    E('s_lshl_b32 s4, s3, 3')
    E('v_add_u32 v19, s4, v19')
    E('v_lshlrev_b32 v55, 4, v46')
    E('v_lshl_add_u32 v55, v54, 8, v55')
    for qt in range(3):
        E('v_add_u32 v57, %d, v56' % (2 * qt))
        E('v_cmp_le_u32 vcc, 3, v57')
        E('v_subrev_u32 v58, 3, v57')
        E('v_lshlrev_b32 v58, 10, v58')
        E('v_add_u32 v58, 12288, v58')
        E('v_lshlrev_b32 v57, 10, v57')
        E('v_cndmask_b32 v57, v57, v58, vcc')
        E('v_add_u32 v%d, v57, v55' % (27 + qt))
    E('s_waitcnt lgkmcnt(0)')
    def srd(d, lo, size):
        E('s_mov_b32 s%d, s%d' % (d, lo))
        E('s_and_b32 s%d, s%d, 0xffff' % (d + 1, lo + 1))
        E('s_mov_b32 s%d, 0x%x' % (d + 2, size))
        E('s_mov_b32 s%d, 0x20000' % (d + 3))
    srd(8, 40, 786432)
    srd(12, 42, 16777216)
    srd(16, 44, 16777216)
    srd(20, 46, 4194304)
    srd(24, 48, 4194304)
    srd(28, 54, WS_SIZE)

    stamp(True)
    def wqpf():
        E('s_lshr_b32 s4, s2, 3')
        E('s_lshl_b32 s4, s4, 2')
        E('s_add_u32 s4, s4, s3')
        E('s_lshl_b32 s4, s4, 15')
        if FUSE:
            E('s_and_b32 s5, s2, 3')
            E('s_lshl_b32 s5, s5, 11')
        else:
            E('s_lshl_b32 s5, s38, 10')
        E('s_add_u32 s4, s4, s5')
        E('v_lshrrev_b32 v62, 4, v1')
        E('v_lshlrev_b32 v62, 13, v62')
        E('v_and_b32 v63, 15, v1')
        E('v_lshl_add_u32 v62, v63, %d, v62' % (7 if FUSE else 6))
        E('buffer_load_dword v62, v62, s[20:23], s4 offen', tag='pf')
    if WQPF == 1:
        wqpf()
    if TOUCH:
        E('v_mov_b32 v63, 0')
        E('s_mul_i32 s4, s37, 393216')
        E('s_lshl_b32 s5, s39, 2')
        E('s_add_u32 s5, s5, s3')
        E('s_mul_i32 s5, s5, 3072')
        E('s_add_u32 s4, s4, s5')
        E('buffer_load_dword v248, v63, s[28:31], s4 offen', tag='pf')
        E('s_and_b32 s4, s2, 3')
        E('s_lshl_b32 s4, s4, 20')
        E('s_add_u32 s4, s4, 0x%x' % WOT_OFF)
        E('buffer_load_dword v249, v63, s[28:31], s4 offen', tag='pf')
        if TOUCH > 1:
            E('buffer_load_dword v250, v63, s[12:15], s64 offen', tag='pf')
            E('buffer_load_dword v251, v63, s[16:19], s64 offen', tag='pf')
            E('s_lshl_b32 s4, s2, 14')
            E('buffer_load_dword v252, v63, s[24:27], s4 offen', tag='pf')
    for n in range(KFIRST):
        E('s_add_u32 s7, s%d, %d' % (64 + n // 8, (n % 8) * 1024))
        E('buffer_load_dwordx4 a[%d:%d], v12, s[12:15], s7 offen' % (n * 4, n * 4 + 3), tag='K%d' % (n // 8))
    E('s_mul_i32 s4, s3, 12288')
    for i in range(12):
        E('s_mul_i32 s5, s3, 12')
        E('s_add_u32 s5, s5, %d' % i)
        E('s_and_b32 s5, s5, 15')
        E('s_lshl_b32 s5, s5, 4')
        E('v_xor_b32 v%d, s5, v11' % (60 + (i & 1)))
        E('s_add_u32 s5, s4, %d' % (XB + i * 1024))
        E('s_mov_b32 m0, s5')
        E('s_add_u32 s6, s33, %d' % (i * 1024))
        E('buffer_load_dwordx4 v%d, s[8:11], s6 offen lds' % (60 + (i & 1)), tag='x')

    def wq_dma(c):
        out = []
        for m in range(4):
            def f(m=m):
                E('s_add_u32 s5, s35, %d' % ((c % NSLOT) * 4096 + m * 1024))
                E('s_mov_b32 m0, s5')
                E('s_add_u32 s6, s34, %d' % (c * 262144))
                E('buffer_load_dwordx4 v%d, s[20:23], s6 offen lds' % (3 + m), tag='wq%d' % c)
            out.append(f)
        return out

    def wq_reg(c):
        if c < 8:
            return 'v', 168 + (c - 3) * 16
        return 'a', 128 + (c - 8) * 16

    def wq_load(c):
        out = []
        fl, r = wq_reg(c)
        for m in range(4):
            def f(m=m):
                E('s_add_u32 s6, s34, %d' % (c * 262144))
                E('buffer_load_dwordx4 %s[%d:%d], v%d, s[20:23], s6 offen' % (fl, r + 4 * m, r + 4 * m + 3, 3 + m), tag='wq%d' % c)
            out.append(f)
        return out

    def wq_write(c):
        out = []
        fl, r = wq_reg(c)
        out.append(lambda: e.wait(vm='wq%d' % c))
        for m in range(4):
            out.append(lambda m=m: E('ds_write_b128 v59, %s[%d:%d] offset:%d' % (fl, r + 4 * m, r + 4 * m + 3, (c % NSLOT) * 4096 + m * 1024)))
        return out

    ACC = 64
    AF = [112, 128]
    BF = [144, 156]

    def p1_reads(c):
        out = []
        bu = c & 1
        sl = c % NSLOT
        out.append(lambda: E('v_xor_b32 v%d, %d, v2' % (60 + bu, c * 64)))
        for st in range(3):
            out.append(lambda st=st: E('ds_read_b128 v[%d:%d], v%d offset:%d' % (BF[bu] + 4 * st, BF[bu] + 4 * st + 3, 60 + bu, XB + st * 16384), tag='p1r%d' % c))
        for t in range(4):
            for hh in range(2):
                out.append(lambda t=t, hh=hh: E('ds_read_b64_tr_b16 v[%d:%d], v%d offset:%d' % (
                    AF[bu] + 4 * t + 2 * hh, AF[bu] + 4 * t + 2 * hh + 1, 7 + t, sl * 4096 + hh * 512), tag='p1r%d' % c))
        return out

    def kload(n):
        def f():
            E('s_add_u32 s7, s%d, %d' % (64 + n // 8, (n % 8) * 1024))
            E('buffer_load_dwordx4 a[%d:%d], v12, s[12:15], s7 offen%s' % (n * 4, n * 4 + 3, KVPOL), tag='K%d' % (n // 8))
        return f

    def v_chunk(t):
        out = []
        for mm in range(8):
            def f(mm=mm):
                E('s_lshl_b32 s5, s3, 13')
                E('s_add_u32 s5, s5, %d' % (VS[t] + mm * 1024))
                E('s_mov_b32 m0, s5')
                E('s_add_u32 s6, s%d, %d' % (64 + t, mm * 1024))
                E('buffer_load_dwordx4 v13, s[16:19], s6 offen%s lds' % KVPOL, tag='V%d' % t)
            out.append(f)
        return out

    def v_regs(t):
        out = []
        for mm in range(8):
            def f(mm=mm):
                r = 192 + (t - 2) * 32 + mm * 4
                E('s_add_u32 s6, s%d, %d' % (64 + t, mm * 1024))
                E('buffer_load_dwordx4 v[%d:%d], v12, s[16:19], s6 offen%s' % (r, r + 3, KVPOL), tag='V%d' % t)
            out.append(f)
        return out
    E('v_add_u32 v59, s35, v11')
    def wo_early():
        out = []
        def pre():
            E('s_lshr_b32 s4, s2, 2')
            E('s_lshl_b32 s4, s4, 16')
            E('s_and_b32 s5, s2, 3')
            E('s_lshl_b32 s5, s5, 8')
            E('s_add_u32 s4, s4, s5')
            E('s_lshl_b32 s5, s3, 14')
            E('s_add_u32 s56, s4, s5')
            E('v_lshrrev_b32 v248, 4, v1')
            E('v_and_b32 v249, 15, v1')
            E('v_lshlrev_b32 v248, 10, v248')
            E('v_lshl_add_u32 v248, v249, 4, v248')
            E('buffer_load_dwordx4 a[96:99], v248, s[24:27], s56 offen', tag='WO')
        out.append(pre)
        for m in range(1, 4):
            def f(m=m):
                E('s_add_u32 s6, s56, %d' % (m * 4096))
                E('buffer_load_dwordx4 a[%d:%d], v248, s[24:27], s6 offen' % (96 + 4 * m, 99 + 4 * m), tag='WO')
            out.append(f)
        return out
    seq = []
    if KORD:
        slow = [kload(n) for n in range(KFIRST, 32)] + v_chunk(0) + v_chunk(1) + v_regs(2) + v_regs(3)
    else:
        slow = [kload(n) for n in range(KFIRST, 16)] + v_chunk(0) + v_chunk(1) + [kload(n) for n in range(16, 32)] + v_regs(2) + v_regs(3)
    for c in range(3):
        seq += wq_dma(c)
    for c in range(3, 16):
        seq += wq_load(c)
        if c >= CI:
            seq += slow[:KI]
            slow = slow[KI:]
    if FUSE > 1:
        seq += wo_early()
    nfast = len(seq)
    seq += slow
    LEFT = {'K0': 56, 'K1': 48, 'V0': 40, 'V1': 32, 'K2': 24, 'K3': 16, 'V2': 8, 'V3': 0}
    if KORD:
        LEFT = {'K0': 56, 'K1': 48, 'K2': 40, 'K3': 32, 'V0': 24, 'V1': 16, 'V2': 8, 'V3': 0}
    def vwait(tag):
        nf = 0
        while len(seq) > LEFT[tag]:
            issue(SLOWCOST); nf += 1
        if nf:
            print('forced issue of %d loads for %s' % (nf, tag))
        e.wait(vm=tag)
    issued = [0]
    def issue(maxn=1000):
        n = 0
        while seq and len(e.vmq) < 62 and n < maxn:
            seq.pop(0)()
            n += 1 if issued[0] < nfast else SLOWCOST
            issued[0] += 1
    stamp()
    issue(PRO0)
    if WQPF == 2:
        wqpf()
    stamp()
    e.wait(vm='wq0')
    stamp()
    E('s_barrier')
    stamp()
    issue(PRO1)
    for f in p1_reads(0):
        f()
    for c in range(16):
        bu = c & 1
        e.wait(lds='p1r%d' % c)
        if c in (2, 4, 6, 8, 12):
            stamp()
        rd = []
        if c + 1 < 16:
            if c + 1 < 3:
                rd.append(lambda c=c: e.wait(vm='wq%d' % (c + 1)))
            rd += p1_reads(c + 1)
        rd2 = []
        if 3 <= c + 2 < 16:
            rd2 = wq_write(c + 2)
        rd2.append(lambda: issue(STEPN))
        if FUSE > 1 and c == 14:
            def stg0():
                e.wait(vm='WO')
                E('s_lshl_b32 s4, s3, 12')
                E('s_add_u32 s4, s4, %d' % VS[1])
                E('v_add_u32 v250, s4, v13')
                for m in range(4):
                    E('ds_write_b128 v250, a[%d:%d] offset:%d' % (96 + 4 * m, 99 + 4 * m, m * 1024))
            rd2.append(stg0)
        mf = []
        for nt in range(4):
            for st in range(3):
                a = ACC + (nt * 3 + st) * 4
                src = 'v[%d:%d]' % (a, a + 3) if c > 0 else '0'
                mf.append(lambda a=a, nt=nt, st=st, src=src: E('v_mfma_f32_16x16x32_bf16 v[%d:%d], v[%d:%d], v[%d:%d], %s' % (
                    a, a + 3, AF[bu] + 4 * nt, AF[bu] + 4 * nt + 3, BF[bu] + 4 * st, BF[bu] + 4 * st + 3, src)))
        for f in merge(mf[:6], rd) + merge(mf[6:], rd2):
            f()
    for nt in range(4):
        for st in range(3):
            a = ACC + (nt * 3 + st) * 4
            E('v_cvt_pk_bf16_f32 v%d, v%d, v%d' % (a, a, a + 1))
            E('v_cvt_pk_bf16_f32 v%d, v%d, v%d' % (a + 1, a + 2, a + 3))
    if FUSE > 1:
        e.wait(lds='all')
    stamp(True)
    E('s_barrier')
    for nt in range(4):
        for st in range(3):
            a = ACC + (nt * 3 + st) * 4
            E('ds_write_b64 v%d, v[%d:%d] offset:%d' % (16 + st, a, a + 1, nt * 1024))

    if FUSE > 1:
        E('v_lshrrev_b32 v46, 4, v1')
        E('v_lshrrev_b32 v47, 2, v1')
        E('v_and_b32 v47, 3, v47')
        E('v_and_b32 v48, 3, v1')
        E('v_lshl_add_u32 v49, v46, 3, v47')
        E('v_lshlrev_b32 v49, 8, v49')
        E('v_xor_b32 v50, s3, v47')
        E('v_lshl_add_u32 v49, v50, 6, v49')
        E('v_lshl_add_u32 v49, v48, 3, v49')
        E('v_add_u32 v49, 0x%x, v49' % VS[1])
        for kk in range(2):
            for nn in range(2):
                for hh in range(2):
                    r = 30 + (kk * 2 + nn) * 4 + 2 * hh
                    E('ds_read_b64_tr_b16 v[%d:%d], v49 offset:%d' % (r, r + 1, (32 * kk + 4 * hh) * 256 + nn * 32), tag='wt')
        E('s_and_b32 s4, s2, 3')
        E('s_lshl_b32 s4, s4, 3')
        E('s_lshl_b32 s5, s3, 1')
        E('s_add_u32 s4, s4, s5')
        E('s_lshl_b32 s4, s4, 17')
        E('s_lshr_b32 s5, s2, 2')
        E('s_lshl_b32 s5, s5, 11')
        E('s_add_u32 s4, s4, s5')
        E('s_add_u32 s62, s4, 0x%x' % WOT_OFF)
        E('s_add_u32 s63, s62, 0x20000')
        E('s_mov_b32 s20, s52')
        E('s_and_b32 s21, s53, 0xffff')
        E('s_mov_b32 s22, 256')
        E('s_mov_b32 s23, 0x20000')
    while len(seq) > NV_LATE:
        issue(SLOWCOST)
    if NOLOAD:
        del seq[:]
    e.wait(lds='all')
    if FUSE > 1:
        for kk in range(2):
            for nn in range(2):
                r = 30 + (kk * 2 + nn) * 4
                E('buffer_store_dwordx4 v[%d:%d], v11, s[28:31], s%d offen offset:%d sc1' % (r, r + 3, 62 + nn, kk * 1024), tag='wst')
    E('s_barrier')
    QF = 128
    for qt in range(3):
        for ks in range(8):
            r = QF + (qt * 8 + ks) * 4
            E('ds_read_b128 a[%d:%d], v11 offset:%d' % (r, r + 3, QB + (qt * 8 + ks) * 1024), tag='Q')
    E('s_lshl_b32 s4, s3, 13')
    E('s_add_u32 s4, s4, 0xC000')
    E('v_and_b32 v46, 15, v1')
    E('v_lshrrev_b32 v47, 4, v1')
    E('v_xor_b32 v48, v46, v47')
    for jj in range(4):
        E('v_xor_b32 v49, %d, v48' % (4 * jj))
        E('v_lshlrev_b32 v49, 4, v49')
        E('v_lshl_add_u32 v49, v47, 8, v49')
        E('v_add_u32 v%d, s4, v49' % (6 + jj))
    E('v_and_b32 v46, 31, v1')
    E('v_lshrrev_b32 v47, 5, v1')
    E('v_and_b32 v48, 15, v1')
    E('v_xor_b32 v48, v48, v47')
    E('v_lshlrev_b32 v48, 4, v48')
    E('v_lshl_add_u32 v48, v46, 8, v48')
    E('v_add_u32 v54, s4, v48')
    E('v_add_u32 v60, 0x%x, v19' % STATS)
    E('v_add_u32 v61, 0x%x, v20' % STATS)
    def ktr(kt):
        w_ = lambda: vwait('K%d' % kt)
        w_.cost = 0
        out = [w_]
        for m in range(8):
            r = (kt * 8 + m) * 4
            out.append(lambda m=m, r=r: E('ds_write_b128 v%d, a[%d:%d] offset:%d' % (6 + (m & 3), r, r + 3, m * 1024)))
        for ks in range(8):
            r = (kt * 8 + ks) * 4
            def f(ks=ks, r=r):
                E('v_xor_b32 v%d, %d, v54' % (55 + (ks & 1), ks * 32))
                E('ds_read_b128 a[%d:%d], v%d' % (r, r + 3, 55 + (ks & 1)), tag='kt%d' % kt)
            out.append(f)
        return out
    SB = [64, 128]
    MX = 62
    def sreg(u, kt):
        return SB[u & 1] + (kt & 1) * 16
    def max_ops(u, kt):
        out = []
        for i in range(8):
            s_ = sreg(u, kt) + 2 * i
            if (kt & 1) == 0 and i == 0:
                out.append(lambda s_=s_: E('v_max_f32 v%d, v%d, v%d' % (MX, s_, s_ + 1)))
            else:
                out.append(lambda s_=s_: E('v_max3_f32 v%d, v%d, v%d, v%d' % (MX, s_, s_ + 1, MX)))
        return out
    def s_mf(u, kt):
        q = u % 3
        mf = []
        for ks in range(8):
            s_ = sreg(u, kt)
            src = 'v[%d:%d]' % (s_, s_ + 15) if ks > 0 else '0'
            kr = (kt * 8 + ks) * 4
            qr = QF + (q * 8 + ks) * 4
            mf.append(lambda s_=s_, kr=kr, qr=qr, src=src: E('v_mfma_f32_32x32x16_bf16 v[%d:%d], a[%d:%d], a[%d:%d], %s' % (
                s_, s_ + 15, kr, kr + 3, qr, qr + 3, src)))
        return mf
    PK = [30, 34, 38, 42]
    pkc = [0]
    OA = [0, 64]
    PSL = {(0, 0): 0, (0, 1): 8192, (1, 0): 16384, (1, 1): 24576, (2, 0): 32768, (2, 1): 40960,
           (0, 2): 49152, (0, 3): 57344, (1, 2): 0, (1, 3): 16384, (2, 2): 32768, (2, 3): 8192}
    def exp_ops(u, kt):
        q = u % 3
        out = []
        s0 = sreg(u, kt)
        for hf in range(2):
            pk = PK[pkc[0] % 4]; pkc[0] += 1
            regs = [s0 + 8 * hf + i for i in range(8)]
            for r in regs:
                out.append(lambda r=r: E('v_fma_f32 v%d, v%d, s36, -v%d' % (r, r, 21 + q)))
            for r in regs:
                out.append(lambda r=r: E('v_exp_f32 v%d, v%d' % (r, r)))
            for k, r in enumerate(regs):
                if kt == 0 and hf == 0 and k == 0:
                    out.append(lambda r=r: E('v_add_f32 v%d, v%d, v%d' % (24 + q, r, r + 1)))
                elif kt == 0 and hf == 0 and k == 1:
                    pass
                else:
                    out.append(lambda r=r: E('v_add_f32 v%d, v%d, v%d' % (24 + q, r, 24 + q)))
                if k & 1:
                    out.append(lambda r=r, pk=pk, k=k: E('v_cvt_pk_bf16_f32 v%d, v%d, v%d' % (pk + k // 2, r - 1, r)))
            off = PSL[(q, kt)] + hf * 1024
            out.append(lambda pk=pk, off=off: E('ds_write_b128 v15, v[%d:%d] offset:%d' % (pk, pk + 3, off)))
        return out
    def exchange(u):
        h, q = u // 3, u % 3
        E('ds_write_b32 v60, v%d offset:%d' % (MX, q * 1024))
        e.wait(lds='all')
        stamp()
        E('s_barrier')
        E('ds_read_b128 v[46:49], v61 offset:%d' % (q * 1024), tag='st')
        E('ds_read_b128 v[50:53], v61 offset:%d' % (q * 1024 + 16), tag='st')
        out = [lambda: e.wait(lds='st')]
        ops = ['v_max3_f32 v46, v46, v47, v48', 'v_max3_f32 v50, v50, v51, v52', 'v_max3_f32 v46, v46, v49, v53', 'v_max_f32 v46, v46, v50']
        if h == 0:
            ops += ['v_mul_f32 v%d, s36, v46' % (21 + q)]
        else:
            ops += ['v_mul_f32 v46, s36, v46', 'v_max_f32 v46, v46, v%d' % (21 + q), 'v_sub_f32 v47, v%d, v46' % (21 + q),
                    'v_exp_f32 v%d, v47' % (57 + q), 'v_mov_b32 v%d, v46' % (21 + q), 'v_mul_f32 v%d, v%d, v%d' % (24 + q, 24 + q, 57 + q)]
        out += [(lambda o=o: E(o)) for o in ops]
        if not XDEF:
            for f in out:
                f()
            out = []
        return out

    PB4 = [96, 112, 160, 176]
    pvc = [0]
    def C(cost, fn):
        fn.cost = cost
        return fn
    def pv_anchors(lst):
        steps = []
        for (t, qs, first) in lst:
            for n in range(8):
                steps.append((t, qs, first, n))
        base = pvc[0]
        pvc[0] += len(steps)
        def reads(i):
            t, qs, first, n = steps[i]
            u, hf = n // 2, n % 2
            b = PB4[(base + i) & 3]
            vb = 14 if (t & 1) == 0 else 10
            tag = 'pv%d' % (base + i)
            out = []
            for ee in range(2):
                out.append(lambda ee=ee: E('ds_read_b64_tr_b16 v[%d:%d], v%d offset:%d' % (
                    b + 2 * ee, b + 2 * ee + 1, vb, (32 * u + 16 * hf + 8 * ee) * 256), tag=tag))
            for qt in qs:
                off = PSL[(qt, t)] + u * 2048 + hf * 1024
                out.append(lambda qt=qt, off=off: E('ds_read_b128 v[%d:%d], v11 offset:%d' % (
                    b + 4 + 4 * qt, b + 7 + 4 * qt, off), tag=tag))
            return out
        pro = reads(0) + reads(1)
        anc = []
        for i, (t, qs, first, n) in enumerate(steps):
            b = PB4[(base + i) & 3]
            rd = reads(i + 2) if i + 2 < len(steps) else []
            k = len(qs)
            for x, qt in enumerate(qs):
                o = OA[t >> 1] + 16 * qt
                src = '0' if (first and n == 0) else 'a[%d:%d]' % (o, o + 15)
                fn = (lambda o=o, b=b, qt=qt, src=src: E('v_mfma_f32_32x32x16_bf16 a[%d:%d], v[%d:%d], v[%d:%d], %s' % (
                    o, o + 15, b, b + 3, b + 4 + 4 * qt, b + 7 + 4 * qt, src)))
                pre = [lambda i=i: e.wait(lds='pv%d' % (base + i))] if x == 0 else []
                post = rd[len(rd) * x // k: len(rd) * (x + 1) // k]
                anc.append((pre, fn, post))
        return pro, anc

    WOR = 240
    def wo_loads():
        out = []
        def pre():
            E('s_lshr_b32 s4, s2, 2')
            E('s_lshl_b32 s4, s4, 16')
            E('s_and_b32 s5, s2, 3')
            E('s_lshl_b32 s5, s5, 8')
            E('s_add_u32 s4, s4, s5')
            E('s_lshl_b32 s5, s3, 14')
            E('s_add_u32 s56, s4, s5')
            E('v_lshrrev_b32 v3, 4, v1')
            E('v_and_b32 v4, 15, v1')
            E('v_lshlrev_b32 v3, 10, v3')
            E('v_lshl_add_u32 v3, v4, 4, v3')
        out.append(pre)
        for m in range(4):
            def f(m=m):
                E('s_add_u32 s6, s56, %d' % (m * 4096))
                E('buffer_load_dwordx4 a[%d:%d], v3, s[24:27], s6 offen' % (WOR + 4 * m, WOR + 4 * m + 3), tag='WO')
            out.append(f)
        return out
    def v_store(t):
        out = [C(0, lambda: vwait('V%d' % t))]
        def pre():
            E('s_lshl_b32 s4, s3, 13')
            E('s_add_u32 s4, s4, %d' % VS[t])
            E('v_add_u32 v55, s4, v13')
        out.append(pre)
        for mm in range(8):
            r = 192 + (t - 2) * 32 + mm * 4
            out.append(lambda r=r, mm=mm: E('ds_write_b128 v55, v[%d:%d] offset:%d' % (r, r + 3, mm * 1024)))
        return out
    def iss(n):
        return [C(20, lambda: issue(SLOWCOST))] * n

    E('v_add_u32 v10, 0x%x, v14' % (VS[1] - VS[0]))
    for f in ktr(0):
        f()
    e.wait(lds='kt0')
    stamp()
    xpost = []
    for u in range(6):
        h, q = u // 3, u % 3
        t0, t1 = 2 * h, 2 * h + 1
        sa = [([], f, []) for f in s_mf(u, t0)] + [([], f, []) for f in s_mf(u, t1)]
        if q == 0:
            sa[8] = ([lambda t1=t1: e.wait(lds='kt%d' % t1)], sa[8][1], [])
        pro = []
        if u in (4, 5):
            pro, pa = pv_anchors([(u - 4, (0, 1, 2), u == 4)])
            anc = sa[:2] + merge(sa[2:], pa[:PVS]) + pa[PVS:]
        else:
            anc = sa
        i7 = [k for k, a in enumerate(anc) if a[1] is sa[7][1]][0]
        i15 = [k for k, a in enumerate(anc) if a[1] is sa[15][1]][0]
        s0, s1 = [], []
        if u > 0:
            pu = u - 1
            s0 = exp_ops(pu, 2 * (pu // 3))
            s1 = exp_ops(pu, 2 * (pu // 3) + 1)
        if q == 0:
            s0 = ktr(t1) + s0 if KTF else merge(s0, ktr(t1))
        if u == 2:
            s1 = merge(s1, ktr(2))
        if u == 5:
            s1 = merge(s1, v_store(2))
        if u == 4 and not FUSE:
            s1 = merge(s1, wo_loads())
        s0 = xpost + merge(s0, iss(NV_S[u][0]))
        s1 = merge(s1, iss(NV_S[u][1]))
        cons = [(i7 + 1, f) for f in max_ops(u, t0)] + [(i15 + 1, f) for f in max_ops(u, t1)]
        if FUSE > 1 and u == 4:
            E('s_and_b32 s4, s2, 3')
            E('s_lshl_b32 s4, s4, 2')
            E('s_add_u32 s4, s4, 64')
            E('v_mov_b32 v4, 1')
            E('v_mov_b32 v3, 0')
            E('s_cmp_eq_u32 s3, 0')
            E('s_cselect_b32 s58, 1, 0')
            E('s_mov_b32 s59, 0')
            E('s_mov_b64 exec, s[58:59]')
            E('buffer_atomic_add v4, v3, s[20:23], s4 offen sc1')
            E('s_mov_b64 exec, -1')
        if FUSE > 1 and u == 5:
            E('s_lshr_b32 s4, s39, 3')
            E('s_lshl_b32 s4, s4, 2')
            E('s_add_u32 s4, s4, 64')
            E('buffer_load_dword v5, v3, s[20:23], s4 offen sc0 sc1', tag='rdy')
        for f in pro:
            f()
        if q == 0:
            sched(e, anc[:8], s0, burst=BURST if u else 0)
            sched(e, anc[8:], s1, [(m - 8, f) for m, f in cons])
        else:
            sched(e, anc, s0 + s1, cons, burst=BURST)
        if u == 3:
            vwait('V0')
        if u == 4:
            vwait('V1')
        xpost = exchange(u)
        if u == 2:
            stamp(True)
    tail = exp_ops(5, 2) + exp_ops(5, 3)
    tail = xpost + merge(tail, v_store(3))
    for qt in range(3):
        tail.append(lambda qt=qt: E('ds_write_b32 v60, v%d offset:%d' % (24 + qt, LSTAT - STATS + qt * 1024)))
    def stg():
        e.wait(vm='WO')
        E('s_lshl_b32 s4, s3, 12')
        E('s_add_u32 s4, s4, %d' % WOST)
        E('v_add_u32 v56, s4, v13')
        for m in range(4):
            E('ds_write_b128 v56, a[%d:%d] offset:%d' % (WOR + 4 * m, WOR + 4 * m + 3, m * 1024))
    if not FUSE:
        tail.append(stg)
    if FUSE > 1:
        e.wait(vm='rdy')
        E('v_readfirstlane_b32 s64, v5')
        E('s_mov_b32 s12, s54')
        E('s_and_b32 s13, s55, 0xffff')
        E('s_cmp_ge_u32 s64, 64')
        E('s_cselect_b32 s14, 0x%x, 0' % WS_SIZE)
        E('s_mov_b32 s15, 0x20000')
        if P3PF:
            E('s_lshr_b32 s4, s2, 3')
            E('s_lshl_b32 s4, s4, 2')
            E('s_add_u32 s4, s4, s3')
            E('s_lshl_b32 s4, s4, 13')
            E('s_lshr_b32 s5, s39, 3')
            E('s_lshl_b32 s5, s5, 20')
            E('s_add_u32 s4, s4, s5')
            E('s_add_u32 s4, s4, 0x%x' % WOT_OFF)
            E('v_lshlrev_b32 v4, 7, v1')
            E('buffer_load_dword v5, v4, s[12:15], s4 offen', tag='pf')
    pro, pa = pv_anchors([(2, (0, 1), True)])
    for f in pro:
        f()
    sched(e, pa, tail, lead=100)
    e.wait(lds='all')
    stamp()
    E('s_barrier')
    stamp(True)
    b = []
    TB = [64, 80, 128]
    for qt in range(3):
        def ls(qt=qt):
            E('ds_read_b128 v[46:49], v61 offset:%d' % (LSTAT - STATS + qt * 1024), tag='ls%d' % qt)
            E('ds_read_b128 v[50:53], v61 offset:%d' % (LSTAT - STATS + qt * 1024 + 16), tag='ls%d' % qt)
            e.wait(lds='ls%d' % qt)
            E('v_add_f32 v46, v46, v47')
            E('v_add_f32 v48, v48, v49')
            E('v_add_f32 v50, v50, v51')
            E('v_add_f32 v52, v52, v53')
            E('v_add_f32 v46, v46, v48')
            E('v_add_f32 v50, v50, v52')
            E('v_add_f32 v46, v46, v50')
            E('v_rcp_f32 v%d, v46' % (24 + qt))
            E('v_mul_f32 v%d, v%d, v%d' % (57 + qt, 57 + qt, 24 + qt))
        b.append(ls)
        for r in range(16):
            def f(qt=qt, r=r):
                E('v_accvgpr_read_b32 v%d, a%d' % (TB[qt] + r, OA[0] + 16 * qt + r))
                E('v_mul_f32 v%d, v%d, v%d' % (TB[qt] + r, TB[qt] + r, 57 + qt))
            b.append(f)
    def wt_addr():
        E('v_lshrrev_b32 v46, 4, v1')
        E('v_lshrrev_b32 v47, 2, v1')
        E('v_and_b32 v47, 3, v47')
        E('v_and_b32 v48, 3, v1')
        E('v_lshl_add_u32 v49, v46, 3, v47')
        E('v_lshlrev_b32 v49, 8, v49')
        E('v_xor_b32 v50, s3, v47')
        E('v_lshl_add_u32 v49, v50, 6, v49')
        E('v_lshl_add_u32 v49, v48, 3, v49')
        E('v_add_u32 v49, 0x%x, v49' % WOST)
        for kk in range(2):
            for nn in range(2):
                for hh in range(2):
                    r = 30 + (kk * 2 + nn) * 4 + 2 * hh
                    E('ds_read_b64_tr_b16 v[%d:%d], v49 offset:%d' % (r, r + 1, (32 * kk + 4 * hh) * 256 + nn * 32), tag='wt')
    if not FUSE:
        b.append(wt_addr)
    def epi(qt):
        out = []
        T = TB[qt]
        U = 192 + (qt & 1) * 16
        for r in range(16):
            out.append(lambda r=r: E('v_accvgpr_read_b32 v%d, a%d' % (U + r, OA[1] + 16 * qt + r)))
        for r in range(16):
            out.append(lambda r=r: E('v_fma_f32 v%d, v%d, v%d, v%d' % (T + r, U + r, 24 + qt, T + r)))
        for k in range(8):
            out.append(lambda k=k: E('v_cvt_pk_bf16_f32 v%d, v%d, v%d' % (T + k, T + 2 * k, T + 2 * k + 1)))
        for k in (0, 2):
            def f(k=k):
                E('v_permlane32_swap_b32 v%d, v%d' % (T + 2 * k, T + 2 * k + 2))
                E('v_permlane32_swap_b32 v%d, v%d' % (T + 2 * k + 1, T + 2 * k + 3))
                E('buffer_store_dwordx4 v[%d:%d], v%d, s[28:31], s57 offen offset:%d%s' % (T + 2 * k, T + 2 * k + 3, 27 + qt, k * 256, STPOL))
            out.append(f)
        return out
    E('s_mul_i32 s4, s37, 393216')
    E('s_lshl_b32 s5, s39, 2')
    E('s_add_u32 s5, s5, s3')
    E('s_mul_i32 s5, s5, 3072')
    E('s_add_u32 s57, s4, s5')
    if EPO:
        pro, pa = pv_anchors([(3, (0, 1), False), (2, (2,), True), (3, (2,), False)])
        for f in pro:
            f()
        sched(e, pa[:16], b, lead=60)
        sched(e, pa[16:], epi(0) + epi(1), burst=1)
        stamp()
        for f in epi(2):
            f()
    else:
        pro, pa = pv_anchors([(2, (2,), True), (3, (0, 1, 2), False)])
        for f in pro:
            f()
        sched(e, pa, b, lead=60)
        stamp()
        for qt in range(3):
            for f in epi(qt):
                f()
    if FUSE:
        phase3(e, stamp)
    else:
        E('s_and_b32 s4, s2, 3')
        E('s_lshl_b32 s4, s4, 3')
        E('s_lshl_b32 s5, s3, 1')
        E('s_add_u32 s4, s4, s5')
        E('s_lshl_b32 s4, s4, 17')
        E('s_lshr_b32 s5, s2, 2')
        E('s_lshl_b32 s5, s5, 11')
        E('s_add_u32 s4, s4, s5')
        E('s_add_u32 s4, s4, 0x%x' % WOT_OFF)
        E('s_add_u32 s5, s4, 0x20000')
        e.wait(lds='wt')
        for kk in range(2):
            for nn in range(2):
                r = 30 + (kk * 2 + nn) * 4
                E('buffer_store_dwordx4 v[%d:%d], v11, s[28:31], s%d offen offset:%d%s' % (r, r + 3, 4 + nn, kk * 1024, STPOL))
    stamp(True)
    e.label('L_a_done')
    E('s_endpgm')
    return e


def phase3(e, stamp):
    E = e
    E('s_mov_b32 s20, s52')
    E('s_and_b32 s21, s53, 0xffff')
    E('s_mov_b32 s22, 256')
    E('s_mov_b32 s23, 0x20000')
    E('s_mov_b32 s8, s50')
    E('s_and_b32 s9, s51, 0xffff')
    E('s_mov_b32 s10, 786432')
    E('s_mov_b32 s11, 0x20000')
    E('s_lshl_b32 s62, s37, 2')
    E('s_mul_i32 s63, s3, 40960')
    E('v_mov_b32 v2, 1')
    E('v_mov_b32 v3, 0')
    E('s_cmp_eq_u32 s3, 0')
    E('s_cselect_b32 s58, 1, 0')
    E('s_mov_b32 s59, 0')
    def pub():
        E('s_barrier')
        E('s_mov_b64 exec, s[58:59]')
        E('buffer_atomic_add v2, v3, s[20:23], s62 offen sc1')
        E('s_mov_b64 exec, -1')
    if FUSE > 1:
        E('s_cmp_ge_u32 s64, 64')
        E('s_cbranch_scc0 L_slow')
        q0 = list(e.vmq)
        E('s_lshl_b32 s33, s39, 17')
        E('s_lshl_b32 s5, s3, 15')
        E('s_add_u32 s33, s33, s5')
        E('s_add_u32 s33, s33, 0x%x' % WOT_OFF)
        E('s_lshr_b32 s5, s39, 1')
        E('s_add_u32 s34, s37, s5')
        E('s_and_b32 s34, s34, %d' % P3ROT)
        for n in range(64):
            i, nn = n // 2, n % 2
            if n % 8 == 0:
                E('s_add_u32 s5, s34, %d' % (n // 8))
                E('s_and_b32 s5, s5, 7')
                E('s_lshl_b32 s5, s5, 12')
                E('s_add_u32 s56, s33, s5')
                E('s_add_u32 s57, s56, 0x20000')
            if n == 40:
                e.wait(vm=q0[-1], lds='all')
                if DIAG:
                    E('s_memtime s[68:69]')
                    E('s_waitcnt lgkmcnt(0)')
                pub()
            if n == 60:
                e.wait(vm='wf3')
            E('buffer_load_dwordx4 a[%d:%d], v11, s[28:31], s%d offen offset:%d' % (n * 4, n * 4 + 3, 56 + nn, (i % 4) * 1024), tag='wf%d' % n)
        if P3X:
            e.wait(vm='all')
            E('s_memtime s[68:69]')
            E('s_waitcnt lgkmcnt(0)')
            for n in range(64):
                i, nn = n // 2, n % 2
                if n % 8 == 0:
                    E('s_add_u32 s5, s34, %d' % (n // 8))
                    E('s_and_b32 s5, s5, 7')
                    E('s_lshl_b32 s5, s5, 12')
                    E('s_add_u32 s56, s33, s5')
                    E('s_add_u32 s57, s56, 0x20000')
                if n == 60:
                    e.wait(vm='wf3')
                E('buffer_load_dwordx4 a[%d:%d], v11, s[28:31], s%d offen offset:%d' % (n * 4, n * 4 + 3, 56 + nn, (i % 4) * 1024), tag='wf%d' % n)
            e.wait(vm='all')
        if DIAG:
            E('s_memtime s[70:71]')
            E('s_waitcnt lgkmcnt(0)')
            E('s_lshl_b32 s5, s2, 2')
            E('s_add_u32 s5, s5, s3')
            E('s_lshl_b32 s5, s5, 8')
            E('s_add_u32 s5, s5, 0x%x' % (0xC00000 + 22 * 8))
            E('v_mov_b32 v63, 0')
            for k in range(4):
                E('v_mov_b32 v0, s%d' % (68 + k))
                e.wait(vm='wf30') if not P3X else None
                E('buffer_store_dword v0, v63, s[28:31], s5 offen offset:%d' % (4 * k))
        E('s_branch L_join')
        e.label('L_slow')
        e.vmq = q0
    E('s_mov_b32 s34, 0')
    e.wait(vm='all', lds='all')
    pub()
    e.vmq = []
    stamp()
    E('v_lshrrev_b32 v4, 2, v1')
    E('v_lshrrev_b32 v5, 5, v1')
    E('v_lshlrev_b32 v5, 1, v5')
    E('v_and_b32 v6, 3, v1')
    E('v_xor_b32 v5, v5, v6')
    E('v_lshlrev_b32 v5, 4, v5')
    E('v_lshl_add_u32 v4, v4, 10, v5')
    E('s_lshl_b32 s56, s3, 20')
    E('s_lshl_b32 s5, s39, 5')
    E('s_add_u32 s56, s56, s5')
    E('v_lshrrev_b32 v46, 4, v1')
    E('v_lshrrev_b32 v47, 2, v1')
    E('v_and_b32 v47, 3, v47')
    E('v_lshl_add_u32 v48, v46, 3, v47')
    E('v_lshlrev_b32 v48, 6, v48')
    E('v_lshl_add_u32 v48, v6, 3, v48')
    E('v_and_b32 v46, 1, v46')
    E('v_lshl_add_u32 v48, v46, 5, v48')
    E('v_add_u32 v7, s63, v48')
    E('v_xor_b32 v8, 32, v7')
    def dma(step, slot):
        for k in range(2):
            E('s_add_u32 s5, s63, %d' % (slot * 2048 + k * 1024))
            E('s_mov_b32 m0, s5')
            E('s_add_u32 s6, s56, %d' % ((step * 2 + k) * 16384))
            E('buffer_load_dwordx4 v4, s[24:27], s6 offen lds', tag='w%d' % step)
    def trd(step, slot):
        for nt in range(2):
            for hh in range(2):
                r = (step * 2 + nt) * 4 + 2 * hh
                E('ds_read_b64_tr_b16 a[%d:%d], v%d offset:%d' % (r, r + 1, 7 + nt, slot * 2048 + hh * 256), tag='t%d' % step)
    for st in range(20):
        dma(st, st)
    for st in range(32):
        e.wait(vm='w%d' % st)
        trd(st, st % 20)
        if st == 12:
            e.wait(lds='t11')
            for s2_ in range(20, 32):
                dma(s2_, s2_ - 20)
    stamp()
    e.wait(vm='all', lds='all')
    e.label('L_join')
    E('s_mov_b32 s7, 0')
    e.label('L_poll')
    E('buffer_load_dword v2, v3, s[20:23], s62 offen sc0 sc1')
    E('s_waitcnt vmcnt(0)')
    E('v_readfirstlane_b32 s4, v2')
    E('s_cmp_ge_u32 s4, 16')
    E('s_cbranch_scc1 L_go')
    E('s_sleep 4')
    E('s_add_u32 s7, s7, 1')
    E('s_cmp_lt_u32 s7, 0x10000')
    E('s_cbranch_scc1 L_poll')
    e.label('L_go')
    e.vmq = []
    stamp()
    E('s_mul_i32 s32, s37, 393216')
    E('s_mul_i32 s4, s3, 98304')
    E('s_add_u32 s32, s32, s4')
    D = P3D
    ACC = 64
    FR = 96
    if P3PF > 1:
        E('s_bfe_u32 s4, s2, 0x20003')
        E('s_lshl_b32 s4, s4, 2')
        E('s_add_u32 s4, s4, s3')
        E('s_mul_i32 s4, s4, 24576')
        E('s_mul_i32 s5, s37, 393216')
        E('s_add_u32 s4, s4, s5')
        E('v_lshlrev_b32 v4, 7, v1')
        for t in range(3):
            E('s_add_u32 s5, s4, %d' % (t * 8192))
            E('buffer_load_dword v%d, v4, s[28:31], s5 offen' % (8 + t), tag='pf')
    def loads(i):
        base = FR + (i % D) * 12
        if i % 4 == 0:
            E('s_add_u32 s35, s34, %d' % (i // 4))
            E('s_and_b32 s35, s35, 7')
            E('s_mul_i32 s35, s35, 12288')
            E('s_add_u32 s35, s35, s32')
        E('s_add_u32 s5, s35, %d' % ((i % 4) * 3072))
        for st in range(3):
            E('buffer_load_dwordx4 v[%d:%d], v11, s[28:31], s5 offen offset:%d' % (base + 4 * st, base + 4 * st + 3, st * 1024), tag='k%d' % i)
    for i in range(D):
        loads(i)
    for i in range(32):
        base = FR + (i % D) * 12
        e.wait(vm='k%d' % i)
        for nn in range(2):
            for st in range(3):
                a = ACC + (nn * 3 + st) * 4
                wr = (i * 2 + nn) * 4
                src = 'v[%d:%d]' % (a, a + 3) if i > 0 else '0'
                E('v_mfma_f32_16x16x32_bf16 v[%d:%d], a[%d:%d], v[%d:%d], %s' % (
                    a, a + 3, wr, wr + 3, base + 4 * st, base + 4 * st + 3, src))
        if i + D < 32:
            loads(i + D)
    stamp()
    E('v_add_u32 v12, s63, v11')
    for tl in range(6):
        E('ds_write_b128 v12, v[%d:%d] offset:%d' % (ACC + 4 * tl, ACC + 4 * tl + 3, tl * 1024))
    e.wait(lds='all')
    E('s_barrier')
    E('v_and_b32 v2, 15, v1')
    E('v_lshrrev_b32 v3, 4, v1')
    E('v_lshlrev_b32 v2, 10, v2')
    E('v_lshl_add_u32 v2, v3, 3, v2')
    E('s_mul_i32 s6, s37, 49152')
    E('s_lshl_b32 s5, s39, 5')
    E('s_add_u32 s6, s6, s5')
    def red(rnd):
        E('s_add_u32 s4, s3, %d' % (4 * rnd))
        E('s_lshl_b32 s5, s4, 10')
        E('v_add_u32 v12, s5, v11')
        E('v_add_u32 v13, 0x14000, v12')
        b0 = 96 + 32 * rnd
        E('ds_read_b128 v[%d:%d], v12' % (b0, b0 + 3), tag='r')
        E('ds_read_b128 v[%d:%d], v12 offset:40960' % (b0 + 4, b0 + 7), tag='r')
        E('ds_read_b128 v[%d:%d], v13' % (b0 + 8, b0 + 11), tag='r')
        E('ds_read_b128 v[%d:%d], v13 offset:40960' % (b0 + 12, b0 + 15), tag='r')
        E('s_cmp_ge_u32 s4, 3')
        E('s_cselect_b32 s7, 1, 0')
        E('s_mul_i32 s5, s7, 3')
        E('s_sub_u32 s5, s4, s5')
        E('s_lshl_b32 s5, s5, 14')
        E('s_lshl_b32 s7, s7, 5')
        E('s_add_u32 s5, s5, s7')
        E('s_add_u32 s5, s5, s6')
        e.wait(lds='r')
        for r in range(4):
            E('v_add_f32 v%d, v%d, v%d' % (b0 + r, b0 + r, b0 + 4 + r))
            E('v_add_f32 v%d, v%d, v%d' % (b0 + 8 + r, b0 + 8 + r, b0 + 12 + r))
        for r in range(4):
            E('v_add_f32 v%d, v%d, v%d' % (b0 + r, b0 + r, b0 + 8 + r))
        E('v_cvt_pk_bf16_f32 v%d, v%d, v%d' % (b0 + 16, b0, b0 + 1))
        E('v_cvt_pk_bf16_f32 v%d, v%d, v%d' % (b0 + 17, b0 + 2, b0 + 3))
        E('buffer_store_dwordx2 v[%d:%d], v2, s[8:11], s5 offen' % (b0 + 16, b0 + 17))
    red(0)
    E('s_cmp_ge_u32 s3, 2')
    E('s_cbranch_scc1 L_a_done')
    red(1)


def kernel_b():
    e = Emitter()
    E = e
    e.raw('.p2align 8')
    e.raw('.globl %s' % KB)
    e.raw('.type %s,@function' % KB)
    e.label(KB)
    E('s_cmp_ge_u32 s2, 256')
    E('s_cbranch_scc1 L_b_done')
    E('s_load_dwordx2 s[40:41], s[0:1], 40')
    E('s_load_dwordx2 s[42:43], s[0:1], 56')
    E('v_and_b32 v1, 63, v0')
    E('v_lshrrev_b32 v2, 6, v0')
    E('s_nop 0')
    E('v_readfirstlane_b32 s3, v2')
    E('s_and_b32 s4, s2, 7')
    E('s_lshr_b32 s5, s2, 3')
    E('s_lshr_b32 s6, s4, 1')
    E('s_lshl_b32 s6, s6, 2')
    E('s_lshr_b32 s7, s5, 3')
    E('s_add_u32 s37, s6, s7')
    E('s_and_b32 s6, s4, 1')
    E('s_lshl_b32 s6, s6, 3')
    E('s_and_b32 s7, s5, 7')
    E('s_add_u32 s38, s6, s7')
    E('v_lshlrev_b32 v11, 4, v1')
    E('s_mul_i32 s32, s37, 393216')
    E('s_mul_i32 s4, s3, 49152')
    E('s_add_u32 s32, s32, s4')
    E('s_lshl_b32 s33, s38, 18')
    E('s_lshl_b32 s4, s3, 14')
    E('s_add_u32 s33, s33, s4')
    E('s_add_u32 s33, s33, 0x%x' % WOT_OFF)
    E('s_add_u32 s34, s33, 0x20000')
    E('s_waitcnt lgkmcnt(0)')
    E('s_mov_b32 s8, s40')
    E('s_and_b32 s9, s41, 0xffff')
    E('s_mov_b32 s10, 786432')
    E('s_mov_b32 s11, 0x20000')
    E('s_mov_b32 s28, s42')
    E('s_and_b32 s29, s43, 0xffff')
    E('s_mov_b32 s30, 0x%x' % WS_SIZE)
    E('s_mov_b32 s31, 0x20000')
    D = BD
    ACC = 16
    FR = 40
    stc = [0]
    def stampb():
        if not DIAG:
            return
        i = stc[0]; stc[0] += 1
        E('s_memtime s[60:61]')
        E('s_waitcnt lgkmcnt(0)')
        E('s_lshl_b32 s58, s2, 3')
        E('s_add_u32 s58, s58, s3')
        E('s_lshl_b32 s58, s58, 8')
        E('s_add_u32 s58, s58, 0x%x' % (0xD00000 + i * 8))
        E('v_mov_b32 v39, 0')
        E('v_mov_b32 v0, s60')
        E('buffer_store_dword v0, v39, s[28:31], s58 offen', tag='stamp')
        E('v_mov_b32 v0, s61')
        E('buffer_store_dword v0, v39, s[28:31], s58 offen offset:4', tag='stamp')
    stampb()
    def loads(i):
        base = FR + (i % D) * 20
        E('s_add_u32 s5, s32, %d' % (i * 3072))
        for st in range(3):
            E('buffer_load_dwordx4 v[%d:%d], v11, s[28:31], s5 offen offset:%d' % (base + 4 * st, base + 4 * st + 3, st * 1024), tag='k%d' % i)
        E('s_add_u32 s6, s33, %d' % (i * 1024))
        E('s_add_u32 s7, s34, %d' % (i * 1024))
        E('buffer_load_dwordx4 v[%d:%d], v11, s[28:31], s6 offen' % (base + 12, base + 15), tag='k%d' % i)
        E('buffer_load_dwordx4 v[%d:%d], v11, s[28:31], s7 offen' % (base + 16, base + 19), tag='k%d' % i)
    for i in range(D):
        loads(i)
    for i in range(16):
        base = FR + (i % D) * 20
        e.wait(vm='k%d' % i)
        if i in (0, 4, 8, 12, 15):
            stampb()
        for nn in range(2):
            for st in range(3):
                a = ACC + (nn * 3 + st) * 4
                src = 'v[%d:%d]' % (a, a + 3) if i > 0 else '0'
                E('v_mfma_f32_16x16x32_bf16 v[%d:%d], v[%d:%d], v[%d:%d], %s' % (
                    a, a + 3, base + 12 + 4 * nn, base + 15 + 4 * nn, base + 4 * st, base + 4 * st + 3, src))
        if i + D < 16:
            loads(i + D)
    E('s_mul_i32 s4, s3, 6144')
    E('v_add_u32 v12, s4, v11')
    for tl in range(6):
        E('ds_write_b128 v12, v[%d:%d] offset:%d' % (ACC + 4 * tl, ACC + 4 * tl + 3, tl * 1024))
    e.wait(lds='all')
    E('s_barrier')
    E('s_cmp_ge_u32 s3, 6')
    E('s_cbranch_scc1 L_b_done')
    E('s_lshl_b32 s4, s3, 10')
    E('v_add_u32 v12, s4, v11')
    for wv in range(8):
        E('ds_read_b128 v[%d:%d], v12 offset:%d' % (FR + 4 * wv, FR + 4 * wv + 3, wv * 6144), tag='r%d' % wv)
    e.wait(lds='r1')
    for r in range(4):
        E('v_add_f32 v%d, v%d, v%d' % (16 + r, FR + r, FR + 4 + r))
    for wv in range(2, 8):
        e.wait(lds='r%d' % wv)
        for r in range(4):
            E('v_add_f32 v%d, v%d, v%d' % (16 + r, 16 + r, FR + 4 * wv + r))
    E('v_cvt_pk_bf16_f32 v20, v16, v17')
    E('v_cvt_pk_bf16_f32 v21, v18, v19')
    E('s_cmp_ge_u32 s3, 3')
    E('s_cselect_b32 s4, 1, 0')
    E('s_mul_i32 s5, s4, 3')
    E('s_sub_u32 s5, s3, s5')
    E('s_mul_i32 s6, s37, 49152')
    E('s_lshl_b32 s5, s5, 14')
    E('s_add_u32 s6, s6, s5')
    E('s_lshl_b32 s5, s38, 6')
    E('s_add_u32 s6, s6, s5')
    E('s_lshl_b32 s4, s4, 5')
    E('s_add_u32 s6, s6, s4')
    E('v_and_b32 v2, 15, v1')
    E('v_lshrrev_b32 v3, 4, v1')
    E('v_lshlrev_b32 v2, 10, v2')
    E('v_lshl_add_u32 v2, v3, 3, v2')
    E('buffer_store_dwordx2 v[20:21], v2, s[8:11], s6 offen')
    stampb()
    e.label('L_b_done')
    E('s_endpgm')
    return e


def kd(name, vgpr, accum, sgpr=72):
    return '''.p2align 6
.amdhsa_kernel %s
  .amdhsa_next_free_vgpr %d
  .amdhsa_next_free_sgpr %d
  .amdhsa_accum_offset %d
  .amdhsa_group_segment_fixed_size 0
  .amdhsa_kernarg_size 64
  .amdhsa_user_sgpr_count 2
  .amdhsa_user_sgpr_kernarg_segment_ptr 1
  .amdhsa_system_sgpr_workgroup_id_x 1
.end_amdhsa_kernel
''' % (name, vgpr, sgpr, accum)


def main():
    global DIAG
    global DIAG_ALL
    if len(sys.argv) > 2 and sys.argv[2].startswith('diag'):
        DIAG = True
        DIAG_ALL = sys.argv[2] == 'diag'
    for kv in sys.argv[3:]:
        k, v = kv.split('=', 1)
        globals()[k] = eval(v)
    ref = open('cdna_kernels/%s.s.ref' % NAME).read().splitlines()
    head = [l for l in ref if l.startswith(';') and '@launch' not in l and 'launch geometry' not in l and 'grid=ceil' not in l]
    a = kernel_a()
    b = kernel_b()
    out = '\n'.join(head) + '\n'
    out += '; @launch kernel=%s grid=(256,1,1) block=(256,1,1) lds=%d\n' % (KA, LDS_A)
    if not FUSE:
        out += '; @launch kernel=%s grid=(256,1,1) block=(512,1,1) lds=49152\n' % KB
    out += '.amdgcn_target "amdgcn-amd-amdhsa--gfx950"\n.text\n'
    out += a.text() + ('' if FUSE else b.text())
    out += '.section .rodata,"a"\n'
    out += kd(KA, 512, 256) + ('' if FUSE else kd(KB, max(144, 44 + 20 * BD), max(144, 44 + 20 * BD)))
    path = sys.argv[1] if len(sys.argv) > 1 else 'cdna_kernels/%s.s' % NAME
    open(path, 'w').write(out)
    print('nops inserted: A %d  B %d; lines %d' % (a.nops_inserted, b.nops_inserted, out.count('\n')))


if __name__ == '__main__':
    main()
```

```python
import struct, sys, math
from emit import Emitter, merge, sched

NAME = 'standalone__gqa_block_cached__near_ridge'
KA = 'gqa_attn_kernel'
KB = 'gqa_oproj_kernel'

def f32bits(x):
    return struct.unpack('<I', struct.pack('<f', x))[0]

XB = 0
QB = 24576
PB = [0, 24576]
RING = 49152
RING_W = 12288
NSLOT = 3
VS = [98304, 131072, 98304, 131072]
STATS = 81920
LSTAT = 86016
WOST = 65536
LDS_A = 163840

WOT_OFF = 0x800000
WS_SIZE = 0x3000000


DIAG = False
DIAG_ALL = True
PRO0, PRO1, STEPN, SLOWCOST = 12, 8, 8, 6
KFIRST = 0
BD = 5
P3PF = 2
P3X = 0
P3ROT = 7
FUSE = 0
PART = 1
PFA = 12
PF6 = 28
PRT_OFF = 0x2000000
P3D = 8
TOUCH = 0
EPO = 0
BURST = 2
XDEF = 1
WQPF = 2
KORD = 1
KVPOL = ''
STPOL = ''
PVS = 16
KTF = 0
NOLOAD = 0
ROT = 0
CI, KI = 3, 0
NV_LATE = 40
NV_S = [[4, 4], [4, 4], [4, 4], [4, 4], [4, 4], [0, 0]]
def kernel_a():
    e = Emitter()
    E = e
    stampc = [0]
    def stamp(key=False):
        if not DIAG or not (DIAG_ALL or key):
            return
        i = stampc[0]; stampc[0] += 1
        E('s_memtime s[60:61]')
        E('s_waitcnt lgkmcnt(0)')
        E('s_lshl_b32 s58, s2, 2')
        E('s_add_u32 s58, s58, s3')
        E('s_lshl_b32 s58, s58, 8')
        E('s_add_u32 s58, s58, 0x%x' % (0xC00000 + i * 8))
        E('v_mov_b32 v63, 0')
        E('v_mov_b32 v0, s60')
        E('buffer_store_dword v0, v63, s[28:31], s58 offen', tag='stamp')
        E('v_mov_b32 v0, s61')
        E('buffer_store_dword v0, v63, s[28:31], s58 offen offset:4', tag='stamp')
    e.raw('.p2align 8')
    e.raw('.globl %s' % KA)
    e.raw('.type %s,@function' % KA)
    e.label(KA)
    E('s_cmp_ge_u32 s2, 256')
    E('s_cbranch_scc1 L_a_done')
    E('s_load_dwordx16 s[40:55], s[0:1], 0')
    E('v_and_b32 v1, 63, v0')
    E('v_lshrrev_b32 v2, 6, v0')
    E('s_nop 0')
    E('v_readfirstlane_b32 s3, v2')
    if FUSE:
        E('s_lshr_b32 s4, s2, 3')
        E('s_and_b32 s38, s2, 3')
        E('s_lshl_b32 s38, s38, 1')
        E('s_and_b32 s5, s4, 1')
        E('s_add_u32 s38, s38, s5')
        E('s_bfe_u32 s37, s2, 0x10002')
        E('s_lshl_b32 s37, s37, 3')
        E('s_lshr_b32 s5, s4, 2')
        E('s_add_u32 s37, s37, s5')
        E('s_bfe_u32 s4, s4, 0x10001')
    else:
        E('s_and_b32 s38, s2, 7')
        E('s_lshr_b32 s4, s2, 3')
        E('s_lshr_b32 s37, s4, 1')
        E('s_and_b32 s4, s4, 1')
    E('s_lshl_b32 s39, s38, 2')
    E('s_lshl_b32 s4, s4, 1')
    E('s_add_u32 s39, s39, s4')
    E('s_lshl_b32 s4, s37, 3')
    E('s_add_u32 s4, s4, s38')
    E('s_lshl_b32 s32, s4, 17')
    E('s_lshl_b32 s5, s3, 15')
    E('s_add_u32 s32, s32, s5')
    E('s_lshr_b32 s5, s2, 3')
    E('s_and_b32 s5, s5, 1')
    E('s_mul_i32 s5, s5, %d' % ROT)
    for kt in range(4):
        E('s_add_u32 s6, s5, %d' % kt)
        E('s_and_b32 s6, s6, 3')
        E('s_lshl_b32 s6, s6, 13')
        E('s_add_u32 s%d, s32, s6' % (64 + kt))
    E('s_mul_i32 s33, s37, 49152')
    E('s_mul_i32 s5, s3, 12288')
    E('s_add_u32 s33, s33, s5')
    E('s_lshl_b32 s34, s39, 8')
    E('s_lshl_b32 s5, s3, 7')
    E('s_add_u32 s34, s34, s5')
    E('s_mul_i32 s35, s3, %d' % RING_W)
    E('s_add_u32 s35, s35, %d' % RING)
    E('s_mov_b32 s36, 0x%08x' % f32bits(math.log2(math.e) / math.sqrt(128.0)))
    E('v_and_b32 v46, 15, v1')
    E('v_lshrrev_b32 v47, 4, v1')
    E('v_xor_b32 v2, v46, v47')
    E('v_lshlrev_b32 v2, 4, v2')
    E('v_lshl_add_u32 v2, v46, 10, v2')
    E('v_lshlrev_b32 v11, 4, v1')
    E('v_lshrrev_b32 v48, 3, v1')
    E('v_and_b32 v49, 7, v1')
    E('v_lshrrev_b32 v50, 1, v49')
    E('v_and_b32 v51, 1, v47')
    E('v_xor_b32 v50, v50, v51')
    E('v_and_b32 v52, 1, v49')
    E('v_lshlrev_b32 v52, 4, v52')
    E('v_lshl_add_u32 v53, v48, 13, v52')
    E('v_lshl_add_u32 v3, v50, 5, v53')
    E('v_xor_b32 v50, 2, v50')
    E('v_lshl_add_u32 v4, v50, 5, v53')
    E('v_add_u32 v4, 0x10000, v4')
    E('v_add_u32 v5, 0x20000, v3')
    E('v_add_u32 v6, 0x20000, v4')
    E('v_lshrrev_b32 v48, 2, v1')
    E('v_and_b32 v48, 3, v48')
    E('v_and_b32 v49, 3, v1')
    E('v_lshrrev_b32 v50, 1, v48')
    E('v_lshlrev_b32 v51, 1, v51')
    E('v_or_b32 v50, v50, v51')
    E('v_lshl_add_u32 v52, v47, 3, v48')
    E('v_lshlrev_b32 v52, 7, v52')
    E('v_lshl_add_u32 v52, v49, 3, v52')
    E('v_add_u32 v52, s35, v52')
    for t in range(4):
        E('v_xor_b32 v53, %d, v50' % t)
        E('v_lshl_add_u32 v%d, v53, 5, v52' % (7 + t))
    E('v_and_b32 v53, 31, v1')
    E('v_lshrrev_b32 v54, 5, v1')
    E('v_lshlrev_b32 v12, 4, v46')
    E('v_lshl_add_u32 v12, v47, 8, v12')
    E('v_lshlrev_b32 v55, 2, v47')
    E('v_xor_b32 v55, v55, v46')
    E('v_lshlrev_b32 v55, 4, v55')
    E('v_lshl_add_u32 v13, v47, 8, v55')
    E('v_lshl_add_u32 v55, v54, 2, v48')
    E('v_lshlrev_b32 v55, 8, v55')
    E('v_xor_b32 v56, s3, v48')
    E('v_lshl_add_u32 v55, v56, 6, v55')
    E('v_and_b32 v56, 1, v47')
    E('v_lshl_add_u32 v55, v56, 5, v55')
    E('v_lshl_add_u32 v14, v49, 3, v55')
    E('v_add_u32 v14, %d, v14' % VS[0])
    E('s_lshl_b32 s4, s3, 11')
    E('v_add_u32 v15, s4, v11')
    E('v_lshlrev_b32 v55, 4, v46')
    E('v_lshl_add_u32 v55, v54, 9, v55')
    E('v_lshl_add_u32 v55, v56, 3, v55')
    E('s_lshr_b32 s4, s3, 1')
    E('s_mul_i32 s4, s4, 3')
    E('s_and_b32 s5, s3, 1')
    E('s_lshl_b32 s5, s5, 12')
    E('s_add_u32 s5, s5, %d' % QB)
    for st in range(3):
        E('s_add_u32 s6, s4, %d' % st)
        E('s_lshr_b32 s7, s6, 1')
        E('s_lshl_b32 s7, s7, 13')
        E('s_and_b32 s6, s6, 1')
        E('s_lshl_b32 s6, s6, 8')
        E('s_add_u32 s6, s6, s7')
        E('s_add_u32 s6, s6, s5')
        E('v_add_u32 v%d, s6, v55' % (16 + st))
    E('v_lshlrev_b32 v20, 5, v53')
    E('v_lshl_add_u32 v19, v54, 2, v20')
    E('s_lshl_b32 s4, s3, 3')
    E('v_add_u32 v19, s4, v19')
    E('v_lshlrev_b32 v55, 4, v46')
    E('v_lshl_add_u32 v55, v54, 8, v55')
    if PART:
        E('s_mul_i32 s4, s3, 3072')
        E('s_add_u32 s5, s4, 86016')
        E('s_cmp_eq_u32 s3, 0')
        E('s_cselect_b32 s5, 77824, s5')
        E('s_add_u32 s4, s4, 65536')
        E('s_sub_u32 s5, s5, s4')
        E('v_add_u32 v55, s4, v55')
    else:
        E('s_mov_b32 s5, 12288')
    for qt in range(3):
        E('v_add_u32 v57, %d, v56' % (2 * qt))
        E('v_cmp_le_u32 vcc, 3, v57')
        E('v_subrev_u32 v58, 3, v57')
        E('v_lshlrev_b32 v58, 10, v58')
        E('v_add_u32 v58, s5, v58')
        E('v_lshlrev_b32 v57, 10, v57')
        E('v_cndmask_b32 v57, v57, v58, vcc')
        E('v_add_u32 v%d, v57, v55' % (27 + qt))
    E('s_waitcnt lgkmcnt(0)')
    def srd(d, lo, size):
        E('s_mov_b32 s%d, s%d' % (d, lo))
        E('s_and_b32 s%d, s%d, 0xffff' % (d + 1, lo + 1))
        E('s_mov_b32 s%d, 0x%x' % (d + 2, size))
        E('s_mov_b32 s%d, 0x20000' % (d + 3))
    srd(8, 40, 786432)
    srd(12, 42, 16777216)
    srd(16, 44, 16777216)
    srd(20, 46, 4194304)
    srd(24, 48, 4194304)
    srd(28, 54, WS_SIZE)

    stamp(True)
    def wqpf():
        E('s_lshr_b32 s4, s2, 3')
        E('s_lshl_b32 s4, s4, 2')
        E('s_add_u32 s4, s4, s3')
        E('s_lshl_b32 s4, s4, 15')
        if FUSE:
            E('s_and_b32 s5, s2, 3')
            E('s_lshl_b32 s5, s5, 11')
        else:
            E('s_lshl_b32 s5, s38, 10')
        E('s_add_u32 s4, s4, s5')
        E('v_lshrrev_b32 v62, 4, v1')
        E('v_lshlrev_b32 v62, 13, v62')
        E('v_and_b32 v63, 15, v1')
        E('v_lshl_add_u32 v62, v63, %d, v62' % (7 if FUSE else 6))
        E('buffer_load_dword v62, v62, s[20:23], s4 offen', tag='pf')
    if WQPF == 1:
        wqpf()
    if TOUCH:
        E('v_mov_b32 v63, 0')
        E('s_mul_i32 s4, s37, 393216')
        E('s_lshl_b32 s5, s39, 2')
        E('s_add_u32 s5, s5, s3')
        E('s_mul_i32 s5, s5, 3072')
        E('s_add_u32 s4, s4, s5')
        E('buffer_load_dword v248, v63, s[28:31], s4 offen', tag='pf')
        E('s_and_b32 s4, s2, 3')
        E('s_lshl_b32 s4, s4, 20')
        E('s_add_u32 s4, s4, 0x%x' % WOT_OFF)
        E('buffer_load_dword v249, v63, s[28:31], s4 offen', tag='pf')
        if TOUCH > 1:
            E('buffer_load_dword v250, v63, s[12:15], s64 offen', tag='pf')
            E('buffer_load_dword v251, v63, s[16:19], s64 offen', tag='pf')
            E('s_lshl_b32 s4, s2, 14')
            E('buffer_load_dword v252, v63, s[24:27], s4 offen', tag='pf')
    for n in range(KFIRST):
        E('s_add_u32 s7, s%d, %d' % (64 + n // 8, (n % 8) * 1024))
        E('buffer_load_dwordx4 a[%d:%d], v12, s[12:15], s7 offen' % (n * 4, n * 4 + 3), tag='K%d' % (n // 8))
    E('s_mul_i32 s4, s3, 12288')
    for i in range(12):
        E('s_mul_i32 s5, s3, 12')
        E('s_add_u32 s5, s5, %d' % i)
        E('s_and_b32 s5, s5, 15')
        E('s_lshl_b32 s5, s5, 4')
        E('v_xor_b32 v%d, s5, v11' % (60 + (i & 1)))
        E('s_add_u32 s5, s4, %d' % (XB + i * 1024))
        E('s_mov_b32 m0, s5')
        E('s_add_u32 s6, s33, %d' % (i * 1024))
        E('buffer_load_dwordx4 v%d, s[8:11], s6 offen lds' % (60 + (i & 1)), tag='x')

    def wq_dma(c):
        out = []
        for m in range(4):
            def f(m=m):
                E('s_add_u32 s5, s35, %d' % ((c % NSLOT) * 4096 + m * 1024))
                E('s_mov_b32 m0, s5')
                E('s_add_u32 s6, s34, %d' % (c * 262144))
                E('buffer_load_dwordx4 v%d, s[20:23], s6 offen lds' % (3 + m), tag='wq%d' % c)
            out.append(f)
        return out

    def wq_reg(c):
        if c < 8:
            return 'v', 168 + (c - 3) * 16
        return 'a', 128 + (c - 8) * 16

    def wq_load(c):
        out = []
        fl, r = wq_reg(c)
        for m in range(4):
            def f(m=m):
                E('s_add_u32 s6, s34, %d' % (c * 262144))
                E('buffer_load_dwordx4 %s[%d:%d], v%d, s[20:23], s6 offen' % (fl, r + 4 * m, r + 4 * m + 3, 3 + m), tag='wq%d' % c)
            out.append(f)
        return out

    def wq_write(c):
        out = []
        fl, r = wq_reg(c)
        out.append(lambda: e.wait(vm='wq%d' % c))
        for m in range(4):
            out.append(lambda m=m: E('ds_write_b128 v59, %s[%d:%d] offset:%d' % (fl, r + 4 * m, r + 4 * m + 3, (c % NSLOT) * 4096 + m * 1024)))
        return out

    ACC = 64
    AF = [112, 128]
    BF = [144, 156]

    def p1_reads(c):
        out = []
        bu = c & 1
        sl = c % NSLOT
        out.append(lambda: E('v_xor_b32 v%d, %d, v2' % (60 + bu, c * 64)))
        for st in range(3):
            out.append(lambda st=st: E('ds_read_b128 v[%d:%d], v%d offset:%d' % (BF[bu] + 4 * st, BF[bu] + 4 * st + 3, 60 + bu, XB + st * 16384), tag='p1r%d' % c))
        for t in range(4):
            for hh in range(2):
                out.append(lambda t=t, hh=hh: E('ds_read_b64_tr_b16 v[%d:%d], v%d offset:%d' % (
                    AF[bu] + 4 * t + 2 * hh, AF[bu] + 4 * t + 2 * hh + 1, 7 + t, sl * 4096 + hh * 512), tag='p1r%d' % c))
        return out

    def kload(n):
        def f():
            E('s_add_u32 s7, s%d, %d' % (64 + n // 8, (n % 8) * 1024))
            E('buffer_load_dwordx4 a[%d:%d], v12, s[12:15], s7 offen%s' % (n * 4, n * 4 + 3, KVPOL), tag='K%d' % (n // 8))
        return f

    def v_chunk(t):
        out = []
        for mm in range(8):
            def f(mm=mm):
                E('s_lshl_b32 s5, s3, 13')
                E('s_add_u32 s5, s5, %d' % (VS[t] + mm * 1024))
                E('s_mov_b32 m0, s5')
                E('s_add_u32 s6, s%d, %d' % (64 + t, mm * 1024))
                E('buffer_load_dwordx4 v13, s[16:19], s6 offen%s lds' % KVPOL, tag='V%d' % t)
            out.append(f)
        return out

    def v_regs(t):
        out = []
        for mm in range(8):
            def f(mm=mm):
                r = 192 + (t - 2) * 32 + mm * 4
                E('s_add_u32 s6, s%d, %d' % (64 + t, mm * 1024))
                E('buffer_load_dwordx4 v[%d:%d], v12, s[16:19], s6 offen%s' % (r, r + 3, KVPOL), tag='V%d' % t)
            out.append(f)
        return out
    E('v_add_u32 v59, s35, v11')
    def wo_early():
        out = []
        def pre():
            E('s_lshr_b32 s4, s2, 2')
            E('s_lshl_b32 s4, s4, 16')
            E('s_and_b32 s5, s2, 3')
            E('s_lshl_b32 s5, s5, 8')
            E('s_add_u32 s4, s4, s5')
            E('s_lshl_b32 s5, s3, 14')
            E('s_add_u32 s56, s4, s5')
            E('v_lshrrev_b32 v248, 4, v1')
            E('v_and_b32 v249, 15, v1')
            E('v_lshlrev_b32 v248, 10, v248')
            E('v_lshl_add_u32 v248, v249, 4, v248')
            E('buffer_load_dwordx4 a[96:99], v248, s[24:27], s56 offen', tag='WO')
        out.append(pre)
        for m in range(1, 4):
            def f(m=m):
                E('s_add_u32 s6, s56, %d' % (m * 4096))
                E('buffer_load_dwordx4 a[%d:%d], v248, s[24:27], s6 offen' % (96 + 4 * m, 99 + 4 * m), tag='WO')
            out.append(f)
        return out
    seq = []
    if KORD:
        slow = [kload(n) for n in range(KFIRST, 32)] + v_chunk(0) + v_chunk(1) + v_regs(2) + v_regs(3)
    else:
        slow = [kload(n) for n in range(KFIRST, 16)] + v_chunk(0) + v_chunk(1) + [kload(n) for n in range(16, 32)] + v_regs(2) + v_regs(3)
    for c in range(3):
        seq += wq_dma(c)
    for c in range(3, 16):
        seq += wq_load(c)
        if c >= CI:
            seq += slow[:KI]
            slow = slow[KI:]
    if FUSE > 1:
        seq += wo_early()
    nfast = len(seq)
    seq += slow
    LEFT = {'K0': 56, 'K1': 48, 'V0': 40, 'V1': 32, 'K2': 24, 'K3': 16, 'V2': 8, 'V3': 0}
    if KORD:
        LEFT = {'K0': 56, 'K1': 48, 'K2': 40, 'K3': 32, 'V0': 24, 'V1': 16, 'V2': 8, 'V3': 0}
    def vwait(tag):
        nf = 0
        while len(seq) > LEFT[tag]:
            issue(SLOWCOST); nf += 1
        if nf:
            print('forced issue of %d loads for %s' % (nf, tag))
        e.wait(vm=tag)
    issued = [0]
    def issue(maxn=1000):
        n = 0
        while seq and len(e.vmq) < 62 and n < maxn:
            seq.pop(0)()
            n += 1 if issued[0] < nfast else SLOWCOST
            issued[0] += 1
    stamp()
    issue(PRO0)
    if WQPF == 2:
        wqpf()
    stamp()
    e.wait(vm='wq0')
    stamp()
    E('s_barrier')
    stamp()
    issue(PRO1)
    for f in p1_reads(0):
        f()
    for c in range(16):
        bu = c & 1
        e.wait(lds='p1r%d' % c)
        if c in (2, 4, 6, 8, 12):
            stamp()
        rd = []
        if c + 1 < 16:
            if c + 1 < 3:
                rd.append(lambda c=c: e.wait(vm='wq%d' % (c + 1)))
            rd += p1_reads(c + 1)
        rd2 = []
        if 3 <= c + 2 < 16:
            rd2 = wq_write(c + 2)
        rd2.append(lambda: issue(STEPN))
        if FUSE > 1 and c == 14:
            def stg0():
                e.wait(vm='WO')
                E('s_lshl_b32 s4, s3, 12')
                E('s_add_u32 s4, s4, %d' % VS[1])
                E('v_add_u32 v250, s4, v13')
                for m in range(4):
                    E('ds_write_b128 v250, a[%d:%d] offset:%d' % (96 + 4 * m, 99 + 4 * m, m * 1024))
            rd2.append(stg0)
        mf = []
        for nt in range(4):
            for st in range(3):
                a = ACC + (nt * 3 + st) * 4
                src = 'v[%d:%d]' % (a, a + 3) if c > 0 else '0'
                mf.append(lambda a=a, nt=nt, st=st, src=src: E('v_mfma_f32_16x16x32_bf16 v[%d:%d], v[%d:%d], v[%d:%d], %s' % (
                    a, a + 3, AF[bu] + 4 * nt, AF[bu] + 4 * nt + 3, BF[bu] + 4 * st, BF[bu] + 4 * st + 3, src)))
        for f in merge(mf[:6], rd) + merge(mf[6:], rd2):
            f()
    for nt in range(4):
        for st in range(3):
            a = ACC + (nt * 3 + st) * 4
            E('v_cvt_pk_bf16_f32 v%d, v%d, v%d' % (a, a, a + 1))
            E('v_cvt_pk_bf16_f32 v%d, v%d, v%d' % (a + 1, a + 2, a + 3))
    if FUSE > 1:
        e.wait(lds='all')
    stamp(True)
    E('s_barrier')
    for nt in range(4):
        for st in range(3):
            a = ACC + (nt * 3 + st) * 4
            E('ds_write_b64 v%d, v[%d:%d] offset:%d' % (16 + st, a, a + 1, nt * 1024))

    if FUSE > 1:
        E('v_lshrrev_b32 v46, 4, v1')
        E('v_lshrrev_b32 v47, 2, v1')
        E('v_and_b32 v47, 3, v47')
        E('v_and_b32 v48, 3, v1')
        E('v_lshl_add_u32 v49, v46, 3, v47')
        E('v_lshlrev_b32 v49, 8, v49')
        E('v_xor_b32 v50, s3, v47')
        E('v_lshl_add_u32 v49, v50, 6, v49')
        E('v_lshl_add_u32 v49, v48, 3, v49')
        E('v_add_u32 v49, 0x%x, v49' % VS[1])
        for kk in range(2):
            for nn in range(2):
                for hh in range(2):
                    r = 30 + (kk * 2 + nn) * 4 + 2 * hh
                    E('ds_read_b64_tr_b16 v[%d:%d], v49 offset:%d' % (r, r + 1, (32 * kk + 4 * hh) * 256 + nn * 32), tag='wt')
        E('s_and_b32 s4, s2, 3')
        E('s_lshl_b32 s4, s4, 3')
        E('s_lshl_b32 s5, s3, 1')
        E('s_add_u32 s4, s4, s5')
        E('s_lshl_b32 s4, s4, 17')
        E('s_lshr_b32 s5, s2, 2')
        E('s_lshl_b32 s5, s5, 11')
        E('s_add_u32 s4, s4, s5')
        E('s_add_u32 s62, s4, 0x%x' % WOT_OFF)
        E('s_add_u32 s63, s62, 0x20000')
        E('s_mov_b32 s20, s52')
        E('s_and_b32 s21, s53, 0xffff')
        E('s_mov_b32 s22, 256')
        E('s_mov_b32 s23, 0x20000')
    while len(seq) > NV_LATE:
        issue(SLOWCOST)
    if NOLOAD:
        del seq[:]
    e.wait(lds='all')
    if FUSE > 1:
        for kk in range(2):
            for nn in range(2):
                r = 30 + (kk * 2 + nn) * 4
                E('buffer_store_dwordx4 v[%d:%d], v11, s[28:31], s%d offen offset:%d sc1' % (r, r + 3, 62 + nn, kk * 1024), tag='wst')
    E('s_barrier')
    QF = 128
    for qt in range(3):
        for ks in range(8):
            r = QF + (qt * 8 + ks) * 4
            E('ds_read_b128 a[%d:%d], v11 offset:%d' % (r, r + 3, QB + (qt * 8 + ks) * 1024), tag='Q')
    E('s_lshl_b32 s4, s3, 13')
    E('s_add_u32 s4, s4, 0xC000')
    E('v_and_b32 v46, 15, v1')
    E('v_lshrrev_b32 v47, 4, v1')
    E('v_xor_b32 v48, v46, v47')
    for jj in range(4):
        E('v_xor_b32 v49, %d, v48' % (4 * jj))
        E('v_lshlrev_b32 v49, 4, v49')
        E('v_lshl_add_u32 v49, v47, 8, v49')
        E('v_add_u32 v%d, s4, v49' % (6 + jj))
    E('v_and_b32 v46, 31, v1')
    E('v_lshrrev_b32 v47, 5, v1')
    E('v_and_b32 v48, 15, v1')
    E('v_xor_b32 v48, v48, v47')
    E('v_lshlrev_b32 v48, 4, v48')
    E('v_lshl_add_u32 v48, v46, 8, v48')
    E('v_add_u32 v54, s4, v48')
    E('v_add_u32 v60, 0x%x, v19' % STATS)
    E('v_add_u32 v61, 0x%x, v20' % STATS)
    def ktr(kt):
        w_ = lambda: vwait('K%d' % kt)
        w_.cost = 0
        out = [w_]
        for m in range(8):
            r = (kt * 8 + m) * 4
            out.append(lambda m=m, r=r: E('ds_write_b128 v%d, a[%d:%d] offset:%d' % (6 + (m & 3), r, r + 3, m * 1024)))
        for ks in range(8):
            r = (kt * 8 + ks) * 4
            def f(ks=ks, r=r):
                E('v_xor_b32 v%d, %d, v54' % (55 + (ks & 1), ks * 32))
                E('ds_read_b128 a[%d:%d], v%d' % (r, r + 3, 55 + (ks & 1)), tag='kt%d' % kt)
            out.append(f)
        return out
    SB = [64, 128]
    MX = 62
    def sreg(u, kt):
        return SB[u & 1] + (kt & 1) * 16
    def max_ops(u, kt):
        out = []
        for i in range(8):
            s_ = sreg(u, kt) + 2 * i
            if (kt & 1) == 0 and i == 0:
                out.append(lambda s_=s_: E('v_max_f32 v%d, v%d, v%d' % (MX, s_, s_ + 1)))
            else:
                out.append(lambda s_=s_: E('v_max3_f32 v%d, v%d, v%d, v%d' % (MX, s_, s_ + 1, MX)))
        return out
    def s_mf(u, kt):
        q = u % 3
        mf = []
        for ks in range(8):
            s_ = sreg(u, kt)
            src = 'v[%d:%d]' % (s_, s_ + 15) if ks > 0 else '0'
            kr = (kt * 8 + ks) * 4
            qr = QF + (q * 8 + ks) * 4
            mf.append(lambda s_=s_, kr=kr, qr=qr, src=src: E('v_mfma_f32_32x32x16_bf16 v[%d:%d], a[%d:%d], a[%d:%d], %s' % (
                s_, s_ + 15, kr, kr + 3, qr, qr + 3, src)))
        return mf
    PK = [30, 34, 38, 42]
    pkc = [0]
    OA = [0, 64]
    PSL = {(0, 0): 0, (0, 1): 8192, (1, 0): 16384, (1, 1): 24576, (2, 0): 32768, (2, 1): 40960,
           (0, 2): 49152, (0, 3): 57344, (1, 2): 0, (1, 3): 16384, (2, 2): 32768, (2, 3): 8192}
    def exp_ops(u, kt):
        q = u % 3
        out = []
        s0 = sreg(u, kt)
        for hf in range(2):
            pk = PK[pkc[0] % 4]; pkc[0] += 1
            regs = [s0 + 8 * hf + i for i in range(8)]
            for r in regs:
                out.append(lambda r=r: E('v_fma_f32 v%d, v%d, s36, -v%d' % (r, r, 21 + q)))
            for r in regs:
                out.append(lambda r=r: E('v_exp_f32 v%d, v%d' % (r, r)))
            for k, r in enumerate(regs):
                if kt == 0 and hf == 0 and k == 0:
                    out.append(lambda r=r: E('v_add_f32 v%d, v%d, v%d' % (24 + q, r, r + 1)))
                elif kt == 0 and hf == 0 and k == 1:
                    pass
                else:
                    out.append(lambda r=r: E('v_add_f32 v%d, v%d, v%d' % (24 + q, r, 24 + q)))
                if k & 1:
                    out.append(lambda r=r, pk=pk, k=k: E('v_cvt_pk_bf16_f32 v%d, v%d, v%d' % (pk + k // 2, r - 1, r)))
            off = PSL[(q, kt)] + hf * 1024
            out.append(lambda pk=pk, off=off: E('ds_write_b128 v15, v[%d:%d] offset:%d' % (pk, pk + 3, off)))
        return out
    def exchange(u):
        h, q = u // 3, u % 3
        E('ds_write_b32 v60, v%d offset:%d' % (MX, q * 1024))
        e.wait(lds='all')
        stamp()
        E('s_barrier')
        E('ds_read_b128 v[46:49], v61 offset:%d' % (q * 1024), tag='st')
        E('ds_read_b128 v[50:53], v61 offset:%d' % (q * 1024 + 16), tag='st')
        out = [lambda: e.wait(lds='st')]
        ops = ['v_max3_f32 v46, v46, v47, v48', 'v_max3_f32 v50, v50, v51, v52', 'v_max3_f32 v46, v46, v49, v53', 'v_max_f32 v46, v46, v50']
        if h == 0:
            ops += ['v_mul_f32 v%d, s36, v46' % (21 + q)]
        else:
            ops += ['v_mul_f32 v46, s36, v46', 'v_max_f32 v46, v46, v%d' % (21 + q), 'v_sub_f32 v47, v%d, v46' % (21 + q),
                    'v_exp_f32 v%d, v47' % (57 + q), 'v_mov_b32 v%d, v46' % (21 + q), 'v_mul_f32 v%d, v%d, v%d' % (24 + q, 24 + q, 57 + q)]
        out += [(lambda o=o: E(o)) for o in ops]
        if not XDEF:
            for f in out:
                f()
            out = []
        return out

    PB4 = [96, 112, 160, 176]
    pvc = [0]
    def C(cost, fn):
        fn.cost = cost
        return fn
    def pv_anchors(lst):
        steps = []
        for (t, qs, first) in lst:
            for n in range(8):
                steps.append((t, qs, first, n))
        base = pvc[0]
        pvc[0] += len(steps)
        def reads(i):
            t, qs, first, n = steps[i]
            u, hf = n // 2, n % 2
            b = PB4[(base + i) & 3]
            vb = 14 if (t & 1) == 0 else 10
            tag = 'pv%d' % (base + i)
            out = []
            for ee in range(2):
                out.append(lambda ee=ee: E('ds_read_b64_tr_b16 v[%d:%d], v%d offset:%d' % (
                    b + 2 * ee, b + 2 * ee + 1, vb, (32 * u + 16 * hf + 8 * ee) * 256), tag=tag))
            for qt in qs:
                off = PSL[(qt, t)] + u * 2048 + hf * 1024
                out.append(lambda qt=qt, off=off: E('ds_read_b128 v[%d:%d], v11 offset:%d' % (
                    b + 4 + 4 * qt, b + 7 + 4 * qt, off), tag=tag))
            return out
        pro = reads(0) + reads(1)
        anc = []
        for i, (t, qs, first, n) in enumerate(steps):
            b = PB4[(base + i) & 3]
            rd = reads(i + 2) if i + 2 < len(steps) else []
            k = len(qs)
            for x, qt in enumerate(qs):
                o = OA[t >> 1] + 16 * qt
                src = '0' if (first and n == 0) else 'a[%d:%d]' % (o, o + 15)
                fn = (lambda o=o, b=b, qt=qt, src=src: E('v_mfma_f32_32x32x16_bf16 a[%d:%d], v[%d:%d], v[%d:%d], %s' % (
                    o, o + 15, b, b + 3, b + 4 + 4 * qt, b + 7 + 4 * qt, src)))
                pre = [lambda i=i: e.wait(lds='pv%d' % (base + i))] if x == 0 else []
                post = rd[len(rd) * x // k: len(rd) * (x + 1) // k]
                anc.append((pre, fn, post))
        return pro, anc

    WOR = 240
    def wo_loads():
        out = []
        def pre():
            E('s_lshr_b32 s4, s2, 2')
            E('s_lshl_b32 s4, s4, 16')
            E('s_and_b32 s5, s2, 3')
            E('s_lshl_b32 s5, s5, 8')
            E('s_add_u32 s4, s4, s5')
            E('s_lshl_b32 s5, s3, 14')
            E('s_add_u32 s56, s4, s5')
            E('v_lshrrev_b32 v3, 4, v1')
            E('v_and_b32 v4, 15, v1')
            E('v_lshlrev_b32 v3, 10, v3')
            E('v_lshl_add_u32 v3, v4, 4, v3')
        out.append(pre)
        for m in range(4):
            def f(m=m):
                E('s_add_u32 s6, s56, %d' % (m * 4096))
                E('buffer_load_dwordx4 a[%d:%d], v3, s[24:27], s6 offen' % (WOR + 4 * m, WOR + 4 * m + 3), tag='WO')
            out.append(f)
        return out
    S0 = [0, 24576, 40960, 49152]
    def wp_reg(j, m):
        if 1 <= j <= 4:
            return 'a', 128 + ((j + 2) % 4) * 32 + 4 * m
        if j == 5:
            return 'v', 224 + 4 * m
        return 'a', (48 + 4 * m) if m < 4 else (112 + 4 * (m - 4))
    def wp_pre():
        E('s_lshl_b32 s4, s39, 17')
        E('s_lshl_b32 s5, s3, 8')
        E('s_add_u32 s56, s4, s5')
        E('v_lshrrev_b32 v3, 4, v1')
        E('v_and_b32 v4, 15, v1')
        E('v_lshlrev_b32 v5, 1, v3')
        E('v_xor_b32 v4, v4, v5')
        E('v_lshlrev_b32 v4, 4, v4')
        E('v_lshl_add_u32 v3, v3, 10, v4')
        E('v_xor_b32 v4, 0x80, v3')
        E('s_mov_b32 s62, %d' % S0[0])
        for w in range(1, 4):
            E('s_cmp_eq_u32 s3, %d' % w)
            E('s_cselect_b32 s62, %d, s62' % S0[w])
    def wp_load(j, m):
        def f():
            E('s_add_u32 s6, s56, %d' % ((32 * j + 4 * m) * 1024))
            vo = 3 + ((m >> 1) & 1)
            if j in (0, 7):
                E('s_add_u32 s5, s62, %d' % (m * 1024))
                E('s_mov_b32 m0, s5')
                E('buffer_load_dwordx4 v%d, s[24:27], s6 offen lds' % vo, tag='wp%d' % j)
            else:
                fl, r = wp_reg(j, m)
                E('buffer_load_dwordx4 %s[%d:%d], v%d, s[24:27], s6 offen' % (fl, r, r + 3, vo), tag='wp%d' % j)
        return C(20, f)
    def v_store(t):
        out = [C(0, lambda: vwait('V%d' % t))]
        def pre():
            E('s_lshl_b32 s4, s3, 13')
            E('s_add_u32 s4, s4, %d' % VS[t])
            E('v_add_u32 v55, s4, v13')
        out.append(pre)
        for mm in range(8):
            r = 192 + (t - 2) * 32 + mm * 4
            out.append(lambda r=r, mm=mm: E('ds_write_b128 v55, v[%d:%d] offset:%d' % (r, r + 3, mm * 1024)))
        return out
    def iss(n):
        return [C(20, lambda: issue(SLOWCOST))] * n

    E('v_add_u32 v10, 0x%x, v14' % (VS[1] - VS[0]))
    for f in ktr(0):
        f()
    e.wait(lds='kt0')
    stamp()
    xpost = []
    for u in range(6):
        h, q = u // 3, u % 3
        t0, t1 = 2 * h, 2 * h + 1
        sa = [([], f, []) for f in s_mf(u, t0)] + [([], f, []) for f in s_mf(u, t1)]
        if q == 0:
            sa[8] = ([lambda t1=t1: e.wait(lds='kt%d' % t1)], sa[8][1], [])
        pro = []
        if u in (4, 5):
            pro, pa = pv_anchors([(u - 4, (0, 1, 2), u == 4)])
            anc = sa[:2] + merge(sa[2:], pa[:PVS]) + pa[PVS:]
        else:
            anc = sa
        i7 = [k for k, a in enumerate(anc) if a[1] is sa[7][1]][0]
        i15 = [k for k, a in enumerate(anc) if a[1] is sa[15][1]][0]
        s0, s1 = [], []
        if u > 0:
            pu = u - 1
            s0 = exp_ops(pu, 2 * (pu // 3))
            s1 = exp_ops(pu, 2 * (pu // 3) + 1)
        if q == 0:
            s0 = ktr(t1) + s0 if KTF else merge(s0, ktr(t1))
        if u == 2:
            s1 = merge(s1, ktr(2))
        if u == 5:
            s1 = merge(s1, v_store(2))
        if u == 4 and not FUSE and not PART:
            s1 = merge(s1, wo_loads())
        if u == 4 and PART:
            early = [wp_load(1, m) for m in range(8)] + [wp_load(6, m) for m in range(4)]
            late6 = [wp_load(j, m) for j in (2, 3, 4) for m in range(8)] + [wp_load(6, m) for m in range(4, 8)]
            late6 = early[PFA:] + late6
            s1 = merge(s1, [wp_pre] + early[:PFA])
        s0 = xpost + merge(s0, iss(NV_S[u][0]))
        s1 = merge(s1, iss(NV_S[u][1]))
        cons = [(i7 + 1, f) for f in max_ops(u, t0)] + [(i15 + 1, f) for f in max_ops(u, t1)]
        if FUSE > 1 and u == 4:
            E('s_and_b32 s4, s2, 3')
            E('s_lshl_b32 s4, s4, 2')
            E('s_add_u32 s4, s4, 64')
            E('v_mov_b32 v4, 1')
            E('v_mov_b32 v3, 0')
            E('s_cmp_eq_u32 s3, 0')
            E('s_cselect_b32 s58, 1, 0')
            E('s_mov_b32 s59, 0')
            E('s_mov_b64 exec, s[58:59]')
            E('buffer_atomic_add v4, v3, s[20:23], s4 offen sc1')
            E('s_mov_b64 exec, -1')
        if FUSE > 1 and u == 5:
            E('s_lshr_b32 s4, s39, 3')
            E('s_lshl_b32 s4, s4, 2')
            E('s_add_u32 s4, s4, 64')
            E('buffer_load_dword v5, v3, s[20:23], s4 offen sc0 sc1', tag='rdy')
        for f in pro:
            f()
        if q == 0:
            sched(e, anc[:8], s0, burst=BURST if u else 0)
            sched(e, anc[8:], s1, [(m - 8, f) for m, f in cons])
        else:
            sched(e, anc, s0 + s1, cons, burst=BURST)
        if u == 3:
            vwait('V0')
        if u == 4:
            vwait('V1')
        xpost = exchange(u)
        if u == 2:
            stamp(True)
    tail = exp_ops(5, 2) + exp_ops(5, 3)
    tail = xpost + merge(tail, v_store(3))
    for qt in range(3):
        tail.append(lambda qt=qt: E('ds_write_b32 v60, v%d offset:%d' % (24 + qt, LSTAT - STATS + qt * 1024)))
    def stg():
        e.wait(vm='WO')
        E('s_lshl_b32 s4, s3, 12')
        E('s_add_u32 s4, s4, %d' % WOST)
        E('v_add_u32 v56, s4, v13')
        for m in range(4):
            E('ds_write_b128 v56, a[%d:%d] offset:%d' % (WOR + 4 * m, WOR + 4 * m + 3, m * 1024))
    if not FUSE and not PART:
        tail.append(stg)
    if PART:
        tail = merge(tail, late6[:PF6])
        late7 = [wp_load(0, m) for m in range(8)] + late6[PF6:] + [wp_load(5, m) for m in range(8)]
    if FUSE > 1:
        e.wait(vm='rdy')
        E('v_readfirstlane_b32 s64, v5')
        E('s_mov_b32 s12, s54')
        E('s_and_b32 s13, s55, 0xffff')
        E('s_cmp_ge_u32 s64, 64')
        E('s_cselect_b32 s14, 0x%x, 0' % WS_SIZE)
        E('s_mov_b32 s15, 0x20000')
        if P3PF:
            E('s_lshr_b32 s4, s2, 3')
            E('s_lshl_b32 s4, s4, 2')
            E('s_add_u32 s4, s4, s3')
            E('s_lshl_b32 s4, s4, 13')
            E('s_lshr_b32 s5, s39, 3')
            E('s_lshl_b32 s5, s5, 20')
            E('s_add_u32 s4, s4, s5')
            E('s_add_u32 s4, s4, 0x%x' % WOT_OFF)
            E('v_lshlrev_b32 v4, 7, v1')
            E('buffer_load_dword v5, v4, s[12:15], s4 offen', tag='pf')
    pro, pa = pv_anchors([(2, (0, 1), True)])
    for f in pro:
        f()
    sched(e, pa, tail, lead=100)
    e.wait(lds='all')
    stamp()
    E('s_barrier')
    stamp(True)
    b = []
    TB = [64, 80, 128]
    for qt in range(3):
        def ls(qt=qt):
            E('ds_read_b128 v[46:49], v61 offset:%d' % (LSTAT - STATS + qt * 1024), tag='ls%d' % qt)
            E('ds_read_b128 v[50:53], v61 offset:%d' % (LSTAT - STATS + qt * 1024 + 16), tag='ls%d' % qt)
            e.wait(lds='ls%d' % qt)
            E('v_add_f32 v46, v46, v47')
            E('v_add_f32 v48, v48, v49')
            E('v_add_f32 v50, v50, v51')
            E('v_add_f32 v52, v52, v53')
            E('v_add_f32 v46, v46, v48')
            E('v_add_f32 v50, v50, v52')
            E('v_add_f32 v46, v46, v50')
            E('v_rcp_f32 v%d, v46' % (24 + qt))
            E('v_mul_f32 v%d, v%d, v%d' % (57 + qt, 57 + qt, 24 + qt))
        b.append(ls)
        for r in range(16):
            def f(qt=qt, r=r):
                E('v_accvgpr_read_b32 v%d, a%d' % (TB[qt] + r, OA[0] + 16 * qt + r))
                E('v_mul_f32 v%d, v%d, v%d' % (TB[qt] + r, TB[qt] + r, 57 + qt))
            b.append(f)
    def wt_addr():
        E('v_lshrrev_b32 v46, 4, v1')
        E('v_lshrrev_b32 v47, 2, v1')
        E('v_and_b32 v47, 3, v47')
        E('v_and_b32 v48, 3, v1')
        E('v_lshl_add_u32 v49, v46, 3, v47')
        E('v_lshlrev_b32 v49, 8, v49')
        E('v_xor_b32 v50, s3, v47')
        E('v_lshl_add_u32 v49, v50, 6, v49')
        E('v_lshl_add_u32 v49, v48, 3, v49')
        E('v_add_u32 v49, 0x%x, v49' % WOST)
        for kk in range(2):
            for nn in range(2):
                for hh in range(2):
                    r = 30 + (kk * 2 + nn) * 4 + 2 * hh
                    E('ds_read_b64_tr_b16 v[%d:%d], v49 offset:%d' % (r, r + 1, (32 * kk + 4 * hh) * 256 + nn * 32), tag='wt')
    if not FUSE and not PART:
        b.append(wt_addr)
    if PART:
        b = merge(b, late7)
    def epi(qt):
        out = []
        T = TB[qt]
        U = 192 + (qt & 1) * 16
        for r in range(16):
            out.append(lambda r=r: E('v_accvgpr_read_b32 v%d, a%d' % (U + r, OA[1] + 16 * qt + r)))
        for r in range(16):
            out.append(lambda r=r: E('v_fma_f32 v%d, v%d, v%d, v%d' % (T + r, U + r, 24 + qt, T + r)))
        for k in range(8):
            out.append(lambda k=k: E('v_cvt_pk_bf16_f32 v%d, v%d, v%d' % (T + k, T + 2 * k, T + 2 * k + 1)))
        for k in (0, 2):
            def f(k=k):
                E('v_permlane32_swap_b32 v%d, v%d' % (T + 2 * k, T + 2 * k + 2))
                E('v_permlane32_swap_b32 v%d, v%d' % (T + 2 * k + 1, T + 2 * k + 3))
                if PART:
                    E('ds_write_b128 v%d, v[%d:%d] offset:%d' % (27 + qt, T + 2 * k, T + 2 * k + 3, k * 256))
                else:
                    E('buffer_store_dwordx4 v[%d:%d], v%d, s[28:31], s57 offen offset:%d%s' % (T + 2 * k, T + 2 * k + 3, 27 + qt, k * 256, STPOL))
            out.append(f)
        return out
    E('s_mul_i32 s4, s37, 393216')
    E('s_lshl_b32 s5, s39, 2')
    E('s_add_u32 s5, s5, s3')
    E('s_mul_i32 s5, s5, 3072')
    E('s_add_u32 s57, s4, s5')
    if EPO:
        pro, pa = pv_anchors([(3, (0, 1), False), (2, (2,), True), (3, (2,), False)])
        for f in pro:
            f()
        sched(e, pa[:16], b, lead=60)
        sched(e, pa[16:], epi(0) + epi(1), burst=1)
        stamp()
        for f in epi(2):
            f()
    else:
        pro, pa = pv_anchors([(2, (2,), True), (3, (0, 1, 2), False)])
        for f in pro:
            f()
        sched(e, pa, b, lead=60)
        stamp()
        for qt in range(3):
            for f in epi(qt):
                f()
    if PART:
        phase3p(e, stamp, wp_reg, wp_load, C)
    elif FUSE:
        phase3(e, stamp)
    else:
        E('s_and_b32 s4, s2, 3')
        E('s_lshl_b32 s4, s4, 3')
        E('s_lshl_b32 s5, s3, 1')
        E('s_add_u32 s4, s4, s5')
        E('s_lshl_b32 s4, s4, 17')
        E('s_lshr_b32 s5, s2, 2')
        E('s_lshl_b32 s5, s5, 11')
        E('s_add_u32 s4, s4, s5')
        E('s_add_u32 s4, s4, 0x%x' % WOT_OFF)
        E('s_add_u32 s5, s4, 0x20000')
        e.wait(lds='wt')
        for kk in range(2):
            for nn in range(2):
                r = 30 + (kk * 2 + nn) * 4
                E('buffer_store_dwordx4 v[%d:%d], v11, s[28:31], s%d offen offset:%d%s' % (r, r + 3, 4 + nn, kk * 1024, STPOL))
    stamp(True)
    e.label('L_a_done')
    E('s_endpgm')
    return e


def phase3p(e, stamp, wp_reg, wp_load, C):
    E = e
    ACC = 64
    WF = [160, 192]
    def OB(j):
        return 65536 + 3072 * j if j < 5 else 89088 + 3072 * (j - 5)
    def oreg(j, st):
        i = j * 3 + st
        return i * 4 if i < 12 else 64 + (i - 12) * 4
    E('v_lshrrev_b32 v46, 4, v1')
    E('v_lshrrev_b32 v47, 2, v1')
    E('v_and_b32 v47, 3, v47')
    E('v_and_b32 v48, 3, v1')
    E('v_lshl_add_u32 v49, v46, 3, v47')
    E('v_lshlrev_b32 v49, 8, v49')
    E('v_and_b32 v50, 1, v46')
    E('v_lshl_add_u32 v50, v50, 2, v47')
    E('v_lshl_add_u32 v49, v50, 5, v49')
    E('v_lshl_add_u32 v49, v48, 3, v49')
    E('v_add_u32 v5, s62, v49')
    E('s_lshl_b32 s4, s3, 14')
    E('s_add_u32 s4, s4, 98304')
    E('v_add_u32 v6, s4, v49')
    E('v_add_u32 v7, s4, v11')
    E('v_add_u32 v8, 0x10000, v11')
    E('s_lshl_b32 s4, s37, 4')
    E('s_lshr_b32 s5, s39, 1')
    E('s_add_u32 s4, s4, s5')
    E('s_mul_i32 s4, s4, 49152')
    E('s_mul_i32 s5, s3, 12288')
    E('s_add_u32 s4, s4, s5')
    E('s_add_u32 s57, s4, 0x%x' % PRT_OFF)
    e.wait(lds='all')
    stamp()
    E('s_barrier')
    stamp(True)
    def oread(j):
        out = []
        for st in range(3):
            r = oreg(j, st)
            out.append(lambda r=r, st=st: E('ds_read_b128 a[%d:%d], v8 offset:%d' % (r, r + 3, OB(j) - 65536 + st * 1024), tag='o%d' % j))
        return out
    tc = [0]
    def trr(j):
        out = []
        base, off = (5, 0) if j in (0, 7) else (6, (j & 1) * 8192)
        if j in (0, 7):
            out.append(C(0, lambda: e.wait(vm='wp%d' % j)))
        else:
            out.append(C(0, lambda: e.wait(lds='sw%d' % j)))
        for t in range(8):
            def f(t=t):
                tmp = 46 + (tc[0] & 3); tc[0] += 1
                if t:
                    E('v_xor_b32 v%d, %d, v%d' % (tmp, t << 5, base))
                else:
                    tmp = base
                for hh in range(2):
                    r = WF[j & 1] + 4 * t + 2 * hh
                    E('ds_read_b64_tr_b16 v[%d:%d], v%d offset:%d' % (r, r + 1, tmp, off + hh * 1024), tag='wf%d' % j)
            out.append(f)
        return out
    def stage(j):
        out = [C(0, lambda: e.wait(vm='wp%d' % j))]
        for m in range(8):
            fl, r = wp_reg(j, m)
            out.append(lambda fl=fl, r=r, m=m: E('ds_write_b128 v7, %s[%d:%d] offset:%d' % (fl, r, r + 3, (j & 1) * 8192 + m * 1024), tag='sw%d' % j))
        return out
    for f in trr(0) + oread(0) + stage(1) + oread(1):
        f()
    for j in range(8):
        anc = []
        for t in range(8):
            for st in range(3):
                a = ACC + (t * 3 + st) * 4
                src = 'v[%d:%d]' % (a, a + 3) if j > 0 else '0'
                w = WF[j & 1] + 4 * t
                o = oreg(j, st)
                fn = (lambda a=a, w=w, o=o, src=src: E('v_mfma_f32_16x16x32_bf16 v[%d:%d], v[%d:%d], a[%d:%d], %s' % (
                    a, a + 3, w, w + 3, o, o + 3, src)))
                anc.append(([], fn, []))
        e.wait(lds=['wf%d' % j, 'o%d' % j])
        fill = []
        if j == 0:
            fill += [wp_load(7, m) for m in range(8)]
        if j + 1 < 8:
            fill += trr(j + 1)
        if j + 2 < 7:
            fill += stage(j + 2)
        if j + 2 < 8:
            fill += oread(j + 2)
        cons = []
        if j == 7:
            for tp in range(4):
                for st in range(3):
                    a0 = ACC + (2 * tp * 3 + st) * 4
                    a1 = ACC + ((2 * tp + 1) * 3 + st) * 4
                    def f(a0=a0, a1=a1, tp=tp, st=st):
                        E('v_cvt_pk_bf16_f32 v%d, v%d, v%d' % (a0, a0, a0 + 1))
                        E('v_cvt_pk_bf16_f32 v%d, v%d, v%d' % (a0 + 1, a0 + 2, a0 + 3))
                        E('v_cvt_pk_bf16_f32 v%d, v%d, v%d' % (a0 + 2, a1, a1 + 1))
                        E('v_cvt_pk_bf16_f32 v%d, v%d, v%d' % (a0 + 3, a1 + 2, a1 + 3))
                        if st == 0:
                            E('s_add_u32 s4, s57, %d' % (tp * 3072))
                        E('buffer_store_dwordx4 v[%d:%d], v11, s[28:31], s4 offen offset:%d%s' % (a0, a0 + 3, st * 1024, STPOL))
                    cons.append((6 * tp + 3 + st + 3, f))
        sched(e, anc, fill, cons)
    stamp()


def kernel_r():
    e = Emitter()
    E = e
    e.raw('.p2align 8')
    e.raw('.globl %s' % KB)
    e.raw('.type %s,@function' % KB)
    e.label(KB)
    E('s_cmp_ge_u32 s2, 256')
    E('s_cbranch_scc1 L_b_done')
    E('s_load_dwordx2 s[40:41], s[0:1], 40')
    E('s_load_dwordx2 s[42:43], s[0:1], 56')
    E('v_and_b32 v1, 63, v0')
    E('v_lshrrev_b32 v2, 6, v0')
    E('s_nop 0')
    E('v_readfirstlane_b32 s3, v2')
    E('s_lshr_b32 s37, s2, 4')
    E('s_and_b32 s38, s2, 15')
    E('s_mul_i32 s32, s37, 786432')
    E('s_mul_i32 s4, s38, 3072')
    E('s_add_u32 s32, s32, s4')
    E('s_lshl_b32 s4, s3, 8')
    E('s_add_u32 s32, s32, s4')
    E('s_add_u32 s32, s32, 0x%x' % PRT_OFF)
    E('v_lshlrev_b32 v11, 2, v1')
    E('s_waitcnt lgkmcnt(0)')
    E('s_mov_b32 s28, s42')
    E('s_and_b32 s29, s43, 0xffff')
    E('s_mov_b32 s30, 0x%x' % WS_SIZE)
    E('s_mov_b32 s31, 0x20000')
    for p in range(16):
        E('s_add_u32 s5, s32, %d' % (p * 49152))
        E('buffer_load_dword v%d, v11, s[28:31], s5 offen' % (16 + p), tag='p%d' % p)
    E('s_mov_b32 s8, s40')
    E('s_and_b32 s9, s41, 0xffff')
    E('s_mov_b32 s10, 786432')
    E('s_mov_b32 s11, 0x20000')
    E('s_mul_i32 s6, s37, 49152')
    E('s_lshr_b32 s4, s3, 2')
    E('s_lshl_b32 s4, s4, 14')
    E('s_add_u32 s6, s6, s4')
    E('s_lshl_b32 s4, s38, 6')
    E('s_add_u32 s6, s6, s4')
    E('s_and_b32 s4, s3, 3')
    E('s_lshl_b32 s4, s4, 3')
    E('s_add_u32 s6, s6, s4')
    E('v_lshrrev_b32 v2, 2, v1')
    E('v_lshlrev_b32 v2, 10, v2')
    E('v_lshrrev_b32 v3, 1, v1')
    E('v_and_b32 v3, 1, v3')
    E('v_lshl_add_u32 v2, v3, 5, v2')
    E('v_and_b32 v3, 1, v1')
    E('v_lshl_add_u32 v2, v3, 2, v2')
    E('s_mov_b32 s7, 0xffff0000')
    for p in range(16):
        e.wait(vm='p%d' % p)
        d = 4 if p < 2 else 8
        d = (4 + 2 * p) if p < 2 else (8 + 2 * (p & 1))
        E('v_lshlrev_b32 v%d, 16, v%d' % (d, 16 + p))
        E('v_and_b32 v%d, s7, v%d' % (d + 1, 16 + p))
        if p >= 2:
            a = 4 + 2 * (p & 1)
            E('v_pk_add_f32 v[%d:%d], v[%d:%d], v[%d:%d]' % (a, a + 1, a, a + 1, d, d + 1))
    E('v_pk_add_f32 v[4:5], v[4:5], v[6:7]')
    E('v_cvt_pk_bf16_f32 v4, v4, v5')
    E('buffer_store_dword v4, v2, s[8:11], s6 offen')
    e.label('L_b_done')
    E('s_endpgm')
    return e


def phase3(e, stamp):
    E = e
    E('s_mov_b32 s20, s52')
    E('s_and_b32 s21, s53, 0xffff')
    E('s_mov_b32 s22, 256')
    E('s_mov_b32 s23, 0x20000')
    E('s_mov_b32 s8, s50')
    E('s_and_b32 s9, s51, 0xffff')
    E('s_mov_b32 s10, 786432')
    E('s_mov_b32 s11, 0x20000')
    E('s_lshl_b32 s62, s37, 2')
    E('s_mul_i32 s63, s3, 40960')
    E('v_mov_b32 v2, 1')
    E('v_mov_b32 v3, 0')
    E('s_cmp_eq_u32 s3, 0')
    E('s_cselect_b32 s58, 1, 0')
    E('s_mov_b32 s59, 0')
    def pub():
        E('s_barrier')
        E('s_mov_b64 exec, s[58:59]')
        E('buffer_atomic_add v2, v3, s[20:23], s62 offen sc1')
        E('s_mov_b64 exec, -1')
    if FUSE > 1:
        E('s_cmp_ge_u32 s64, 64')
        E('s_cbranch_scc0 L_slow')
        q0 = list(e.vmq)
        E('s_lshl_b32 s33, s39, 17')
        E('s_lshl_b32 s5, s3, 15')
        E('s_add_u32 s33, s33, s5')
        E('s_add_u32 s33, s33, 0x%x' % WOT_OFF)
        E('s_lshr_b32 s5, s39, 1')
        E('s_add_u32 s34, s37, s5')
        E('s_and_b32 s34, s34, %d' % P3ROT)
        for n in range(64):
            i, nn = n // 2, n % 2
            if n % 8 == 0:
                E('s_add_u32 s5, s34, %d' % (n // 8))
                E('s_and_b32 s5, s5, 7')
                E('s_lshl_b32 s5, s5, 12')
                E('s_add_u32 s56, s33, s5')
                E('s_add_u32 s57, s56, 0x20000')
            if n == 40:
                e.wait(vm=q0[-1], lds='all')
                if DIAG:
                    E('s_memtime s[68:69]')
                    E('s_waitcnt lgkmcnt(0)')
                pub()
            if n == 60:
                e.wait(vm='wf3')
            E('buffer_load_dwordx4 a[%d:%d], v11, s[28:31], s%d offen offset:%d' % (n * 4, n * 4 + 3, 56 + nn, (i % 4) * 1024), tag='wf%d' % n)
        if P3X:
            e.wait(vm='all')
            E('s_memtime s[68:69]')
            E('s_waitcnt lgkmcnt(0)')
            for n in range(64):
                i, nn = n // 2, n % 2
                if n % 8 == 0:
                    E('s_add_u32 s5, s34, %d' % (n // 8))
                    E('s_and_b32 s5, s5, 7')
                    E('s_lshl_b32 s5, s5, 12')
                    E('s_add_u32 s56, s33, s5')
                    E('s_add_u32 s57, s56, 0x20000')
                if n == 60:
                    e.wait(vm='wf3')
                E('buffer_load_dwordx4 a[%d:%d], v11, s[28:31], s%d offen offset:%d' % (n * 4, n * 4 + 3, 56 + nn, (i % 4) * 1024), tag='wf%d' % n)
            e.wait(vm='all')
        if DIAG:
            E('s_memtime s[70:71]')
            E('s_waitcnt lgkmcnt(0)')
            E('s_lshl_b32 s5, s2, 2')
            E('s_add_u32 s5, s5, s3')
            E('s_lshl_b32 s5, s5, 8')
            E('s_add_u32 s5, s5, 0x%x' % (0xC00000 + 22 * 8))
            E('v_mov_b32 v63, 0')
            for k in range(4):
                E('v_mov_b32 v0, s%d' % (68 + k))
                e.wait(vm='wf30') if not P3X else None
                E('buffer_store_dword v0, v63, s[28:31], s5 offen offset:%d' % (4 * k))
        E('s_branch L_join')
        e.label('L_slow')
        e.vmq = q0
    E('s_mov_b32 s34, 0')
    e.wait(vm='all', lds='all')
    pub()
    e.vmq = []
    stamp()
    E('v_lshrrev_b32 v4, 2, v1')
    E('v_lshrrev_b32 v5, 5, v1')
    E('v_lshlrev_b32 v5, 1, v5')
    E('v_and_b32 v6, 3, v1')
    E('v_xor_b32 v5, v5, v6')
    E('v_lshlrev_b32 v5, 4, v5')
    E('v_lshl_add_u32 v4, v4, 10, v5')
    E('s_lshl_b32 s56, s3, 20')
    E('s_lshl_b32 s5, s39, 5')
    E('s_add_u32 s56, s56, s5')
    E('v_lshrrev_b32 v46, 4, v1')
    E('v_lshrrev_b32 v47, 2, v1')
    E('v_and_b32 v47, 3, v47')
    E('v_lshl_add_u32 v48, v46, 3, v47')
    E('v_lshlrev_b32 v48, 6, v48')
    E('v_lshl_add_u32 v48, v6, 3, v48')
    E('v_and_b32 v46, 1, v46')
    E('v_lshl_add_u32 v48, v46, 5, v48')
    E('v_add_u32 v7, s63, v48')
    E('v_xor_b32 v8, 32, v7')
    def dma(step, slot):
        for k in range(2):
            E('s_add_u32 s5, s63, %d' % (slot * 2048 + k * 1024))
            E('s_mov_b32 m0, s5')
            E('s_add_u32 s6, s56, %d' % ((step * 2 + k) * 16384))
            E('buffer_load_dwordx4 v4, s[24:27], s6 offen lds', tag='w%d' % step)
    def trd(step, slot):
        for nt in range(2):
            for hh in range(2):
                r = (step * 2 + nt) * 4 + 2 * hh
                E('ds_read_b64_tr_b16 a[%d:%d], v%d offset:%d' % (r, r + 1, 7 + nt, slot * 2048 + hh * 256), tag='t%d' % step)
    for st in range(20):
        dma(st, st)
    for st in range(32):
        e.wait(vm='w%d' % st)
        trd(st, st % 20)
        if st == 12:
            e.wait(lds='t11')
            for s2_ in range(20, 32):
                dma(s2_, s2_ - 20)
    stamp()
    e.wait(vm='all', lds='all')
    e.label('L_join')
    E('s_mov_b32 s7, 0')
    e.label('L_poll')
    E('buffer_load_dword v2, v3, s[20:23], s62 offen sc0 sc1')
    E('s_waitcnt vmcnt(0)')
    E('v_readfirstlane_b32 s4, v2')
    E('s_cmp_ge_u32 s4, 16')
    E('s_cbranch_scc1 L_go')
    E('s_sleep 4')
    E('s_add_u32 s7, s7, 1')
    E('s_cmp_lt_u32 s7, 0x10000')
    E('s_cbranch_scc1 L_poll')
    e.label('L_go')
    e.vmq = []
    stamp()
    E('s_mul_i32 s32, s37, 393216')
    E('s_mul_i32 s4, s3, 98304')
    E('s_add_u32 s32, s32, s4')
    D = P3D
    ACC = 64
    FR = 96
    if P3PF > 1:
        E('s_bfe_u32 s4, s2, 0x20003')
        E('s_lshl_b32 s4, s4, 2')
        E('s_add_u32 s4, s4, s3')
        E('s_mul_i32 s4, s4, 24576')
        E('s_mul_i32 s5, s37, 393216')
        E('s_add_u32 s4, s4, s5')
        E('v_lshlrev_b32 v4, 7, v1')
        for t in range(3):
            E('s_add_u32 s5, s4, %d' % (t * 8192))
            E('buffer_load_dword v%d, v4, s[28:31], s5 offen' % (8 + t), tag='pf')
    def loads(i):
        base = FR + (i % D) * 12
        if i % 4 == 0:
            E('s_add_u32 s35, s34, %d' % (i // 4))
            E('s_and_b32 s35, s35, 7')
            E('s_mul_i32 s35, s35, 12288')
            E('s_add_u32 s35, s35, s32')
        E('s_add_u32 s5, s35, %d' % ((i % 4) * 3072))
        for st in range(3):
            E('buffer_load_dwordx4 v[%d:%d], v11, s[28:31], s5 offen offset:%d' % (base + 4 * st, base + 4 * st + 3, st * 1024), tag='k%d' % i)
    for i in range(D):
        loads(i)
    for i in range(32):
        base = FR + (i % D) * 12
        e.wait(vm='k%d' % i)
        for nn in range(2):
            for st in range(3):
                a = ACC + (nn * 3 + st) * 4
                wr = (i * 2 + nn) * 4
                src = 'v[%d:%d]' % (a, a + 3) if i > 0 else '0'
                E('v_mfma_f32_16x16x32_bf16 v[%d:%d], a[%d:%d], v[%d:%d], %s' % (
                    a, a + 3, wr, wr + 3, base + 4 * st, base + 4 * st + 3, src))
        if i + D < 32:
            loads(i + D)
    stamp()
    E('v_add_u32 v12, s63, v11')
    for tl in range(6):
        E('ds_write_b128 v12, v[%d:%d] offset:%d' % (ACC + 4 * tl, ACC + 4 * tl + 3, tl * 1024))
    e.wait(lds='all')
    E('s_barrier')
    E('v_and_b32 v2, 15, v1')
    E('v_lshrrev_b32 v3, 4, v1')
    E('v_lshlrev_b32 v2, 10, v2')
    E('v_lshl_add_u32 v2, v3, 3, v2')
    E('s_mul_i32 s6, s37, 49152')
    E('s_lshl_b32 s5, s39, 5')
    E('s_add_u32 s6, s6, s5')
    def red(rnd):
        E('s_add_u32 s4, s3, %d' % (4 * rnd))
        E('s_lshl_b32 s5, s4, 10')
        E('v_add_u32 v12, s5, v11')
        E('v_add_u32 v13, 0x14000, v12')
        b0 = 96 + 32 * rnd
        E('ds_read_b128 v[%d:%d], v12' % (b0, b0 + 3), tag='r')
        E('ds_read_b128 v[%d:%d], v12 offset:40960' % (b0 + 4, b0 + 7), tag='r')
        E('ds_read_b128 v[%d:%d], v13' % (b0 + 8, b0 + 11), tag='r')
        E('ds_read_b128 v[%d:%d], v13 offset:40960' % (b0 + 12, b0 + 15), tag='r')
        E('s_cmp_ge_u32 s4, 3')
        E('s_cselect_b32 s7, 1, 0')
        E('s_mul_i32 s5, s7, 3')
        E('s_sub_u32 s5, s4, s5')
        E('s_lshl_b32 s5, s5, 14')
        E('s_lshl_b32 s7, s7, 5')
        E('s_add_u32 s5, s5, s7')
        E('s_add_u32 s5, s5, s6')
        e.wait(lds='r')
        for r in range(4):
            E('v_add_f32 v%d, v%d, v%d' % (b0 + r, b0 + r, b0 + 4 + r))
            E('v_add_f32 v%d, v%d, v%d' % (b0 + 8 + r, b0 + 8 + r, b0 + 12 + r))
        for r in range(4):
            E('v_add_f32 v%d, v%d, v%d' % (b0 + r, b0 + r, b0 + 8 + r))
        E('v_cvt_pk_bf16_f32 v%d, v%d, v%d' % (b0 + 16, b0, b0 + 1))
        E('v_cvt_pk_bf16_f32 v%d, v%d, v%d' % (b0 + 17, b0 + 2, b0 + 3))
        E('buffer_store_dwordx2 v[%d:%d], v2, s[8:11], s5 offen' % (b0 + 16, b0 + 17))
    red(0)
    E('s_cmp_ge_u32 s3, 2')
    E('s_cbranch_scc1 L_a_done')
    red(1)


def kernel_b():
    e = Emitter()
    E = e
    e.raw('.p2align 8')
    e.raw('.globl %s' % KB)
    e.raw('.type %s,@function' % KB)
    e.label(KB)
    E('s_cmp_ge_u32 s2, 256')
    E('s_cbranch_scc1 L_b_done')
    E('s_load_dwordx2 s[40:41], s[0:1], 40')
    E('s_load_dwordx2 s[42:43], s[0:1], 56')
    E('v_and_b32 v1, 63, v0')
    E('v_lshrrev_b32 v2, 6, v0')
    E('s_nop 0')
    E('v_readfirstlane_b32 s3, v2')
    E('s_and_b32 s4, s2, 7')
    E('s_lshr_b32 s5, s2, 3')
    E('s_lshr_b32 s6, s4, 1')
    E('s_lshl_b32 s6, s6, 2')
    E('s_lshr_b32 s7, s5, 3')
    E('s_add_u32 s37, s6, s7')
    E('s_and_b32 s6, s4, 1')
    E('s_lshl_b32 s6, s6, 3')
    E('s_and_b32 s7, s5, 7')
    E('s_add_u32 s38, s6, s7')
    E('v_lshlrev_b32 v11, 4, v1')
    E('s_mul_i32 s32, s37, 393216')
    E('s_mul_i32 s4, s3, 49152')
    E('s_add_u32 s32, s32, s4')
    E('s_lshl_b32 s33, s38, 18')
    E('s_lshl_b32 s4, s3, 14')
    E('s_add_u32 s33, s33, s4')
    E('s_add_u32 s33, s33, 0x%x' % WOT_OFF)
    E('s_add_u32 s34, s33, 0x20000')
    E('s_waitcnt lgkmcnt(0)')
    E('s_mov_b32 s8, s40')
    E('s_and_b32 s9, s41, 0xffff')
    E('s_mov_b32 s10, 786432')
    E('s_mov_b32 s11, 0x20000')
    E('s_mov_b32 s28, s42')
    E('s_and_b32 s29, s43, 0xffff')
    E('s_mov_b32 s30, 0x%x' % WS_SIZE)
    E('s_mov_b32 s31, 0x20000')
    D = BD
    ACC = 16
    FR = 40
    stc = [0]
    def stampb():
        if not DIAG:
            return
        i = stc[0]; stc[0] += 1
        E('s_memtime s[60:61]')
        E('s_waitcnt lgkmcnt(0)')
        E('s_lshl_b32 s58, s2, 3')
        E('s_add_u32 s58, s58, s3')
        E('s_lshl_b32 s58, s58, 8')
        E('s_add_u32 s58, s58, 0x%x' % (0xD00000 + i * 8))
        E('v_mov_b32 v39, 0')
        E('v_mov_b32 v0, s60')
        E('buffer_store_dword v0, v39, s[28:31], s58 offen', tag='stamp')
        E('v_mov_b32 v0, s61')
        E('buffer_store_dword v0, v39, s[28:31], s58 offen offset:4', tag='stamp')
    stampb()
    def loads(i):
        base = FR + (i % D) * 20
        E('s_add_u32 s5, s32, %d' % (i * 3072))
        for st in range(3):
            E('buffer_load_dwordx4 v[%d:%d], v11, s[28:31], s5 offen offset:%d' % (base + 4 * st, base + 4 * st + 3, st * 1024), tag='k%d' % i)
        E('s_add_u32 s6, s33, %d' % (i * 1024))
        E('s_add_u32 s7, s34, %d' % (i * 1024))
        E('buffer_load_dwordx4 v[%d:%d], v11, s[28:31], s6 offen' % (base + 12, base + 15), tag='k%d' % i)
        E('buffer_load_dwordx4 v[%d:%d], v11, s[28:31], s7 offen' % (base + 16, base + 19), tag='k%d' % i)
    for i in range(D):
        loads(i)
    for i in range(16):
        base = FR + (i % D) * 20
        e.wait(vm='k%d' % i)
        if i in (0, 4, 8, 12, 15):
            stampb()
        for nn in range(2):
            for st in range(3):
                a = ACC + (nn * 3 + st) * 4
                src = 'v[%d:%d]' % (a, a + 3) if i > 0 else '0'
                E('v_mfma_f32_16x16x32_bf16 v[%d:%d], v[%d:%d], v[%d:%d], %s' % (
                    a, a + 3, base + 12 + 4 * nn, base + 15 + 4 * nn, base + 4 * st, base + 4 * st + 3, src))
        if i + D < 16:
            loads(i + D)
    E('s_mul_i32 s4, s3, 6144')
    E('v_add_u32 v12, s4, v11')
    for tl in range(6):
        E('ds_write_b128 v12, v[%d:%d] offset:%d' % (ACC + 4 * tl, ACC + 4 * tl + 3, tl * 1024))
    e.wait(lds='all')
    E('s_barrier')
    E('s_cmp_ge_u32 s3, 6')
    E('s_cbranch_scc1 L_b_done')
    E('s_lshl_b32 s4, s3, 10')
    E('v_add_u32 v12, s4, v11')
    for wv in range(8):
        E('ds_read_b128 v[%d:%d], v12 offset:%d' % (FR + 4 * wv, FR + 4 * wv + 3, wv * 6144), tag='r%d' % wv)
    e.wait(lds='r1')
    for r in range(4):
        E('v_add_f32 v%d, v%d, v%d' % (16 + r, FR + r, FR + 4 + r))
    for wv in range(2, 8):
        e.wait(lds='r%d' % wv)
        for r in range(4):
            E('v_add_f32 v%d, v%d, v%d' % (16 + r, 16 + r, FR + 4 * wv + r))
    E('v_cvt_pk_bf16_f32 v20, v16, v17')
    E('v_cvt_pk_bf16_f32 v21, v18, v19')
    E('s_cmp_ge_u32 s3, 3')
    E('s_cselect_b32 s4, 1, 0')
    E('s_mul_i32 s5, s4, 3')
    E('s_sub_u32 s5, s3, s5')
    E('s_mul_i32 s6, s37, 49152')
    E('s_lshl_b32 s5, s5, 14')
    E('s_add_u32 s6, s6, s5')
    E('s_lshl_b32 s5, s38, 6')
    E('s_add_u32 s6, s6, s5')
    E('s_lshl_b32 s4, s4, 5')
    E('s_add_u32 s6, s6, s4')
    E('v_and_b32 v2, 15, v1')
    E('v_lshrrev_b32 v3, 4, v1')
    E('v_lshlrev_b32 v2, 10, v2')
    E('v_lshl_add_u32 v2, v3, 3, v2')
    E('buffer_store_dwordx2 v[20:21], v2, s[8:11], s6 offen')
    stampb()
    e.label('L_b_done')
    E('s_endpgm')
    return e


def kd(name, vgpr, accum, sgpr=72):
    return '''.p2align 6
.amdhsa_kernel %s
  .amdhsa_next_free_vgpr %d
  .amdhsa_next_free_sgpr %d
  .amdhsa_accum_offset %d
  .amdhsa_group_segment_fixed_size 0
  .amdhsa_kernarg_size 64
  .amdhsa_user_sgpr_count 2
  .amdhsa_user_sgpr_kernarg_segment_ptr 1
  .amdhsa_system_sgpr_workgroup_id_x 1
.end_amdhsa_kernel
''' % (name, vgpr, sgpr, accum)


def main():
    global DIAG
    global DIAG_ALL
    if len(sys.argv) > 2 and sys.argv[2].startswith('diag'):
        DIAG = True
        DIAG_ALL = sys.argv[2] == 'diag'
    for kv in sys.argv[3:]:
        k, v = kv.split('=', 1)
        globals()[k] = eval(v)
    ref = open('cdna_kernels/%s.s.ref' % NAME).read().splitlines()
    head = [l for l in ref if l.startswith(';') and '@launch' not in l and 'launch geometry' not in l and 'grid=ceil' not in l]
    a = kernel_a()
    b = kernel_r() if PART else kernel_b()
    out = '\n'.join(head) + '\n'
    out += '; @launch kernel=%s grid=(256,1,1) block=(256,1,1) lds=%d\n' % (KA, LDS_A)
    if not FUSE:
        if PART:
            out += '; @launch kernel=%s grid=(256,1,1) block=(768,1,1) lds=0\n' % KB
        else:
            out += '; @launch kernel=%s grid=(256,1,1) block=(512,1,1) lds=49152\n' % KB
    out += '.amdgcn_target "amdgcn-amd-amdhsa--gfx950"\n.text\n'
    out += a.text() + ('' if FUSE else b.text())
    out += '.section .rodata,"a"\n'
    if PART:
        out += kd(KA, 512, 256) + kd(KB, 32, 32)
    else:
        out += kd(KA, 512, 256) + ('' if FUSE else kd(KB, max(144, 44 + 20 * BD), max(144, 44 + 20 * BD)))
    path = sys.argv[1] if len(sys.argv) > 1 else 'cdna_kernels/%s.s' % NAME
    open(path, 'w').write(out)
    print('nops inserted: A %d  B %d; lines %d' % (a.nops_inserted, b.nops_inserted, out.count('\n')))


if __name__ == '__main__':
    main()
```

```python
import struct, sys, math
from emit import Emitter, merge, sched

NAME = 'standalone__gqa_block_cached__near_ridge'
KA = 'gqa_attn_kernel'
KB = 'gqa_oproj_kernel'

def f32bits(x):
    return struct.unpack('<I', struct.pack('<f', x))[0]

XB = 0
QB = 24576
PB = [0, 24576]
RING = 49152
RING_W = 12288
NSLOT = 3
VS = [98304, 131072, 98304, 131072]
STATS = 81920
LSTAT = 86016
WOST = 65536
LDS_A = 163840

WOT_OFF = 0x800000
WS_SIZE = 0x3000000


DIAG = False
DIAG_ALL = True
PRO0, PRO1, STEPN, SLOWCOST = 12, 8, 8, 6
KFIRST = 0
BD = 5
P3PF = 2
P3X = 0
P3ROT = 7
FUSE = 0
PART = 1
PFA = 12
P3ST = 0
PF6 = 24
PRT_OFF = 0x2000000
P3D = 8
TOUCH = 0
EPO = 0
BURST = 2
XDEF = 1
WQPF = 2
KORD = 1
KVPOL = ''
STPOL = ''
PVS = 16
KTF = 0
NOLOAD = 0
ROT = 0
CI, KI = 3, 0
NV_LATE = 40
NV_S = [[4, 4], [4, 4], [4, 4], [4, 4], [4, 4], [0, 0]]
def kernel_a():
    e = Emitter()
    E = e
    stampc = [0]
    def stamp(key=False):
        if not DIAG or not (DIAG_ALL or key):
            return
        i = stampc[0]; stampc[0] += 1
        E('s_memtime s[60:61]')
        E('s_waitcnt lgkmcnt(0)')
        E('s_lshl_b32 s58, s2, 2')
        E('s_add_u32 s58, s58, s3')
        E('s_lshl_b32 s58, s58, 8')
        E('s_add_u32 s58, s58, 0x%x' % (0xC00000 + i * 8))
        E('v_mov_b32 v63, 0')
        E('v_mov_b32 v0, s60')
        E('buffer_store_dword v0, v63, s[28:31], s58 offen', tag='stamp')
        E('v_mov_b32 v0, s61')
        E('buffer_store_dword v0, v63, s[28:31], s58 offen offset:4', tag='stamp')
    e.raw('.p2align 8')
    e.raw('.globl %s' % KA)
    e.raw('.type %s,@function' % KA)
    e.label(KA)
    E('s_cmp_ge_u32 s2, 256')
    E('s_cbranch_scc1 L_a_done')
    E('s_load_dwordx16 s[40:55], s[0:1], 0')
    E('v_and_b32 v1, 63, v0')
    E('v_lshrrev_b32 v2, 6, v0')
    E('s_nop 0')
    E('v_readfirstlane_b32 s3, v2')
    if FUSE:
        E('s_lshr_b32 s4, s2, 3')
        E('s_and_b32 s38, s2, 3')
        E('s_lshl_b32 s38, s38, 1')
        E('s_and_b32 s5, s4, 1')
        E('s_add_u32 s38, s38, s5')
        E('s_bfe_u32 s37, s2, 0x10002')
        E('s_lshl_b32 s37, s37, 3')
        E('s_lshr_b32 s5, s4, 2')
        E('s_add_u32 s37, s37, s5')
        E('s_bfe_u32 s4, s4, 0x10001')
    else:
        E('s_and_b32 s38, s2, 7')
        E('s_lshr_b32 s4, s2, 3')
        E('s_lshr_b32 s37, s4, 1')
        E('s_and_b32 s4, s4, 1')
    E('s_lshl_b32 s39, s38, 2')
    E('s_lshl_b32 s4, s4, 1')
    E('s_add_u32 s39, s39, s4')
    E('s_lshl_b32 s4, s37, 3')
    E('s_add_u32 s4, s4, s38')
    E('s_lshl_b32 s32, s4, 17')
    E('s_lshl_b32 s5, s3, 15')
    E('s_add_u32 s32, s32, s5')
    E('s_lshr_b32 s5, s2, 3')
    E('s_and_b32 s5, s5, 1')
    E('s_mul_i32 s5, s5, %d' % ROT)
    for kt in range(4):
        E('s_add_u32 s6, s5, %d' % kt)
        E('s_and_b32 s6, s6, 3')
        E('s_lshl_b32 s6, s6, 13')
        E('s_add_u32 s%d, s32, s6' % (64 + kt))
    E('s_mul_i32 s33, s37, 49152')
    E('s_mul_i32 s5, s3, 12288')
    E('s_add_u32 s33, s33, s5')
    E('s_lshl_b32 s34, s39, 8')
    E('s_lshl_b32 s5, s3, 7')
    E('s_add_u32 s34, s34, s5')
    E('s_mul_i32 s35, s3, %d' % RING_W)
    E('s_add_u32 s35, s35, %d' % RING)
    E('s_mov_b32 s36, 0x%08x' % f32bits(math.log2(math.e) / math.sqrt(128.0)))
    E('v_and_b32 v46, 15, v1')
    E('v_lshrrev_b32 v47, 4, v1')
    E('v_xor_b32 v2, v46, v47')
    E('v_lshlrev_b32 v2, 4, v2')
    E('v_lshl_add_u32 v2, v46, 10, v2')
    E('v_lshlrev_b32 v11, 4, v1')
    E('v_lshrrev_b32 v48, 3, v1')
    E('v_and_b32 v49, 7, v1')
    E('v_lshrrev_b32 v50, 1, v49')
    E('v_and_b32 v51, 1, v47')
    E('v_xor_b32 v50, v50, v51')
    E('v_and_b32 v52, 1, v49')
    E('v_lshlrev_b32 v52, 4, v52')
    E('v_lshl_add_u32 v53, v48, 13, v52')
    E('v_lshl_add_u32 v3, v50, 5, v53')
    E('v_xor_b32 v50, 2, v50')
    E('v_lshl_add_u32 v4, v50, 5, v53')
    E('v_add_u32 v4, 0x10000, v4')
    E('v_add_u32 v5, 0x20000, v3')
    E('v_add_u32 v6, 0x20000, v4')
    E('v_lshrrev_b32 v48, 2, v1')
    E('v_and_b32 v48, 3, v48')
    E('v_and_b32 v49, 3, v1')
    E('v_lshrrev_b32 v50, 1, v48')
    E('v_lshlrev_b32 v51, 1, v51')
    E('v_or_b32 v50, v50, v51')
    E('v_lshl_add_u32 v52, v47, 3, v48')
    E('v_lshlrev_b32 v52, 7, v52')
    E('v_lshl_add_u32 v52, v49, 3, v52')
    E('v_add_u32 v52, s35, v52')
    for t in range(4):
        E('v_xor_b32 v53, %d, v50' % t)
        E('v_lshl_add_u32 v%d, v53, 5, v52' % (7 + t))
    E('v_and_b32 v53, 31, v1')
    E('v_lshrrev_b32 v54, 5, v1')
    E('v_lshlrev_b32 v12, 4, v46')
    E('v_lshl_add_u32 v12, v47, 8, v12')
    E('v_lshlrev_b32 v55, 2, v47')
    E('v_xor_b32 v55, v55, v46')
    E('v_lshlrev_b32 v55, 4, v55')
    E('v_lshl_add_u32 v13, v47, 8, v55')
    E('v_lshl_add_u32 v55, v54, 2, v48')
    E('v_lshlrev_b32 v55, 8, v55')
    E('v_xor_b32 v56, s3, v48')
    E('v_lshl_add_u32 v55, v56, 6, v55')
    E('v_and_b32 v56, 1, v47')
    E('v_lshl_add_u32 v55, v56, 5, v55')
    E('v_lshl_add_u32 v14, v49, 3, v55')
    E('v_add_u32 v14, %d, v14' % VS[0])
    E('s_lshl_b32 s4, s3, 11')
    E('v_add_u32 v15, s4, v11')
    E('v_lshlrev_b32 v55, 4, v46')
    E('v_lshl_add_u32 v55, v54, 9, v55')
    E('v_lshl_add_u32 v55, v56, 3, v55')
    E('s_lshr_b32 s4, s3, 1')
    E('s_mul_i32 s4, s4, 3')
    E('s_and_b32 s5, s3, 1')
    E('s_lshl_b32 s5, s5, 12')
    E('s_add_u32 s5, s5, %d' % QB)
    for st in range(3):
        E('s_add_u32 s6, s4, %d' % st)
        E('s_lshr_b32 s7, s6, 1')
        E('s_lshl_b32 s7, s7, 13')
        E('s_and_b32 s6, s6, 1')
        E('s_lshl_b32 s6, s6, 8')
        E('s_add_u32 s6, s6, s7')
        E('s_add_u32 s6, s6, s5')
        E('v_add_u32 v%d, s6, v55' % (16 + st))
    E('v_lshlrev_b32 v20, 5, v53')
    E('v_lshl_add_u32 v19, v54, 2, v20')
    E('s_lshl_b32 s4, s3, 3')
    E('v_add_u32 v19, s4, v19')
    E('v_lshlrev_b32 v55, 4, v46')
    E('v_lshl_add_u32 v55, v54, 8, v55')
    if PART:
        E('s_mul_i32 s4, s3, 3072')
        E('s_add_u32 s5, s4, 86016')
        E('s_cmp_eq_u32 s3, 0')
        E('s_cselect_b32 s5, 77824, s5')
        E('s_add_u32 s4, s4, 65536')
        E('s_sub_u32 s5, s5, s4')
        E('v_add_u32 v55, s4, v55')
    else:
        E('s_mov_b32 s5, 12288')
    for qt in range(3):
        E('v_add_u32 v57, %d, v56' % (2 * qt))
        E('v_cmp_le_u32 vcc, 3, v57')
        E('v_subrev_u32 v58, 3, v57')
        E('v_lshlrev_b32 v58, 10, v58')
        E('v_add_u32 v58, s5, v58')
        E('v_lshlrev_b32 v57, 10, v57')
        E('v_cndmask_b32 v57, v57, v58, vcc')
        E('v_add_u32 v%d, v57, v55' % (27 + qt))
    E('s_waitcnt lgkmcnt(0)')
    def srd(d, lo, size):
        E('s_mov_b32 s%d, s%d' % (d, lo))
        E('s_and_b32 s%d, s%d, 0xffff' % (d + 1, lo + 1))
        E('s_mov_b32 s%d, 0x%x' % (d + 2, size))
        E('s_mov_b32 s%d, 0x20000' % (d + 3))
    srd(8, 40, 786432)
    srd(12, 42, 16777216)
    srd(16, 44, 16777216)
    srd(20, 46, 4194304)
    srd(24, 48, 4194304)
    srd(28, 54, WS_SIZE)

    stamp(True)
    def wqpf():
        E('s_lshr_b32 s4, s2, 3')
        E('s_lshl_b32 s4, s4, 2')
        E('s_add_u32 s4, s4, s3')
        E('s_lshl_b32 s4, s4, 15')
        if FUSE:
            E('s_and_b32 s5, s2, 3')
            E('s_lshl_b32 s5, s5, 11')
        else:
            E('s_lshl_b32 s5, s38, 10')
        E('s_add_u32 s4, s4, s5')
        E('v_lshrrev_b32 v62, 4, v1')
        E('v_lshlrev_b32 v62, 13, v62')
        E('v_and_b32 v63, 15, v1')
        E('v_lshl_add_u32 v62, v63, %d, v62' % (7 if FUSE else 6))
        E('buffer_load_dword v62, v62, s[20:23], s4 offen', tag='pf')
    if WQPF == 1:
        wqpf()
    if TOUCH:
        E('v_mov_b32 v63, 0')
        E('s_mul_i32 s4, s37, 393216')
        E('s_lshl_b32 s5, s39, 2')
        E('s_add_u32 s5, s5, s3')
        E('s_mul_i32 s5, s5, 3072')
        E('s_add_u32 s4, s4, s5')
        E('buffer_load_dword v248, v63, s[28:31], s4 offen', tag='pf')
        E('s_and_b32 s4, s2, 3')
        E('s_lshl_b32 s4, s4, 20')
        E('s_add_u32 s4, s4, 0x%x' % WOT_OFF)
        E('buffer_load_dword v249, v63, s[28:31], s4 offen', tag='pf')
        if TOUCH > 1:
            E('buffer_load_dword v250, v63, s[12:15], s64 offen', tag='pf')
            E('buffer_load_dword v251, v63, s[16:19], s64 offen', tag='pf')
            E('s_lshl_b32 s4, s2, 14')
            E('buffer_load_dword v252, v63, s[24:27], s4 offen', tag='pf')
    for n in range(KFIRST):
        E('s_add_u32 s7, s%d, %d' % (64 + n // 8, (n % 8) * 1024))
        E('buffer_load_dwordx4 a[%d:%d], v12, s[12:15], s7 offen' % (n * 4, n * 4 + 3), tag='K%d' % (n // 8))
    E('s_mul_i32 s4, s3, 12288')
    for i in range(12):
        E('s_mul_i32 s5, s3, 12')
        E('s_add_u32 s5, s5, %d' % i)
        E('s_and_b32 s5, s5, 15')
        E('s_lshl_b32 s5, s5, 4')
        E('v_xor_b32 v%d, s5, v11' % (60 + (i & 1)))
        E('s_add_u32 s5, s4, %d' % (XB + i * 1024))
        E('s_mov_b32 m0, s5')
        E('s_add_u32 s6, s33, %d' % (i * 1024))
        E('buffer_load_dwordx4 v%d, s[8:11], s6 offen lds' % (60 + (i & 1)), tag='x')

    def wq_dma(c):
        out = []
        for m in range(4):
            def f(m=m):
                E('s_add_u32 s5, s35, %d' % ((c % NSLOT) * 4096 + m * 1024))
                E('s_mov_b32 m0, s5')
                E('s_add_u32 s6, s34, %d' % (c * 262144))
                E('buffer_load_dwordx4 v%d, s[20:23], s6 offen lds' % (3 + m), tag='wq%d' % c)
            out.append(f)
        return out

    def wq_reg(c):
        if c < 8:
            return 'v', 168 + (c - 3) * 16
        return 'a', 128 + (c - 8) * 16

    def wq_load(c):
        out = []
        fl, r = wq_reg(c)
        for m in range(4):
            def f(m=m):
                E('s_add_u32 s6, s34, %d' % (c * 262144))
                E('buffer_load_dwordx4 %s[%d:%d], v%d, s[20:23], s6 offen' % (fl, r + 4 * m, r + 4 * m + 3, 3 + m), tag='wq%d' % c)
            out.append(f)
        return out

    def wq_write(c):
        out = []
        fl, r = wq_reg(c)
        out.append(lambda: e.wait(vm='wq%d' % c))
        for m in range(4):
            out.append(lambda m=m: E('ds_write_b128 v59, %s[%d:%d] offset:%d' % (fl, r + 4 * m, r + 4 * m + 3, (c % NSLOT) * 4096 + m * 1024)))
        return out

    ACC = 64
    AF = [112, 128]
    BF = [144, 156]

    def p1_reads(c):
        out = []
        bu = c & 1
        sl = c % NSLOT
        out.append(lambda: E('v_xor_b32 v%d, %d, v2' % (60 + bu, c * 64)))
        for st in range(3):
            out.append(lambda st=st: E('ds_read_b128 v[%d:%d], v%d offset:%d' % (BF[bu] + 4 * st, BF[bu] + 4 * st + 3, 60 + bu, XB + st * 16384), tag='p1r%d' % c))
        for t in range(4):
            for hh in range(2):
                out.append(lambda t=t, hh=hh: E('ds_read_b64_tr_b16 v[%d:%d], v%d offset:%d' % (
                    AF[bu] + 4 * t + 2 * hh, AF[bu] + 4 * t + 2 * hh + 1, 7 + t, sl * 4096 + hh * 512), tag='p1r%d' % c))
        return out

    def kload(n):
        def f():
            E('s_add_u32 s7, s%d, %d' % (64 + n // 8, (n % 8) * 1024))
            E('buffer_load_dwordx4 a[%d:%d], v12, s[12:15], s7 offen%s' % (n * 4, n * 4 + 3, KVPOL), tag='K%d' % (n // 8))
        return f

    def v_chunk(t):
        out = []
        for mm in range(8):
            def f(mm=mm):
                E('s_lshl_b32 s5, s3, 13')
                E('s_add_u32 s5, s5, %d' % (VS[t] + mm * 1024))
                E('s_mov_b32 m0, s5')
                E('s_add_u32 s6, s%d, %d' % (64 + t, mm * 1024))
                E('buffer_load_dwordx4 v13, s[16:19], s6 offen%s lds' % KVPOL, tag='V%d' % t)
            out.append(f)
        return out

    def v_regs(t):
        out = []
        for mm in range(8):
            def f(mm=mm):
                r = 192 + (t - 2) * 32 + mm * 4
                E('s_add_u32 s6, s%d, %d' % (64 + t, mm * 1024))
                E('buffer_load_dwordx4 v[%d:%d], v12, s[16:19], s6 offen%s' % (r, r + 3, KVPOL), tag='V%d' % t)
            out.append(f)
        return out
    E('v_add_u32 v59, s35, v11')
    def wo_early():
        out = []
        def pre():
            E('s_lshr_b32 s4, s2, 2')
            E('s_lshl_b32 s4, s4, 16')
            E('s_and_b32 s5, s2, 3')
            E('s_lshl_b32 s5, s5, 8')
            E('s_add_u32 s4, s4, s5')
            E('s_lshl_b32 s5, s3, 14')
            E('s_add_u32 s56, s4, s5')
            E('v_lshrrev_b32 v248, 4, v1')
            E('v_and_b32 v249, 15, v1')
            E('v_lshlrev_b32 v248, 10, v248')
            E('v_lshl_add_u32 v248, v249, 4, v248')
            E('buffer_load_dwordx4 a[96:99], v248, s[24:27], s56 offen', tag='WO')
        out.append(pre)
        for m in range(1, 4):
            def f(m=m):
                E('s_add_u32 s6, s56, %d' % (m * 4096))
                E('buffer_load_dwordx4 a[%d:%d], v248, s[24:27], s6 offen' % (96 + 4 * m, 99 + 4 * m), tag='WO')
            out.append(f)
        return out
    seq = []
    if KORD:
        slow = [kload(n) for n in range(KFIRST, 32)] + v_chunk(0) + v_chunk(1) + v_regs(2) + v_regs(3)
    else:
        slow = [kload(n) for n in range(KFIRST, 16)] + v_chunk(0) + v_chunk(1) + [kload(n) for n in range(16, 32)] + v_regs(2) + v_regs(3)
    for c in range(3):
        seq += wq_dma(c)
    for c in range(3, 16):
        seq += wq_load(c)
        if c >= CI:
            seq += slow[:KI]
            slow = slow[KI:]
    if FUSE > 1:
        seq += wo_early()
    nfast = len(seq)
    seq += slow
    LEFT = {'K0': 56, 'K1': 48, 'V0': 40, 'V1': 32, 'K2': 24, 'K3': 16, 'V2': 8, 'V3': 0}
    if KORD:
        LEFT = {'K0': 56, 'K1': 48, 'K2': 40, 'K3': 32, 'V0': 24, 'V1': 16, 'V2': 8, 'V3': 0}
    def vwait(tag):
        nf = 0
        while len(seq) > LEFT[tag]:
            issue(SLOWCOST); nf += 1
        if nf:
            print('forced issue of %d loads for %s' % (nf, tag))
        e.wait(vm=tag)
    issued = [0]
    def issue(maxn=1000):
        n = 0
        while seq and len(e.vmq) < 62 and n < maxn:
            seq.pop(0)()
            n += 1 if issued[0] < nfast else SLOWCOST
            issued[0] += 1
    stamp()
    issue(PRO0)
    if WQPF == 2:
        wqpf()
    stamp()
    e.wait(vm='wq0')
    stamp()
    E('s_barrier')
    stamp()
    issue(PRO1)
    for f in p1_reads(0):
        f()
    for c in range(16):
        bu = c & 1
        e.wait(lds='p1r%d' % c)
        if c in (2, 4, 6, 8, 12):
            stamp()
        rd = []
        if c + 1 < 16:
            if c + 1 < 3:
                rd.append(lambda c=c: e.wait(vm='wq%d' % (c + 1)))
            rd += p1_reads(c + 1)
        rd2 = []
        if 3 <= c + 2 < 16:
            rd2 = wq_write(c + 2)
        rd2.append(lambda: issue(STEPN))
        if FUSE > 1 and c == 14:
            def stg0():
                e.wait(vm='WO')
                E('s_lshl_b32 s4, s3, 12')
                E('s_add_u32 s4, s4, %d' % VS[1])
                E('v_add_u32 v250, s4, v13')
                for m in range(4):
                    E('ds_write_b128 v250, a[%d:%d] offset:%d' % (96 + 4 * m, 99 + 4 * m, m * 1024))
            rd2.append(stg0)
        mf = []
        for nt in range(4):
            for st in range(3):
                a = ACC + (nt * 3 + st) * 4
                src = 'v[%d:%d]' % (a, a + 3) if c > 0 else '0'
                mf.append(lambda a=a, nt=nt, st=st, src=src: E('v_mfma_f32_16x16x32_bf16 v[%d:%d], v[%d:%d], v[%d:%d], %s' % (
                    a, a + 3, AF[bu] + 4 * nt, AF[bu] + 4 * nt + 3, BF[bu] + 4 * st, BF[bu] + 4 * st + 3, src)))
        for f in merge(mf[:6], rd) + merge(mf[6:], rd2):
            f()
    for nt in range(4):
        for st in range(3):
            a = ACC + (nt * 3 + st) * 4
            E('v_cvt_pk_bf16_f32 v%d, v%d, v%d' % (a, a, a + 1))
            E('v_cvt_pk_bf16_f32 v%d, v%d, v%d' % (a + 1, a + 2, a + 3))
    if FUSE > 1:
        e.wait(lds='all')
    stamp(True)
    E('s_barrier')
    for nt in range(4):
        for st in range(3):
            a = ACC + (nt * 3 + st) * 4
            E('ds_write_b64 v%d, v[%d:%d] offset:%d' % (16 + st, a, a + 1, nt * 1024))

    if FUSE > 1:
        E('v_lshrrev_b32 v46, 4, v1')
        E('v_lshrrev_b32 v47, 2, v1')
        E('v_and_b32 v47, 3, v47')
        E('v_and_b32 v48, 3, v1')
        E('v_lshl_add_u32 v49, v46, 3, v47')
        E('v_lshlrev_b32 v49, 8, v49')
        E('v_xor_b32 v50, s3, v47')
        E('v_lshl_add_u32 v49, v50, 6, v49')
        E('v_lshl_add_u32 v49, v48, 3, v49')
        E('v_add_u32 v49, 0x%x, v49' % VS[1])
        for kk in range(2):
            for nn in range(2):
                for hh in range(2):
                    r = 30 + (kk * 2 + nn) * 4 + 2 * hh
                    E('ds_read_b64_tr_b16 v[%d:%d], v49 offset:%d' % (r, r + 1, (32 * kk + 4 * hh) * 256 + nn * 32), tag='wt')
        E('s_and_b32 s4, s2, 3')
        E('s_lshl_b32 s4, s4, 3')
        E('s_lshl_b32 s5, s3, 1')
        E('s_add_u32 s4, s4, s5')
        E('s_lshl_b32 s4, s4, 17')
        E('s_lshr_b32 s5, s2, 2')
        E('s_lshl_b32 s5, s5, 11')
        E('s_add_u32 s4, s4, s5')
        E('s_add_u32 s62, s4, 0x%x' % WOT_OFF)
        E('s_add_u32 s63, s62, 0x20000')
        E('s_mov_b32 s20, s52')
        E('s_and_b32 s21, s53, 0xffff')
        E('s_mov_b32 s22, 256')
        E('s_mov_b32 s23, 0x20000')
    while len(seq) > NV_LATE:
        issue(SLOWCOST)
    if NOLOAD:
        del seq[:]
    e.wait(lds='all')
    if FUSE > 1:
        for kk in range(2):
            for nn in range(2):
                r = 30 + (kk * 2 + nn) * 4
                E('buffer_store_dwordx4 v[%d:%d], v11, s[28:31], s%d offen offset:%d sc1' % (r, r + 3, 62 + nn, kk * 1024), tag='wst')
    E('s_barrier')
    QF = 128
    for qt in range(3):
        for ks in range(8):
            r = QF + (qt * 8 + ks) * 4
            E('ds_read_b128 a[%d:%d], v11 offset:%d' % (r, r + 3, QB + (qt * 8 + ks) * 1024), tag='Q')
    E('s_lshl_b32 s4, s3, 13')
    E('s_add_u32 s4, s4, 0xC000')
    E('v_and_b32 v46, 15, v1')
    E('v_lshrrev_b32 v47, 4, v1')
    E('v_xor_b32 v48, v46, v47')
    for jj in range(4):
        E('v_xor_b32 v49, %d, v48' % (4 * jj))
        E('v_lshlrev_b32 v49, 4, v49')
        E('v_lshl_add_u32 v49, v47, 8, v49')
        E('v_add_u32 v%d, s4, v49' % (6 + jj))
    E('v_and_b32 v46, 31, v1')
    E('v_lshrrev_b32 v47, 5, v1')
    E('v_and_b32 v48, 15, v1')
    E('v_xor_b32 v48, v48, v47')
    E('v_lshlrev_b32 v48, 4, v48')
    E('v_lshl_add_u32 v48, v46, 8, v48')
    E('v_add_u32 v54, s4, v48')
    E('v_add_u32 v60, 0x%x, v19' % STATS)
    E('v_add_u32 v61, 0x%x, v20' % STATS)
    def ktr(kt):
        w_ = lambda: vwait('K%d' % kt)
        w_.cost = 0
        out = [w_]
        for m in range(8):
            r = (kt * 8 + m) * 4
            out.append(lambda m=m, r=r: E('ds_write_b128 v%d, a[%d:%d] offset:%d' % (6 + (m & 3), r, r + 3, m * 1024)))
        for ks in range(8):
            r = (kt * 8 + ks) * 4
            def f(ks=ks, r=r):
                E('v_xor_b32 v%d, %d, v54' % (55 + (ks & 1), ks * 32))
                E('ds_read_b128 a[%d:%d], v%d' % (r, r + 3, 55 + (ks & 1)), tag='kt%d' % kt)
            out.append(f)
        return out
    SB = [64, 128]
    MX = 62
    def sreg(u, kt):
        return SB[u & 1] + (kt & 1) * 16
    def max_ops(u, kt):
        out = []
        for i in range(8):
            s_ = sreg(u, kt) + 2 * i
            if (kt & 1) == 0 and i == 0:
                out.append(lambda s_=s_: E('v_max_f32 v%d, v%d, v%d' % (MX, s_, s_ + 1)))
            else:
                out.append(lambda s_=s_: E('v_max3_f32 v%d, v%d, v%d, v%d' % (MX, s_, s_ + 1, MX)))
        return out
    def s_mf(u, kt):
        q = u % 3
        mf = []
        for ks in range(8):
            s_ = sreg(u, kt)
            src = 'v[%d:%d]' % (s_, s_ + 15) if ks > 0 else '0'
            kr = (kt * 8 + ks) * 4
            qr = QF + (q * 8 + ks) * 4
            mf.append(lambda s_=s_, kr=kr, qr=qr, src=src: E('v_mfma_f32_32x32x16_bf16 v[%d:%d], a[%d:%d], a[%d:%d], %s' % (
                s_, s_ + 15, kr, kr + 3, qr, qr + 3, src)))
        return mf
    PK = [30, 34, 38, 42]
    pkc = [0]
    OA = [0, 64]
    PSL = {(0, 0): 0, (0, 1): 8192, (1, 0): 16384, (1, 1): 24576, (2, 0): 32768, (2, 1): 40960,
           (0, 2): 49152, (0, 3): 57344, (1, 2): 0, (1, 3): 16384, (2, 2): 32768, (2, 3): 8192}
    def exp_ops(u, kt):
        q = u % 3
        out = []
        s0 = sreg(u, kt)
        for hf in range(2):
            pk = PK[pkc[0] % 4]; pkc[0] += 1
            regs = [s0 + 8 * hf + i for i in range(8)]
            for r in regs:
                out.append(lambda r=r: E('v_fma_f32 v%d, v%d, s36, -v%d' % (r, r, 21 + q)))
            for r in regs:
                out.append(lambda r=r: E('v_exp_f32 v%d, v%d' % (r, r)))
            for k, r in enumerate(regs):
                if kt == 0 and hf == 0 and k == 0:
                    out.append(lambda r=r: E('v_add_f32 v%d, v%d, v%d' % (24 + q, r, r + 1)))
                elif kt == 0 and hf == 0 and k == 1:
                    pass
                else:
                    out.append(lambda r=r: E('v_add_f32 v%d, v%d, v%d' % (24 + q, r, 24 + q)))
                if k & 1:
                    out.append(lambda r=r, pk=pk, k=k: E('v_cvt_pk_bf16_f32 v%d, v%d, v%d' % (pk + k // 2, r - 1, r)))
            off = PSL[(q, kt)] + hf * 1024
            out.append(lambda pk=pk, off=off: E('ds_write_b128 v15, v[%d:%d] offset:%d' % (pk, pk + 3, off)))
        return out
    def exchange(u):
        h, q = u // 3, u % 3
        E('ds_write_b32 v60, v%d offset:%d' % (MX, q * 1024))
        e.wait(lds='all')
        stamp()
        E('s_barrier')
        E('ds_read_b128 v[46:49], v61 offset:%d' % (q * 1024), tag='st')
        E('ds_read_b128 v[50:53], v61 offset:%d' % (q * 1024 + 16), tag='st')
        out = [lambda: e.wait(lds='st')]
        ops = ['v_max3_f32 v46, v46, v47, v48', 'v_max3_f32 v50, v50, v51, v52', 'v_max3_f32 v46, v46, v49, v53', 'v_max_f32 v46, v46, v50']
        if h == 0:
            ops += ['v_mul_f32 v%d, s36, v46' % (21 + q)]
        else:
            ops += ['v_mul_f32 v46, s36, v46', 'v_max_f32 v46, v46, v%d' % (21 + q), 'v_sub_f32 v47, v%d, v46' % (21 + q),
                    'v_exp_f32 v%d, v47' % (57 + q), 'v_mov_b32 v%d, v46' % (21 + q), 'v_mul_f32 v%d, v%d, v%d' % (24 + q, 24 + q, 57 + q)]
        out += [(lambda o=o: E(o)) for o in ops]
        if not XDEF:
            for f in out:
                f()
            out = []
        return out

    PB4 = [96, 112, 160, 176]
    pvc = [0]
    def C(cost, fn):
        fn.cost = cost
        return fn
    def pv_anchors(lst):
        steps = []
        for (t, qs, first) in lst:
            for n in range(8):
                steps.append((t, qs, first, n))
        base = pvc[0]
        pvc[0] += len(steps)
        def reads(i):
            t, qs, first, n = steps[i]
            u, hf = n // 2, n % 2
            b = PB4[(base + i) & 3]
            vb = 14 if (t & 1) == 0 else 10
            tag = 'pv%d' % (base + i)
            out = []
            for ee in range(2):
                out.append(lambda ee=ee: E('ds_read_b64_tr_b16 v[%d:%d], v%d offset:%d' % (
                    b + 2 * ee, b + 2 * ee + 1, vb, (32 * u + 16 * hf + 8 * ee) * 256), tag=tag))
            for qt in qs:
                off = PSL[(qt, t)] + u * 2048 + hf * 1024
                out.append(lambda qt=qt, off=off: E('ds_read_b128 v[%d:%d], v11 offset:%d' % (
                    b + 4 + 4 * qt, b + 7 + 4 * qt, off), tag=tag))
            return out
        pro = reads(0) + reads(1)
        anc = []
        for i, (t, qs, first, n) in enumerate(steps):
            b = PB4[(base + i) & 3]
            rd = reads(i + 2) if i + 2 < len(steps) else []
            k = len(qs)
            for x, qt in enumerate(qs):
                o = OA[t >> 1] + 16 * qt
                src = '0' if (first and n == 0) else 'a[%d:%d]' % (o, o + 15)
                fn = (lambda o=o, b=b, qt=qt, src=src: E('v_mfma_f32_32x32x16_bf16 a[%d:%d], v[%d:%d], v[%d:%d], %s' % (
                    o, o + 15, b, b + 3, b + 4 + 4 * qt, b + 7 + 4 * qt, src)))
                pre = [lambda i=i: e.wait(lds='pv%d' % (base + i))] if x == 0 else []
                post = rd[len(rd) * x // k: len(rd) * (x + 1) // k]
                anc.append((pre, fn, post))
        return pro, anc

    WOR = 240
    def wo_loads():
        out = []
        def pre():
            E('s_lshr_b32 s4, s2, 2')
            E('s_lshl_b32 s4, s4, 16')
            E('s_and_b32 s5, s2, 3')
            E('s_lshl_b32 s5, s5, 8')
            E('s_add_u32 s4, s4, s5')
            E('s_lshl_b32 s5, s3, 14')
            E('s_add_u32 s56, s4, s5')
            E('v_lshrrev_b32 v3, 4, v1')
            E('v_and_b32 v4, 15, v1')
            E('v_lshlrev_b32 v3, 10, v3')
            E('v_lshl_add_u32 v3, v4, 4, v3')
        out.append(pre)
        for m in range(4):
            def f(m=m):
                E('s_add_u32 s6, s56, %d' % (m * 4096))
                E('buffer_load_dwordx4 a[%d:%d], v3, s[24:27], s6 offen' % (WOR + 4 * m, WOR + 4 * m + 3), tag='WO')
            out.append(f)
        return out
    def wp_reg(j, i):
        if 1 <= j <= 4:
            return 'a', 128 + ((j + 2) % 4) * 32 + 4 * i
        if j in (0, 7):
            return 'v', 192 + 4 * i
        if j == 5:
            return 'v', 224 + 4 * i
        return 'a', (48 + 4 * i) if i < 4 else (112 + 4 * (i - 4))
    def wp_pre():
        E('s_lshl_b32 s4, s39, 17')
        E('s_lshl_b32 s5, s3, 8')
        E('s_add_u32 s56, s4, s5')
        E('v_lshrrev_b32 v3, 4, v1')
        E('v_and_b32 v4, 15, v1')
        E('v_lshlrev_b32 v4, 4, v4')
        E('v_lshl_add_u32 v3, v3, 13, v4')
    def wp_load(j, i):
        def f():
            fl, r = wp_reg(j, i)
            if i % 4 == 0:
                E('s_add_u32 s62, s56, %d' % ((32 * j + i) * 1024))
            E('buffer_load_dwordx4 %s[%d:%d], v3, s[24:27], s62 offen offset:%d' % (fl, r, r + 3, (i % 4) * 1024), tag='wp%d' % j)
        return C(20, f)
    def v_store(t):
        out = [C(0, lambda: vwait('V%d' % t))]
        def pre():
            E('s_lshl_b32 s4, s3, 13')
            E('s_add_u32 s4, s4, %d' % VS[t])
            E('v_add_u32 v55, s4, v13')
        out.append(pre)
        for mm in range(8):
            r = 192 + (t - 2) * 32 + mm * 4
            out.append(lambda r=r, mm=mm: E('ds_write_b128 v55, v[%d:%d] offset:%d' % (r, r + 3, mm * 1024)))
        return out
    def iss(n):
        return [C(20, lambda: issue(SLOWCOST))] * n

    E('v_add_u32 v10, 0x%x, v14' % (VS[1] - VS[0]))
    for f in ktr(0):
        f()
    e.wait(lds='kt0')
    stamp()
    xpost = []
    for u in range(6):
        h, q = u // 3, u % 3
        t0, t1 = 2 * h, 2 * h + 1
        sa = [([], f, []) for f in s_mf(u, t0)] + [([], f, []) for f in s_mf(u, t1)]
        if q == 0:
            sa[8] = ([lambda t1=t1: e.wait(lds='kt%d' % t1)], sa[8][1], [])
        pro = []
        if u in (4, 5):
            pro, pa = pv_anchors([(u - 4, (0, 1, 2), u == 4)])
            anc = sa[:2] + merge(sa[2:], pa[:PVS]) + pa[PVS:]
        else:
            anc = sa
        i7 = [k for k, a in enumerate(anc) if a[1] is sa[7][1]][0]
        i15 = [k for k, a in enumerate(anc) if a[1] is sa[15][1]][0]
        s0, s1 = [], []
        if u > 0:
            pu = u - 1
            s0 = exp_ops(pu, 2 * (pu // 3))
            s1 = exp_ops(pu, 2 * (pu // 3) + 1)
        if q == 0:
            s0 = ktr(t1) + s0 if KTF else merge(s0, ktr(t1))
        if u == 2:
            s1 = merge(s1, ktr(2))
        if u == 5:
            s1 = merge(s1, v_store(2))
        if u == 4 and not FUSE and not PART:
            s1 = merge(s1, wo_loads())
        if u == 4 and PART:
            early = [wp_load(1, m) for m in range(8)] + [wp_load(6, m) for m in range(4)]
            late6 = [wp_load(j, m) for j in (2, 3, 4) for m in range(8)] + [wp_load(6, m) for m in range(4, 8)]
            late6 = early[PFA:] + late6
            s1 = merge(s1, [wp_pre] + early[:PFA])
        s0 = xpost + merge(s0, iss(NV_S[u][0]))
        s1 = merge(s1, iss(NV_S[u][1]))
        cons = [(i7 + 1, f) for f in max_ops(u, t0)] + [(i15 + 1, f) for f in max_ops(u, t1)]
        if FUSE > 1 and u == 4:
            E('s_and_b32 s4, s2, 3')
            E('s_lshl_b32 s4, s4, 2')
            E('s_add_u32 s4, s4, 64')
            E('v_mov_b32 v4, 1')
            E('v_mov_b32 v3, 0')
            E('s_cmp_eq_u32 s3, 0')
            E('s_cselect_b32 s58, 1, 0')
            E('s_mov_b32 s59, 0')
            E('s_mov_b64 exec, s[58:59]')
            E('buffer_atomic_add v4, v3, s[20:23], s4 offen sc1')
            E('s_mov_b64 exec, -1')
        if FUSE > 1 and u == 5:
            E('s_lshr_b32 s4, s39, 3')
            E('s_lshl_b32 s4, s4, 2')
            E('s_add_u32 s4, s4, 64')
            E('buffer_load_dword v5, v3, s[20:23], s4 offen sc0 sc1', tag='rdy')
        for f in pro:
            f()
        if q == 0:
            sched(e, anc[:8], s0, burst=BURST if u else 0)
            sched(e, anc[8:], s1, [(m - 8, f) for m, f in cons])
        else:
            sched(e, anc, s0 + s1, cons, burst=BURST)
        if u == 3:
            vwait('V0')
        if u == 4:
            vwait('V1')
        xpost = exchange(u)
        if u == 2:
            stamp(True)
    tail = exp_ops(5, 2) + exp_ops(5, 3)
    tail = xpost + merge(tail, v_store(3))
    for qt in range(3):
        tail.append(lambda qt=qt: E('ds_write_b32 v60, v%d offset:%d' % (24 + qt, LSTAT - STATS + qt * 1024)))
    def stg():
        e.wait(vm='WO')
        E('s_lshl_b32 s4, s3, 12')
        E('s_add_u32 s4, s4, %d' % WOST)
        E('v_add_u32 v56, s4, v13')
        for m in range(4):
            E('ds_write_b128 v56, a[%d:%d] offset:%d' % (WOR + 4 * m, WOR + 4 * m + 3, m * 1024))
    if not FUSE and not PART:
        tail.append(stg)
    if PART:
        late6 = [wp_load(0, m) for m in range(8)] + late6
        tail = merge(tail, late6[:PF6])
        late7 = late6[PF6:] + [wp_load(5, m) for m in range(8)]
    if FUSE > 1:
        e.wait(vm='rdy')
        E('v_readfirstlane_b32 s64, v5')
        E('s_mov_b32 s12, s54')
        E('s_and_b32 s13, s55, 0xffff')
        E('s_cmp_ge_u32 s64, 64')
        E('s_cselect_b32 s14, 0x%x, 0' % WS_SIZE)
        E('s_mov_b32 s15, 0x20000')
        if P3PF:
            E('s_lshr_b32 s4, s2, 3')
            E('s_lshl_b32 s4, s4, 2')
            E('s_add_u32 s4, s4, s3')
            E('s_lshl_b32 s4, s4, 13')
            E('s_lshr_b32 s5, s39, 3')
            E('s_lshl_b32 s5, s5, 20')
            E('s_add_u32 s4, s4, s5')
            E('s_add_u32 s4, s4, 0x%x' % WOT_OFF)
            E('v_lshlrev_b32 v4, 7, v1')
            E('buffer_load_dword v5, v4, s[12:15], s4 offen', tag='pf')
    pro, pa = pv_anchors([(2, (0, 1), True)])
    for f in pro:
        f()
    sched(e, pa, tail, lead=100)
    e.wait(lds='all')
    stamp()
    E('s_barrier')
    stamp(True)
    b = []
    TB = [64, 80, 128]
    for qt in range(3):
        def ls(qt=qt):
            E('ds_read_b128 v[46:49], v61 offset:%d' % (LSTAT - STATS + qt * 1024), tag='ls%d' % qt)
            E('ds_read_b128 v[50:53], v61 offset:%d' % (LSTAT - STATS + qt * 1024 + 16), tag='ls%d' % qt)
            e.wait(lds='ls%d' % qt)
            E('v_add_f32 v46, v46, v47')
            E('v_add_f32 v48, v48, v49')
            E('v_add_f32 v50, v50, v51')
            E('v_add_f32 v52, v52, v53')
            E('v_add_f32 v46, v46, v48')
            E('v_add_f32 v50, v50, v52')
            E('v_add_f32 v46, v46, v50')
            E('v_rcp_f32 v%d, v46' % (24 + qt))
            E('v_mul_f32 v%d, v%d, v%d' % (57 + qt, 57 + qt, 24 + qt))
        b.append(ls)
        for r in range(16):
            def f(qt=qt, r=r):
                E('v_accvgpr_read_b32 v%d, a%d' % (TB[qt] + r, OA[0] + 16 * qt + r))
                E('v_mul_f32 v%d, v%d, v%d' % (TB[qt] + r, TB[qt] + r, 57 + qt))
            b.append(f)
    def wt_addr():
        E('v_lshrrev_b32 v46, 4, v1')
        E('v_lshrrev_b32 v47, 2, v1')
        E('v_and_b32 v47, 3, v47')
        E('v_and_b32 v48, 3, v1')
        E('v_lshl_add_u32 v49, v46, 3, v47')
        E('v_lshlrev_b32 v49, 8, v49')
        E('v_xor_b32 v50, s3, v47')
        E('v_lshl_add_u32 v49, v50, 6, v49')
        E('v_lshl_add_u32 v49, v48, 3, v49')
        E('v_add_u32 v49, 0x%x, v49' % WOST)
        for kk in range(2):
            for nn in range(2):
                for hh in range(2):
                    r = 30 + (kk * 2 + nn) * 4 + 2 * hh
                    E('ds_read_b64_tr_b16 v[%d:%d], v49 offset:%d' % (r, r + 1, (32 * kk + 4 * hh) * 256 + nn * 32), tag='wt')
    if not FUSE and not PART:
        b.append(wt_addr)
    if PART:
        b = merge(b, late7)
    def epi(qt):
        out = []
        T = TB[qt]
        U = (96 if PART else 192) + (qt & 1) * 16
        for r in range(16):
            out.append(lambda r=r: E('v_accvgpr_read_b32 v%d, a%d' % (U + r, OA[1] + 16 * qt + r)))
        for r in range(16):
            out.append(lambda r=r: E('v_fma_f32 v%d, v%d, v%d, v%d' % (T + r, U + r, 24 + qt, T + r)))
        for k in range(8):
            out.append(lambda k=k: E('v_cvt_pk_bf16_f32 v%d, v%d, v%d' % (T + k, T + 2 * k, T + 2 * k + 1)))
        for k in (0, 2):
            def f(k=k):
                E('v_permlane32_swap_b32 v%d, v%d' % (T + 2 * k, T + 2 * k + 2))
                E('v_permlane32_swap_b32 v%d, v%d' % (T + 2 * k + 1, T + 2 * k + 3))
                if PART:
                    E('ds_write_b128 v%d, v[%d:%d] offset:%d' % (27 + qt, T + 2 * k, T + 2 * k + 3, k * 256))
                else:
                    E('buffer_store_dwordx4 v[%d:%d], v%d, s[28:31], s57 offen offset:%d%s' % (T + 2 * k, T + 2 * k + 3, 27 + qt, k * 256, STPOL))
            out.append(f)
        return out
    E('s_mul_i32 s4, s37, 393216')
    E('s_lshl_b32 s5, s39, 2')
    E('s_add_u32 s5, s5, s3')
    E('s_mul_i32 s5, s5, 3072')
    E('s_add_u32 s57, s4, s5')
    if EPO:
        pro, pa = pv_anchors([(3, (0, 1), False), (2, (2,), True), (3, (2,), False)])
        for f in pro:
            f()
        sched(e, pa[:16], b, lead=60)
        sched(e, pa[16:], epi(0) + epi(1), burst=1)
        stamp()
        for f in epi(2):
            f()
    else:
        pro, pa = pv_anchors([(2, (2,), True), (3, (0, 1, 2), False)])
        for f in pro:
            f()
        sched(e, pa, b, lead=60)
        stamp()
        for qt in range(3):
            for f in epi(qt):
                f()
    if PART:
        phase3p(e, stamp, wp_reg, wp_load, C)
    elif FUSE:
        phase3(e, stamp)
    else:
        E('s_and_b32 s4, s2, 3')
        E('s_lshl_b32 s4, s4, 3')
        E('s_lshl_b32 s5, s3, 1')
        E('s_add_u32 s4, s4, s5')
        E('s_lshl_b32 s4, s4, 17')
        E('s_lshr_b32 s5, s2, 2')
        E('s_lshl_b32 s5, s5, 11')
        E('s_add_u32 s4, s4, s5')
        E('s_add_u32 s4, s4, 0x%x' % WOT_OFF)
        E('s_add_u32 s5, s4, 0x20000')
        e.wait(lds='wt')
        for kk in range(2):
            for nn in range(2):
                r = 30 + (kk * 2 + nn) * 4
                E('buffer_store_dwordx4 v[%d:%d], v11, s[28:31], s%d offen offset:%d%s' % (r, r + 3, 4 + nn, kk * 1024, STPOL))
    stamp(True)
    e.label('L_a_done')
    E('s_endpgm')
    return e


def phase3p(e, stamp, wp_reg, wp_load, C):
    E = e
    ACC = 64
    WF = [160, 32]
    ORD = [0, 5, 1, 2, 3, 4, 6, 7]
    def OB(j):
        return 65536 + 3072 * j if j < 5 else 89088 + 3072 * (j - 5)
    def oreg(j, st):
        i = j * 3 + st
        return i * 4 if i < 12 else 64 + (i - 12) * 4
    E('v_add_u32 v8, 0x10000, v11')
    E('s_mov_b32 s68, 0x05040100')
    E('s_mov_b32 s69, 0x07060302')
    E('s_lshl_b32 s4, s37, 4')
    E('s_lshr_b32 s5, s39, 1')
    E('s_add_u32 s4, s4, s5')
    E('s_mul_i32 s4, s4, 49152')
    E('s_mul_i32 s5, s3, 12288')
    E('s_add_u32 s4, s4, s5')
    E('s_add_u32 s57, s4, 0x%x' % PRT_OFF)
    def oread(j):
        out = []
        for st in range(3):
            r = oreg(j, st)
            out.append(lambda r=r, st=st: E('ds_read_b128 a[%d:%d], v8 offset:%d' % (r, r + 3, OB(j) - 65536 + st * 1024), tag='o%d' % j))
        return out
    tc = [0]
    def tr(x):
        j = ORD[x]
        out = [C(0, lambda: e.wait(vm='wp%d' % j))]
        for c in range(4):
            for ip in range(4):
                def f(c=c, ip=ip):
                    fl, r0 = wp_reg(j, 2 * ip)
                    fl, r1 = wp_reg(j, 2 * ip + 1)
                    r0 += c; r1 += c
                    if fl == 'a':
                        t0 = 16 + 2 * (tc[0] & 3); tc[0] += 1
                        E('v_accvgpr_read_b32 v%d, a%d' % (t0, r0))
                        E('v_accvgpr_read_b32 v%d, a%d' % (t0 + 1, r1))
                        r0, r1 = t0, t0 + 1
                    d = WF[x & 1] + 8 * c + ip
                    E('v_perm_b32 v%d, v%d, v%d, s68' % (d, r1, r0))
                    E('v_perm_b32 v%d, v%d, v%d, s69' % (d + 4, r1, r0))
                out.append(f)
        return out
    for f in tr(0):
        f()
    e.wait(lds='all')
    stamp()
    E('s_barrier')
    stamp(True)
    for f in oread(ORD[0]) + oread(ORD[1]) + [wp_load(7, m) for m in range(8)]:
        f()
    for x in range(8):
        j = ORD[x]
        anc = []
        order = [(t, st) for t in range(8) for st in range(3)] if x < 7 else [(t, st) for st in range(3) for t in range(8)]
        for (t, st) in order:
            a = ACC + (t * 3 + st) * 4
            src = 'v[%d:%d]' % (a, a + 3) if x > 0 else '0'
            w = WF[x & 1] + 4 * t
            o = oreg(j, st)
            fn = (lambda a=a, w=w, o=o, src=src: E('v_mfma_f32_16x16x32_bf16 v[%d:%d], v[%d:%d], a[%d:%d], %s' % (
                a, a + 3, w, w + 3, o, o + 3, src)))
            anc.append(([], fn, []))
        e.wait(lds='o%d' % j)
        if P3ST:
            stamp(True)
        fill = []
        if x + 2 < 8:
            fill += oread(ORD[x + 2])
        if x + 1 < 8:
            fill += tr(x + 1)
        cons = []
        if x == 7:
            for st in range(3):
                for r in range(4):
                    d = WF[0] + (st & 1) * 16 + 4 * r
                    def f(d=d, st=st, r=r):
                        for c in range(4):
                            E('v_cvt_pk_bf16_f32 v%d, v%d, v%d' % (d + c, ACC + (2 * c * 3 + st) * 4 + r, ACC + ((2 * c + 1) * 3 + st) * 4 + r))
                        if r == 0:
                            E('s_add_u32 s4, s57, %d' % (st * 4096))
                        E('buffer_store_dwordx4 v[%d:%d], v11, s[28:31], s4 offen offset:%d%s' % (d, d + 3, r * 1024, STPOL))
                    cons.append((8 * st + 7 + 2 + r, f))
        sched(e, anc, fill, cons)
    stamp()


def kernel_r():
    e = Emitter()
    E = e
    e.raw('.p2align 8')
    e.raw('.globl %s' % KB)
    e.raw('.type %s,@function' % KB)
    e.label(KB)
    E('s_cmp_ge_u32 s2, 256')
    E('s_cbranch_scc1 L_b_done')
    E('s_load_dwordx2 s[40:41], s[0:1], 40')
    E('s_load_dwordx2 s[42:43], s[0:1], 56')
    E('v_and_b32 v1, 63, v0')
    E('v_lshrrev_b32 v2, 6, v0')
    E('s_nop 0')
    E('v_readfirstlane_b32 s3, v2')
    E('s_lshr_b32 s37, s2, 4')
    E('s_and_b32 s38, s2, 15')
    E('s_mul_i32 s32, s37, 786432')
    E('s_mul_i32 s4, s38, 3072')
    E('s_add_u32 s32, s32, s4')
    E('s_lshl_b32 s4, s3, 8')
    E('s_add_u32 s32, s32, s4')
    E('s_add_u32 s32, s32, 0x%x' % PRT_OFF)
    E('v_lshlrev_b32 v11, 2, v1')
    E('s_waitcnt lgkmcnt(0)')
    E('s_mov_b32 s28, s42')
    E('s_and_b32 s29, s43, 0xffff')
    E('s_mov_b32 s30, 0x%x' % WS_SIZE)
    E('s_mov_b32 s31, 0x20000')
    for p in range(16):
        E('s_add_u32 s5, s32, %d' % (p * 49152))
        E('buffer_load_dword v%d, v11, s[28:31], s5 offen' % (16 + p), tag='p%d' % p)
    E('s_mov_b32 s8, s40')
    E('s_and_b32 s9, s41, 0xffff')
    E('s_mov_b32 s10, 786432')
    E('s_mov_b32 s11, 0x20000')
    E('s_mul_i32 s4, s38, 3')
    E('s_lshr_b32 s5, s3, 2')
    E('s_add_u32 s4, s4, s5')
    E('s_mul_i32 s5, s4, 43')
    E('s_lshr_b32 s5, s5, 9')
    E('s_mul_i32 s6, s5, 12')
    E('s_sub_u32 s4, s4, s6')
    E('s_mul_i32 s6, s37, 49152')
    E('s_lshl_b32 s5, s5, 8')
    E('s_add_u32 s6, s6, s5')
    E('s_lshr_b32 s5, s4, 2')
    E('s_lshl_b32 s5, s5, 14')
    E('s_add_u32 s6, s6, s5')
    E('s_and_b32 s5, s4, 3')
    E('s_lshl_b32 s5, s5, 4')
    E('s_add_u32 s6, s6, s5')
    E('s_and_b32 s5, s3, 3')
    E('s_lshl_b32 s5, s5, 6')
    E('s_add_u32 s6, s6, s5')
    E('v_lshrrev_b32 v2, 2, v1')
    E('v_lshlrev_b32 v2, 10, v2')
    E('v_and_b32 v3, 3, v1')
    E('v_lshl_add_u32 v2, v3, 2, v2')
    E('s_mov_b32 s7, 0xffff0000')
    for p in range(16):
        e.wait(vm='p%d' % p)
        d = 4 if p < 2 else 8
        d = (4 + 2 * p) if p < 2 else (8 + 2 * (p & 1))
        E('v_lshlrev_b32 v%d, 16, v%d' % (d, 16 + p))
        E('v_and_b32 v%d, s7, v%d' % (d + 1, 16 + p))
        if p >= 2:
            a = 4 + 2 * (p & 1)
            E('v_pk_add_f32 v[%d:%d], v[%d:%d], v[%d:%d]' % (a, a + 1, a, a + 1, d, d + 1))
    E('v_pk_add_f32 v[4:5], v[4:5], v[6:7]')
    E('v_cvt_pk_bf16_f32 v4, v4, v5')
    E('buffer_store_dword v4, v2, s[8:11], s6 offen')
    e.label('L_b_done')
    E('s_endpgm')
    return e


def phase3(e, stamp):
    E = e
    E('s_mov_b32 s20, s52')
    E('s_and_b32 s21, s53, 0xffff')
    E('s_mov_b32 s22, 256')
    E('s_mov_b32 s23, 0x20000')
    E('s_mov_b32 s8, s50')
    E('s_and_b32 s9, s51, 0xffff')
    E('s_mov_b32 s10, 786432')
    E('s_mov_b32 s11, 0x20000')
    E('s_lshl_b32 s62, s37, 2')
    E('s_mul_i32 s63, s3, 40960')
    E('v_mov_b32 v2, 1')
    E('v_mov_b32 v3, 0')
    E('s_cmp_eq_u32 s3, 0')
    E('s_cselect_b32 s58, 1, 0')
    E('s_mov_b32 s59, 0')
    def pub():
        E('s_barrier')
        E('s_mov_b64 exec, s[58:59]')
        E('buffer_atomic_add v2, v3, s[20:23], s62 offen sc1')
        E('s_mov_b64 exec, -1')
    if FUSE > 1:
        E('s_cmp_ge_u32 s64, 64')
        E('s_cbranch_scc0 L_slow')
        q0 = list(e.vmq)
        E('s_lshl_b32 s33, s39, 17')
        E('s_lshl_b32 s5, s3, 15')
        E('s_add_u32 s33, s33, s5')
        E('s_add_u32 s33, s33, 0x%x' % WOT_OFF)
        E('s_lshr_b32 s5, s39, 1')
        E('s_add_u32 s34, s37, s5')
        E('s_and_b32 s34, s34, %d' % P3ROT)
        for n in range(64):
            i, nn = n // 2, n % 2
            if n % 8 == 0:
                E('s_add_u32 s5, s34, %d' % (n // 8))
                E('s_and_b32 s5, s5, 7')
                E('s_lshl_b32 s5, s5, 12')
                E('s_add_u32 s56, s33, s5')
                E('s_add_u32 s57, s56, 0x20000')
            if n == 40:
                e.wait(vm=q0[-1], lds='all')
                if DIAG:
                    E('s_memtime s[68:69]')
                    E('s_waitcnt lgkmcnt(0)')
                pub()
            if n == 60:
                e.wait(vm='wf3')
            E('buffer_load_dwordx4 a[%d:%d], v11, s[28:31], s%d offen offset:%d' % (n * 4, n * 4 + 3, 56 + nn, (i % 4) * 1024), tag='wf%d' % n)
        if P3X:
            e.wait(vm='all')
            E('s_memtime s[68:69]')
            E('s_waitcnt lgkmcnt(0)')
            for n in range(64):
                i, nn = n // 2, n % 2
                if n % 8 == 0:
                    E('s_add_u32 s5, s34, %d' % (n // 8))
                    E('s_and_b32 s5, s5, 7')
                    E('s_lshl_b32 s5, s5, 12')
                    E('s_add_u32 s56, s33, s5')
                    E('s_add_u32 s57, s56, 0x20000')
                if n == 60:
                    e.wait(vm='wf3')
                E('buffer_load_dwordx4 a[%d:%d], v11, s[28:31], s%d offen offset:%d' % (n * 4, n * 4 + 3, 56 + nn, (i % 4) * 1024), tag='wf%d' % n)
            e.wait(vm='all')
        if DIAG:
            E('s_memtime s[70:71]')
            E('s_waitcnt lgkmcnt(0)')
            E('s_lshl_b32 s5, s2, 2')
            E('s_add_u32 s5, s5, s3')
            E('s_lshl_b32 s5, s5, 8')
            E('s_add_u32 s5, s5, 0x%x' % (0xC00000 + 22 * 8))
            E('v_mov_b32 v63, 0')
            for k in range(4):
                E('v_mov_b32 v0, s%d' % (68 + k))
                e.wait(vm='wf30') if not P3X else None
                E('buffer_store_dword v0, v63, s[28:31], s5 offen offset:%d' % (4 * k))
        E('s_branch L_join')
        e.label('L_slow')
        e.vmq = q0
    E('s_mov_b32 s34, 0')
    e.wait(vm='all', lds='all')
    pub()
    e.vmq = []
    stamp()
    E('v_lshrrev_b32 v4, 2, v1')
    E('v_lshrrev_b32 v5, 5, v1')
    E('v_lshlrev_b32 v5, 1, v5')
    E('v_and_b32 v6, 3, v1')
    E('v_xor_b32 v5, v5, v6')
    E('v_lshlrev_b32 v5, 4, v5')
    E('v_lshl_add_u32 v4, v4, 10, v5')
    E('s_lshl_b32 s56, s3, 20')
    E('s_lshl_b32 s5, s39, 5')
    E('s_add_u32 s56, s56, s5')
    E('v_lshrrev_b32 v46, 4, v1')
    E('v_lshrrev_b32 v47, 2, v1')
    E('v_and_b32 v47, 3, v47')
    E('v_lshl_add_u32 v48, v46, 3, v47')
    E('v_lshlrev_b32 v48, 6, v48')
    E('v_lshl_add_u32 v48, v6, 3, v48')
    E('v_and_b32 v46, 1, v46')
    E('v_lshl_add_u32 v48, v46, 5, v48')
    E('v_add_u32 v7, s63, v48')
    E('v_xor_b32 v8, 32, v7')
    def dma(step, slot):
        for k in range(2):
            E('s_add_u32 s5, s63, %d' % (slot * 2048 + k * 1024))
            E('s_mov_b32 m0, s5')
            E('s_add_u32 s6, s56, %d' % ((step * 2 + k) * 16384))
            E('buffer_load_dwordx4 v4, s[24:27], s6 offen lds', tag='w%d' % step)
    def trd(step, slot):
        for nt in range(2):
            for hh in range(2):
                r = (step * 2 + nt) * 4 + 2 * hh
                E('ds_read_b64_tr_b16 a[%d:%d], v%d offset:%d' % (r, r + 1, 7 + nt, slot * 2048 + hh * 256), tag='t%d' % step)
    for st in range(20):
        dma(st, st)
    for st in range(32):
        e.wait(vm='w%d' % st)
        trd(st, st % 20)
        if st == 12:
            e.wait(lds='t11')
            for s2_ in range(20, 32):
                dma(s2_, s2_ - 20)
    stamp()
    e.wait(vm='all', lds='all')
    e.label('L_join')
    E('s_mov_b32 s7, 0')
    e.label('L_poll')
    E('buffer_load_dword v2, v3, s[20:23], s62 offen sc0 sc1')
    E('s_waitcnt vmcnt(0)')
    E('v_readfirstlane_b32 s4, v2')
    E('s_cmp_ge_u32 s4, 16')
    E('s_cbranch_scc1 L_go')
    E('s_sleep 4')
    E('s_add_u32 s7, s7, 1')
    E('s_cmp_lt_u32 s7, 0x10000')
    E('s_cbranch_scc1 L_poll')
    e.label('L_go')
    e.vmq = []
    stamp()
    E('s_mul_i32 s32, s37, 393216')
    E('s_mul_i32 s4, s3, 98304')
    E('s_add_u32 s32, s32, s4')
    D = P3D
    ACC = 64
    FR = 96
    if P3PF > 1:
        E('s_bfe_u32 s4, s2, 0x20003')
        E('s_lshl_b32 s4, s4, 2')
        E('s_add_u32 s4, s4, s3')
        E('s_mul_i32 s4, s4, 24576')
        E('s_mul_i32 s5, s37, 393216')
        E('s_add_u32 s4, s4, s5')
        E('v_lshlrev_b32 v4, 7, v1')
        for t in range(3):
            E('s_add_u32 s5, s4, %d' % (t * 8192))
            E('buffer_load_dword v%d, v4, s[28:31], s5 offen' % (8 + t), tag='pf')
    def loads(i):
        base = FR + (i % D) * 12
        if i % 4 == 0:
            E('s_add_u32 s35, s34, %d' % (i // 4))
            E('s_and_b32 s35, s35, 7')
            E('s_mul_i32 s35, s35, 12288')
            E('s_add_u32 s35, s35, s32')
        E('s_add_u32 s5, s35, %d' % ((i % 4) * 3072))
        for st in range(3):
            E('buffer_load_dwordx4 v[%d:%d], v11, s[28:31], s5 offen offset:%d' % (base + 4 * st, base + 4 * st + 3, st * 1024), tag='k%d' % i)
    for i in range(D):
        loads(i)
    for i in range(32):
        base = FR + (i % D) * 12
        e.wait(vm='k%d' % i)
        for nn in range(2):
            for st in range(3):
                a = ACC + (nn * 3 + st) * 4
                wr = (i * 2 + nn) * 4
                src = 'v[%d:%d]' % (a, a + 3) if i > 0 else '0'
                E('v_mfma_f32_16x16x32_bf16 v[%d:%d], a[%d:%d], v[%d:%d], %s' % (
                    a, a + 3, wr, wr + 3, base + 4 * st, base + 4 * st + 3, src))
        if i + D < 32:
            loads(i + D)
    stamp()
    E('v_add_u32 v12, s63, v11')
    for tl in range(6):
        E('ds_write_b128 v12, v[%d:%d] offset:%d' % (ACC + 4 * tl, ACC + 4 * tl + 3, tl * 1024))
    e.wait(lds='all')
    E('s_barrier')
    E('v_and_b32 v2, 15, v1')
    E('v_lshrrev_b32 v3, 4, v1')
    E('v_lshlrev_b32 v2, 10, v2')
    E('v_lshl_add_u32 v2, v3, 3, v2')
    E('s_mul_i32 s6, s37, 49152')
    E('s_lshl_b32 s5, s39, 5')
    E('s_add_u32 s6, s6, s5')
    def red(rnd):
        E('s_add_u32 s4, s3, %d' % (4 * rnd))
        E('s_lshl_b32 s5, s4, 10')
        E('v_add_u32 v12, s5, v11')
        E('v_add_u32 v13, 0x14000, v12')
        b0 = 96 + 32 * rnd
        E('ds_read_b128 v[%d:%d], v12' % (b0, b0 + 3), tag='r')
        E('ds_read_b128 v[%d:%d], v12 offset:40960' % (b0 + 4, b0 + 7), tag='r')
        E('ds_read_b128 v[%d:%d], v13' % (b0 + 8, b0 + 11), tag='r')
        E('ds_read_b128 v[%d:%d], v13 offset:40960' % (b0 + 12, b0 + 15), tag='r')
        E('s_cmp_ge_u32 s4, 3')
        E('s_cselect_b32 s7, 1, 0')
        E('s_mul_i32 s5, s7, 3')
        E('s_sub_u32 s5, s4, s5')
        E('s_lshl_b32 s5, s5, 14')
        E('s_lshl_b32 s7, s7, 5')
        E('s_add_u32 s5, s5, s7')
        E('s_add_u32 s5, s5, s6')
        e.wait(lds='r')
        for r in range(4):
            E('v_add_f32 v%d, v%d, v%d' % (b0 + r, b0 + r, b0 + 4 + r))
            E('v_add_f32 v%d, v%d, v%d' % (b0 + 8 + r, b0 + 8 + r, b0 + 12 + r))
        for r in range(4):
            E('v_add_f32 v%d, v%d, v%d' % (b0 + r, b0 + r, b0 + 8 + r))
        E('v_cvt_pk_bf16_f32 v%d, v%d, v%d' % (b0 + 16, b0, b0 + 1))
        E('v_cvt_pk_bf16_f32 v%d, v%d, v%d' % (b0 + 17, b0 + 2, b0 + 3))
        E('buffer_store_dwordx2 v[%d:%d], v2, s[8:11], s5 offen' % (b0 + 16, b0 + 17))
    red(0)
    E('s_cmp_ge_u32 s3, 2')
    E('s_cbranch_scc1 L_a_done')
    red(1)


def kernel_b():
    e = Emitter()
    E = e
    e.raw('.p2align 8')
    e.raw('.globl %s' % KB)
    e.raw('.type %s,@function' % KB)
    e.label(KB)
    E('s_cmp_ge_u32 s2, 256')
    E('s_cbranch_scc1 L_b_done')
    E('s_load_dwordx2 s[40:41], s[0:1], 40')
    E('s_load_dwordx2 s[42:43], s[0:1], 56')
    E('v_and_b32 v1, 63, v0')
    E('v_lshrrev_b32 v2, 6, v0')
    E('s_nop 0')
    E('v_readfirstlane_b32 s3, v2')
    E('s_and_b32 s4, s2, 7')
    E('s_lshr_b32 s5, s2, 3')
    E('s_lshr_b32 s6, s4, 1')
    E('s_lshl_b32 s6, s6, 2')
    E('s_lshr_b32 s7, s5, 3')
    E('s_add_u32 s37, s6, s7')
    E('s_and_b32 s6, s4, 1')
    E('s_lshl_b32 s6, s6, 3')
    E('s_and_b32 s7, s5, 7')
    E('s_add_u32 s38, s6, s7')
    E('v_lshlrev_b32 v11, 4, v1')
    E('s_mul_i32 s32, s37, 393216')
    E('s_mul_i32 s4, s3, 49152')
    E('s_add_u32 s32, s32, s4')
    E('s_lshl_b32 s33, s38, 18')
    E('s_lshl_b32 s4, s3, 14')
    E('s_add_u32 s33, s33, s4')
    E('s_add_u32 s33, s33, 0x%x' % WOT_OFF)
    E('s_add_u32 s34, s33, 0x20000')
    E('s_waitcnt lgkmcnt(0)')
    E('s_mov_b32 s8, s40')
    E('s_and_b32 s9, s41, 0xffff')
    E('s_mov_b32 s10, 786432')
    E('s_mov_b32 s11, 0x20000')
    E('s_mov_b32 s28, s42')
    E('s_and_b32 s29, s43, 0xffff')
    E('s_mov_b32 s30, 0x%x' % WS_SIZE)
    E('s_mov_b32 s31, 0x20000')
    D = BD
    ACC = 16
    FR = 40
    stc = [0]
    def stampb():
        if not DIAG:
            return
        i = stc[0]; stc[0] += 1
        E('s_memtime s[60:61]')
        E('s_waitcnt lgkmcnt(0)')
        E('s_lshl_b32 s58, s2, 3')
        E('s_add_u32 s58, s58, s3')
        E('s_lshl_b32 s58, s58, 8')
        E('s_add_u32 s58, s58, 0x%x' % (0xD00000 + i * 8))
        E('v_mov_b32 v39, 0')
        E('v_mov_b32 v0, s60')
        E('buffer_store_dword v0, v39, s[28:31], s58 offen', tag='stamp')
        E('v_mov_b32 v0, s61')
        E('buffer_store_dword v0, v39, s[28:31], s58 offen offset:4', tag='stamp')
    stampb()
    def loads(i):
        base = FR + (i % D) * 20
        E('s_add_u32 s5, s32, %d' % (i * 3072))
        for st in range(3):
            E('buffer_load_dwordx4 v[%d:%d], v11, s[28:31], s5 offen offset:%d' % (base + 4 * st, base + 4 * st + 3, st * 1024), tag='k%d' % i)
        E('s_add_u32 s6, s33, %d' % (i * 1024))
        E('s_add_u32 s7, s34, %d' % (i * 1024))
        E('buffer_load_dwordx4 v[%d:%d], v11, s[28:31], s6 offen' % (base + 12, base + 15), tag='k%d' % i)
        E('buffer_load_dwordx4 v[%d:%d], v11, s[28:31], s7 offen' % (base + 16, base + 19), tag='k%d' % i)
    for i in range(D):
        loads(i)
    for i in range(16):
        base = FR + (i % D) * 20
        e.wait(vm='k%d' % i)
        if i in (0, 4, 8, 12, 15):
            stampb()
        for nn in range(2):
            for st in range(3):
                a = ACC + (nn * 3 + st) * 4
                src = 'v[%d:%d]' % (a, a + 3) if i > 0 else '0'
                E('v_mfma_f32_16x16x32_bf16 v[%d:%d], v[%d:%d], v[%d:%d], %s' % (
                    a, a + 3, base + 12 + 4 * nn, base + 15 + 4 * nn, base + 4 * st, base + 4 * st + 3, src))
        if i + D < 16:
            loads(i + D)
    E('s_mul_i32 s4, s3, 6144')
    E('v_add_u32 v12, s4, v11')
    for tl in range(6):
        E('ds_write_b128 v12, v[%d:%d] offset:%d' % (ACC + 4 * tl, ACC + 4 * tl + 3, tl * 1024))
    e.wait(lds='all')
    E('s_barrier')
    E('s_cmp_ge_u32 s3, 6')
    E('s_cbranch_scc1 L_b_done')
    E('s_lshl_b32 s4, s3, 10')
    E('v_add_u32 v12, s4, v11')
    for wv in range(8):
        E('ds_read_b128 v[%d:%d], v12 offset:%d' % (FR + 4 * wv, FR + 4 * wv + 3, wv * 6144), tag='r%d' % wv)
    e.wait(lds='r1')
    for r in range(4):
        E('v_add_f32 v%d, v%d, v%d' % (16 + r, FR + r, FR + 4 + r))
    for wv in range(2, 8):
        e.wait(lds='r%d' % wv)
        for r in range(4):
            E('v_add_f32 v%d, v%d, v%d' % (16 + r, 16 + r, FR + 4 * wv + r))
    E('v_cvt_pk_bf16_f32 v20, v16, v17')
    E('v_cvt_pk_bf16_f32 v21, v18, v19')
    E('s_cmp_ge_u32 s3, 3')
    E('s_cselect_b32 s4, 1, 0')
    E('s_mul_i32 s5, s4, 3')
    E('s_sub_u32 s5, s3, s5')
    E('s_mul_i32 s6, s37, 49152')
    E('s_lshl_b32 s5, s5, 14')
    E('s_add_u32 s6, s6, s5')
    E('s_lshl_b32 s5, s38, 6')
    E('s_add_u32 s6, s6, s5')
    E('s_lshl_b32 s4, s4, 5')
    E('s_add_u32 s6, s6, s4')
    E('v_and_b32 v2, 15, v1')
    E('v_lshrrev_b32 v3, 4, v1')
    E('v_lshlrev_b32 v2, 10, v2')
    E('v_lshl_add_u32 v2, v3, 3, v2')
    E('buffer_store_dwordx2 v[20:21], v2, s[8:11], s6 offen')
    stampb()
    e.label('L_b_done')
    E('s_endpgm')
    return e


def kd(name, vgpr, accum, sgpr=72):
    return '''.p2align 6
.amdhsa_kernel %s
  .amdhsa_next_free_vgpr %d
  .amdhsa_next_free_sgpr %d
  .amdhsa_accum_offset %d
  .amdhsa_group_segment_fixed_size 0
  .amdhsa_kernarg_size 64
  .amdhsa_user_sgpr_count 2
  .amdhsa_user_sgpr_kernarg_segment_ptr 1
  .amdhsa_system_sgpr_workgroup_id_x 1
.end_amdhsa_kernel
''' % (name, vgpr, sgpr, accum)


def main():
    global DIAG
    global DIAG_ALL
    if len(sys.argv) > 2 and sys.argv[2].startswith('diag'):
        DIAG = True
        DIAG_ALL = sys.argv[2] == 'diag'
    for kv in sys.argv[3:]:
        k, v = kv.split('=', 1)
        globals()[k] = eval(v)
    ref = open('cdna_kernels/%s.s.ref' % NAME).read().splitlines()
    head = [l for l in ref if l.startswith(';') and '@launch' not in l and 'launch geometry' not in l and 'grid=ceil' not in l]
    a = kernel_a()
    b = kernel_r() if PART else kernel_b()
    out = '\n'.join(head) + '\n'
    out += '; @launch kernel=%s grid=(256,1,1) block=(256,1,1) lds=%d\n' % (KA, LDS_A)
    if not FUSE:
        if PART:
            out += '; @launch kernel=%s grid=(256,1,1) block=(768,1,1) lds=0\n' % KB
        else:
            out += '; @launch kernel=%s grid=(256,1,1) block=(512,1,1) lds=49152\n' % KB
    out += '.amdgcn_target "amdgcn-amd-amdhsa--gfx950"\n.text\n'
    out += a.text() + ('' if FUSE else b.text())
    out += '.section .rodata,"a"\n'
    if PART:
        out += kd(KA, 512, 256) + kd(KB, 32, 32)
    else:
        out += kd(KA, 512, 256) + ('' if FUSE else kd(KB, max(144, 44 + 20 * BD), max(144, 44 + 20 * BD)))
    path = sys.argv[1] if len(sys.argv) > 1 else 'cdna_kernels/%s.s' % NAME
    open(path, 'w').write(out)
    print('nops inserted: A %d  B %d; lines %d' % (a.nops_inserted, b.nops_inserted, out.count('\n')))


if __name__ == '__main__':
    main()
```

```python
import struct, sys, math
from emit import Emitter, merge, sched

NAME = 'standalone__gqa_block_cached__near_ridge'
KA = 'gqa_attn_kernel'
KB = 'gqa_oproj_kernel'

def f32bits(x):
    return struct.unpack('<I', struct.pack('<f', x))[0]

XB = 0
QB = 24576
PB = [0, 24576]
RING = 49152
RING_W = 12288
NSLOT = 3
VS = [98304, 131072, 98304, 131072]
STATS = 81920
LSTAT = 86016
WOST = 65536
LDS_A = 163840

WOT_OFF = 0x800000
WS_SIZE = 0x3000000


DIAG = False
DIAG_ALL = True
PRO0, PRO1, STEPN, SLOWCOST = 12, 8, 8, 6
KFIRST = 0
BD = 5
P3PF = 2
P3X = 0
P3ROT = 7
FUSE = 0
PART = 1
PFA = 12
CPF = 0
P3ST = 0
PF6 = 24
PRT_OFF = 0x2000000
P3D = 8
TOUCH = 0
EPO = 0
BURST = 2
XDEF = 1
WQPF = 2
KORD = 1
KVPOL = ''
STPOL = ''
PVS = 16
KTF = 0
NOLOAD = 0
ROT = 0
CI, KI = 3, 0
NV_LATE = 40
NV_S = [[4, 4], [4, 4], [4, 4], [4, 4], [4, 4], [0, 0]]
def kernel_a():
    e = Emitter()
    E = e
    stampc = [0]
    def stamp(key=False):
        if not DIAG or not (DIAG_ALL or key):
            return
        i = stampc[0]; stampc[0] += 1
        E('s_memtime s[60:61]')
        E('s_waitcnt lgkmcnt(0)')
        E('s_lshl_b32 s58, s2, 2')
        E('s_add_u32 s58, s58, s3')
        E('s_lshl_b32 s58, s58, 8')
        E('s_add_u32 s58, s58, 0x%x' % (0xC00000 + i * 8))
        E('v_mov_b32 v63, 0')
        E('v_mov_b32 v0, s60')
        E('buffer_store_dword v0, v63, s[28:31], s58 offen', tag='stamp')
        E('v_mov_b32 v0, s61')
        E('buffer_store_dword v0, v63, s[28:31], s58 offen offset:4', tag='stamp')
    e.raw('.p2align 8')
    e.raw('.globl %s' % KA)
    e.raw('.type %s,@function' % KA)
    e.label(KA)
    E('s_cmp_ge_u32 s2, 256')
    E('s_cbranch_scc1 L_a_done')
    E('s_load_dwordx16 s[40:55], s[0:1], 0')
    E('v_and_b32 v1, 63, v0')
    E('v_lshrrev_b32 v2, 6, v0')
    E('s_nop 0')
    E('v_readfirstlane_b32 s3, v2')
    if CPF:
        E('s_getpc_b64 s[68:69]')
        e.label('L_pc')
        E('s_and_b32 s69, s69, 0xffff')
        E('s_mov_b32 s70, L_text_end-L_pc')
        E('s_mov_b32 s71, 0x20000')
        E('v_lshlrev_b32 v255, 7, v0')
        E('buffer_load_dword v255, v255, s[68:71], 0 offen', tag='cpf')
        if CPF > 1:
            E('v_lshlrev_b32 v62, 7, v0')
            E('v_add_u32 v62, 0x8000, v62')
            E('buffer_load_dword v62, v62, s[68:71], 0 offen', tag='cpf')
    if FUSE:
        E('s_lshr_b32 s4, s2, 3')
        E('s_and_b32 s38, s2, 3')
        E('s_lshl_b32 s38, s38, 1')
        E('s_and_b32 s5, s4, 1')
        E('s_add_u32 s38, s38, s5')
        E('s_bfe_u32 s37, s2, 0x10002')
        E('s_lshl_b32 s37, s37, 3')
        E('s_lshr_b32 s5, s4, 2')
        E('s_add_u32 s37, s37, s5')
        E('s_bfe_u32 s4, s4, 0x10001')
    else:
        E('s_and_b32 s38, s2, 7')
        E('s_lshr_b32 s4, s2, 3')
        E('s_lshr_b32 s37, s4, 1')
        E('s_and_b32 s4, s4, 1')
    E('s_lshl_b32 s39, s38, 2')
    E('s_lshl_b32 s4, s4, 1')
    E('s_add_u32 s39, s39, s4')
    E('s_lshl_b32 s4, s37, 3')
    E('s_add_u32 s4, s4, s38')
    E('s_lshl_b32 s32, s4, 17')
    E('s_lshl_b32 s5, s3, 15')
    E('s_add_u32 s32, s32, s5')
    E('s_lshr_b32 s5, s2, 3')
    E('s_and_b32 s5, s5, 1')
    E('s_mul_i32 s5, s5, %d' % ROT)
    for kt in range(4):
        E('s_add_u32 s6, s5, %d' % kt)
        E('s_and_b32 s6, s6, 3')
        E('s_lshl_b32 s6, s6, 13')
        E('s_add_u32 s%d, s32, s6' % (64 + kt))
    E('s_mul_i32 s33, s37, 49152')
    E('s_mul_i32 s5, s3, 12288')
    E('s_add_u32 s33, s33, s5')
    E('s_lshl_b32 s34, s39, 8')
    E('s_lshl_b32 s5, s3, 7')
    E('s_add_u32 s34, s34, s5')
    E('s_mul_i32 s35, s3, %d' % RING_W)
    E('s_add_u32 s35, s35, %d' % RING)
    E('s_mov_b32 s36, 0x%08x' % f32bits(math.log2(math.e) / math.sqrt(128.0)))
    E('v_and_b32 v46, 15, v1')
    E('v_lshrrev_b32 v47, 4, v1')
    E('v_xor_b32 v2, v46, v47')
    E('v_lshlrev_b32 v2, 4, v2')
    E('v_lshl_add_u32 v2, v46, 10, v2')
    E('v_lshlrev_b32 v11, 4, v1')
    E('v_lshrrev_b32 v48, 3, v1')
    E('v_and_b32 v49, 7, v1')
    E('v_lshrrev_b32 v50, 1, v49')
    E('v_and_b32 v51, 1, v47')
    E('v_xor_b32 v50, v50, v51')
    E('v_and_b32 v52, 1, v49')
    E('v_lshlrev_b32 v52, 4, v52')
    E('v_lshl_add_u32 v53, v48, 13, v52')
    E('v_lshl_add_u32 v3, v50, 5, v53')
    E('v_xor_b32 v50, 2, v50')
    E('v_lshl_add_u32 v4, v50, 5, v53')
    E('v_add_u32 v4, 0x10000, v4')
    E('v_add_u32 v5, 0x20000, v3')
    E('v_add_u32 v6, 0x20000, v4')
    E('v_lshrrev_b32 v48, 2, v1')
    E('v_and_b32 v48, 3, v48')
    E('v_and_b32 v49, 3, v1')
    E('v_lshrrev_b32 v50, 1, v48')
    E('v_lshlrev_b32 v51, 1, v51')
    E('v_or_b32 v50, v50, v51')
    E('v_lshl_add_u32 v52, v47, 3, v48')
    E('v_lshlrev_b32 v52, 7, v52')
    E('v_lshl_add_u32 v52, v49, 3, v52')
    E('v_add_u32 v52, s35, v52')
    for t in range(4):
        E('v_xor_b32 v53, %d, v50' % t)
        E('v_lshl_add_u32 v%d, v53, 5, v52' % (7 + t))
    E('v_and_b32 v53, 31, v1')
    E('v_lshrrev_b32 v54, 5, v1')
    E('v_lshlrev_b32 v12, 4, v46')
    E('v_lshl_add_u32 v12, v47, 8, v12')
    E('v_lshlrev_b32 v55, 2, v47')
    E('v_xor_b32 v55, v55, v46')
    E('v_lshlrev_b32 v55, 4, v55')
    E('v_lshl_add_u32 v13, v47, 8, v55')
    E('v_lshl_add_u32 v55, v54, 2, v48')
    E('v_lshlrev_b32 v55, 8, v55')
    E('v_xor_b32 v56, s3, v48')
    E('v_lshl_add_u32 v55, v56, 6, v55')
    E('v_and_b32 v56, 1, v47')
    E('v_lshl_add_u32 v55, v56, 5, v55')
    E('v_lshl_add_u32 v14, v49, 3, v55')
    E('v_add_u32 v14, %d, v14' % VS[0])
    E('s_lshl_b32 s4, s3, 11')
    E('v_add_u32 v15, s4, v11')
    E('v_lshlrev_b32 v55, 4, v46')
    E('v_lshl_add_u32 v55, v54, 9, v55')
    E('v_lshl_add_u32 v55, v56, 3, v55')
    E('s_lshr_b32 s4, s3, 1')
    E('s_mul_i32 s4, s4, 3')
    E('s_and_b32 s5, s3, 1')
    E('s_lshl_b32 s5, s5, 12')
    E('s_add_u32 s5, s5, %d' % QB)
    for st in range(3):
        E('s_add_u32 s6, s4, %d' % st)
        E('s_lshr_b32 s7, s6, 1')
        E('s_lshl_b32 s7, s7, 13')
        E('s_and_b32 s6, s6, 1')
        E('s_lshl_b32 s6, s6, 8')
        E('s_add_u32 s6, s6, s7')
        E('s_add_u32 s6, s6, s5')
        E('v_add_u32 v%d, s6, v55' % (16 + st))
    E('v_lshlrev_b32 v20, 5, v53')
    E('v_lshl_add_u32 v19, v54, 2, v20')
    E('s_lshl_b32 s4, s3, 3')
    E('v_add_u32 v19, s4, v19')
    E('v_lshlrev_b32 v55, 4, v46')
    E('v_lshl_add_u32 v55, v54, 8, v55')
    if PART:
        E('s_mul_i32 s4, s3, 3072')
        E('s_add_u32 s5, s4, 86016')
        E('s_cmp_eq_u32 s3, 0')
        E('s_cselect_b32 s5, 77824, s5')
        E('s_add_u32 s4, s4, 65536')
        E('s_sub_u32 s5, s5, s4')
        E('v_add_u32 v55, s4, v55')
    else:
        E('s_mov_b32 s5, 12288')
    for qt in range(3):
        E('v_add_u32 v57, %d, v56' % (2 * qt))
        E('v_cmp_le_u32 vcc, 3, v57')
        E('v_subrev_u32 v58, 3, v57')
        E('v_lshlrev_b32 v58, 10, v58')
        E('v_add_u32 v58, s5, v58')
        E('v_lshlrev_b32 v57, 10, v57')
        E('v_cndmask_b32 v57, v57, v58, vcc')
        E('v_add_u32 v%d, v57, v55' % (27 + qt))
    E('s_waitcnt lgkmcnt(0)')
    def srd(d, lo, size):
        E('s_mov_b32 s%d, s%d' % (d, lo))
        E('s_and_b32 s%d, s%d, 0xffff' % (d + 1, lo + 1))
        E('s_mov_b32 s%d, 0x%x' % (d + 2, size))
        E('s_mov_b32 s%d, 0x20000' % (d + 3))
    srd(8, 40, 786432)
    srd(12, 42, 16777216)
    srd(16, 44, 16777216)
    srd(20, 46, 4194304)
    srd(24, 48, 4194304)
    srd(28, 54, WS_SIZE)

    stamp(True)
    def wqpf():
        E('s_lshr_b32 s4, s2, 3')
        E('s_lshl_b32 s4, s4, 2')
        E('s_add_u32 s4, s4, s3')
        E('s_lshl_b32 s4, s4, 15')
        if FUSE:
            E('s_and_b32 s5, s2, 3')
            E('s_lshl_b32 s5, s5, 11')
        else:
            E('s_lshl_b32 s5, s38, 10')
        E('s_add_u32 s4, s4, s5')
        E('v_lshrrev_b32 v62, 4, v1')
        E('v_lshlrev_b32 v62, 13, v62')
        E('v_and_b32 v63, 15, v1')
        E('v_lshl_add_u32 v62, v63, %d, v62' % (7 if FUSE else 6))
        E('buffer_load_dword v62, v62, s[20:23], s4 offen', tag='pf')
    if WQPF == 1:
        wqpf()
    if TOUCH:
        E('v_mov_b32 v63, 0')
        E('s_mul_i32 s4, s37, 393216')
        E('s_lshl_b32 s5, s39, 2')
        E('s_add_u32 s5, s5, s3')
        E('s_mul_i32 s5, s5, 3072')
        E('s_add_u32 s4, s4, s5')
        E('buffer_load_dword v248, v63, s[28:31], s4 offen', tag='pf')
        E('s_and_b32 s4, s2, 3')
        E('s_lshl_b32 s4, s4, 20')
        E('s_add_u32 s4, s4, 0x%x' % WOT_OFF)
        E('buffer_load_dword v249, v63, s[28:31], s4 offen', tag='pf')
        if TOUCH > 1:
            E('buffer_load_dword v250, v63, s[12:15], s64 offen', tag='pf')
            E('buffer_load_dword v251, v63, s[16:19], s64 offen', tag='pf')
            E('s_lshl_b32 s4, s2, 14')
            E('buffer_load_dword v252, v63, s[24:27], s4 offen', tag='pf')
    for n in range(KFIRST):
        E('s_add_u32 s7, s%d, %d' % (64 + n // 8, (n % 8) * 1024))
        E('buffer_load_dwordx4 a[%d:%d], v12, s[12:15], s7 offen' % (n * 4, n * 4 + 3), tag='K%d' % (n // 8))
    E('s_mul_i32 s4, s3, 12288')
    for i in range(12):
        E('s_mul_i32 s5, s3, 12')
        E('s_add_u32 s5, s5, %d' % i)
        E('s_and_b32 s5, s5, 15')
        E('s_lshl_b32 s5, s5, 4')
        E('v_xor_b32 v%d, s5, v11' % (60 + (i & 1)))
        E('s_add_u32 s5, s4, %d' % (XB + i * 1024))
        E('s_mov_b32 m0, s5')
        E('s_add_u32 s6, s33, %d' % (i * 1024))
        E('buffer_load_dwordx4 v%d, s[8:11], s6 offen lds' % (60 + (i & 1)), tag='x')

    def wq_dma(c):
        out = []
        for m in range(4):
            def f(m=m):
                E('s_add_u32 s5, s35, %d' % ((c % NSLOT) * 4096 + m * 1024))
                E('s_mov_b32 m0, s5')
                E('s_add_u32 s6, s34, %d' % (c * 262144))
                E('buffer_load_dwordx4 v%d, s[20:23], s6 offen lds' % (3 + m), tag='wq%d' % c)
            out.append(f)
        return out

    def wq_reg(c):
        if c < 8:
            return 'v', 168 + (c - 3) * 16
        return 'a', 128 + (c - 8) * 16

    def wq_load(c):
        out = []
        fl, r = wq_reg(c)
        for m in range(4):
            def f(m=m):
                E('s_add_u32 s6, s34, %d' % (c * 262144))
                E('buffer_load_dwordx4 %s[%d:%d], v%d, s[20:23], s6 offen' % (fl, r + 4 * m, r + 4 * m + 3, 3 + m), tag='wq%d' % c)
            out.append(f)
        return out

    def wq_write(c):
        out = []
        fl, r = wq_reg(c)
        out.append(lambda: e.wait(vm='wq%d' % c))
        for m in range(4):
            out.append(lambda m=m: E('ds_write_b128 v59, %s[%d:%d] offset:%d' % (fl, r + 4 * m, r + 4 * m + 3, (c % NSLOT) * 4096 + m * 1024)))
        return out

    ACC = 64
    AF = [112, 128]
    BF = [144, 156]

    def p1_reads(c):
        out = []
        bu = c & 1
        sl = c % NSLOT
        out.append(lambda: E('v_xor_b32 v%d, %d, v2' % (60 + bu, c * 64)))
        for st in range(3):
            out.append(lambda st=st: E('ds_read_b128 v[%d:%d], v%d offset:%d' % (BF[bu] + 4 * st, BF[bu] + 4 * st + 3, 60 + bu, XB + st * 16384), tag='p1r%d' % c))
        for t in range(4):
            for hh in range(2):
                out.append(lambda t=t, hh=hh: E('ds_read_b64_tr_b16 v[%d:%d], v%d offset:%d' % (
                    AF[bu] + 4 * t + 2 * hh, AF[bu] + 4 * t + 2 * hh + 1, 7 + t, sl * 4096 + hh * 512), tag='p1r%d' % c))
        return out

    def kload(n):
        def f():
            E('s_add_u32 s7, s%d, %d' % (64 + n // 8, (n % 8) * 1024))
            E('buffer_load_dwordx4 a[%d:%d], v12, s[12:15], s7 offen%s' % (n * 4, n * 4 + 3, KVPOL), tag='K%d' % (n // 8))
        return f

    def v_chunk(t):
        out = []
        for mm in range(8):
            def f(mm=mm):
                E('s_lshl_b32 s5, s3, 13')
                E('s_add_u32 s5, s5, %d' % (VS[t] + mm * 1024))
                E('s_mov_b32 m0, s5')
                E('s_add_u32 s6, s%d, %d' % (64 + t, mm * 1024))
                E('buffer_load_dwordx4 v13, s[16:19], s6 offen%s lds' % KVPOL, tag='V%d' % t)
            out.append(f)
        return out

    def v_regs(t):
        out = []
        for mm in range(8):
            def f(mm=mm):
                r = 192 + (t - 2) * 32 + mm * 4
                E('s_add_u32 s6, s%d, %d' % (64 + t, mm * 1024))
                E('buffer_load_dwordx4 v[%d:%d], v12, s[16:19], s6 offen%s' % (r, r + 3, KVPOL), tag='V%d' % t)
            out.append(f)
        return out
    E('v_add_u32 v59, s35, v11')
    def wo_early():
        out = []
        def pre():
            E('s_lshr_b32 s4, s2, 2')
            E('s_lshl_b32 s4, s4, 16')
            E('s_and_b32 s5, s2, 3')
            E('s_lshl_b32 s5, s5, 8')
            E('s_add_u32 s4, s4, s5')
            E('s_lshl_b32 s5, s3, 14')
            E('s_add_u32 s56, s4, s5')
            E('v_lshrrev_b32 v248, 4, v1')
            E('v_and_b32 v249, 15, v1')
            E('v_lshlrev_b32 v248, 10, v248')
            E('v_lshl_add_u32 v248, v249, 4, v248')
            E('buffer_load_dwordx4 a[96:99], v248, s[24:27], s56 offen', tag='WO')
        out.append(pre)
        for m in range(1, 4):
            def f(m=m):
                E('s_add_u32 s6, s56, %d' % (m * 4096))
                E('buffer_load_dwordx4 a[%d:%d], v248, s[24:27], s6 offen' % (96 + 4 * m, 99 + 4 * m), tag='WO')
            out.append(f)
        return out
    seq = []
    if KORD:
        slow = [kload(n) for n in range(KFIRST, 32)] + v_chunk(0) + v_chunk(1) + v_regs(2) + v_regs(3)
    else:
        slow = [kload(n) for n in range(KFIRST, 16)] + v_chunk(0) + v_chunk(1) + [kload(n) for n in range(16, 32)] + v_regs(2) + v_regs(3)
    for c in range(3):
        seq += wq_dma(c)
    for c in range(3, 16):
        seq += wq_load(c)
        if c >= CI:
            seq += slow[:KI]
            slow = slow[KI:]
    if FUSE > 1:
        seq += wo_early()
    nfast = len(seq)
    seq += slow
    LEFT = {'K0': 56, 'K1': 48, 'V0': 40, 'V1': 32, 'K2': 24, 'K3': 16, 'V2': 8, 'V3': 0}
    if KORD:
        LEFT = {'K0': 56, 'K1': 48, 'K2': 40, 'K3': 32, 'V0': 24, 'V1': 16, 'V2': 8, 'V3': 0}
    def vwait(tag):
        nf = 0
        while len(seq) > LEFT[tag]:
            issue(SLOWCOST); nf += 1
        if nf:
            print('forced issue of %d loads for %s' % (nf, tag))
        e.wait(vm=tag)
    issued = [0]
    def issue(maxn=1000):
        n = 0
        while seq and len(e.vmq) < 62 and n < maxn:
            seq.pop(0)()
            n += 1 if issued[0] < nfast else SLOWCOST
            issued[0] += 1
    stamp()
    issue(PRO0)
    if WQPF == 2:
        wqpf()
    stamp()
    e.wait(vm='wq0')
    stamp()
    E('s_barrier')
    stamp()
    issue(PRO1)
    for f in p1_reads(0):
        f()
    for c in range(16):
        bu = c & 1
        e.wait(lds='p1r%d' % c)
        if c in (2, 4, 6, 8, 12):
            stamp()
        rd = []
        if c + 1 < 16:
            if c + 1 < 3:
                rd.append(lambda c=c: e.wait(vm='wq%d' % (c + 1)))
            rd += p1_reads(c + 1)
        rd2 = []
        if 3 <= c + 2 < 16:
            rd2 = wq_write(c + 2)
        rd2.append(lambda: issue(STEPN))
        if FUSE > 1 and c == 14:
            def stg0():
                e.wait(vm='WO')
                E('s_lshl_b32 s4, s3, 12')
                E('s_add_u32 s4, s4, %d' % VS[1])
                E('v_add_u32 v250, s4, v13')
                for m in range(4):
                    E('ds_write_b128 v250, a[%d:%d] offset:%d' % (96 + 4 * m, 99 + 4 * m, m * 1024))
            rd2.append(stg0)
        mf = []
        for nt in range(4):
            for st in range(3):
                a = ACC + (nt * 3 + st) * 4
                src = 'v[%d:%d]' % (a, a + 3) if c > 0 else '0'
                mf.append(lambda a=a, nt=nt, st=st, src=src: E('v_mfma_f32_16x16x32_bf16 v[%d:%d], v[%d:%d], v[%d:%d], %s' % (
                    a, a + 3, AF[bu] + 4 * nt, AF[bu] + 4 * nt + 3, BF[bu] + 4 * st, BF[bu] + 4 * st + 3, src)))
        for f in merge(mf[:6], rd) + merge(mf[6:], rd2):
            f()
    for nt in range(4):
        for st in range(3):
            a = ACC + (nt * 3 + st) * 4
            E('v_cvt_pk_bf16_f32 v%d, v%d, v%d' % (a, a, a + 1))
            E('v_cvt_pk_bf16_f32 v%d, v%d, v%d' % (a + 1, a + 2, a + 3))
    if FUSE > 1:
        e.wait(lds='all')
    stamp(True)
    E('s_barrier')
    for nt in range(4):
        for st in range(3):
            a = ACC + (nt * 3 + st) * 4
            E('ds_write_b64 v%d, v[%d:%d] offset:%d' % (16 + st, a, a + 1, nt * 1024))

    if FUSE > 1:
        E('v_lshrrev_b32 v46, 4, v1')
        E('v_lshrrev_b32 v47, 2, v1')
        E('v_and_b32 v47, 3, v47')
        E('v_and_b32 v48, 3, v1')
        E('v_lshl_add_u32 v49, v46, 3, v47')
        E('v_lshlrev_b32 v49, 8, v49')
        E('v_xor_b32 v50, s3, v47')
        E('v_lshl_add_u32 v49, v50, 6, v49')
        E('v_lshl_add_u32 v49, v48, 3, v49')
        E('v_add_u32 v49, 0x%x, v49' % VS[1])
        for kk in range(2):
            for nn in range(2):
                for hh in range(2):
                    r = 30 + (kk * 2 + nn) * 4 + 2 * hh
                    E('ds_read_b64_tr_b16 v[%d:%d], v49 offset:%d' % (r, r + 1, (32 * kk + 4 * hh) * 256 + nn * 32), tag='wt')
        E('s_and_b32 s4, s2, 3')
        E('s_lshl_b32 s4, s4, 3')
        E('s_lshl_b32 s5, s3, 1')
        E('s_add_u32 s4, s4, s5')
        E('s_lshl_b32 s4, s4, 17')
        E('s_lshr_b32 s5, s2, 2')
        E('s_lshl_b32 s5, s5, 11')
        E('s_add_u32 s4, s4, s5')
        E('s_add_u32 s62, s4, 0x%x' % WOT_OFF)
        E('s_add_u32 s63, s62, 0x20000')
        E('s_mov_b32 s20, s52')
        E('s_and_b32 s21, s53, 0xffff')
        E('s_mov_b32 s22, 256')
        E('s_mov_b32 s23, 0x20000')
    while len(seq) > NV_LATE:
        issue(SLOWCOST)
    if NOLOAD:
        del seq[:]
    e.wait(lds='all')
    if FUSE > 1:
        for kk in range(2):
            for nn in range(2):
                r = 30 + (kk * 2 + nn) * 4
                E('buffer_store_dwordx4 v[%d:%d], v11, s[28:31], s%d offen offset:%d sc1' % (r, r + 3, 62 + nn, kk * 1024), tag='wst')
    E('s_barrier')
    QF = 128
    for qt in range(3):
        for ks in range(8):
            r = QF + (qt * 8 + ks) * 4
            E('ds_read_b128 a[%d:%d], v11 offset:%d' % (r, r + 3, QB + (qt * 8 + ks) * 1024), tag='Q')
    E('s_lshl_b32 s4, s3, 13')
    E('s_add_u32 s4, s4, 0xC000')
    E('v_and_b32 v46, 15, v1')
    E('v_lshrrev_b32 v47, 4, v1')
    E('v_xor_b32 v48, v46, v47')
    for jj in range(4):
        E('v_xor_b32 v49, %d, v48' % (4 * jj))
        E('v_lshlrev_b32 v49, 4, v49')
        E('v_lshl_add_u32 v49, v47, 8, v49')
        E('v_add_u32 v%d, s4, v49' % (6 + jj))
    E('v_and_b32 v46, 31, v1')
    E('v_lshrrev_b32 v47, 5, v1')
    E('v_and_b32 v48, 15, v1')
    E('v_xor_b32 v48, v48, v47')
    E('v_lshlrev_b32 v48, 4, v48')
    E('v_lshl_add_u32 v48, v46, 8, v48')
    E('v_add_u32 v54, s4, v48')
    E('v_add_u32 v60, 0x%x, v19' % STATS)
    E('v_add_u32 v61, 0x%x, v20' % STATS)
    def ktr(kt):
        w_ = lambda: vwait('K%d' % kt)
        w_.cost = 0
        out = [w_]
        for m in range(8):
            r = (kt * 8 + m) * 4
            out.append(lambda m=m, r=r: E('ds_write_b128 v%d, a[%d:%d] offset:%d' % (6 + (m & 3), r, r + 3, m * 1024)))
        for ks in range(8):
            r = (kt * 8 + ks) * 4
            def f(ks=ks, r=r):
                E('v_xor_b32 v%d, %d, v54' % (55 + (ks & 1), ks * 32))
                E('ds_read_b128 a[%d:%d], v%d' % (r, r + 3, 55 + (ks & 1)), tag='kt%d' % kt)
            out.append(f)
        return out
    SB = [64, 128]
    MX = 62
    def sreg(u, kt):
        return SB[u & 1] + (kt & 1) * 16
    def max_ops(u, kt):
        out = []
        for i in range(8):
            s_ = sreg(u, kt) + 2 * i
            if (kt & 1) == 0 and i == 0:
                out.append(lambda s_=s_: E('v_max_f32 v%d, v%d, v%d' % (MX, s_, s_ + 1)))
            else:
                out.append(lambda s_=s_: E('v_max3_f32 v%d, v%d, v%d, v%d' % (MX, s_, s_ + 1, MX)))
        return out
    def s_mf(u, kt):
        q = u % 3
        mf = []
        for ks in range(8):
            s_ = sreg(u, kt)
            src = 'v[%d:%d]' % (s_, s_ + 15) if ks > 0 else '0'
            kr = (kt * 8 + ks) * 4
            qr = QF + (q * 8 + ks) * 4
            mf.append(lambda s_=s_, kr=kr, qr=qr, src=src: E('v_mfma_f32_32x32x16_bf16 v[%d:%d], a[%d:%d], a[%d:%d], %s' % (
                s_, s_ + 15, kr, kr + 3, qr, qr + 3, src)))
        return mf
    PK = [30, 34, 38, 42]
    pkc = [0]
    OA = [0, 64]
    PSL = {(0, 0): 0, (0, 1): 8192, (1, 0): 16384, (1, 1): 24576, (2, 0): 32768, (2, 1): 40960,
           (0, 2): 49152, (0, 3): 57344, (1, 2): 0, (1, 3): 16384, (2, 2): 32768, (2, 3): 8192}
    def exp_ops(u, kt):
        q = u % 3
        out = []
        s0 = sreg(u, kt)
        for hf in range(2):
            pk = PK[pkc[0] % 4]; pkc[0] += 1
            regs = [s0 + 8 * hf + i for i in range(8)]
            for r in regs:
                out.append(lambda r=r: E('v_fma_f32 v%d, v%d, s36, -v%d' % (r, r, 21 + q)))
            for r in regs:
                out.append(lambda r=r: E('v_exp_f32 v%d, v%d' % (r, r)))
            for k, r in enumerate(regs):
                if kt == 0 and hf == 0 and k == 0:
                    out.append(lambda r=r: E('v_add_f32 v%d, v%d, v%d' % (24 + q, r, r + 1)))
                elif kt == 0 and hf == 0 and k == 1:
                    pass
                else:
                    out.append(lambda r=r: E('v_add_f32 v%d, v%d, v%d' % (24 + q, r, 24 + q)))
                if k & 1:
                    out.append(lambda r=r, pk=pk, k=k: E('v_cvt_pk_bf16_f32 v%d, v%d, v%d' % (pk + k // 2, r - 1, r)))
            off = PSL[(q, kt)] + hf * 1024
            out.append(lambda pk=pk, off=off: E('ds_write_b128 v15, v[%d:%d] offset:%d' % (pk, pk + 3, off)))
        return out
    def exchange(u):
        h, q = u // 3, u % 3
        E('ds_write_b32 v60, v%d offset:%d' % (MX, q * 1024))
        e.wait(lds='all')
        stamp()
        E('s_barrier')
        E('ds_read_b128 v[46:49], v61 offset:%d' % (q * 1024), tag='st')
        E('ds_read_b128 v[50:53], v61 offset:%d' % (q * 1024 + 16), tag='st')
        out = [lambda: e.wait(lds='st')]
        ops = ['v_max3_f32 v46, v46, v47, v48', 'v_max3_f32 v50, v50, v51, v52', 'v_max3_f32 v46, v46, v49, v53', 'v_max_f32 v46, v46, v50']
        if h == 0:
            ops += ['v_mul_f32 v%d, s36, v46' % (21 + q)]
        else:
            ops += ['v_mul_f32 v46, s36, v46', 'v_max_f32 v46, v46, v%d' % (21 + q), 'v_sub_f32 v47, v%d, v46' % (21 + q),
                    'v_exp_f32 v%d, v47' % (57 + q), 'v_mov_b32 v%d, v46' % (21 + q), 'v_mul_f32 v%d, v%d, v%d' % (24 + q, 24 + q, 57 + q)]
        out += [(lambda o=o: E(o)) for o in ops]
        if not XDEF:
            for f in out:
                f()
            out = []
        return out

    PB4 = [96, 112, 160, 176]
    pvc = [0]
    def C(cost, fn):
        fn.cost = cost
        return fn
    def pv_anchors(lst):
        steps = []
        for (t, qs, first) in lst:
            for n in range(8):
                steps.append((t, qs, first, n))
        base = pvc[0]
        pvc[0] += len(steps)
        def reads(i):
            t, qs, first, n = steps[i]
            u, hf = n // 2, n % 2
            b = PB4[(base + i) & 3]
            vb = 14 if (t & 1) == 0 else 10
            tag = 'pv%d' % (base + i)
            out = []
            for ee in range(2):
                out.append(lambda ee=ee: E('ds_read_b64_tr_b16 v[%d:%d], v%d offset:%d' % (
                    b + 2 * ee, b + 2 * ee + 1, vb, (32 * u + 16 * hf + 8 * ee) * 256), tag=tag))
            for qt in qs:
                off = PSL[(qt, t)] + u * 2048 + hf * 1024
                out.append(lambda qt=qt, off=off: E('ds_read_b128 v[%d:%d], v11 offset:%d' % (
                    b + 4 + 4 * qt, b + 7 + 4 * qt, off), tag=tag))
            return out
        pro = reads(0) + reads(1)
        anc = []
        for i, (t, qs, first, n) in enumerate(steps):
            b = PB4[(base + i) & 3]
            rd = reads(i + 2) if i + 2 < len(steps) else []
            k = len(qs)
            for x, qt in enumerate(qs):
                o = OA[t >> 1] + 16 * qt
                src = '0' if (first and n == 0) else 'a[%d:%d]' % (o, o + 15)
                fn = (lambda o=o, b=b, qt=qt, src=src: E('v_mfma_f32_32x32x16_bf16 a[%d:%d], v[%d:%d], v[%d:%d], %s' % (
                    o, o + 15, b, b + 3, b + 4 + 4 * qt, b + 7 + 4 * qt, src)))
                pre = [lambda i=i: e.wait(lds='pv%d' % (base + i))] if x == 0 else []
                post = rd[len(rd) * x // k: len(rd) * (x + 1) // k]
                anc.append((pre, fn, post))
        return pro, anc

    WOR = 240
    def wo_loads():
        out = []
        def pre():
            E('s_lshr_b32 s4, s2, 2')
            E('s_lshl_b32 s4, s4, 16')
            E('s_and_b32 s5, s2, 3')
            E('s_lshl_b32 s5, s5, 8')
            E('s_add_u32 s4, s4, s5')
            E('s_lshl_b32 s5, s3, 14')
            E('s_add_u32 s56, s4, s5')
            E('v_lshrrev_b32 v3, 4, v1')
            E('v_and_b32 v4, 15, v1')
            E('v_lshlrev_b32 v3, 10, v3')
            E('v_lshl_add_u32 v3, v4, 4, v3')
        out.append(pre)
        for m in range(4):
            def f(m=m):
                E('s_add_u32 s6, s56, %d' % (m * 4096))
                E('buffer_load_dwordx4 a[%d:%d], v3, s[24:27], s6 offen' % (WOR + 4 * m, WOR + 4 * m + 3), tag='WO')
            out.append(f)
        return out
    def wp_reg(j, i):
        if 1 <= j <= 4:
            return 'a', 128 + ((j + 2) % 4) * 32 + 4 * i
        if j in (0, 7):
            return 'v', 192 + 4 * i
        if j == 5:
            return 'v', 224 + 4 * i
        return 'a', (48 + 4 * i) if i < 4 else (112 + 4 * (i - 4))
    def wp_pre():
        E('s_lshl_b32 s4, s39, 17')
        E('s_lshl_b32 s5, s3, 8')
        E('s_add_u32 s56, s4, s5')
        E('v_lshrrev_b32 v3, 4, v1')
        E('v_and_b32 v4, 15, v1')
        E('v_lshlrev_b32 v4, 4, v4')
        E('v_lshl_add_u32 v3, v3, 13, v4')
    def wp_load(j, i):
        def f():
            fl, r = wp_reg(j, i)
            if i % 4 == 0:
                E('s_add_u32 s62, s56, %d' % ((32 * j + i) * 1024))
            E('buffer_load_dwordx4 %s[%d:%d], v3, s[24:27], s62 offen offset:%d' % (fl, r, r + 3, (i % 4) * 1024), tag='wp%d' % j)
        return C(20, f)
    def v_store(t):
        out = [C(0, lambda: vwait('V%d' % t))]
        def pre():
            E('s_lshl_b32 s4, s3, 13')
            E('s_add_u32 s4, s4, %d' % VS[t])
            E('v_add_u32 v55, s4, v13')
        out.append(pre)
        for mm in range(8):
            r = 192 + (t - 2) * 32 + mm * 4
            out.append(lambda r=r, mm=mm: E('ds_write_b128 v55, v[%d:%d] offset:%d' % (r, r + 3, mm * 1024)))
        return out
    def iss(n):
        return [C(20, lambda: issue(SLOWCOST))] * n

    E('v_add_u32 v10, 0x%x, v14' % (VS[1] - VS[0]))
    for f in ktr(0):
        f()
    e.wait(lds='kt0')
    stamp()
    xpost = []
    for u in range(6):
        h, q = u // 3, u % 3
        t0, t1 = 2 * h, 2 * h + 1
        sa = [([], f, []) for f in s_mf(u, t0)] + [([], f, []) for f in s_mf(u, t1)]
        if q == 0:
            sa[8] = ([lambda t1=t1: e.wait(lds='kt%d' % t1)], sa[8][1], [])
        pro = []
        if u in (4, 5):
            pro, pa = pv_anchors([(u - 4, (0, 1, 2), u == 4)])
            anc = sa[:2] + merge(sa[2:], pa[:PVS]) + pa[PVS:]
        else:
            anc = sa
        i7 = [k for k, a in enumerate(anc) if a[1] is sa[7][1]][0]
        i15 = [k for k, a in enumerate(anc) if a[1] is sa[15][1]][0]
        s0, s1 = [], []
        if u > 0:
            pu = u - 1
            s0 = exp_ops(pu, 2 * (pu // 3))
            s1 = exp_ops(pu, 2 * (pu // 3) + 1)
        if q == 0:
            s0 = ktr(t1) + s0 if KTF else merge(s0, ktr(t1))
        if u == 2:
            s1 = merge(s1, ktr(2))
        if u == 5:
            s1 = merge(s1, v_store(2))
        if u == 4 and not FUSE and not PART:
            s1 = merge(s1, wo_loads())
        if u == 4 and PART:
            early = [wp_load(1, m) for m in range(8)] + [wp_load(6, m) for m in range(4)]
            late6 = [wp_load(j, m) for j in (2, 3, 4) for m in range(8)] + [wp_load(6, m) for m in range(4, 8)]
            late6 = early[PFA:] + late6
            s1 = merge(s1, [wp_pre] + early[:PFA])
        s0 = xpost + merge(s0, iss(NV_S[u][0]))
        s1 = merge(s1, iss(NV_S[u][1]))
        cons = [(i7 + 1, f) for f in max_ops(u, t0)] + [(i15 + 1, f) for f in max_ops(u, t1)]
        if FUSE > 1 and u == 4:
            E('s_and_b32 s4, s2, 3')
            E('s_lshl_b32 s4, s4, 2')
            E('s_add_u32 s4, s4, 64')
            E('v_mov_b32 v4, 1')
            E('v_mov_b32 v3, 0')
            E('s_cmp_eq_u32 s3, 0')
            E('s_cselect_b32 s58, 1, 0')
            E('s_mov_b32 s59, 0')
            E('s_mov_b64 exec, s[58:59]')
            E('buffer_atomic_add v4, v3, s[20:23], s4 offen sc1')
            E('s_mov_b64 exec, -1')
        if FUSE > 1 and u == 5:
            E('s_lshr_b32 s4, s39, 3')
            E('s_lshl_b32 s4, s4, 2')
            E('s_add_u32 s4, s4, 64')
            E('buffer_load_dword v5, v3, s[20:23], s4 offen sc0 sc1', tag='rdy')
        for f in pro:
            f()
        if q == 0:
            sched(e, anc[:8], s0, burst=BURST if u else 0)
            sched(e, anc[8:], s1, [(m - 8, f) for m, f in cons])
        else:
            sched(e, anc, s0 + s1, cons, burst=BURST)
        if u == 3:
            vwait('V0')
        if u == 4:
            vwait('V1')
        xpost = exchange(u)
        if u == 2:
            stamp(True)
    tail = exp_ops(5, 2) + exp_ops(5, 3)
    tail = xpost + merge(tail, v_store(3))
    for qt in range(3):
        tail.append(lambda qt=qt: E('ds_write_b32 v60, v%d offset:%d' % (24 + qt, LSTAT - STATS + qt * 1024)))
    def stg():
        e.wait(vm='WO')
        E('s_lshl_b32 s4, s3, 12')
        E('s_add_u32 s4, s4, %d' % WOST)
        E('v_add_u32 v56, s4, v13')
        for m in range(4):
            E('ds_write_b128 v56, a[%d:%d] offset:%d' % (WOR + 4 * m, WOR + 4 * m + 3, m * 1024))
    if not FUSE and not PART:
        tail.append(stg)
    if PART:
        late6 = [wp_load(0, m) for m in range(8)] + late6
        tail = merge(tail, late6[:PF6])
        late7 = late6[PF6:] + [wp_load(5, m) for m in range(8)]
    if FUSE > 1:
        e.wait(vm='rdy')
        E('v_readfirstlane_b32 s64, v5')
        E('s_mov_b32 s12, s54')
        E('s_and_b32 s13, s55, 0xffff')
        E('s_cmp_ge_u32 s64, 64')
        E('s_cselect_b32 s14, 0x%x, 0' % WS_SIZE)
        E('s_mov_b32 s15, 0x20000')
        if P3PF:
            E('s_lshr_b32 s4, s2, 3')
            E('s_lshl_b32 s4, s4, 2')
            E('s_add_u32 s4, s4, s3')
            E('s_lshl_b32 s4, s4, 13')
            E('s_lshr_b32 s5, s39, 3')
            E('s_lshl_b32 s5, s5, 20')
            E('s_add_u32 s4, s4, s5')
            E('s_add_u32 s4, s4, 0x%x' % WOT_OFF)
            E('v_lshlrev_b32 v4, 7, v1')
            E('buffer_load_dword v5, v4, s[12:15], s4 offen', tag='pf')
    pro, pa = pv_anchors([(2, (0, 1), True)])
    for f in pro:
        f()
    sched(e, pa, tail, lead=100)
    e.wait(lds='all')
    stamp()
    E('s_barrier')
    stamp(True)
    b = []
    TB = [64, 80, 128]
    for qt in range(3):
        def ls(qt=qt):
            E('ds_read_b128 v[46:49], v61 offset:%d' % (LSTAT - STATS + qt * 1024), tag='ls%d' % qt)
            E('ds_read_b128 v[50:53], v61 offset:%d' % (LSTAT - STATS + qt * 1024 + 16), tag='ls%d' % qt)
            e.wait(lds='ls%d' % qt)
            E('v_add_f32 v46, v46, v47')
            E('v_add_f32 v48, v48, v49')
            E('v_add_f32 v50, v50, v51')
            E('v_add_f32 v52, v52, v53')
            E('v_add_f32 v46, v46, v48')
            E('v_add_f32 v50, v50, v52')
            E('v_add_f32 v46, v46, v50')
            E('v_rcp_f32 v%d, v46' % (24 + qt))
            E('v_mul_f32 v%d, v%d, v%d' % (57 + qt, 57 + qt, 24 + qt))
        b.append(ls)
        for r in range(16):
            def f(qt=qt, r=r):
                E('v_accvgpr_read_b32 v%d, a%d' % (TB[qt] + r, OA[0] + 16 * qt + r))
                E('v_mul_f32 v%d, v%d, v%d' % (TB[qt] + r, TB[qt] + r, 57 + qt))
            b.append(f)
    def wt_addr():
        E('v_lshrrev_b32 v46, 4, v1')
        E('v_lshrrev_b32 v47, 2, v1')
        E('v_and_b32 v47, 3, v47')
        E('v_and_b32 v48, 3, v1')
        E('v_lshl_add_u32 v49, v46, 3, v47')
        E('v_lshlrev_b32 v49, 8, v49')
        E('v_xor_b32 v50, s3, v47')
        E('v_lshl_add_u32 v49, v50, 6, v49')
        E('v_lshl_add_u32 v49, v48, 3, v49')
        E('v_add_u32 v49, 0x%x, v49' % WOST)
        for kk in range(2):
            for nn in range(2):
                for hh in range(2):
                    r = 30 + (kk * 2 + nn) * 4 + 2 * hh
                    E('ds_read_b64_tr_b16 v[%d:%d], v49 offset:%d' % (r, r + 1, (32 * kk + 4 * hh) * 256 + nn * 32), tag='wt')
    if not FUSE and not PART:
        b.append(wt_addr)
    if PART:
        b = merge(b, late7)
    def epi(qt):
        out = []
        T = TB[qt]
        U = (96 if PART else 192) + (qt & 1) * 16
        for r in range(16):
            out.append(lambda r=r: E('v_accvgpr_read_b32 v%d, a%d' % (U + r, OA[1] + 16 * qt + r)))
        for r in range(16):
            out.append(lambda r=r: E('v_fma_f32 v%d, v%d, v%d, v%d' % (T + r, U + r, 24 + qt, T + r)))
        for k in range(8):
            out.append(lambda k=k: E('v_cvt_pk_bf16_f32 v%d, v%d, v%d' % (T + k, T + 2 * k, T + 2 * k + 1)))
        for k in (0, 2):
            def f(k=k):
                E('v_permlane32_swap_b32 v%d, v%d' % (T + 2 * k, T + 2 * k + 2))
                E('v_permlane32_swap_b32 v%d, v%d' % (T + 2 * k + 1, T + 2 * k + 3))
                if PART:
                    E('ds_write_b128 v%d, v[%d:%d] offset:%d' % (27 + qt, T + 2 * k, T + 2 * k + 3, k * 256))
                else:
                    E('buffer_store_dwordx4 v[%d:%d], v%d, s[28:31], s57 offen offset:%d%s' % (T + 2 * k, T + 2 * k + 3, 27 + qt, k * 256, STPOL))
            out.append(f)
        return out
    E('s_mul_i32 s4, s37, 393216')
    E('s_lshl_b32 s5, s39, 2')
    E('s_add_u32 s5, s5, s3')
    E('s_mul_i32 s5, s5, 3072')
    E('s_add_u32 s57, s4, s5')
    if EPO:
        pro, pa = pv_anchors([(3, (0, 1), False), (2, (2,), True), (3, (2,), False)])
        for f in pro:
            f()
        sched(e, pa[:16], b, lead=60)
        sched(e, pa[16:], epi(0) + epi(1), burst=1)
        stamp()
        for f in epi(2):
            f()
    else:
        pro, pa = pv_anchors([(2, (2,), True), (3, (0, 1, 2), False)])
        for f in pro:
            f()
        sched(e, pa, b, lead=60)
        stamp()
        for qt in range(3):
            for f in epi(qt):
                f()
    if PART:
        phase3p(e, stamp, wp_reg, wp_load, C)
    elif FUSE:
        phase3(e, stamp)
    else:
        E('s_and_b32 s4, s2, 3')
        E('s_lshl_b32 s4, s4, 3')
        E('s_lshl_b32 s5, s3, 1')
        E('s_add_u32 s4, s4, s5')
        E('s_lshl_b32 s4, s4, 17')
        E('s_lshr_b32 s5, s2, 2')
        E('s_lshl_b32 s5, s5, 11')
        E('s_add_u32 s4, s4, s5')
        E('s_add_u32 s4, s4, 0x%x' % WOT_OFF)
        E('s_add_u32 s5, s4, 0x20000')
        e.wait(lds='wt')
        for kk in range(2):
            for nn in range(2):
                r = 30 + (kk * 2 + nn) * 4
                E('buffer_store_dwordx4 v[%d:%d], v11, s[28:31], s%d offen offset:%d%s' % (r, r + 3, 4 + nn, kk * 1024, STPOL))
    stamp(True)
    e.label('L_a_done')
    E('s_endpgm')
    return e


def phase3p(e, stamp, wp_reg, wp_load, C):
    E = e
    ACC = 64
    WF = [160, 32]
    ORD = [0, 5, 1, 2, 3, 4, 6, 7]
    def OB(j):
        return 65536 + 3072 * j if j < 5 else 89088 + 3072 * (j - 5)
    def oreg(j, st):
        i = j * 3 + st
        return i * 4 if i < 12 else 64 + (i - 12) * 4
    E('v_add_u32 v8, 0x10000, v11')
    E('s_mov_b32 s68, 0x05040100')
    E('s_mov_b32 s69, 0x07060302')
    E('s_lshl_b32 s4, s37, 4')
    E('s_lshr_b32 s5, s39, 1')
    E('s_add_u32 s4, s4, s5')
    E('s_mul_i32 s4, s4, 49152')
    E('s_mul_i32 s5, s3, 12288')
    E('s_add_u32 s4, s4, s5')
    E('s_add_u32 s57, s4, 0x%x' % PRT_OFF)
    def oread(j):
        out = []
        for st in range(3):
            r = oreg(j, st)
            out.append(lambda r=r, st=st: E('ds_read_b128 a[%d:%d], v8 offset:%d' % (r, r + 3, OB(j) - 65536 + st * 1024), tag='o%d' % j))
        return out
    tc = [0]
    def tr(x):
        j = ORD[x]
        out = [C(0, lambda: e.wait(vm='wp%d' % j))]
        for c in range(4):
            for ip in range(4):
                def f(c=c, ip=ip):
                    fl, r0 = wp_reg(j, 2 * ip)
                    fl, r1 = wp_reg(j, 2 * ip + 1)
                    r0 += c; r1 += c
                    if fl == 'a':
                        t0 = 16 + 2 * (tc[0] & 3); tc[0] += 1
                        E('v_accvgpr_read_b32 v%d, a%d' % (t0, r0))
                        E('v_accvgpr_read_b32 v%d, a%d' % (t0 + 1, r1))
                        r0, r1 = t0, t0 + 1
                    d = WF[x & 1] + 8 * c + ip
                    E('v_perm_b32 v%d, v%d, v%d, s68' % (d, r1, r0))
                    E('v_perm_b32 v%d, v%d, v%d, s69' % (d + 4, r1, r0))
                out.append(f)
        return out
    for f in tr(0):
        f()
    e.wait(lds='all')
    stamp()
    E('s_barrier')
    stamp(True)
    for f in oread(ORD[0]) + oread(ORD[1]) + [wp_load(7, m) for m in range(8)]:
        f()
    for x in range(8):
        j = ORD[x]
        anc = []
        order = [(t, st) for t in range(8) for st in range(3)] if x < 7 else [(t, st) for st in range(3) for t in range(8)]
        for (t, st) in order:
            a = ACC + (t * 3 + st) * 4
            src = 'v[%d:%d]' % (a, a + 3) if x > 0 else '0'
            w = WF[x & 1] + 4 * t
            o = oreg(j, st)
            fn = (lambda a=a, w=w, o=o, src=src: E('v_mfma_f32_16x16x32_bf16 v[%d:%d], v[%d:%d], a[%d:%d], %s' % (
                a, a + 3, w, w + 3, o, o + 3, src)))
            anc.append(([], fn, []))
        e.wait(lds='o%d' % j)
        if P3ST:
            stamp(True)
        fill = []
        if x + 2 < 8:
            fill += oread(ORD[x + 2])
        if x + 1 < 8:
            fill += tr(x + 1)
        cons = []
        if x == 7:
            for st in range(3):
                for r in range(4):
                    d = WF[0] + (st & 1) * 16 + 4 * r
                    def f(d=d, st=st, r=r):
                        for c in range(4):
                            E('v_cvt_pk_bf16_f32 v%d, v%d, v%d' % (d + c, ACC + (2 * c * 3 + st) * 4 + r, ACC + ((2 * c + 1) * 3 + st) * 4 + r))
                        if r == 0:
                            E('s_add_u32 s4, s57, %d' % (st * 4096))
                        E('buffer_store_dwordx4 v[%d:%d], v11, s[28:31], s4 offen offset:%d%s' % (d, d + 3, r * 1024, STPOL))
                    cons.append((8 * st + 7 + 2 + r, f))
        sched(e, anc, fill, cons)
    stamp()


def kernel_r():
    e = Emitter()
    E = e
    e.raw('.p2align 8')
    e.raw('.globl %s' % KB)
    e.raw('.type %s,@function' % KB)
    e.label(KB)
    E('s_cmp_ge_u32 s2, 256')
    E('s_cbranch_scc1 L_b_done')
    E('s_load_dwordx2 s[40:41], s[0:1], 40')
    E('s_load_dwordx2 s[42:43], s[0:1], 56')
    E('v_and_b32 v1, 63, v0')
    E('v_lshrrev_b32 v2, 6, v0')
    E('s_nop 0')
    E('v_readfirstlane_b32 s3, v2')
    E('s_lshr_b32 s37, s2, 4')
    E('s_and_b32 s38, s2, 15')
    E('s_mul_i32 s32, s37, 786432')
    E('s_mul_i32 s4, s38, 3072')
    E('s_add_u32 s32, s32, s4')
    E('s_lshl_b32 s4, s3, 8')
    E('s_add_u32 s32, s32, s4')
    E('s_add_u32 s32, s32, 0x%x' % PRT_OFF)
    E('v_lshlrev_b32 v11, 2, v1')
    E('s_waitcnt lgkmcnt(0)')
    E('s_mov_b32 s28, s42')
    E('s_and_b32 s29, s43, 0xffff')
    E('s_mov_b32 s30, 0x%x' % WS_SIZE)
    E('s_mov_b32 s31, 0x20000')
    for p in range(16):
        E('s_add_u32 s5, s32, %d' % (p * 49152))
        E('buffer_load_dword v%d, v11, s[28:31], s5 offen' % (16 + p), tag='p%d' % p)
    E('s_mov_b32 s8, s40')
    E('s_and_b32 s9, s41, 0xffff')
    E('s_mov_b32 s10, 786432')
    E('s_mov_b32 s11, 0x20000')
    E('s_mul_i32 s4, s38, 3')
    E('s_lshr_b32 s5, s3, 2')
    E('s_add_u32 s4, s4, s5')
    E('s_mul_i32 s5, s4, 43')
    E('s_lshr_b32 s5, s5, 9')
    E('s_mul_i32 s6, s5, 12')
    E('s_sub_u32 s4, s4, s6')
    E('s_mul_i32 s6, s37, 49152')
    E('s_lshl_b32 s5, s5, 8')
    E('s_add_u32 s6, s6, s5')
    E('s_lshr_b32 s5, s4, 2')
    E('s_lshl_b32 s5, s5, 14')
    E('s_add_u32 s6, s6, s5')
    E('s_and_b32 s5, s4, 3')
    E('s_lshl_b32 s5, s5, 4')
    E('s_add_u32 s6, s6, s5')
    E('s_and_b32 s5, s3, 3')
    E('s_lshl_b32 s5, s5, 6')
    E('s_add_u32 s6, s6, s5')
    E('v_lshrrev_b32 v2, 2, v1')
    E('v_lshlrev_b32 v2, 10, v2')
    E('v_and_b32 v3, 3, v1')
    E('v_lshl_add_u32 v2, v3, 2, v2')
    E('s_mov_b32 s7, 0xffff0000')
    for p in range(16):
        e.wait(vm='p%d' % p)
        d = 4 if p < 2 else 8
        d = (4 + 2 * p) if p < 2 else (8 + 2 * (p & 1))
        E('v_lshlrev_b32 v%d, 16, v%d' % (d, 16 + p))
        E('v_and_b32 v%d, s7, v%d' % (d + 1, 16 + p))
        if p >= 2:
            a = 4 + 2 * (p & 1)
            E('v_pk_add_f32 v[%d:%d], v[%d:%d], v[%d:%d]' % (a, a + 1, a, a + 1, d, d + 1))
    E('v_pk_add_f32 v[4:5], v[4:5], v[6:7]')
    E('v_cvt_pk_bf16_f32 v4, v4, v5')
    E('buffer_store_dword v4, v2, s[8:11], s6 offen')
    e.label('L_b_done')
    E('s_endpgm')
    return e


def phase3(e, stamp):
    E = e
    E('s_mov_b32 s20, s52')
    E('s_and_b32 s21, s53, 0xffff')
    E('s_mov_b32 s22, 256')
    E('s_mov_b32 s23, 0x20000')
    E('s_mov_b32 s8, s50')
    E('s_and_b32 s9, s51, 0xffff')
    E('s_mov_b32 s10, 786432')
    E('s_mov_b32 s11, 0x20000')
    E('s_lshl_b32 s62, s37, 2')
    E('s_mul_i32 s63, s3, 40960')
    E('v_mov_b32 v2, 1')
    E('v_mov_b32 v3, 0')
    E('s_cmp_eq_u32 s3, 0')
    E('s_cselect_b32 s58, 1, 0')
    E('s_mov_b32 s59, 0')
    def pub():
        E('s_barrier')
        E('s_mov_b64 exec, s[58:59]')
        E('buffer_atomic_add v2, v3, s[20:23], s62 offen sc1')
        E('s_mov_b64 exec, -1')
    if FUSE > 1:
        E('s_cmp_ge_u32 s64, 64')
        E('s_cbranch_scc0 L_slow')
        q0 = list(e.vmq)
        E('s_lshl_b32 s33, s39, 17')
        E('s_lshl_b32 s5, s3, 15')
        E('s_add_u32 s33, s33, s5')
        E('s_add_u32 s33, s33, 0x%x' % WOT_OFF)
        E('s_lshr_b32 s5, s39, 1')
        E('s_add_u32 s34, s37, s5')
        E('s_and_b32 s34, s34, %d' % P3ROT)
        for n in range(64):
            i, nn = n // 2, n % 2
            if n % 8 == 0:
                E('s_add_u32 s5, s34, %d' % (n // 8))
                E('s_and_b32 s5, s5, 7')
                E('s_lshl_b32 s5, s5, 12')
                E('s_add_u32 s56, s33, s5')
                E('s_add_u32 s57, s56, 0x20000')
            if n == 40:
                e.wait(vm=q0[-1], lds='all')
                if DIAG:
                    E('s_memtime s[68:69]')
                    E('s_waitcnt lgkmcnt(0)')
                pub()
            if n == 60:
                e.wait(vm='wf3')
            E('buffer_load_dwordx4 a[%d:%d], v11, s[28:31], s%d offen offset:%d' % (n * 4, n * 4 + 3, 56 + nn, (i % 4) * 1024), tag='wf%d' % n)
        if P3X:
            e.wait(vm='all')
            E('s_memtime s[68:69]')
            E('s_waitcnt lgkmcnt(0)')
            for n in range(64):
                i, nn = n // 2, n % 2
                if n % 8 == 0:
                    E('s_add_u32 s5, s34, %d' % (n // 8))
                    E('s_and_b32 s5, s5, 7')
                    E('s_lshl_b32 s5, s5, 12')
                    E('s_add_u32 s56, s33, s5')
                    E('s_add_u32 s57, s56, 0x20000')
                if n == 60:
                    e.wait(vm='wf3')
                E('buffer_load_dwordx4 a[%d:%d], v11, s[28:31], s%d offen offset:%d' % (n * 4, n * 4 + 3, 56 + nn, (i % 4) * 1024), tag='wf%d' % n)
            e.wait(vm='all')
        if DIAG:
            E('s_memtime s[70:71]')
            E('s_waitcnt lgkmcnt(0)')
            E('s_lshl_b32 s5, s2, 2')
            E('s_add_u32 s5, s5, s3')
            E('s_lshl_b32 s5, s5, 8')
            E('s_add_u32 s5, s5, 0x%x' % (0xC00000 + 22 * 8))
            E('v_mov_b32 v63, 0')
            for k in range(4):
                E('v_mov_b32 v0, s%d' % (68 + k))
                e.wait(vm='wf30') if not P3X else None
                E('buffer_store_dword v0, v63, s[28:31], s5 offen offset:%d' % (4 * k))
        E('s_branch L_join')
        e.label('L_slow')
        e.vmq = q0
    E('s_mov_b32 s34, 0')
    e.wait(vm='all', lds='all')
    pub()
    e.vmq = []
    stamp()
    E('v_lshrrev_b32 v4, 2, v1')
    E('v_lshrrev_b32 v5, 5, v1')
    E('v_lshlrev_b32 v5, 1, v5')
    E('v_and_b32 v6, 3, v1')
    E('v_xor_b32 v5, v5, v6')
    E('v_lshlrev_b32 v5, 4, v5')
    E('v_lshl_add_u32 v4, v4, 10, v5')
    E('s_lshl_b32 s56, s3, 20')
    E('s_lshl_b32 s5, s39, 5')
    E('s_add_u32 s56, s56, s5')
    E('v_lshrrev_b32 v46, 4, v1')
    E('v_lshrrev_b32 v47, 2, v1')
    E('v_and_b32 v47, 3, v47')
    E('v_lshl_add_u32 v48, v46, 3, v47')
    E('v_lshlrev_b32 v48, 6, v48')
    E('v_lshl_add_u32 v48, v6, 3, v48')
    E('v_and_b32 v46, 1, v46')
    E('v_lshl_add_u32 v48, v46, 5, v48')
    E('v_add_u32 v7, s63, v48')
    E('v_xor_b32 v8, 32, v7')
    def dma(step, slot):
        for k in range(2):
            E('s_add_u32 s5, s63, %d' % (slot * 2048 + k * 1024))
            E('s_mov_b32 m0, s5')
            E('s_add_u32 s6, s56, %d' % ((step * 2 + k) * 16384))
            E('buffer_load_dwordx4 v4, s[24:27], s6 offen lds', tag='w%d' % step)
    def trd(step, slot):
        for nt in range(2):
            for hh in range(2):
                r = (step * 2 + nt) * 4 + 2 * hh
                E('ds_read_b64_tr_b16 a[%d:%d], v%d offset:%d' % (r, r + 1, 7 + nt, slot * 2048 + hh * 256), tag='t%d' % step)
    for st in range(20):
        dma(st, st)
    for st in range(32):
        e.wait(vm='w%d' % st)
        trd(st, st % 20)
        if st == 12:
            e.wait(lds='t11')
            for s2_ in range(20, 32):
                dma(s2_, s2_ - 20)
    stamp()
    e.wait(vm='all', lds='all')
    e.label('L_join')
    E('s_mov_b32 s7, 0')
    e.label('L_poll')
    E('buffer_load_dword v2, v3, s[20:23], s62 offen sc0 sc1')
    E('s_waitcnt vmcnt(0)')
    E('v_readfirstlane_b32 s4, v2')
    E('s_cmp_ge_u32 s4, 16')
    E('s_cbranch_scc1 L_go')
    E('s_sleep 4')
    E('s_add_u32 s7, s7, 1')
    E('s_cmp_lt_u32 s7, 0x10000')
    E('s_cbranch_scc1 L_poll')
    e.label('L_go')
    e.vmq = []
    stamp()
    E('s_mul_i32 s32, s37, 393216')
    E('s_mul_i32 s4, s3, 98304')
    E('s_add_u32 s32, s32, s4')
    D = P3D
    ACC = 64
    FR = 96
    if P3PF > 1:
        E('s_bfe_u32 s4, s2, 0x20003')
        E('s_lshl_b32 s4, s4, 2')
        E('s_add_u32 s4, s4, s3')
        E('s_mul_i32 s4, s4, 24576')
        E('s_mul_i32 s5, s37, 393216')
        E('s_add_u32 s4, s4, s5')
        E('v_lshlrev_b32 v4, 7, v1')
        for t in range(3):
            E('s_add_u32 s5, s4, %d' % (t * 8192))
            E('buffer_load_dword v%d, v4, s[28:31], s5 offen' % (8 + t), tag='pf')
    def loads(i):
        base = FR + (i % D) * 12
        if i % 4 == 0:
            E('s_add_u32 s35, s34, %d' % (i // 4))
            E('s_and_b32 s35, s35, 7')
            E('s_mul_i32 s35, s35, 12288')
            E('s_add_u32 s35, s35, s32')
        E('s_add_u32 s5, s35, %d' % ((i % 4) * 3072))
        for st in range(3):
            E('buffer_load_dwordx4 v[%d:%d], v11, s[28:31], s5 offen offset:%d' % (base + 4 * st, base + 4 * st + 3, st * 1024), tag='k%d' % i)
    for i in range(D):
        loads(i)
    for i in range(32):
        base = FR + (i % D) * 12
        e.wait(vm='k%d' % i)
        for nn in range(2):
            for st in range(3):
                a = ACC + (nn * 3 + st) * 4
                wr = (i * 2 + nn) * 4
                src = 'v[%d:%d]' % (a, a + 3) if i > 0 else '0'
                E('v_mfma_f32_16x16x32_bf16 v[%d:%d], a[%d:%d], v[%d:%d], %s' % (
                    a, a + 3, wr, wr + 3, base + 4 * st, base + 4 * st + 3, src))
        if i + D < 32:
            loads(i + D)
    stamp()
    E('v_add_u32 v12, s63, v11')
    for tl in range(6):
        E('ds_write_b128 v12, v[%d:%d] offset:%d' % (ACC + 4 * tl, ACC + 4 * tl + 3, tl * 1024))
    e.wait(lds='all')
    E('s_barrier')
    E('v_and_b32 v2, 15, v1')
    E('v_lshrrev_b32 v3, 4, v1')
    E('v_lshlrev_b32 v2, 10, v2')
    E('v_lshl_add_u32 v2, v3, 3, v2')
    E('s_mul_i32 s6, s37, 49152')
    E('s_lshl_b32 s5, s39, 5')
    E('s_add_u32 s6, s6, s5')
    def red(rnd):
        E('s_add_u32 s4, s3, %d' % (4 * rnd))
        E('s_lshl_b32 s5, s4, 10')
        E('v_add_u32 v12, s5, v11')
        E('v_add_u32 v13, 0x14000, v12')
        b0 = 96 + 32 * rnd
        E('ds_read_b128 v[%d:%d], v12' % (b0, b0 + 3), tag='r')
        E('ds_read_b128 v[%d:%d], v12 offset:40960' % (b0 + 4, b0 + 7), tag='r')
        E('ds_read_b128 v[%d:%d], v13' % (b0 + 8, b0 + 11), tag='r')
        E('ds_read_b128 v[%d:%d], v13 offset:40960' % (b0 + 12, b0 + 15), tag='r')
        E('s_cmp_ge_u32 s4, 3')
        E('s_cselect_b32 s7, 1, 0')
        E('s_mul_i32 s5, s7, 3')
        E('s_sub_u32 s5, s4, s5')
        E('s_lshl_b32 s5, s5, 14')
        E('s_lshl_b32 s7, s7, 5')
        E('s_add_u32 s5, s5, s7')
        E('s_add_u32 s5, s5, s6')
        e.wait(lds='r')
        for r in range(4):
            E('v_add_f32 v%d, v%d, v%d' % (b0 + r, b0 + r, b0 + 4 + r))
            E('v_add_f32 v%d, v%d, v%d' % (b0 + 8 + r, b0 + 8 + r, b0 + 12 + r))
        for r in range(4):
            E('v_add_f32 v%d, v%d, v%d' % (b0 + r, b0 + r, b0 + 8 + r))
        E('v_cvt_pk_bf16_f32 v%d, v%d, v%d' % (b0 + 16, b0, b0 + 1))
        E('v_cvt_pk_bf16_f32 v%d, v%d, v%d' % (b0 + 17, b0 + 2, b0 + 3))
        E('buffer_store_dwordx2 v[%d:%d], v2, s[8:11], s5 offen' % (b0 + 16, b0 + 17))
    red(0)
    E('s_cmp_ge_u32 s3, 2')
    E('s_cbranch_scc1 L_a_done')
    red(1)


def kernel_b():
    e = Emitter()
    E = e
    e.raw('.p2align 8')
    e.raw('.globl %s' % KB)
    e.raw('.type %s,@function' % KB)
    e.label(KB)
    E('s_cmp_ge_u32 s2, 256')
    E('s_cbranch_scc1 L_b_done')
    E('s_load_dwordx2 s[40:41], s[0:1], 40')
    E('s_load_dwordx2 s[42:43], s[0:1], 56')
    E('v_and_b32 v1, 63, v0')
    E('v_lshrrev_b32 v2, 6, v0')
    E('s_nop 0')
    E('v_readfirstlane_b32 s3, v2')
    E('s_and_b32 s4, s2, 7')
    E('s_lshr_b32 s5, s2, 3')
    E('s_lshr_b32 s6, s4, 1')
    E('s_lshl_b32 s6, s6, 2')
    E('s_lshr_b32 s7, s5, 3')
    E('s_add_u32 s37, s6, s7')
    E('s_and_b32 s6, s4, 1')
    E('s_lshl_b32 s6, s6, 3')
    E('s_and_b32 s7, s5, 7')
    E('s_add_u32 s38, s6, s7')
    E('v_lshlrev_b32 v11, 4, v1')
    E('s_mul_i32 s32, s37, 393216')
    E('s_mul_i32 s4, s3, 49152')
    E('s_add_u32 s32, s32, s4')
    E('s_lshl_b32 s33, s38, 18')
    E('s_lshl_b32 s4, s3, 14')
    E('s_add_u32 s33, s33, s4')
    E('s_add_u32 s33, s33, 0x%x' % WOT_OFF)
    E('s_add_u32 s34, s33, 0x20000')
    E('s_waitcnt lgkmcnt(0)')
    E('s_mov_b32 s8, s40')
    E('s_and_b32 s9, s41, 0xffff')
    E('s_mov_b32 s10, 786432')
    E('s_mov_b32 s11, 0x20000')
    E('s_mov_b32 s28, s42')
    E('s_and_b32 s29, s43, 0xffff')
    E('s_mov_b32 s30, 0x%x' % WS_SIZE)
    E('s_mov_b32 s31, 0x20000')
    D = BD
    ACC = 16
    FR = 40
    stc = [0]
    def stampb():
        if not DIAG:
            return
        i = stc[0]; stc[0] += 1
        E('s_memtime s[60:61]')
        E('s_waitcnt lgkmcnt(0)')
        E('s_lshl_b32 s58, s2, 3')
        E('s_add_u32 s58, s58, s3')
        E('s_lshl_b32 s58, s58, 8')
        E('s_add_u32 s58, s58, 0x%x' % (0xD00000 + i * 8))
        E('v_mov_b32 v39, 0')
        E('v_mov_b32 v0, s60')
        E('buffer_store_dword v0, v39, s[28:31], s58 offen', tag='stamp')
        E('v_mov_b32 v0, s61')
        E('buffer_store_dword v0, v39, s[28:31], s58 offen offset:4', tag='stamp')
    stampb()
    def loads(i):
        base = FR + (i % D) * 20
        E('s_add_u32 s5, s32, %d' % (i * 3072))
        for st in range(3):
            E('buffer_load_dwordx4 v[%d:%d], v11, s[28:31], s5 offen offset:%d' % (base + 4 * st, base + 4 * st + 3, st * 1024), tag='k%d' % i)
        E('s_add_u32 s6, s33, %d' % (i * 1024))
        E('s_add_u32 s7, s34, %d' % (i * 1024))
        E('buffer_load_dwordx4 v[%d:%d], v11, s[28:31], s6 offen' % (base + 12, base + 15), tag='k%d' % i)
        E('buffer_load_dwordx4 v[%d:%d], v11, s[28:31], s7 offen' % (base + 16, base + 19), tag='k%d' % i)
    for i in range(D):
        loads(i)
    for i in range(16):
        base = FR + (i % D) * 20
        e.wait(vm='k%d' % i)
        if i in (0, 4, 8, 12, 15):
            stampb()
        for nn in range(2):
            for st in range(3):
                a = ACC + (nn * 3 + st) * 4
                src = 'v[%d:%d]' % (a, a + 3) if i > 0 else '0'
                E('v_mfma_f32_16x16x32_bf16 v[%d:%d], v[%d:%d], v[%d:%d], %s' % (
                    a, a + 3, base + 12 + 4 * nn, base + 15 + 4 * nn, base + 4 * st, base + 4 * st + 3, src))
        if i + D < 16:
            loads(i + D)
    E('s_mul_i32 s4, s3, 6144')
    E('v_add_u32 v12, s4, v11')
    for tl in range(6):
        E('ds_write_b128 v12, v[%d:%d] offset:%d' % (ACC + 4 * tl, ACC + 4 * tl + 3, tl * 1024))
    e.wait(lds='all')
    E('s_barrier')
    E('s_cmp_ge_u32 s3, 6')
    E('s_cbranch_scc1 L_b_done')
    E('s_lshl_b32 s4, s3, 10')
    E('v_add_u32 v12, s4, v11')
    for wv in range(8):
        E('ds_read_b128 v[%d:%d], v12 offset:%d' % (FR + 4 * wv, FR + 4 * wv + 3, wv * 6144), tag='r%d' % wv)
    e.wait(lds='r1')
    for r in range(4):
        E('v_add_f32 v%d, v%d, v%d' % (16 + r, FR + r, FR + 4 + r))
    for wv in range(2, 8):
        e.wait(lds='r%d' % wv)
        for r in range(4):
            E('v_add_f32 v%d, v%d, v%d' % (16 + r, 16 + r, FR + 4 * wv + r))
    E('v_cvt_pk_bf16_f32 v20, v16, v17')
    E('v_cvt_pk_bf16_f32 v21, v18, v19')
    E('s_cmp_ge_u32 s3, 3')
    E('s_cselect_b32 s4, 1, 0')
    E('s_mul_i32 s5, s4, 3')
    E('s_sub_u32 s5, s3, s5')
    E('s_mul_i32 s6, s37, 49152')
    E('s_lshl_b32 s5, s5, 14')
    E('s_add_u32 s6, s6, s5')
    E('s_lshl_b32 s5, s38, 6')
    E('s_add_u32 s6, s6, s5')
    E('s_lshl_b32 s4, s4, 5')
    E('s_add_u32 s6, s6, s4')
    E('v_and_b32 v2, 15, v1')
    E('v_lshrrev_b32 v3, 4, v1')
    E('v_lshlrev_b32 v2, 10, v2')
    E('v_lshl_add_u32 v2, v3, 3, v2')
    E('buffer_store_dwordx2 v[20:21], v2, s[8:11], s6 offen')
    stampb()
    e.label('L_b_done')
    E('s_endpgm')
    return e


def kd(name, vgpr, accum, sgpr=72):
    return '''.p2align 6
.amdhsa_kernel %s
  .amdhsa_next_free_vgpr %d
  .amdhsa_next_free_sgpr %d
  .amdhsa_accum_offset %d
  .amdhsa_group_segment_fixed_size 0
  .amdhsa_kernarg_size 64
  .amdhsa_user_sgpr_count 2
  .amdhsa_user_sgpr_kernarg_segment_ptr 1
  .amdhsa_system_sgpr_workgroup_id_x 1
.end_amdhsa_kernel
''' % (name, vgpr, sgpr, accum)


def main():
    global DIAG
    global DIAG_ALL
    if len(sys.argv) > 2 and sys.argv[2].startswith('diag'):
        DIAG = True
        DIAG_ALL = sys.argv[2] == 'diag'
    for kv in sys.argv[3:]:
        k, v = kv.split('=', 1)
        globals()[k] = eval(v)
    ref = open('cdna_kernels/%s.s.ref' % NAME).read().splitlines()
    head = [l for l in ref if l.startswith(';') and '@launch' not in l and 'launch geometry' not in l and 'grid=ceil' not in l]
    a = kernel_a()
    b = kernel_r() if PART else kernel_b()
    out = '\n'.join(head) + '\n'
    out += '; @launch kernel=%s grid=(256,1,1) block=(256,1,1) lds=%d\n' % (KA, LDS_A)
    if not FUSE:
        if PART:
            out += '; @launch kernel=%s grid=(256,1,1) block=(768,1,1) lds=0\n' % KB
        else:
            out += '; @launch kernel=%s grid=(256,1,1) block=(512,1,1) lds=49152\n' % KB
    out += '.amdgcn_target "amdgcn-amd-amdhsa--gfx950"\n.text\n'
    out += a.text() + ('' if FUSE else b.text())
    out += 'L_text_end:\n'
    out += '.section .rodata,"a"\n'
    if PART:
        out += kd(KA, 512, 256) + kd(KB, 32, 32)
    else:
        out += kd(KA, 512, 256) + ('' if FUSE else kd(KB, max(144, 44 + 20 * BD), max(144, 44 + 20 * BD)))
    path = sys.argv[1] if len(sys.argv) > 1 else 'cdna_kernels/%s.s' % NAME
    open(path, 'w').write(out)
    print('nops inserted: A %d  B %d; lines %d' % (a.nops_inserted, b.nops_inserted, out.count('\n')))


if __name__ == '__main__':
    main()
```

```python
import struct, sys, math
from emit import Emitter, merge, sched

NAME = 'standalone__gqa_block_cached__near_ridge'
KA = 'gqa_attn_kernel'
KB = 'gqa_oproj_kernel'

def f32bits(x):
    return struct.unpack('<I', struct.pack('<f', x))[0]

XB = 0
QB = 24576
PB = [0, 24576]
RING = 49152
RING_W = 12288
NSLOT = 3
VS = [98304, 131072, 98304, 131072]
STATS = 81920
LSTAT = 86016
WOST = 65536
LDS_A = 163840

WOT_OFF = 0x800000
WS_SIZE = 0x3000000


DIAG = False
DIAG_ALL = True
PRO0, PRO1, STEPN, SLOWCOST = 12, 8, 8, 6
KFIRST = 0
BD = 5
P3PF = 2
P3X = 0
P3ROT = 7
FUSE = 0
PART = 1
PFA = 12
CPF = 1
P3ST = 0
PF6 = 24
PRT_OFF = 0x2000000
P3D = 8
TOUCH = 0
EPO = 0
BURST = 2
XDEF = 1
WQPF = 2
KORD = 1
KVPOL = ''
STPOL = ''
PVS = 16
KTF = 0
NOLOAD = 0
ROT = 0
CI, KI = 3, 0
NV_LATE = 40
NV_S = [[4, 4], [4, 4], [4, 4], [4, 4], [4, 4], [0, 0]]
def kernel_a():
    e = Emitter()
    E = e
    stampc = [0]
    def stamp(key=False):
        if not DIAG or not (DIAG_ALL or key):
            return
        i = stampc[0]; stampc[0] += 1
        E('s_memtime s[60:61]')
        E('s_waitcnt lgkmcnt(0)')
        E('s_lshl_b32 s58, s2, 2')
        E('s_add_u32 s58, s58, s3')
        E('s_lshl_b32 s58, s58, 8')
        E('s_add_u32 s58, s58, 0x%x' % (0xC00000 + i * 8))
        E('v_mov_b32 v63, 0')
        E('v_mov_b32 v0, s60')
        E('buffer_store_dword v0, v63, s[28:31], s58 offen', tag='stamp')
        E('v_mov_b32 v0, s61')
        E('buffer_store_dword v0, v63, s[28:31], s58 offen offset:4', tag='stamp')
    e.raw('.p2align 8')
    e.raw('.globl %s' % KA)
    e.raw('.type %s,@function' % KA)
    e.label(KA)
    E('s_cmp_ge_u32 s2, 256')
    E('s_cbranch_scc1 L_a_done')
    E('s_load_dwordx16 s[40:55], s[0:1], 0')
    E('v_and_b32 v1, 63, v0')
    E('v_lshrrev_b32 v2, 6, v0')
    E('s_nop 0')
    E('v_readfirstlane_b32 s3, v2')
    if CPF:
        E('s_getpc_b64 s[68:69]')
        e.label('L_pc')
        E('s_and_b32 s69, s69, 0xffff')
        E('s_mov_b32 s70, L_text_end-L_pc')
        E('s_mov_b32 s71, 0x20000')
        if CPF == 1:
            E('v_lshlrev_b32 v255, 7, v0')
        else:
            nl = {3: 3, 4: 1, 5: 4}[CPF]
            E('s_lshr_b32 s4, s2, 3')
            E('s_and_b32 s4, s4, %d' % ((64 >> nl) - 1))
            E('s_lshl_b32 s4, s4, 2')
            E('s_add_u32 s4, s4, s3')
            E('s_lshl_b32 s4, s4, %d' % (nl + 7))
            E('v_and_b32 v255, %d, v1' % ((1 << nl) - 1))
            E('v_lshlrev_b32 v255, 7, v255')
            E('v_add_u32 v255, s4, v255')
        E('buffer_load_dword v255, v255, s[68:71], 0 offen', tag='cpf')
    if FUSE:
        E('s_lshr_b32 s4, s2, 3')
        E('s_and_b32 s38, s2, 3')
        E('s_lshl_b32 s38, s38, 1')
        E('s_and_b32 s5, s4, 1')
        E('s_add_u32 s38, s38, s5')
        E('s_bfe_u32 s37, s2, 0x10002')
        E('s_lshl_b32 s37, s37, 3')
        E('s_lshr_b32 s5, s4, 2')
        E('s_add_u32 s37, s37, s5')
        E('s_bfe_u32 s4, s4, 0x10001')
    else:
        E('s_and_b32 s38, s2, 7')
        E('s_lshr_b32 s4, s2, 3')
        E('s_lshr_b32 s37, s4, 1')
        E('s_and_b32 s4, s4, 1')
    E('s_lshl_b32 s39, s38, 2')
    E('s_lshl_b32 s4, s4, 1')
    E('s_add_u32 s39, s39, s4')
    E('s_lshl_b32 s4, s37, 3')
    E('s_add_u32 s4, s4, s38')
    E('s_lshl_b32 s32, s4, 17')
    E('s_lshl_b32 s5, s3, 15')
    E('s_add_u32 s32, s32, s5')
    E('s_lshr_b32 s5, s2, 3')
    E('s_and_b32 s5, s5, 1')
    E('s_mul_i32 s5, s5, %d' % ROT)
    for kt in range(4):
        E('s_add_u32 s6, s5, %d' % kt)
        E('s_and_b32 s6, s6, 3')
        E('s_lshl_b32 s6, s6, 13')
        E('s_add_u32 s%d, s32, s6' % (64 + kt))
    E('s_mul_i32 s33, s37, 49152')
    E('s_mul_i32 s5, s3, 12288')
    E('s_add_u32 s33, s33, s5')
    E('s_lshl_b32 s34, s39, 8')
    E('s_lshl_b32 s5, s3, 7')
    E('s_add_u32 s34, s34, s5')
    E('s_mul_i32 s35, s3, %d' % RING_W)
    E('s_add_u32 s35, s35, %d' % RING)
    E('s_mov_b32 s36, 0x%08x' % f32bits(math.log2(math.e) / math.sqrt(128.0)))
    E('v_and_b32 v46, 15, v1')
    E('v_lshrrev_b32 v47, 4, v1')
    E('v_xor_b32 v2, v46, v47')
    E('v_lshlrev_b32 v2, 4, v2')
    E('v_lshl_add_u32 v2, v46, 10, v2')
    E('v_lshlrev_b32 v11, 4, v1')
    E('v_lshrrev_b32 v48, 3, v1')
    E('v_and_b32 v49, 7, v1')
    E('v_lshrrev_b32 v50, 1, v49')
    E('v_and_b32 v51, 1, v47')
    E('v_xor_b32 v50, v50, v51')
    E('v_and_b32 v52, 1, v49')
    E('v_lshlrev_b32 v52, 4, v52')
    E('v_lshl_add_u32 v53, v48, 13, v52')
    E('v_lshl_add_u32 v3, v50, 5, v53')
    E('v_xor_b32 v50, 2, v50')
    E('v_lshl_add_u32 v4, v50, 5, v53')
    E('v_add_u32 v4, 0x10000, v4')
    E('v_add_u32 v5, 0x20000, v3')
    E('v_add_u32 v6, 0x20000, v4')
    E('v_lshrrev_b32 v48, 2, v1')
    E('v_and_b32 v48, 3, v48')
    E('v_and_b32 v49, 3, v1')
    E('v_lshrrev_b32 v50, 1, v48')
    E('v_lshlrev_b32 v51, 1, v51')
    E('v_or_b32 v50, v50, v51')
    E('v_lshl_add_u32 v52, v47, 3, v48')
    E('v_lshlrev_b32 v52, 7, v52')
    E('v_lshl_add_u32 v52, v49, 3, v52')
    E('v_add_u32 v52, s35, v52')
    for t in range(4):
        E('v_xor_b32 v53, %d, v50' % t)
        E('v_lshl_add_u32 v%d, v53, 5, v52' % (7 + t))
    E('v_and_b32 v53, 31, v1')
    E('v_lshrrev_b32 v54, 5, v1')
    E('v_lshlrev_b32 v12, 4, v46')
    E('v_lshl_add_u32 v12, v47, 8, v12')
    E('v_lshlrev_b32 v55, 2, v47')
    E('v_xor_b32 v55, v55, v46')
    E('v_lshlrev_b32 v55, 4, v55')
    E('v_lshl_add_u32 v13, v47, 8, v55')
    E('v_lshl_add_u32 v55, v54, 2, v48')
    E('v_lshlrev_b32 v55, 8, v55')
    E('v_xor_b32 v56, s3, v48')
    E('v_lshl_add_u32 v55, v56, 6, v55')
    E('v_and_b32 v56, 1, v47')
    E('v_lshl_add_u32 v55, v56, 5, v55')
    E('v_lshl_add_u32 v14, v49, 3, v55')
    E('v_add_u32 v14, %d, v14' % VS[0])
    E('s_lshl_b32 s4, s3, 11')
    E('v_add_u32 v15, s4, v11')
    E('v_lshlrev_b32 v55, 4, v46')
    E('v_lshl_add_u32 v55, v54, 9, v55')
    E('v_lshl_add_u32 v55, v56, 3, v55')
    E('s_lshr_b32 s4, s3, 1')
    E('s_mul_i32 s4, s4, 3')
    E('s_and_b32 s5, s3, 1')
    E('s_lshl_b32 s5, s5, 12')
    E('s_add_u32 s5, s5, %d' % QB)
    for st in range(3):
        E('s_add_u32 s6, s4, %d' % st)
        E('s_lshr_b32 s7, s6, 1')
        E('s_lshl_b32 s7, s7, 13')
        E('s_and_b32 s6, s6, 1')
        E('s_lshl_b32 s6, s6, 8')
        E('s_add_u32 s6, s6, s7')
        E('s_add_u32 s6, s6, s5')
        E('v_add_u32 v%d, s6, v55' % (16 + st))
    E('v_lshlrev_b32 v20, 5, v53')
    E('v_lshl_add_u32 v19, v54, 2, v20')
    E('s_lshl_b32 s4, s3, 3')
    E('v_add_u32 v19, s4, v19')
    E('v_lshlrev_b32 v55, 4, v46')
    E('v_lshl_add_u32 v55, v54, 8, v55')
    if PART:
        E('s_mul_i32 s4, s3, 3072')
        E('s_add_u32 s5, s4, 86016')
        E('s_cmp_eq_u32 s3, 0')
        E('s_cselect_b32 s5, 77824, s5')
        E('s_add_u32 s4, s4, 65536')
        E('s_sub_u32 s5, s5, s4')
        E('v_add_u32 v55, s4, v55')
    else:
        E('s_mov_b32 s5, 12288')
    for qt in range(3):
        E('v_add_u32 v57, %d, v56' % (2 * qt))
        E('v_cmp_le_u32 vcc, 3, v57')
        E('v_subrev_u32 v58, 3, v57')
        E('v_lshlrev_b32 v58, 10, v58')
        E('v_add_u32 v58, s5, v58')
        E('v_lshlrev_b32 v57, 10, v57')
        E('v_cndmask_b32 v57, v57, v58, vcc')
        E('v_add_u32 v%d, v57, v55' % (27 + qt))
    E('s_waitcnt lgkmcnt(0)')
    def srd(d, lo, size):
        E('s_mov_b32 s%d, s%d' % (d, lo))
        E('s_and_b32 s%d, s%d, 0xffff' % (d + 1, lo + 1))
        E('s_mov_b32 s%d, 0x%x' % (d + 2, size))
        E('s_mov_b32 s%d, 0x20000' % (d + 3))
    srd(8, 40, 786432)
    srd(12, 42, 16777216)
    srd(16, 44, 16777216)
    srd(20, 46, 4194304)
    srd(24, 48, 4194304)
    srd(28, 54, WS_SIZE)

    stamp(True)
    def wqpf():
        E('s_lshr_b32 s4, s2, 3')
        E('s_lshl_b32 s4, s4, 2')
        E('s_add_u32 s4, s4, s3')
        E('s_lshl_b32 s4, s4, 15')
        if FUSE:
            E('s_and_b32 s5, s2, 3')
            E('s_lshl_b32 s5, s5, 11')
        else:
            E('s_lshl_b32 s5, s38, 10')
        E('s_add_u32 s4, s4, s5')
        E('v_lshrrev_b32 v62, 4, v1')
        E('v_lshlrev_b32 v62, 13, v62')
        E('v_and_b32 v63, 15, v1')
        E('v_lshl_add_u32 v62, v63, %d, v62' % (7 if FUSE else 6))
        E('buffer_load_dword v62, v62, s[20:23], s4 offen', tag='pf')
    if WQPF == 1:
        wqpf()
    if TOUCH:
        E('v_mov_b32 v63, 0')
        E('s_mul_i32 s4, s37, 393216')
        E('s_lshl_b32 s5, s39, 2')
        E('s_add_u32 s5, s5, s3')
        E('s_mul_i32 s5, s5, 3072')
        E('s_add_u32 s4, s4, s5')
        E('buffer_load_dword v248, v63, s[28:31], s4 offen', tag='pf')
        E('s_and_b32 s4, s2, 3')
        E('s_lshl_b32 s4, s4, 20')
        E('s_add_u32 s4, s4, 0x%x' % WOT_OFF)
        E('buffer_load_dword v249, v63, s[28:31], s4 offen', tag='pf')
        if TOUCH > 1:
            E('buffer_load_dword v250, v63, s[12:15], s64 offen', tag='pf')
            E('buffer_load_dword v251, v63, s[16:19], s64 offen', tag='pf')
            E('s_lshl_b32 s4, s2, 14')
            E('buffer_load_dword v252, v63, s[24:27], s4 offen', tag='pf')
    for n in range(KFIRST):
        E('s_add_u32 s7, s%d, %d' % (64 + n // 8, (n % 8) * 1024))
        E('buffer_load_dwordx4 a[%d:%d], v12, s[12:15], s7 offen' % (n * 4, n * 4 + 3), tag='K%d' % (n // 8))
    E('s_mul_i32 s4, s3, 12288')
    for i in range(12):
        E('s_mul_i32 s5, s3, 12')
        E('s_add_u32 s5, s5, %d' % i)
        E('s_and_b32 s5, s5, 15')
        E('s_lshl_b32 s5, s5, 4')
        E('v_xor_b32 v%d, s5, v11' % (60 + (i & 1)))
        E('s_add_u32 s5, s4, %d' % (XB + i * 1024))
        E('s_mov_b32 m0, s5')
        E('s_add_u32 s6, s33, %d' % (i * 1024))
        E('buffer_load_dwordx4 v%d, s[8:11], s6 offen lds' % (60 + (i & 1)), tag='x')

    def wq_dma(c):
        out = []
        for m in range(4):
            def f(m=m):
                E('s_add_u32 s5, s35, %d' % ((c % NSLOT) * 4096 + m * 1024))
                E('s_mov_b32 m0, s5')
                E('s_add_u32 s6, s34, %d' % (c * 262144))
                E('buffer_load_dwordx4 v%d, s[20:23], s6 offen lds' % (3 + m), tag='wq%d' % c)
            out.append(f)
        return out

    def wq_reg(c):
        if c < 8:
            return 'v', 168 + (c - 3) * 16
        return 'a', 128 + (c - 8) * 16

    def wq_load(c):
        out = []
        fl, r = wq_reg(c)
        for m in range(4):
            def f(m=m):
                E('s_add_u32 s6, s34, %d' % (c * 262144))
                E('buffer_load_dwordx4 %s[%d:%d], v%d, s[20:23], s6 offen' % (fl, r + 4 * m, r + 4 * m + 3, 3 + m), tag='wq%d' % c)
            out.append(f)
        return out

    def wq_write(c):
        out = []
        fl, r = wq_reg(c)
        out.append(lambda: e.wait(vm='wq%d' % c))
        for m in range(4):
            out.append(lambda m=m: E('ds_write_b128 v59, %s[%d:%d] offset:%d' % (fl, r + 4 * m, r + 4 * m + 3, (c % NSLOT) * 4096 + m * 1024)))
        return out

    ACC = 64
    AF = [112, 128]
    BF = [144, 156]

    def p1_reads(c):
        out = []
        bu = c & 1
        sl = c % NSLOT
        out.append(lambda: E('v_xor_b32 v%d, %d, v2' % (60 + bu, c * 64)))
        for st in range(3):
            out.append(lambda st=st: E('ds_read_b128 v[%d:%d], v%d offset:%d' % (BF[bu] + 4 * st, BF[bu] + 4 * st + 3, 60 + bu, XB + st * 16384), tag='p1r%d' % c))
        for t in range(4):
            for hh in range(2):
                out.append(lambda t=t, hh=hh: E('ds_read_b64_tr_b16 v[%d:%d], v%d offset:%d' % (
                    AF[bu] + 4 * t + 2 * hh, AF[bu] + 4 * t + 2 * hh + 1, 7 + t, sl * 4096 + hh * 512), tag='p1r%d' % c))
        return out

    def kload(n):
        def f():
            E('s_add_u32 s7, s%d, %d' % (64 + n // 8, (n % 8) * 1024))
            E('buffer_load_dwordx4 a[%d:%d], v12, s[12:15], s7 offen%s' % (n * 4, n * 4 + 3, KVPOL), tag='K%d' % (n // 8))
        return f

    def v_chunk(t):
        out = []
        for mm in range(8):
            def f(mm=mm):
                E('s_lshl_b32 s5, s3, 13')
                E('s_add_u32 s5, s5, %d' % (VS[t] + mm * 1024))
                E('s_mov_b32 m0, s5')
                E('s_add_u32 s6, s%d, %d' % (64 + t, mm * 1024))
                E('buffer_load_dwordx4 v13, s[16:19], s6 offen%s lds' % KVPOL, tag='V%d' % t)
            out.append(f)
        return out

    def v_regs(t):
        out = []
        for mm in range(8):
            def f(mm=mm):
                r = 192 + (t - 2) * 32 + mm * 4
                E('s_add_u32 s6, s%d, %d' % (64 + t, mm * 1024))
                E('buffer_load_dwordx4 v[%d:%d], v12, s[16:19], s6 offen%s' % (r, r + 3, KVPOL), tag='V%d' % t)
            out.append(f)
        return out
    E('v_add_u32 v59, s35, v11')
    def wo_early():
        out = []
        def pre():
            E('s_lshr_b32 s4, s2, 2')
            E('s_lshl_b32 s4, s4, 16')
            E('s_and_b32 s5, s2, 3')
            E('s_lshl_b32 s5, s5, 8')
            E('s_add_u32 s4, s4, s5')
            E('s_lshl_b32 s5, s3, 14')
            E('s_add_u32 s56, s4, s5')
            E('v_lshrrev_b32 v248, 4, v1')
            E('v_and_b32 v249, 15, v1')
            E('v_lshlrev_b32 v248, 10, v248')
            E('v_lshl_add_u32 v248, v249, 4, v248')
            E('buffer_load_dwordx4 a[96:99], v248, s[24:27], s56 offen', tag='WO')
        out.append(pre)
        for m in range(1, 4):
            def f(m=m):
                E('s_add_u32 s6, s56, %d' % (m * 4096))
                E('buffer_load_dwordx4 a[%d:%d], v248, s[24:27], s6 offen' % (96 + 4 * m, 99 + 4 * m), tag='WO')
            out.append(f)
        return out
    seq = []
    if KORD:
        slow = [kload(n) for n in range(KFIRST, 32)] + v_chunk(0) + v_chunk(1) + v_regs(2) + v_regs(3)
    else:
        slow = [kload(n) for n in range(KFIRST, 16)] + v_chunk(0) + v_chunk(1) + [kload(n) for n in range(16, 32)] + v_regs(2) + v_regs(3)
    for c in range(3):
        seq += wq_dma(c)
    for c in range(3, 16):
        seq += wq_load(c)
        if c >= CI:
            seq += slow[:KI]
            slow = slow[KI:]
    if FUSE > 1:
        seq += wo_early()
    nfast = len(seq)
    seq += slow
    LEFT = {'K0': 56, 'K1': 48, 'V0': 40, 'V1': 32, 'K2': 24, 'K3': 16, 'V2': 8, 'V3': 0}
    if KORD:
        LEFT = {'K0': 56, 'K1': 48, 'K2': 40, 'K3': 32, 'V0': 24, 'V1': 16, 'V2': 8, 'V3': 0}
    def vwait(tag):
        nf = 0
        while len(seq) > LEFT[tag]:
            issue(SLOWCOST); nf += 1
        if nf:
            print('forced issue of %d loads for %s' % (nf, tag))
        e.wait(vm=tag)
    issued = [0]
    def issue(maxn=1000):
        n = 0
        while seq and len(e.vmq) < 62 and n < maxn:
            seq.pop(0)()
            n += 1 if issued[0] < nfast else SLOWCOST
            issued[0] += 1
    stamp()
    issue(PRO0)
    if WQPF == 2:
        wqpf()
    stamp()
    e.wait(vm='wq0')
    stamp()
    E('s_barrier')
    stamp()
    issue(PRO1)
    for f in p1_reads(0):
        f()
    for c in range(16):
        bu = c & 1
        e.wait(lds='p1r%d' % c)
        if c in (2, 4, 6, 8, 12):
            stamp()
        rd = []
        if c + 1 < 16:
            if c + 1 < 3:
                rd.append(lambda c=c: e.wait(vm='wq%d' % (c + 1)))
            rd += p1_reads(c + 1)
        rd2 = []
        if 3 <= c + 2 < 16:
            rd2 = wq_write(c + 2)
        rd2.append(lambda: issue(STEPN))
        if FUSE > 1 and c == 14:
            def stg0():
                e.wait(vm='WO')
                E('s_lshl_b32 s4, s3, 12')
                E('s_add_u32 s4, s4, %d' % VS[1])
                E('v_add_u32 v250, s4, v13')
                for m in range(4):
                    E('ds_write_b128 v250, a[%d:%d] offset:%d' % (96 + 4 * m, 99 + 4 * m, m * 1024))
            rd2.append(stg0)
        mf = []
        for nt in range(4):
            for st in range(3):
                a = ACC + (nt * 3 + st) * 4
                src = 'v[%d:%d]' % (a, a + 3) if c > 0 else '0'
                mf.append(lambda a=a, nt=nt, st=st, src=src: E('v_mfma_f32_16x16x32_bf16 v[%d:%d], v[%d:%d], v[%d:%d], %s' % (
                    a, a + 3, AF[bu] + 4 * nt, AF[bu] + 4 * nt + 3, BF[bu] + 4 * st, BF[bu] + 4 * st + 3, src)))
        for f in merge(mf[:6], rd) + merge(mf[6:], rd2):
            f()
    for nt in range(4):
        for st in range(3):
            a = ACC + (nt * 3 + st) * 4
            E('v_cvt_pk_bf16_f32 v%d, v%d, v%d' % (a, a, a + 1))
            E('v_cvt_pk_bf16_f32 v%d, v%d, v%d' % (a + 1, a + 2, a + 3))
    if FUSE > 1:
        e.wait(lds='all')
    stamp(True)
    E('s_barrier')
    for nt in range(4):
        for st in range(3):
            a = ACC + (nt * 3 + st) * 4
            E('ds_write_b64 v%d, v[%d:%d] offset:%d' % (16 + st, a, a + 1, nt * 1024))

    if FUSE > 1:
        E('v_lshrrev_b32 v46, 4, v1')
        E('v_lshrrev_b32 v47, 2, v1')
        E('v_and_b32 v47, 3, v47')
        E('v_and_b32 v48, 3, v1')
        E('v_lshl_add_u32 v49, v46, 3, v47')
        E('v_lshlrev_b32 v49, 8, v49')
        E('v_xor_b32 v50, s3, v47')
        E('v_lshl_add_u32 v49, v50, 6, v49')
        E('v_lshl_add_u32 v49, v48, 3, v49')
        E('v_add_u32 v49, 0x%x, v49' % VS[1])
        for kk in range(2):
            for nn in range(2):
                for hh in range(2):
                    r = 30 + (kk * 2 + nn) * 4 + 2 * hh
                    E('ds_read_b64_tr_b16 v[%d:%d], v49 offset:%d' % (r, r + 1, (32 * kk + 4 * hh) * 256 + nn * 32), tag='wt')
        E('s_and_b32 s4, s2, 3')
        E('s_lshl_b32 s4, s4, 3')
        E('s_lshl_b32 s5, s3, 1')
        E('s_add_u32 s4, s4, s5')
        E('s_lshl_b32 s4, s4, 17')
        E('s_lshr_b32 s5, s2, 2')
        E('s_lshl_b32 s5, s5, 11')
        E('s_add_u32 s4, s4, s5')
        E('s_add_u32 s62, s4, 0x%x' % WOT_OFF)
        E('s_add_u32 s63, s62, 0x20000')
        E('s_mov_b32 s20, s52')
        E('s_and_b32 s21, s53, 0xffff')
        E('s_mov_b32 s22, 256')
        E('s_mov_b32 s23, 0x20000')
    while len(seq) > NV_LATE:
        issue(SLOWCOST)
    if NOLOAD:
        del seq[:]
    e.wait(lds='all')
    if FUSE > 1:
        for kk in range(2):
            for nn in range(2):
                r = 30 + (kk * 2 + nn) * 4
                E('buffer_store_dwordx4 v[%d:%d], v11, s[28:31], s%d offen offset:%d sc1' % (r, r + 3, 62 + nn, kk * 1024), tag='wst')
    E('s_barrier')
    QF = 128
    for qt in range(3):
        for ks in range(8):
            r = QF + (qt * 8 + ks) * 4
            E('ds_read_b128 a[%d:%d], v11 offset:%d' % (r, r + 3, QB + (qt * 8 + ks) * 1024), tag='Q')
    E('s_lshl_b32 s4, s3, 13')
    E('s_add_u32 s4, s4, 0xC000')
    E('v_and_b32 v46, 15, v1')
    E('v_lshrrev_b32 v47, 4, v1')
    E('v_xor_b32 v48, v46, v47')
    for jj in range(4):
        E('v_xor_b32 v49, %d, v48' % (4 * jj))
        E('v_lshlrev_b32 v49, 4, v49')
        E('v_lshl_add_u32 v49, v47, 8, v49')
        E('v_add_u32 v%d, s4, v49' % (6 + jj))
    E('v_and_b32 v46, 31, v1')
    E('v_lshrrev_b32 v47, 5, v1')
    E('v_and_b32 v48, 15, v1')
    E('v_xor_b32 v48, v48, v47')
    E('v_lshlrev_b32 v48, 4, v48')
    E('v_lshl_add_u32 v48, v46, 8, v48')
    E('v_add_u32 v54, s4, v48')
    E('v_add_u32 v60, 0x%x, v19' % STATS)
    E('v_add_u32 v61, 0x%x, v20' % STATS)
    def ktr(kt):
        w_ = lambda: vwait('K%d' % kt)
        w_.cost = 0
        out = [w_]
        for m in range(8):
            r = (kt * 8 + m) * 4
            out.append(lambda m=m, r=r: E('ds_write_b128 v%d, a[%d:%d] offset:%d' % (6 + (m & 3), r, r + 3, m * 1024)))
        for ks in range(8):
            r = (kt * 8 + ks) * 4
            def f(ks=ks, r=r):
                E('v_xor_b32 v%d, %d, v54' % (55 + (ks & 1), ks * 32))
                E('ds_read_b128 a[%d:%d], v%d' % (r, r + 3, 55 + (ks & 1)), tag='kt%d' % kt)
            out.append(f)
        return out
    SB = [64, 128]
    MX = 62
    def sreg(u, kt):
        return SB[u & 1] + (kt & 1) * 16
    def max_ops(u, kt):
        out = []
        for i in range(8):
            s_ = sreg(u, kt) + 2 * i
            if (kt & 1) == 0 and i == 0:
                out.append(lambda s_=s_: E('v_max_f32 v%d, v%d, v%d' % (MX, s_, s_ + 1)))
            else:
                out.append(lambda s_=s_: E('v_max3_f32 v%d, v%d, v%d, v%d' % (MX, s_, s_ + 1, MX)))
        return out
    def s_mf(u, kt):
        q = u % 3
        mf = []
        for ks in range(8):
            s_ = sreg(u, kt)
            src = 'v[%d:%d]' % (s_, s_ + 15) if ks > 0 else '0'
            kr = (kt * 8 + ks) * 4
            qr = QF + (q * 8 + ks) * 4
            mf.append(lambda s_=s_, kr=kr, qr=qr, src=src: E('v_mfma_f32_32x32x16_bf16 v[%d:%d], a[%d:%d], a[%d:%d], %s' % (
                s_, s_ + 15, kr, kr + 3, qr, qr + 3, src)))
        return mf
    PK = [30, 34, 38, 42]
    pkc = [0]
    OA = [0, 64]
    PSL = {(0, 0): 0, (0, 1): 8192, (1, 0): 16384, (1, 1): 24576, (2, 0): 32768, (2, 1): 40960,
           (0, 2): 49152, (0, 3): 57344, (1, 2): 0, (1, 3): 16384, (2, 2): 32768, (2, 3): 8192}
    def exp_ops(u, kt):
        q = u % 3
        out = []
        s0 = sreg(u, kt)
        for hf in range(2):
            pk = PK[pkc[0] % 4]; pkc[0] += 1
            regs = [s0 + 8 * hf + i for i in range(8)]
            for r in regs:
                out.append(lambda r=r: E('v_fma_f32 v%d, v%d, s36, -v%d' % (r, r, 21 + q)))
            for r in regs:
                out.append(lambda r=r: E('v_exp_f32 v%d, v%d' % (r, r)))
            for k, r in enumerate(regs):
                if kt == 0 and hf == 0 and k == 0:
                    out.append(lambda r=r: E('v_add_f32 v%d, v%d, v%d' % (24 + q, r, r + 1)))
                elif kt == 0 and hf == 0 and k == 1:
                    pass
                else:
                    out.append(lambda r=r: E('v_add_f32 v%d, v%d, v%d' % (24 + q, r, 24 + q)))
                if k & 1:
                    out.append(lambda r=r, pk=pk, k=k: E('v_cvt_pk_bf16_f32 v%d, v%d, v%d' % (pk + k // 2, r - 1, r)))
            off = PSL[(q, kt)] + hf * 1024
            out.append(lambda pk=pk, off=off: E('ds_write_b128 v15, v[%d:%d] offset:%d' % (pk, pk + 3, off)))
        return out
    def exchange(u):
        h, q = u // 3, u % 3
        E('ds_write_b32 v60, v%d offset:%d' % (MX, q * 1024))
        e.wait(lds='all')
        stamp()
        E('s_barrier')
        E('ds_read_b128 v[46:49], v61 offset:%d' % (q * 1024), tag='st')
        E('ds_read_b128 v[50:53], v61 offset:%d' % (q * 1024 + 16), tag='st')
        out = [lambda: e.wait(lds='st')]
        ops = ['v_max3_f32 v46, v46, v47, v48', 'v_max3_f32 v50, v50, v51, v52', 'v_max3_f32 v46, v46, v49, v53', 'v_max_f32 v46, v46, v50']
        if h == 0:
            ops += ['v_mul_f32 v%d, s36, v46' % (21 + q)]
        else:
            ops += ['v_mul_f32 v46, s36, v46', 'v_max_f32 v46, v46, v%d' % (21 + q), 'v_sub_f32 v47, v%d, v46' % (21 + q),
                    'v_exp_f32 v%d, v47' % (57 + q), 'v_mov_b32 v%d, v46' % (21 + q), 'v_mul_f32 v%d, v%d, v%d' % (24 + q, 24 + q, 57 + q)]
        out += [(lambda o=o: E(o)) for o in ops]
        if not XDEF:
            for f in out:
                f()
            out = []
        return out

    PB4 = [96, 112, 160, 176]
    pvc = [0]
    def C(cost, fn):
        fn.cost = cost
        return fn
    def pv_anchors(lst):
        steps = []
        for (t, qs, first) in lst:
            for n in range(8):
                steps.append((t, qs, first, n))
        base = pvc[0]
        pvc[0] += len(steps)
        def reads(i):
            t, qs, first, n = steps[i]
            u, hf = n // 2, n % 2
            b = PB4[(base + i) & 3]
            vb = 14 if (t & 1) == 0 else 10
            tag = 'pv%d' % (base + i)
            out = []
            for ee in range(2):
                out.append(lambda ee=ee: E('ds_read_b64_tr_b16 v[%d:%d], v%d offset:%d' % (
                    b + 2 * ee, b + 2 * ee + 1, vb, (32 * u + 16 * hf + 8 * ee) * 256), tag=tag))
            for qt in qs:
                off = PSL[(qt, t)] + u * 2048 + hf * 1024
                out.append(lambda qt=qt, off=off: E('ds_read_b128 v[%d:%d], v11 offset:%d' % (
                    b + 4 + 4 * qt, b + 7 + 4 * qt, off), tag=tag))
            return out
        pro = reads(0) + reads(1)
        anc = []
        for i, (t, qs, first, n) in enumerate(steps):
            b = PB4[(base + i) & 3]
            rd = reads(i + 2) if i + 2 < len(steps) else []
            k = len(qs)
            for x, qt in enumerate(qs):
                o = OA[t >> 1] + 16 * qt
                src = '0' if (first and n == 0) else 'a[%d:%d]' % (o, o + 15)
                fn = (lambda o=o, b=b, qt=qt, src=src: E('v_mfma_f32_32x32x16_bf16 a[%d:%d], v[%d:%d], v[%d:%d], %s' % (
                    o, o + 15, b, b + 3, b + 4 + 4 * qt, b + 7 + 4 * qt, src)))
                pre = [lambda i=i: e.wait(lds='pv%d' % (base + i))] if x == 0 else []
                post = rd[len(rd) * x // k: len(rd) * (x + 1) // k]
                anc.append((pre, fn, post))
        return pro, anc

    WOR = 240
    def wo_loads():
        out = []
        def pre():
            E('s_lshr_b32 s4, s2, 2')
            E('s_lshl_b32 s4, s4, 16')
            E('s_and_b32 s5, s2, 3')
            E('s_lshl_b32 s5, s5, 8')
            E('s_add_u32 s4, s4, s5')
            E('s_lshl_b32 s5, s3, 14')
            E('s_add_u32 s56, s4, s5')
            E('v_lshrrev_b32 v3, 4, v1')
            E('v_and_b32 v4, 15, v1')
            E('v_lshlrev_b32 v3, 10, v3')
            E('v_lshl_add_u32 v3, v4, 4, v3')
        out.append(pre)
        for m in range(4):
            def f(m=m):
                E('s_add_u32 s6, s56, %d' % (m * 4096))
                E('buffer_load_dwordx4 a[%d:%d], v3, s[24:27], s6 offen' % (WOR + 4 * m, WOR + 4 * m + 3), tag='WO')
            out.append(f)
        return out
    def wp_reg(j, i):
        if 1 <= j <= 4:
            return 'a', 128 + ((j + 2) % 4) * 32 + 4 * i
        if j in (0, 7):
            return 'v', 192 + 4 * i
        if j == 5:
            return 'v', 224 + 4 * i
        return 'a', (48 + 4 * i) if i < 4 else (112 + 4 * (i - 4))
    def wp_pre():
        E('s_lshl_b32 s4, s39, 17')
        E('s_lshl_b32 s5, s3, 8')
        E('s_add_u32 s56, s4, s5')
        E('v_lshrrev_b32 v3, 4, v1')
        E('v_and_b32 v4, 15, v1')
        E('v_lshlrev_b32 v4, 4, v4')
        E('v_lshl_add_u32 v3, v3, 13, v4')
    def wp_load(j, i):
        def f():
            fl, r = wp_reg(j, i)
            if i % 4 == 0:
                E('s_add_u32 s62, s56, %d' % ((32 * j + i) * 1024))
            E('buffer_load_dwordx4 %s[%d:%d], v3, s[24:27], s62 offen offset:%d' % (fl, r, r + 3, (i % 4) * 1024), tag='wp%d' % j)
        return C(20, f)
    def v_store(t):
        out = [C(0, lambda: vwait('V%d' % t))]
        def pre():
            E('s_lshl_b32 s4, s3, 13')
            E('s_add_u32 s4, s4, %d' % VS[t])
            E('v_add_u32 v55, s4, v13')
        out.append(pre)
        for mm in range(8):
            r = 192 + (t - 2) * 32 + mm * 4
            out.append(lambda r=r, mm=mm: E('ds_write_b128 v55, v[%d:%d] offset:%d' % (r, r + 3, mm * 1024)))
        return out
    def iss(n):
        return [C(20, lambda: issue(SLOWCOST))] * n

    E('v_add_u32 v10, 0x%x, v14' % (VS[1] - VS[0]))
    for f in ktr(0):
        f()
    e.wait(lds='kt0')
    stamp()
    xpost = []
    for u in range(6):
        h, q = u // 3, u % 3
        t0, t1 = 2 * h, 2 * h + 1
        sa = [([], f, []) for f in s_mf(u, t0)] + [([], f, []) for f in s_mf(u, t1)]
        if q == 0:
            sa[8] = ([lambda t1=t1: e.wait(lds='kt%d' % t1)], sa[8][1], [])
        pro = []
        if u in (4, 5):
            pro, pa = pv_anchors([(u - 4, (0, 1, 2), u == 4)])
            anc = sa[:2] + merge(sa[2:], pa[:PVS]) + pa[PVS:]
        else:
            anc = sa
        i7 = [k for k, a in enumerate(anc) if a[1] is sa[7][1]][0]
        i15 = [k for k, a in enumerate(anc) if a[1] is sa[15][1]][0]
        s0, s1 = [], []
        if u > 0:
            pu = u - 1
            s0 = exp_ops(pu, 2 * (pu // 3))
            s1 = exp_ops(pu, 2 * (pu // 3) + 1)
        if q == 0:
            s0 = ktr(t1) + s0 if KTF else merge(s0, ktr(t1))
        if u == 2:
            s1 = merge(s1, ktr(2))
        if u == 5:
            s1 = merge(s1, v_store(2))
        if u == 4 and not FUSE and not PART:
            s1 = merge(s1, wo_loads())
        if u == 4 and PART:
            early = [wp_load(1, m) for m in range(8)] + [wp_load(6, m) for m in range(4)]
            late6 = [wp_load(j, m) for j in (2, 3, 4) for m in range(8)] + [wp_load(6, m) for m in range(4, 8)]
            late6 = early[PFA:] + late6
            s1 = merge(s1, [wp_pre] + early[:PFA])
        s0 = xpost + merge(s0, iss(NV_S[u][0]))
        s1 = merge(s1, iss(NV_S[u][1]))
        cons = [(i7 + 1, f) for f in max_ops(u, t0)] + [(i15 + 1, f) for f in max_ops(u, t1)]
        if FUSE > 1 and u == 4:
            E('s_and_b32 s4, s2, 3')
            E('s_lshl_b32 s4, s4, 2')
            E('s_add_u32 s4, s4, 64')
            E('v_mov_b32 v4, 1')
            E('v_mov_b32 v3, 0')
            E('s_cmp_eq_u32 s3, 0')
            E('s_cselect_b32 s58, 1, 0')
            E('s_mov_b32 s59, 0')
            E('s_mov_b64 exec, s[58:59]')
            E('buffer_atomic_add v4, v3, s[20:23], s4 offen sc1')
            E('s_mov_b64 exec, -1')
        if FUSE > 1 and u == 5:
            E('s_lshr_b32 s4, s39, 3')
            E('s_lshl_b32 s4, s4, 2')
            E('s_add_u32 s4, s4, 64')
            E('buffer_load_dword v5, v3, s[20:23], s4 offen sc0 sc1', tag='rdy')
        for f in pro:
            f()
        if q == 0:
            sched(e, anc[:8], s0, burst=BURST if u else 0)
            sched(e, anc[8:], s1, [(m - 8, f) for m, f in cons])
        else:
            sched(e, anc, s0 + s1, cons, burst=BURST)
        if u == 3:
            vwait('V0')
        if u == 4:
            vwait('V1')
        xpost = exchange(u)
        if u == 2:
            stamp(True)
    tail = exp_ops(5, 2) + exp_ops(5, 3)
    tail = xpost + merge(tail, v_store(3))
    for qt in range(3):
        tail.append(lambda qt=qt: E('ds_write_b32 v60, v%d offset:%d' % (24 + qt, LSTAT - STATS + qt * 1024)))
    def stg():
        e.wait(vm='WO')
        E('s_lshl_b32 s4, s3, 12')
        E('s_add_u32 s4, s4, %d' % WOST)
        E('v_add_u32 v56, s4, v13')
        for m in range(4):
            E('ds_write_b128 v56, a[%d:%d] offset:%d' % (WOR + 4 * m, WOR + 4 * m + 3, m * 1024))
    if not FUSE and not PART:
        tail.append(stg)
    if PART:
        late6 = [wp_load(0, m) for m in range(8)] + late6
        tail = merge(tail, late6[:PF6])
        late7 = late6[PF6:] + [wp_load(5, m) for m in range(8)]
    if FUSE > 1:
        e.wait(vm='rdy')
        E('v_readfirstlane_b32 s64, v5')
        E('s_mov_b32 s12, s54')
        E('s_and_b32 s13, s55, 0xffff')
        E('s_cmp_ge_u32 s64, 64')
        E('s_cselect_b32 s14, 0x%x, 0' % WS_SIZE)
        E('s_mov_b32 s15, 0x20000')
        if P3PF:
            E('s_lshr_b32 s4, s2, 3')
            E('s_lshl_b32 s4, s4, 2')
            E('s_add_u32 s4, s4, s3')
            E('s_lshl_b32 s4, s4, 13')
            E('s_lshr_b32 s5, s39, 3')
            E('s_lshl_b32 s5, s5, 20')
            E('s_add_u32 s4, s4, s5')
            E('s_add_u32 s4, s4, 0x%x' % WOT_OFF)
            E('v_lshlrev_b32 v4, 7, v1')
            E('buffer_load_dword v5, v4, s[12:15], s4 offen', tag='pf')
    pro, pa = pv_anchors([(2, (0, 1), True)])
    for f in pro:
        f()
    sched(e, pa, tail, lead=100)
    e.wait(lds='all')
    stamp()
    E('s_barrier')
    stamp(True)
    b = []
    TB = [64, 80, 128]
    for qt in range(3):
        def ls(qt=qt):
            E('ds_read_b128 v[46:49], v61 offset:%d' % (LSTAT - STATS + qt * 1024), tag='ls%d' % qt)
            E('ds_read_b128 v[50:53], v61 offset:%d' % (LSTAT - STATS + qt * 1024 + 16), tag='ls%d' % qt)
            e.wait(lds='ls%d' % qt)
            E('v_add_f32 v46, v46, v47')
            E('v_add_f32 v48, v48, v49')
            E('v_add_f32 v50, v50, v51')
            E('v_add_f32 v52, v52, v53')
            E('v_add_f32 v46, v46, v48')
            E('v_add_f32 v50, v50, v52')
            E('v_add_f32 v46, v46, v50')
            E('v_rcp_f32 v%d, v46' % (24 + qt))
            E('v_mul_f32 v%d, v%d, v%d' % (57 + qt, 57 + qt, 24 + qt))
        b.append(ls)
        for r in range(16):
            def f(qt=qt, r=r):
                E('v_accvgpr_read_b32 v%d, a%d' % (TB[qt] + r, OA[0] + 16 * qt + r))
                E('v_mul_f32 v%d, v%d, v%d' % (TB[qt] + r, TB[qt] + r, 57 + qt))
            b.append(f)
    def wt_addr():
        E('v_lshrrev_b32 v46, 4, v1')
        E('v_lshrrev_b32 v47, 2, v1')
        E('v_and_b32 v47, 3, v47')
        E('v_and_b32 v48, 3, v1')
        E('v_lshl_add_u32 v49, v46, 3, v47')
        E('v_lshlrev_b32 v49, 8, v49')
        E('v_xor_b32 v50, s3, v47')
        E('v_lshl_add_u32 v49, v50, 6, v49')
        E('v_lshl_add_u32 v49, v48, 3, v49')
        E('v_add_u32 v49, 0x%x, v49' % WOST)
        for kk in range(2):
            for nn in range(2):
                for hh in range(2):
                    r = 30 + (kk * 2 + nn) * 4 + 2 * hh
                    E('ds_read_b64_tr_b16 v[%d:%d], v49 offset:%d' % (r, r + 1, (32 * kk + 4 * hh) * 256 + nn * 32), tag='wt')
    if not FUSE and not PART:
        b.append(wt_addr)
    if PART:
        b = merge(b, late7)
    def epi(qt):
        out = []
        T = TB[qt]
        U = (96 if PART else 192) + (qt & 1) * 16
        for r in range(16):
            out.append(lambda r=r: E('v_accvgpr_read_b32 v%d, a%d' % (U + r, OA[1] + 16 * qt + r)))
        for r in range(16):
            out.append(lambda r=r: E('v_fma_f32 v%d, v%d, v%d, v%d' % (T + r, U + r, 24 + qt, T + r)))
        for k in range(8):
            out.append(lambda k=k: E('v_cvt_pk_bf16_f32 v%d, v%d, v%d' % (T + k, T + 2 * k, T + 2 * k + 1)))
        for k in (0, 2):
            def f(k=k):
                E('v_permlane32_swap_b32 v%d, v%d' % (T + 2 * k, T + 2 * k + 2))
                E('v_permlane32_swap_b32 v%d, v%d' % (T + 2 * k + 1, T + 2 * k + 3))
                if PART:
                    E('ds_write_b128 v%d, v[%d:%d] offset:%d' % (27 + qt, T + 2 * k, T + 2 * k + 3, k * 256))
                else:
                    E('buffer_store_dwordx4 v[%d:%d], v%d, s[28:31], s57 offen offset:%d%s' % (T + 2 * k, T + 2 * k + 3, 27 + qt, k * 256, STPOL))
            out.append(f)
        return out
    E('s_mul_i32 s4, s37, 393216')
    E('s_lshl_b32 s5, s39, 2')
    E('s_add_u32 s5, s5, s3')
    E('s_mul_i32 s5, s5, 3072')
    E('s_add_u32 s57, s4, s5')
    if EPO:
        pro, pa = pv_anchors([(3, (0, 1), False), (2, (2,), True), (3, (2,), False)])
        for f in pro:
            f()
        sched(e, pa[:16], b, lead=60)
        sched(e, pa[16:], epi(0) + epi(1), burst=1)
        stamp()
        for f in epi(2):
            f()
    else:
        pro, pa = pv_anchors([(2, (2,), True), (3, (0, 1, 2), False)])
        for f in pro:
            f()
        sched(e, pa, b, lead=60)
        stamp()
        for qt in range(3):
            for f in epi(qt):
                f()
    if PART:
        phase3p(e, stamp, wp_reg, wp_load, C)
    elif FUSE:
        phase3(e, stamp)
    else:
        E('s_and_b32 s4, s2, 3')
        E('s_lshl_b32 s4, s4, 3')
        E('s_lshl_b32 s5, s3, 1')
        E('s_add_u32 s4, s4, s5')
        E('s_lshl_b32 s4, s4, 17')
        E('s_lshr_b32 s5, s2, 2')
        E('s_lshl_b32 s5, s5, 11')
        E('s_add_u32 s4, s4, s5')
        E('s_add_u32 s4, s4, 0x%x' % WOT_OFF)
        E('s_add_u32 s5, s4, 0x20000')
        e.wait(lds='wt')
        for kk in range(2):
            for nn in range(2):
                r = 30 + (kk * 2 + nn) * 4
                E('buffer_store_dwordx4 v[%d:%d], v11, s[28:31], s%d offen offset:%d%s' % (r, r + 3, 4 + nn, kk * 1024, STPOL))
    stamp(True)
    e.label('L_a_done')
    E('s_endpgm')
    return e


def phase3p(e, stamp, wp_reg, wp_load, C):
    E = e
    ACC = 64
    WF = [160, 32]
    ORD = [0, 5, 1, 2, 3, 4, 6, 7]
    def OB(j):
        return 65536 + 3072 * j if j < 5 else 89088 + 3072 * (j - 5)
    def oreg(j, st):
        i = j * 3 + st
        return i * 4 if i < 12 else 64 + (i - 12) * 4
    E('v_add_u32 v8, 0x10000, v11')
    E('s_mov_b32 s68, 0x05040100')
    E('s_mov_b32 s69, 0x07060302')
    E('s_lshl_b32 s4, s37, 4')
    E('s_lshr_b32 s5, s39, 1')
    E('s_add_u32 s4, s4, s5')
    E('s_mul_i32 s4, s4, 49152')
    E('s_mul_i32 s5, s3, 12288')
    E('s_add_u32 s4, s4, s5')
    E('s_add_u32 s57, s4, 0x%x' % PRT_OFF)
    def oread(j):
        out = []
        for st in range(3):
            r = oreg(j, st)
            out.append(lambda r=r, st=st: E('ds_read_b128 a[%d:%d], v8 offset:%d' % (r, r + 3, OB(j) - 65536 + st * 1024), tag='o%d' % j))
        return out
    tc = [0]
    def tr(x):
        j = ORD[x]
        out = [C(0, lambda: e.wait(vm='wp%d' % j))]
        for c in range(4):
            for ip in range(4):
                def f(c=c, ip=ip):
                    fl, r0 = wp_reg(j, 2 * ip)
                    fl, r1 = wp_reg(j, 2 * ip + 1)
                    r0 += c; r1 += c
                    if fl == 'a':
                        t0 = 16 + 2 * (tc[0] & 3); tc[0] += 1
                        E('v_accvgpr_read_b32 v%d, a%d' % (t0, r0))
                        E('v_accvgpr_read_b32 v%d, a%d' % (t0 + 1, r1))
                        r0, r1 = t0, t0 + 1
                    d = WF[x & 1] + 8 * c + ip
                    E('v_perm_b32 v%d, v%d, v%d, s68' % (d, r1, r0))
                    E('v_perm_b32 v%d, v%d, v%d, s69' % (d + 4, r1, r0))
                out.append(f)
        return out
    for f in tr(0):
        f()
    e.wait(lds='all')
    stamp()
    E('s_barrier')
    stamp(True)
    for f in oread(ORD[0]) + oread(ORD[1]) + [wp_load(7, m) for m in range(8)]:
        f()
    for x in range(8):
        j = ORD[x]
        anc = []
        order = [(t, st) for t in range(8) for st in range(3)] if x < 7 else [(t, st) for st in range(3) for t in range(8)]
        for (t, st) in order:
            a = ACC + (t * 3 + st) * 4
            src = 'v[%d:%d]' % (a, a + 3) if x > 0 else '0'
            w = WF[x & 1] + 4 * t
            o = oreg(j, st)
            fn = (lambda a=a, w=w, o=o, src=src: E('v_mfma_f32_16x16x32_bf16 v[%d:%d], v[%d:%d], a[%d:%d], %s' % (
                a, a + 3, w, w + 3, o, o + 3, src)))
            anc.append(([], fn, []))
        e.wait(lds='o%d' % j)
        if P3ST:
            stamp(True)
        fill = []
        if x + 2 < 8:
            fill += oread(ORD[x + 2])
        if x + 1 < 8:
            fill += tr(x + 1)
        cons = []
        if x == 7:
            for st in range(3):
                for r in range(4):
                    d = WF[0] + (st & 1) * 16 + 4 * r
                    def f(d=d, st=st, r=r):
                        for c in range(4):
                            E('v_cvt_pk_bf16_f32 v%d, v%d, v%d' % (d + c, ACC + (2 * c * 3 + st) * 4 + r, ACC + ((2 * c + 1) * 3 + st) * 4 + r))
                        if r == 0:
                            E('s_add_u32 s4, s57, %d' % (st * 4096))
                        E('buffer_store_dwordx4 v[%d:%d], v11, s[28:31], s4 offen offset:%d%s' % (d, d + 3, r * 1024, STPOL))
                    cons.append((8 * st + 7 + 2 + r, f))
        sched(e, anc, fill, cons)
    stamp()


def kernel_r():
    e = Emitter()
    E = e
    e.raw('.p2align 8')
    e.raw('.globl %s' % KB)
    e.raw('.type %s,@function' % KB)
    e.label(KB)
    E('s_cmp_ge_u32 s2, 256')
    E('s_cbranch_scc1 L_b_done')
    E('s_load_dwordx2 s[40:41], s[0:1], 40')
    E('s_load_dwordx2 s[42:43], s[0:1], 56')
    E('v_and_b32 v1, 63, v0')
    E('v_lshrrev_b32 v2, 6, v0')
    E('s_nop 0')
    E('v_readfirstlane_b32 s3, v2')
    E('s_lshr_b32 s37, s2, 4')
    E('s_and_b32 s38, s2, 15')
    E('s_mul_i32 s32, s37, 786432')
    E('s_mul_i32 s4, s38, 3072')
    E('s_add_u32 s32, s32, s4')
    E('s_lshl_b32 s4, s3, 8')
    E('s_add_u32 s32, s32, s4')
    E('s_add_u32 s32, s32, 0x%x' % PRT_OFF)
    E('v_lshlrev_b32 v11, 2, v1')
    E('s_waitcnt lgkmcnt(0)')
    E('s_mov_b32 s28, s42')
    E('s_and_b32 s29, s43, 0xffff')
    E('s_mov_b32 s30, 0x%x' % WS_SIZE)
    E('s_mov_b32 s31, 0x20000')
    for p in range(16):
        E('s_add_u32 s5, s32, %d' % (p * 49152))
        E('buffer_load_dword v%d, v11, s[28:31], s5 offen' % (16 + p), tag='p%d' % p)
    E('s_mov_b32 s8, s40')
    E('s_and_b32 s9, s41, 0xffff')
    E('s_mov_b32 s10, 786432')
    E('s_mov_b32 s11, 0x20000')
    E('s_mul_i32 s4, s38, 3')
    E('s_lshr_b32 s5, s3, 2')
    E('s_add_u32 s4, s4, s5')
    E('s_mul_i32 s5, s4, 43')
    E('s_lshr_b32 s5, s5, 9')
    E('s_mul_i32 s6, s5, 12')
    E('s_sub_u32 s4, s4, s6')
    E('s_mul_i32 s6, s37, 49152')
    E('s_lshl_b32 s5, s5, 8')
    E('s_add_u32 s6, s6, s5')
    E('s_lshr_b32 s5, s4, 2')
    E('s_lshl_b32 s5, s5, 14')
    E('s_add_u32 s6, s6, s5')
    E('s_and_b32 s5, s4, 3')
    E('s_lshl_b32 s5, s5, 4')
    E('s_add_u32 s6, s6, s5')
    E('s_and_b32 s5, s3, 3')
    E('s_lshl_b32 s5, s5, 6')
    E('s_add_u32 s6, s6, s5')
    E('v_lshrrev_b32 v2, 2, v1')
    E('v_lshlrev_b32 v2, 10, v2')
    E('v_and_b32 v3, 3, v1')
    E('v_lshl_add_u32 v2, v3, 2, v2')
    E('s_mov_b32 s7, 0xffff0000')
    for p in range(16):
        e.wait(vm='p%d' % p)
        d = 4 if p < 2 else 8
        d = (4 + 2 * p) if p < 2 else (8 + 2 * (p & 1))
        E('v_lshlrev_b32 v%d, 16, v%d' % (d, 16 + p))
        E('v_and_b32 v%d, s7, v%d' % (d + 1, 16 + p))
        if p >= 2:
            a = 4 + 2 * (p & 1)
            E('v_pk_add_f32 v[%d:%d], v[%d:%d], v[%d:%d]' % (a, a + 1, a, a + 1, d, d + 1))
    E('v_pk_add_f32 v[4:5], v[4:5], v[6:7]')
    E('v_cvt_pk_bf16_f32 v4, v4, v5')
    E('buffer_store_dword v4, v2, s[8:11], s6 offen')
    e.label('L_b_done')
    E('s_endpgm')
    return e


def phase3(e, stamp):
    E = e
    E('s_mov_b32 s20, s52')
    E('s_and_b32 s21, s53, 0xffff')
    E('s_mov_b32 s22, 256')
    E('s_mov_b32 s23, 0x20000')
    E('s_mov_b32 s8, s50')
    E('s_and_b32 s9, s51, 0xffff')
    E('s_mov_b32 s10, 786432')
    E('s_mov_b32 s11, 0x20000')
    E('s_lshl_b32 s62, s37, 2')
    E('s_mul_i32 s63, s3, 40960')
    E('v_mov_b32 v2, 1')
    E('v_mov_b32 v3, 0')
    E('s_cmp_eq_u32 s3, 0')
    E('s_cselect_b32 s58, 1, 0')
    E('s_mov_b32 s59, 0')
    def pub():
        E('s_barrier')
        E('s_mov_b64 exec, s[58:59]')
        E('buffer_atomic_add v2, v3, s[20:23], s62 offen sc1')
        E('s_mov_b64 exec, -1')
    if FUSE > 1:
        E('s_cmp_ge_u32 s64, 64')
        E('s_cbranch_scc0 L_slow')
        q0 = list(e.vmq)
        E('s_lshl_b32 s33, s39, 17')
        E('s_lshl_b32 s5, s3, 15')
        E('s_add_u32 s33, s33, s5')
        E('s_add_u32 s33, s33, 0x%x' % WOT_OFF)
        E('s_lshr_b32 s5, s39, 1')
        E('s_add_u32 s34, s37, s5')
        E('s_and_b32 s34, s34, %d' % P3ROT)
        for n in range(64):
            i, nn = n // 2, n % 2
            if n % 8 == 0:
                E('s_add_u32 s5, s34, %d' % (n // 8))
                E('s_and_b32 s5, s5, 7')
                E('s_lshl_b32 s5, s5, 12')
                E('s_add_u32 s56, s33, s5')
                E('s_add_u32 s57, s56, 0x20000')
            if n == 40:
                e.wait(vm=q0[-1], lds='all')
                if DIAG:
                    E('s_memtime s[68:69]')
                    E('s_waitcnt lgkmcnt(0)')
                pub()
            if n == 60:
                e.wait(vm='wf3')
            E('buffer_load_dwordx4 a[%d:%d], v11, s[28:31], s%d offen offset:%d' % (n * 4, n * 4 + 3, 56 + nn, (i % 4) * 1024), tag='wf%d' % n)
        if P3X:
            e.wait(vm='all')
            E('s_memtime s[68:69]')
            E('s_waitcnt lgkmcnt(0)')
            for n in range(64):
                i, nn = n // 2, n % 2
                if n % 8 == 0:
                    E('s_add_u32 s5, s34, %d' % (n // 8))
                    E('s_and_b32 s5, s5, 7')
                    E('s_lshl_b32 s5, s5, 12')
                    E('s_add_u32 s56, s33, s5')
                    E('s_add_u32 s57, s56, 0x20000')
                if n == 60:
                    e.wait(vm='wf3')
                E('buffer_load_dwordx4 a[%d:%d], v11, s[28:31], s%d offen offset:%d' % (n * 4, n * 4 + 3, 56 + nn, (i % 4) * 1024), tag='wf%d' % n)
            e.wait(vm='all')
        if DIAG:
            E('s_memtime s[70:71]')
            E('s_waitcnt lgkmcnt(0)')
            E('s_lshl_b32 s5, s2, 2')
            E('s_add_u32 s5, s5, s3')
            E('s_lshl_b32 s5, s5, 8')
            E('s_add_u32 s5, s5, 0x%x' % (0xC00000 + 22 * 8))
            E('v_mov_b32 v63, 0')
            for k in range(4):
                E('v_mov_b32 v0, s%d' % (68 + k))
                e.wait(vm='wf30') if not P3X else None
                E('buffer_store_dword v0, v63, s[28:31], s5 offen offset:%d' % (4 * k))
        E('s_branch L_join')
        e.label('L_slow')
        e.vmq = q0
    E('s_mov_b32 s34, 0')
    e.wait(vm='all', lds='all')
    pub()
    e.vmq = []
    stamp()
    E('v_lshrrev_b32 v4, 2, v1')
    E('v_lshrrev_b32 v5, 5, v1')
    E('v_lshlrev_b32 v5, 1, v5')
    E('v_and_b32 v6, 3, v1')
    E('v_xor_b32 v5, v5, v6')
    E('v_lshlrev_b32 v5, 4, v5')
    E('v_lshl_add_u32 v4, v4, 10, v5')
    E('s_lshl_b32 s56, s3, 20')
    E('s_lshl_b32 s5, s39, 5')
    E('s_add_u32 s56, s56, s5')
    E('v_lshrrev_b32 v46, 4, v1')
    E('v_lshrrev_b32 v47, 2, v1')
    E('v_and_b32 v47, 3, v47')
    E('v_lshl_add_u32 v48, v46, 3, v47')
    E('v_lshlrev_b32 v48, 6, v48')
    E('v_lshl_add_u32 v48, v6, 3, v48')
    E('v_and_b32 v46, 1, v46')
    E('v_lshl_add_u32 v48, v46, 5, v48')
    E('v_add_u32 v7, s63, v48')
    E('v_xor_b32 v8, 32, v7')
    def dma(step, slot):
        for k in range(2):
            E('s_add_u32 s5, s63, %d' % (slot * 2048 + k * 1024))
            E('s_mov_b32 m0, s5')
            E('s_add_u32 s6, s56, %d' % ((step * 2 + k) * 16384))
            E('buffer_load_dwordx4 v4, s[24:27], s6 offen lds', tag='w%d' % step)
    def trd(step, slot):
        for nt in range(2):
            for hh in range(2):
                r = (step * 2 + nt) * 4 + 2 * hh
                E('ds_read_b64_tr_b16 a[%d:%d], v%d offset:%d' % (r, r + 1, 7 + nt, slot * 2048 + hh * 256), tag='t%d' % step)
    for st in range(20):
        dma(st, st)
    for st in range(32):
        e.wait(vm='w%d' % st)
        trd(st, st % 20)
        if st == 12:
            e.wait(lds='t11')
            for s2_ in range(20, 32):
                dma(s2_, s2_ - 20)
    stamp()
    e.wait(vm='all', lds='all')
    e.label('L_join')
    E('s_mov_b32 s7, 0')
    e.label('L_poll')
    E('buffer_load_dword v2, v3, s[20:23], s62 offen sc0 sc1')
    E('s_waitcnt vmcnt(0)')
    E('v_readfirstlane_b32 s4, v2')
    E('s_cmp_ge_u32 s4, 16')
    E('s_cbranch_scc1 L_go')
    E('s_sleep 4')
    E('s_add_u32 s7, s7, 1')
    E('s_cmp_lt_u32 s7, 0x10000')
    E('s_cbranch_scc1 L_poll')
    e.label('L_go')
    e.vmq = []
    stamp()
    E('s_mul_i32 s32, s37, 393216')
    E('s_mul_i32 s4, s3, 98304')
    E('s_add_u32 s32, s32, s4')
    D = P3D
    ACC = 64
    FR = 96
    if P3PF > 1:
        E('s_bfe_u32 s4, s2, 0x20003')
        E('s_lshl_b32 s4, s4, 2')
        E('s_add_u32 s4, s4, s3')
        E('s_mul_i32 s4, s4, 24576')
        E('s_mul_i32 s5, s37, 393216')
        E('s_add_u32 s4, s4, s5')
        E('v_lshlrev_b32 v4, 7, v1')
        for t in range(3):
            E('s_add_u32 s5, s4, %d' % (t * 8192))
            E('buffer_load_dword v%d, v4, s[28:31], s5 offen' % (8 + t), tag='pf')
    def loads(i):
        base = FR + (i % D) * 12
        if i % 4 == 0:
            E('s_add_u32 s35, s34, %d' % (i // 4))
            E('s_and_b32 s35, s35, 7')
            E('s_mul_i32 s35, s35, 12288')
            E('s_add_u32 s35, s35, s32')
        E('s_add_u32 s5, s35, %d' % ((i % 4) * 3072))
        for st in range(3):
            E('buffer_load_dwordx4 v[%d:%d], v11, s[28:31], s5 offen offset:%d' % (base + 4 * st, base + 4 * st + 3, st * 1024), tag='k%d' % i)
    for i in range(D):
        loads(i)
    for i in range(32):
        base = FR + (i % D) * 12
        e.wait(vm='k%d' % i)
        for nn in range(2):
            for st in range(3):
                a = ACC + (nn * 3 + st) * 4
                wr = (i * 2 + nn) * 4
                src = 'v[%d:%d]' % (a, a + 3) if i > 0 else '0'
                E('v_mfma_f32_16x16x32_bf16 v[%d:%d], a[%d:%d], v[%d:%d], %s' % (
                    a, a + 3, wr, wr + 3, base + 4 * st, base + 4 * st + 3, src))
        if i + D < 32:
            loads(i + D)
    stamp()
    E('v_add_u32 v12, s63, v11')
    for tl in range(6):
        E('ds_write_b128 v12, v[%d:%d] offset:%d' % (ACC + 4 * tl, ACC + 4 * tl + 3, tl * 1024))
    e.wait(lds='all')
    E('s_barrier')
    E('v_and_b32 v2, 15, v1')
    E('v_lshrrev_b32 v3, 4, v1')
    E('v_lshlrev_b32 v2, 10, v2')
    E('v_lshl_add_u32 v2, v3, 3, v2')
    E('s_mul_i32 s6, s37, 49152')
    E('s_lshl_b32 s5, s39, 5')
    E('s_add_u32 s6, s6, s5')
    def red(rnd):
        E('s_add_u32 s4, s3, %d' % (4 * rnd))
        E('s_lshl_b32 s5, s4, 10')
        E('v_add_u32 v12, s5, v11')
        E('v_add_u32 v13, 0x14000, v12')
        b0 = 96 + 32 * rnd
        E('ds_read_b128 v[%d:%d], v12' % (b0, b0 + 3), tag='r')
        E('ds_read_b128 v[%d:%d], v12 offset:40960' % (b0 + 4, b0 + 7), tag='r')
        E('ds_read_b128 v[%d:%d], v13' % (b0 + 8, b0 + 11), tag='r')
        E('ds_read_b128 v[%d:%d], v13 offset:40960' % (b0 + 12, b0 + 15), tag='r')
        E('s_cmp_ge_u32 s4, 3')
        E('s_cselect_b32 s7, 1, 0')
        E('s_mul_i32 s5, s7, 3')
        E('s_sub_u32 s5, s4, s5')
        E('s_lshl_b32 s5, s5, 14')
        E('s_lshl_b32 s7, s7, 5')
        E('s_add_u32 s5, s5, s7')
        E('s_add_u32 s5, s5, s6')
        e.wait(lds='r')
        for r in range(4):
            E('v_add_f32 v%d, v%d, v%d' % (b0 + r, b0 + r, b0 + 4 + r))
            E('v_add_f32 v%d, v%d, v%d' % (b0 + 8 + r, b0 + 8 + r, b0 + 12 + r))
        for r in range(4):
            E('v_add_f32 v%d, v%d, v%d' % (b0 + r, b0 + r, b0 + 8 + r))
        E('v_cvt_pk_bf16_f32 v%d, v%d, v%d' % (b0 + 16, b0, b0 + 1))
        E('v_cvt_pk_bf16_f32 v%d, v%d, v%d' % (b0 + 17, b0 + 2, b0 + 3))
        E('buffer_store_dwordx2 v[%d:%d], v2, s[8:11], s5 offen' % (b0 + 16, b0 + 17))
    red(0)
    E('s_cmp_ge_u32 s3, 2')
    E('s_cbranch_scc1 L_a_done')
    red(1)


def kernel_b():
    e = Emitter()
    E = e
    e.raw('.p2align 8')
    e.raw('.globl %s' % KB)
    e.raw('.type %s,@function' % KB)
    e.label(KB)
    E('s_cmp_ge_u32 s2, 256')
    E('s_cbranch_scc1 L_b_done')
    E('s_load_dwordx2 s[40:41], s[0:1], 40')
    E('s_load_dwordx2 s[42:43], s[0:1], 56')
    E('v_and_b32 v1, 63, v0')
    E('v_lshrrev_b32 v2, 6, v0')
    E('s_nop 0')
    E('v_readfirstlane_b32 s3, v2')
    E('s_and_b32 s4, s2, 7')
    E('s_lshr_b32 s5, s2, 3')
    E('s_lshr_b32 s6, s4, 1')
    E('s_lshl_b32 s6, s6, 2')
    E('s_lshr_b32 s7, s5, 3')
    E('s_add_u32 s37, s6, s7')
    E('s_and_b32 s6, s4, 1')
    E('s_lshl_b32 s6, s6, 3')
    E('s_and_b32 s7, s5, 7')
    E('s_add_u32 s38, s6, s7')
    E('v_lshlrev_b32 v11, 4, v1')
    E('s_mul_i32 s32, s37, 393216')
    E('s_mul_i32 s4, s3, 49152')
    E('s_add_u32 s32, s32, s4')
    E('s_lshl_b32 s33, s38, 18')
    E('s_lshl_b32 s4, s3, 14')
    E('s_add_u32 s33, s33, s4')
    E('s_add_u32 s33, s33, 0x%x' % WOT_OFF)
    E('s_add_u32 s34, s33, 0x20000')
    E('s_waitcnt lgkmcnt(0)')
    E('s_mov_b32 s8, s40')
    E('s_and_b32 s9, s41, 0xffff')
    E('s_mov_b32 s10, 786432')
    E('s_mov_b32 s11, 0x20000')
    E('s_mov_b32 s28, s42')
    E('s_and_b32 s29, s43, 0xffff')
    E('s_mov_b32 s30, 0x%x' % WS_SIZE)
    E('s_mov_b32 s31, 0x20000')
    D = BD
    ACC = 16
    FR = 40
    stc = [0]
    def stampb():
        if not DIAG:
            return
        i = stc[0]; stc[0] += 1
        E('s_memtime s[60:61]')
        E('s_waitcnt lgkmcnt(0)')
        E('s_lshl_b32 s58, s2, 3')
        E('s_add_u32 s58, s58, s3')
        E('s_lshl_b32 s58, s58, 8')
        E('s_add_u32 s58, s58, 0x%x' % (0xD00000 + i * 8))
        E('v_mov_b32 v39, 0')
        E('v_mov_b32 v0, s60')
        E('buffer_store_dword v0, v39, s[28:31], s58 offen', tag='stamp')
        E('v_mov_b32 v0, s61')
        E('buffer_store_dword v0, v39, s[28:31], s58 offen offset:4', tag='stamp')
    stampb()
    def loads(i):
        base = FR + (i % D) * 20
        E('s_add_u32 s5, s32, %d' % (i * 3072))
        for st in range(3):
            E('buffer_load_dwordx4 v[%d:%d], v11, s[28:31], s5 offen offset:%d' % (base + 4 * st, base + 4 * st + 3, st * 1024), tag='k%d' % i)
        E('s_add_u32 s6, s33, %d' % (i * 1024))
        E('s_add_u32 s7, s34, %d' % (i * 1024))
        E('buffer_load_dwordx4 v[%d:%d], v11, s[28:31], s6 offen' % (base + 12, base + 15), tag='k%d' % i)
        E('buffer_load_dwordx4 v[%d:%d], v11, s[28:31], s7 offen' % (base + 16, base + 19), tag='k%d' % i)
    for i in range(D):
        loads(i)
    for i in range(16):
        base = FR + (i % D) * 20
        e.wait(vm='k%d' % i)
        if i in (0, 4, 8, 12, 15):
            stampb()
        for nn in range(2):
            for st in range(3):
                a = ACC + (nn * 3 + st) * 4
                src = 'v[%d:%d]' % (a, a + 3) if i > 0 else '0'
                E('v_mfma_f32_16x16x32_bf16 v[%d:%d], v[%d:%d], v[%d:%d], %s' % (
                    a, a + 3, base + 12 + 4 * nn, base + 15 + 4 * nn, base + 4 * st, base + 4 * st + 3, src))
        if i + D < 16:
            loads(i + D)
    E('s_mul_i32 s4, s3, 6144')
    E('v_add_u32 v12, s4, v11')
    for tl in range(6):
        E('ds_write_b128 v12, v[%d:%d] offset:%d' % (ACC + 4 * tl, ACC + 4 * tl + 3, tl * 1024))
    e.wait(lds='all')
    E('s_barrier')
    E('s_cmp_ge_u32 s3, 6')
    E('s_cbranch_scc1 L_b_done')
    E('s_lshl_b32 s4, s3, 10')
    E('v_add_u32 v12, s4, v11')
    for wv in range(8):
        E('ds_read_b128 v[%d:%d], v12 offset:%d' % (FR + 4 * wv, FR + 4 * wv + 3, wv * 6144), tag='r%d' % wv)
    e.wait(lds='r1')
    for r in range(4):
        E('v_add_f32 v%d, v%d, v%d' % (16 + r, FR + r, FR + 4 + r))
    for wv in range(2, 8):
        e.wait(lds='r%d' % wv)
        for r in range(4):
            E('v_add_f32 v%d, v%d, v%d' % (16 + r, 16 + r, FR + 4 * wv + r))
    E('v_cvt_pk_bf16_f32 v20, v16, v17')
    E('v_cvt_pk_bf16_f32 v21, v18, v19')
    E('s_cmp_ge_u32 s3, 3')
    E('s_cselect_b32 s4, 1, 0')
    E('s_mul_i32 s5, s4, 3')
    E('s_sub_u32 s5, s3, s5')
    E('s_mul_i32 s6, s37, 49152')
    E('s_lshl_b32 s5, s5, 14')
    E('s_add_u32 s6, s6, s5')
    E('s_lshl_b32 s5, s38, 6')
    E('s_add_u32 s6, s6, s5')
    E('s_lshl_b32 s4, s4, 5')
    E('s_add_u32 s6, s6, s4')
    E('v_and_b32 v2, 15, v1')
    E('v_lshrrev_b32 v3, 4, v1')
    E('v_lshlrev_b32 v2, 10, v2')
    E('v_lshl_add_u32 v2, v3, 3, v2')
    E('buffer_store_dwordx2 v[20:21], v2, s[8:11], s6 offen')
    stampb()
    e.label('L_b_done')
    E('s_endpgm')
    return e


def kd(name, vgpr, accum, sgpr=72):
    return '''.p2align 6
.amdhsa_kernel %s
  .amdhsa_next_free_vgpr %d
  .amdhsa_next_free_sgpr %d
  .amdhsa_accum_offset %d
  .amdhsa_group_segment_fixed_size 0
  .amdhsa_kernarg_size 64
  .amdhsa_user_sgpr_count 2
  .amdhsa_user_sgpr_kernarg_segment_ptr 1
  .amdhsa_system_sgpr_workgroup_id_x 1
.end_amdhsa_kernel
''' % (name, vgpr, sgpr, accum)


def main():
    global DIAG
    global DIAG_ALL
    if len(sys.argv) > 2 and sys.argv[2].startswith('diag'):
        DIAG = True
        DIAG_ALL = sys.argv[2] == 'diag'
    for kv in sys.argv[3:]:
        k, v = kv.split('=', 1)
        globals()[k] = eval(v)
    ref = open('cdna_kernels/%s.s.ref' % NAME).read().splitlines()
    head = [l for l in ref if l.startswith(';') and '@launch' not in l and 'launch geometry' not in l and 'grid=ceil' not in l]
    a = kernel_a()
    b = kernel_r() if PART else kernel_b()
    out = '\n'.join(head) + '\n'
    out += '; @launch kernel=%s grid=(256,1,1) block=(256,1,1) lds=%d\n' % (KA, LDS_A)
    if not FUSE:
        if PART:
            out += '; @launch kernel=%s grid=(256,1,1) block=(768,1,1) lds=0\n' % KB
        else:
            out += '; @launch kernel=%s grid=(256,1,1) block=(512,1,1) lds=49152\n' % KB
    out += '.amdgcn_target "amdgcn-amd-amdhsa--gfx950"\n.text\n'
    out += a.text() + ('' if FUSE else b.text())
    out += 'L_text_end:\n'
    out += '.section .rodata,"a"\n'
    if PART:
        out += kd(KA, 512, 256) + kd(KB, 32, 32)
    else:
        out += kd(KA, 512, 256) + ('' if FUSE else kd(KB, max(144, 44 + 20 * BD), max(144, 44 + 20 * BD)))
    path = sys.argv[1] if len(sys.argv) > 1 else 'cdna_kernels/%s.s' % NAME
    open(path, 'w').write(out)
    print('nops inserted: A %d  B %d; lines %d' % (a.nops_inserted, b.nops_inserted, out.count('\n')))


if __name__ == '__main__':
    main()
```

```python
import struct, sys, math
from emit import Emitter, merge, sched

NAME = 'standalone__gqa_block_cached__near_ridge'
KA = 'gqa_attn_kernel'
KB = 'gqa_oproj_kernel'

def f32bits(x):
    return struct.unpack('<I', struct.pack('<f', x))[0]

XB = 0
QB = 24576
PB = [0, 24576]
RING = 49152
RING_W = 12288
NSLOT = 3
VS = [98304, 131072, 98304, 131072]
STATS = 81920
LSTAT = 86016
WOST = 65536
LDS_A = 163840

WOT_OFF = 0x800000
WS_SIZE = 0x3000000


DIAG = False
DIAG_ALL = True
PRO0, PRO1, STEPN, SLOWCOST = 12, 8, 8, 6
KFIRST = 0
BD = 5
P3PF = 2
P3X = 0
P3ROT = 7
FUSE = 0
PART = 1
PFA = 12
P4 = 1
CPF = 1
P3ST = 0
PF6 = 24
PRT_OFF = 0x2000000
P3D = 8
TOUCH = 0
EPO = 0
BURST = 2
XDEF = 1
WQPF = 2
KORD = 1
KVPOL = ''
STPOL = ' sc1'
PVS = 16
KTF = 0
NOLOAD = 0
ROT = 0
CI, KI = 3, 0
NV_LATE = 40
NV_S = [[4, 4], [4, 4], [4, 4], [4, 4], [4, 4], [0, 0]]
def kernel_a():
    e = Emitter()
    E = e
    stampc = [0]
    def stamp(key=False):
        if not DIAG or not (DIAG_ALL or key):
            return
        i = stampc[0]; stampc[0] += 1
        E('s_memtime s[60:61]')
        E('s_waitcnt lgkmcnt(0)')
        E('s_lshl_b32 s58, s2, 2')
        E('s_add_u32 s58, s58, s3')
        E('s_lshl_b32 s58, s58, 8')
        E('s_add_u32 s58, s58, 0x%x' % (0xC00000 + i * 8))
        E('v_mov_b32 v63, 0')
        E('v_mov_b32 v0, s60')
        E('buffer_store_dword v0, v63, s[28:31], s58 offen', tag='stamp')
        E('v_mov_b32 v0, s61')
        E('buffer_store_dword v0, v63, s[28:31], s58 offen offset:4', tag='stamp')
    e.raw('.p2align 8')
    e.raw('.globl %s' % KA)
    e.raw('.type %s,@function' % KA)
    e.label(KA)
    E('s_cmp_ge_u32 s2, 256')
    E('s_cbranch_scc1 L_a_done')
    E('s_load_dwordx16 s[40:55], s[0:1], 0')
    E('v_and_b32 v1, 63, v0')
    E('v_lshrrev_b32 v2, 6, v0')
    E('s_nop 0')
    E('v_readfirstlane_b32 s3, v2')
    if CPF:
        E('s_getpc_b64 s[68:69]')
        e.label('L_pc')
        E('s_and_b32 s69, s69, 0xffff')
        E('s_mov_b32 s70, L_text_end-L_pc')
        E('s_mov_b32 s71, 0x20000')
        if CPF == 1:
            E('v_lshlrev_b32 v255, 7, v0')
        else:
            nl = {3: 3, 4: 1, 5: 4}[CPF]
            E('s_lshr_b32 s4, s2, 3')
            E('s_and_b32 s4, s4, %d' % ((64 >> nl) - 1))
            E('s_lshl_b32 s4, s4, 2')
            E('s_add_u32 s4, s4, s3')
            E('s_lshl_b32 s4, s4, %d' % (nl + 7))
            E('v_and_b32 v255, %d, v1' % ((1 << nl) - 1))
            E('v_lshlrev_b32 v255, 7, v255')
            E('v_add_u32 v255, s4, v255')
        E('buffer_load_dword v255, v255, s[68:71], 0 offen', tag='cpf')
    if FUSE:
        E('s_lshr_b32 s4, s2, 3')
        E('s_and_b32 s38, s2, 3')
        E('s_lshl_b32 s38, s38, 1')
        E('s_and_b32 s5, s4, 1')
        E('s_add_u32 s38, s38, s5')
        E('s_bfe_u32 s37, s2, 0x10002')
        E('s_lshl_b32 s37, s37, 3')
        E('s_lshr_b32 s5, s4, 2')
        E('s_add_u32 s37, s37, s5')
        E('s_bfe_u32 s4, s4, 0x10001')
    else:
        E('s_and_b32 s38, s2, 7')
        E('s_lshr_b32 s4, s2, 3')
        E('s_lshr_b32 s37, s4, 1')
        E('s_and_b32 s4, s4, 1')
    E('s_lshl_b32 s39, s38, 2')
    E('s_lshl_b32 s4, s4, 1')
    E('s_add_u32 s39, s39, s4')
    E('s_lshl_b32 s4, s37, 3')
    E('s_add_u32 s4, s4, s38')
    E('s_lshl_b32 s32, s4, 17')
    E('s_lshl_b32 s5, s3, 15')
    E('s_add_u32 s32, s32, s5')
    E('s_lshr_b32 s5, s2, 3')
    E('s_and_b32 s5, s5, 1')
    E('s_mul_i32 s5, s5, %d' % ROT)
    for kt in range(4):
        E('s_add_u32 s6, s5, %d' % kt)
        E('s_and_b32 s6, s6, 3')
        E('s_lshl_b32 s6, s6, 13')
        E('s_add_u32 s%d, s32, s6' % (64 + kt))
    E('s_mul_i32 s33, s37, 49152')
    E('s_mul_i32 s5, s3, 12288')
    E('s_add_u32 s33, s33, s5')
    E('s_lshl_b32 s34, s39, 8')
    E('s_lshl_b32 s5, s3, 7')
    E('s_add_u32 s34, s34, s5')
    E('s_mul_i32 s35, s3, %d' % RING_W)
    E('s_add_u32 s35, s35, %d' % RING)
    E('s_mov_b32 s36, 0x%08x' % f32bits(math.log2(math.e) / math.sqrt(128.0)))
    E('v_and_b32 v46, 15, v1')
    E('v_lshrrev_b32 v47, 4, v1')
    E('v_xor_b32 v2, v46, v47')
    E('v_lshlrev_b32 v2, 4, v2')
    E('v_lshl_add_u32 v2, v46, 10, v2')
    E('v_lshlrev_b32 v11, 4, v1')
    E('v_lshrrev_b32 v48, 3, v1')
    E('v_and_b32 v49, 7, v1')
    E('v_lshrrev_b32 v50, 1, v49')
    E('v_and_b32 v51, 1, v47')
    E('v_xor_b32 v50, v50, v51')
    E('v_and_b32 v52, 1, v49')
    E('v_lshlrev_b32 v52, 4, v52')
    E('v_lshl_add_u32 v53, v48, 13, v52')
    E('v_lshl_add_u32 v3, v50, 5, v53')
    E('v_xor_b32 v50, 2, v50')
    E('v_lshl_add_u32 v4, v50, 5, v53')
    E('v_add_u32 v4, 0x10000, v4')
    E('v_add_u32 v5, 0x20000, v3')
    E('v_add_u32 v6, 0x20000, v4')
    E('v_lshrrev_b32 v48, 2, v1')
    E('v_and_b32 v48, 3, v48')
    E('v_and_b32 v49, 3, v1')
    E('v_lshrrev_b32 v50, 1, v48')
    E('v_lshlrev_b32 v51, 1, v51')
    E('v_or_b32 v50, v50, v51')
    E('v_lshl_add_u32 v52, v47, 3, v48')
    E('v_lshlrev_b32 v52, 7, v52')
    E('v_lshl_add_u32 v52, v49, 3, v52')
    E('v_add_u32 v52, s35, v52')
    for t in range(4):
        E('v_xor_b32 v53, %d, v50' % t)
        E('v_lshl_add_u32 v%d, v53, 5, v52' % (7 + t))
    E('v_and_b32 v53, 31, v1')
    E('v_lshrrev_b32 v54, 5, v1')
    E('v_lshlrev_b32 v12, 4, v46')
    E('v_lshl_add_u32 v12, v47, 8, v12')
    E('v_lshlrev_b32 v55, 2, v47')
    E('v_xor_b32 v55, v55, v46')
    E('v_lshlrev_b32 v55, 4, v55')
    E('v_lshl_add_u32 v13, v47, 8, v55')
    E('v_lshl_add_u32 v55, v54, 2, v48')
    E('v_lshlrev_b32 v55, 8, v55')
    E('v_xor_b32 v56, s3, v48')
    E('v_lshl_add_u32 v55, v56, 6, v55')
    E('v_and_b32 v56, 1, v47')
    E('v_lshl_add_u32 v55, v56, 5, v55')
    E('v_lshl_add_u32 v14, v49, 3, v55')
    E('v_add_u32 v14, %d, v14' % VS[0])
    E('s_lshl_b32 s4, s3, 11')
    E('v_add_u32 v15, s4, v11')
    E('v_lshlrev_b32 v55, 4, v46')
    E('v_lshl_add_u32 v55, v54, 9, v55')
    E('v_lshl_add_u32 v55, v56, 3, v55')
    E('s_lshr_b32 s4, s3, 1')
    E('s_mul_i32 s4, s4, 3')
    E('s_and_b32 s5, s3, 1')
    E('s_lshl_b32 s5, s5, 12')
    E('s_add_u32 s5, s5, %d' % QB)
    for st in range(3):
        E('s_add_u32 s6, s4, %d' % st)
        E('s_lshr_b32 s7, s6, 1')
        E('s_lshl_b32 s7, s7, 13')
        E('s_and_b32 s6, s6, 1')
        E('s_lshl_b32 s6, s6, 8')
        E('s_add_u32 s6, s6, s7')
        E('s_add_u32 s6, s6, s5')
        E('v_add_u32 v%d, s6, v55' % (16 + st))
    E('v_lshlrev_b32 v20, 5, v53')
    E('v_lshl_add_u32 v19, v54, 2, v20')
    E('s_lshl_b32 s4, s3, 3')
    E('v_add_u32 v19, s4, v19')
    E('v_lshlrev_b32 v55, 4, v46')
    E('v_lshl_add_u32 v55, v54, 8, v55')
    if PART:
        E('s_mul_i32 s4, s3, 3072')
        E('s_add_u32 s5, s4, 86016')
        E('s_cmp_eq_u32 s3, 0')
        E('s_cselect_b32 s5, 77824, s5')
        E('s_add_u32 s4, s4, 65536')
        E('s_sub_u32 s5, s5, s4')
        E('v_add_u32 v55, s4, v55')
    else:
        E('s_mov_b32 s5, 12288')
    for qt in range(3):
        E('v_add_u32 v57, %d, v56' % (2 * qt))
        E('v_cmp_le_u32 vcc, 3, v57')
        E('v_subrev_u32 v58, 3, v57')
        E('v_lshlrev_b32 v58, 10, v58')
        E('v_add_u32 v58, s5, v58')
        E('v_lshlrev_b32 v57, 10, v57')
        E('v_cndmask_b32 v57, v57, v58, vcc')
        E('v_add_u32 v%d, v57, v55' % (27 + qt))
    E('s_waitcnt lgkmcnt(0)')
    def srd(d, lo, size):
        E('s_mov_b32 s%d, s%d' % (d, lo))
        E('s_and_b32 s%d, s%d, 0xffff' % (d + 1, lo + 1))
        E('s_mov_b32 s%d, 0x%x' % (d + 2, size))
        E('s_mov_b32 s%d, 0x20000' % (d + 3))
    srd(8, 40, 786432)
    srd(12, 42, 16777216)
    srd(16, 44, 16777216)
    srd(20, 46, 4194304)
    srd(24, 48, 4194304)
    srd(28, 54, WS_SIZE)

    stamp(True)
    def wqpf():
        E('s_lshr_b32 s4, s2, 3')
        E('s_lshl_b32 s4, s4, 2')
        E('s_add_u32 s4, s4, s3')
        E('s_lshl_b32 s4, s4, 15')
        if FUSE:
            E('s_and_b32 s5, s2, 3')
            E('s_lshl_b32 s5, s5, 11')
        else:
            E('s_lshl_b32 s5, s38, 10')
        E('s_add_u32 s4, s4, s5')
        E('v_lshrrev_b32 v62, 4, v1')
        E('v_lshlrev_b32 v62, 13, v62')
        E('v_and_b32 v63, 15, v1')
        E('v_lshl_add_u32 v62, v63, %d, v62' % (7 if FUSE else 6))
        E('buffer_load_dword v62, v62, s[20:23], s4 offen', tag='pf')
    if WQPF == 1:
        wqpf()
    if TOUCH:
        E('v_mov_b32 v63, 0')
        E('s_mul_i32 s4, s37, 393216')
        E('s_lshl_b32 s5, s39, 2')
        E('s_add_u32 s5, s5, s3')
        E('s_mul_i32 s5, s5, 3072')
        E('s_add_u32 s4, s4, s5')
        E('buffer_load_dword v248, v63, s[28:31], s4 offen', tag='pf')
        E('s_and_b32 s4, s2, 3')
        E('s_lshl_b32 s4, s4, 20')
        E('s_add_u32 s4, s4, 0x%x' % WOT_OFF)
        E('buffer_load_dword v249, v63, s[28:31], s4 offen', tag='pf')
        if TOUCH > 1:
            E('buffer_load_dword v250, v63, s[12:15], s64 offen', tag='pf')
            E('buffer_load_dword v251, v63, s[16:19], s64 offen', tag='pf')
            E('s_lshl_b32 s4, s2, 14')
            E('buffer_load_dword v252, v63, s[24:27], s4 offen', tag='pf')
    for n in range(KFIRST):
        E('s_add_u32 s7, s%d, %d' % (64 + n // 8, (n % 8) * 1024))
        E('buffer_load_dwordx4 a[%d:%d], v12, s[12:15], s7 offen' % (n * 4, n * 4 + 3), tag='K%d' % (n // 8))
    E('s_mul_i32 s4, s3, 12288')
    for i in range(12):
        E('s_mul_i32 s5, s3, 12')
        E('s_add_u32 s5, s5, %d' % i)
        E('s_and_b32 s5, s5, 15')
        E('s_lshl_b32 s5, s5, 4')
        E('v_xor_b32 v%d, s5, v11' % (60 + (i & 1)))
        E('s_add_u32 s5, s4, %d' % (XB + i * 1024))
        E('s_mov_b32 m0, s5')
        E('s_add_u32 s6, s33, %d' % (i * 1024))
        E('buffer_load_dwordx4 v%d, s[8:11], s6 offen lds' % (60 + (i & 1)), tag='x')

    def wq_dma(c):
        out = []
        for m in range(4):
            def f(m=m):
                E('s_add_u32 s5, s35, %d' % ((c % NSLOT) * 4096 + m * 1024))
                E('s_mov_b32 m0, s5')
                E('s_add_u32 s6, s34, %d' % (c * 262144))
                E('buffer_load_dwordx4 v%d, s[20:23], s6 offen lds' % (3 + m), tag='wq%d' % c)
            out.append(f)
        return out

    def wq_reg(c):
        if c < 8:
            return 'v', 168 + (c - 3) * 16
        return 'a', 128 + (c - 8) * 16

    def wq_load(c):
        out = []
        fl, r = wq_reg(c)
        for m in range(4):
            def f(m=m):
                E('s_add_u32 s6, s34, %d' % (c * 262144))
                E('buffer_load_dwordx4 %s[%d:%d], v%d, s[20:23], s6 offen' % (fl, r + 4 * m, r + 4 * m + 3, 3 + m), tag='wq%d' % c)
            out.append(f)
        return out

    def wq_write(c):
        out = []
        fl, r = wq_reg(c)
        out.append(lambda: e.wait(vm='wq%d' % c))
        for m in range(4):
            out.append(lambda m=m: E('ds_write_b128 v59, %s[%d:%d] offset:%d' % (fl, r + 4 * m, r + 4 * m + 3, (c % NSLOT) * 4096 + m * 1024)))
        return out

    ACC = 64
    AF = [112, 128]
    BF = [144, 156]

    def p1_reads(c):
        out = []
        bu = c & 1
        sl = c % NSLOT
        out.append(lambda: E('v_xor_b32 v%d, %d, v2' % (60 + bu, c * 64)))
        for st in range(3):
            out.append(lambda st=st: E('ds_read_b128 v[%d:%d], v%d offset:%d' % (BF[bu] + 4 * st, BF[bu] + 4 * st + 3, 60 + bu, XB + st * 16384), tag='p1r%d' % c))
        for t in range(4):
            for hh in range(2):
                out.append(lambda t=t, hh=hh: E('ds_read_b64_tr_b16 v[%d:%d], v%d offset:%d' % (
                    AF[bu] + 4 * t + 2 * hh, AF[bu] + 4 * t + 2 * hh + 1, 7 + t, sl * 4096 + hh * 512), tag='p1r%d' % c))
        return out

    def kload(n):
        def f():
            E('s_add_u32 s7, s%d, %d' % (64 + n // 8, (n % 8) * 1024))
            E('buffer_load_dwordx4 a[%d:%d], v12, s[12:15], s7 offen%s' % (n * 4, n * 4 + 3, KVPOL), tag='K%d' % (n // 8))
        return f

    def v_chunk(t):
        out = []
        for mm in range(8):
            def f(mm=mm):
                E('s_lshl_b32 s5, s3, 13')
                E('s_add_u32 s5, s5, %d' % (VS[t] + mm * 1024))
                E('s_mov_b32 m0, s5')
                E('s_add_u32 s6, s%d, %d' % (64 + t, mm * 1024))
                E('buffer_load_dwordx4 v13, s[16:19], s6 offen%s lds' % KVPOL, tag='V%d' % t)
            out.append(f)
        return out

    def v_regs(t):
        out = []
        for mm in range(8):
            def f(mm=mm):
                r = 192 + (t - 2) * 32 + mm * 4
                E('s_add_u32 s6, s%d, %d' % (64 + t, mm * 1024))
                E('buffer_load_dwordx4 v[%d:%d], v12, s[16:19], s6 offen%s' % (r, r + 3, KVPOL), tag='V%d' % t)
            out.append(f)
        return out
    E('v_add_u32 v59, s35, v11')
    def wo_early():
        out = []
        def pre():
            E('s_lshr_b32 s4, s2, 2')
            E('s_lshl_b32 s4, s4, 16')
            E('s_and_b32 s5, s2, 3')
            E('s_lshl_b32 s5, s5, 8')
            E('s_add_u32 s4, s4, s5')
            E('s_lshl_b32 s5, s3, 14')
            E('s_add_u32 s56, s4, s5')
            E('v_lshrrev_b32 v248, 4, v1')
            E('v_and_b32 v249, 15, v1')
            E('v_lshlrev_b32 v248, 10, v248')
            E('v_lshl_add_u32 v248, v249, 4, v248')
            E('buffer_load_dwordx4 a[96:99], v248, s[24:27], s56 offen', tag='WO')
        out.append(pre)
        for m in range(1, 4):
            def f(m=m):
                E('s_add_u32 s6, s56, %d' % (m * 4096))
                E('buffer_load_dwordx4 a[%d:%d], v248, s[24:27], s6 offen' % (96 + 4 * m, 99 + 4 * m), tag='WO')
            out.append(f)
        return out
    seq = []
    if KORD:
        slow = [kload(n) for n in range(KFIRST, 32)] + v_chunk(0) + v_chunk(1) + v_regs(2) + v_regs(3)
    else:
        slow = [kload(n) for n in range(KFIRST, 16)] + v_chunk(0) + v_chunk(1) + [kload(n) for n in range(16, 32)] + v_regs(2) + v_regs(3)
    for c in range(3):
        seq += wq_dma(c)
    for c in range(3, 16):
        seq += wq_load(c)
        if c >= CI:
            seq += slow[:KI]
            slow = slow[KI:]
    if FUSE > 1:
        seq += wo_early()
    nfast = len(seq)
    seq += slow
    LEFT = {'K0': 56, 'K1': 48, 'V0': 40, 'V1': 32, 'K2': 24, 'K3': 16, 'V2': 8, 'V3': 0}
    if KORD:
        LEFT = {'K0': 56, 'K1': 48, 'K2': 40, 'K3': 32, 'V0': 24, 'V1': 16, 'V2': 8, 'V3': 0}
    def vwait(tag):
        nf = 0
        while len(seq) > LEFT[tag]:
            issue(SLOWCOST); nf += 1
        if nf:
            print('forced issue of %d loads for %s' % (nf, tag))
        e.wait(vm=tag)
    issued = [0]
    def issue(maxn=1000):
        n = 0
        while seq and len(e.vmq) < 62 and n < maxn:
            seq.pop(0)()
            n += 1 if issued[0] < nfast else SLOWCOST
            issued[0] += 1
    stamp()
    issue(PRO0)
    if WQPF == 2:
        wqpf()
    stamp()
    e.wait(vm='wq0')
    stamp()
    E('s_barrier')
    stamp()
    issue(PRO1)
    for f in p1_reads(0):
        f()
    for c in range(16):
        bu = c & 1
        e.wait(lds='p1r%d' % c)
        if c in (2, 4, 6, 8, 12):
            stamp()
        rd = []
        if c + 1 < 16:
            if c + 1 < 3:
                rd.append(lambda c=c: e.wait(vm='wq%d' % (c + 1)))
            rd += p1_reads(c + 1)
        rd2 = []
        if 3 <= c + 2 < 16:
            rd2 = wq_write(c + 2)
        rd2.append(lambda: issue(STEPN))
        if FUSE > 1 and c == 14:
            def stg0():
                e.wait(vm='WO')
                E('s_lshl_b32 s4, s3, 12')
                E('s_add_u32 s4, s4, %d' % VS[1])
                E('v_add_u32 v250, s4, v13')
                for m in range(4):
                    E('ds_write_b128 v250, a[%d:%d] offset:%d' % (96 + 4 * m, 99 + 4 * m, m * 1024))
            rd2.append(stg0)
        mf = []
        for nt in range(4):
            for st in range(3):
                a = ACC + (nt * 3 + st) * 4
                src = 'v[%d:%d]' % (a, a + 3) if c > 0 else '0'
                mf.append(lambda a=a, nt=nt, st=st, src=src: E('v_mfma_f32_16x16x32_bf16 v[%d:%d], v[%d:%d], v[%d:%d], %s' % (
                    a, a + 3, AF[bu] + 4 * nt, AF[bu] + 4 * nt + 3, BF[bu] + 4 * st, BF[bu] + 4 * st + 3, src)))
        for f in merge(mf[:6], rd) + merge(mf[6:], rd2):
            f()
    for nt in range(4):
        for st in range(3):
            a = ACC + (nt * 3 + st) * 4
            E('v_cvt_pk_bf16_f32 v%d, v%d, v%d' % (a, a, a + 1))
            E('v_cvt_pk_bf16_f32 v%d, v%d, v%d' % (a + 1, a + 2, a + 3))
    if FUSE > 1:
        e.wait(lds='all')
    stamp(True)
    E('s_barrier')
    for nt in range(4):
        for st in range(3):
            a = ACC + (nt * 3 + st) * 4
            E('ds_write_b64 v%d, v[%d:%d] offset:%d' % (16 + st, a, a + 1, nt * 1024))

    if FUSE > 1:
        E('v_lshrrev_b32 v46, 4, v1')
        E('v_lshrrev_b32 v47, 2, v1')
        E('v_and_b32 v47, 3, v47')
        E('v_and_b32 v48, 3, v1')
        E('v_lshl_add_u32 v49, v46, 3, v47')
        E('v_lshlrev_b32 v49, 8, v49')
        E('v_xor_b32 v50, s3, v47')
        E('v_lshl_add_u32 v49, v50, 6, v49')
        E('v_lshl_add_u32 v49, v48, 3, v49')
        E('v_add_u32 v49, 0x%x, v49' % VS[1])
        for kk in range(2):
            for nn in range(2):
                for hh in range(2):
                    r = 30 + (kk * 2 + nn) * 4 + 2 * hh
                    E('ds_read_b64_tr_b16 v[%d:%d], v49 offset:%d' % (r, r + 1, (32 * kk + 4 * hh) * 256 + nn * 32), tag='wt')
        E('s_and_b32 s4, s2, 3')
        E('s_lshl_b32 s4, s4, 3')
        E('s_lshl_b32 s5, s3, 1')
        E('s_add_u32 s4, s4, s5')
        E('s_lshl_b32 s4, s4, 17')
        E('s_lshr_b32 s5, s2, 2')
        E('s_lshl_b32 s5, s5, 11')
        E('s_add_u32 s4, s4, s5')
        E('s_add_u32 s62, s4, 0x%x' % WOT_OFF)
        E('s_add_u32 s63, s62, 0x20000')
        E('s_mov_b32 s20, s52')
        E('s_and_b32 s21, s53, 0xffff')
        E('s_mov_b32 s22, 256')
        E('s_mov_b32 s23, 0x20000')
    while len(seq) > NV_LATE:
        issue(SLOWCOST)
    if NOLOAD:
        del seq[:]
    e.wait(lds='all')
    if FUSE > 1:
        for kk in range(2):
            for nn in range(2):
                r = 30 + (kk * 2 + nn) * 4
                E('buffer_store_dwordx4 v[%d:%d], v11, s[28:31], s%d offen offset:%d sc1' % (r, r + 3, 62 + nn, kk * 1024), tag='wst')
    E('s_barrier')
    QF = 128
    for qt in range(3):
        for ks in range(8):
            r = QF + (qt * 8 + ks) * 4
            E('ds_read_b128 a[%d:%d], v11 offset:%d' % (r, r + 3, QB + (qt * 8 + ks) * 1024), tag='Q')
    E('s_lshl_b32 s4, s3, 13')
    E('s_add_u32 s4, s4, 0xC000')
    E('v_and_b32 v46, 15, v1')
    E('v_lshrrev_b32 v47, 4, v1')
    E('v_xor_b32 v48, v46, v47')
    for jj in range(4):
        E('v_xor_b32 v49, %d, v48' % (4 * jj))
        E('v_lshlrev_b32 v49, 4, v49')
        E('v_lshl_add_u32 v49, v47, 8, v49')
        E('v_add_u32 v%d, s4, v49' % (6 + jj))
    E('v_and_b32 v46, 31, v1')
    E('v_lshrrev_b32 v47, 5, v1')
    E('v_and_b32 v48, 15, v1')
    E('v_xor_b32 v48, v48, v47')
    E('v_lshlrev_b32 v48, 4, v48')
    E('v_lshl_add_u32 v48, v46, 8, v48')
    E('v_add_u32 v54, s4, v48')
    E('v_add_u32 v60, 0x%x, v19' % STATS)
    E('v_add_u32 v61, 0x%x, v20' % STATS)
    def ktr(kt):
        w_ = lambda: vwait('K%d' % kt)
        w_.cost = 0
        out = [w_]
        for m in range(8):
            r = (kt * 8 + m) * 4
            out.append(lambda m=m, r=r: E('ds_write_b128 v%d, a[%d:%d] offset:%d' % (6 + (m & 3), r, r + 3, m * 1024)))
        for ks in range(8):
            r = (kt * 8 + ks) * 4
            def f(ks=ks, r=r):
                E('v_xor_b32 v%d, %d, v54' % (55 + (ks & 1), ks * 32))
                E('ds_read_b128 a[%d:%d], v%d' % (r, r + 3, 55 + (ks & 1)), tag='kt%d' % kt)
            out.append(f)
        return out
    SB = [64, 128]
    MX = 62
    def sreg(u, kt):
        return SB[u & 1] + (kt & 1) * 16
    def max_ops(u, kt):
        out = []
        for i in range(8):
            s_ = sreg(u, kt) + 2 * i
            if (kt & 1) == 0 and i == 0:
                out.append(lambda s_=s_: E('v_max_f32 v%d, v%d, v%d' % (MX, s_, s_ + 1)))
            else:
                out.append(lambda s_=s_: E('v_max3_f32 v%d, v%d, v%d, v%d' % (MX, s_, s_ + 1, MX)))
        return out
    def s_mf(u, kt):
        q = u % 3
        mf = []
        for ks in range(8):
            s_ = sreg(u, kt)
            src = 'v[%d:%d]' % (s_, s_ + 15) if ks > 0 else '0'
            kr = (kt * 8 + ks) * 4
            qr = QF + (q * 8 + ks) * 4
            mf.append(lambda s_=s_, kr=kr, qr=qr, src=src: E('v_mfma_f32_32x32x16_bf16 v[%d:%d], a[%d:%d], a[%d:%d], %s' % (
                s_, s_ + 15, kr, kr + 3, qr, qr + 3, src)))
        return mf
    PK = [30, 34, 38, 42]
    pkc = [0]
    OA = [0, 64]
    PSL = {(0, 0): 0, (0, 1): 8192, (1, 0): 16384, (1, 1): 24576, (2, 0): 32768, (2, 1): 40960,
           (0, 2): 49152, (0, 3): 57344, (1, 2): 0, (1, 3): 16384, (2, 2): 32768, (2, 3): 8192}
    def exp_ops(u, kt):
        q = u % 3
        out = []
        s0 = sreg(u, kt)
        for hf in range(2):
            pk = PK[pkc[0] % 4]; pkc[0] += 1
            regs = [s0 + 8 * hf + i for i in range(8)]
            for r in regs:
                out.append(lambda r=r: E('v_fma_f32 v%d, v%d, s36, -v%d' % (r, r, 21 + q)))
            for r in regs:
                out.append(lambda r=r: E('v_exp_f32 v%d, v%d' % (r, r)))
            for k, r in enumerate(regs):
                if kt == 0 and hf == 0 and k == 0:
                    out.append(lambda r=r: E('v_add_f32 v%d, v%d, v%d' % (24 + q, r, r + 1)))
                elif kt == 0 and hf == 0 and k == 1:
                    pass
                else:
                    out.append(lambda r=r: E('v_add_f32 v%d, v%d, v%d' % (24 + q, r, 24 + q)))
                if k & 1:
                    out.append(lambda r=r, pk=pk, k=k: E('v_cvt_pk_bf16_f32 v%d, v%d, v%d' % (pk + k // 2, r - 1, r)))
            off = PSL[(q, kt)] + hf * 1024
            out.append(lambda pk=pk, off=off: E('ds_write_b128 v15, v[%d:%d] offset:%d' % (pk, pk + 3, off)))
        return out
    def exchange(u):
        h, q = u // 3, u % 3
        E('ds_write_b32 v60, v%d offset:%d' % (MX, q * 1024))
        e.wait(lds='all')
        stamp()
        E('s_barrier')
        E('ds_read_b128 v[46:49], v61 offset:%d' % (q * 1024), tag='st')
        E('ds_read_b128 v[50:53], v61 offset:%d' % (q * 1024 + 16), tag='st')
        out = [lambda: e.wait(lds='st')]
        ops = ['v_max3_f32 v46, v46, v47, v48', 'v_max3_f32 v50, v50, v51, v52', 'v_max3_f32 v46, v46, v49, v53', 'v_max_f32 v46, v46, v50']
        if h == 0:
            ops += ['v_mul_f32 v%d, s36, v46' % (21 + q)]
        else:
            ops += ['v_mul_f32 v46, s36, v46', 'v_max_f32 v46, v46, v%d' % (21 + q), 'v_sub_f32 v47, v%d, v46' % (21 + q),
                    'v_exp_f32 v%d, v47' % (57 + q), 'v_mov_b32 v%d, v46' % (21 + q), 'v_mul_f32 v%d, v%d, v%d' % (24 + q, 24 + q, 57 + q)]
        out += [(lambda o=o: E(o)) for o in ops]
        if not XDEF:
            for f in out:
                f()
            out = []
        return out

    PB4 = [96, 112, 160, 176]
    pvc = [0]
    def C(cost, fn):
        fn.cost = cost
        return fn
    def pv_anchors(lst):
        steps = []
        for (t, qs, first) in lst:
            for n in range(8):
                steps.append((t, qs, first, n))
        base = pvc[0]
        pvc[0] += len(steps)
        def reads(i):
            t, qs, first, n = steps[i]
            u, hf = n // 2, n % 2
            b = PB4[(base + i) & 3]
            vb = 14 if (t & 1) == 0 else 10
            tag = 'pv%d' % (base + i)
            out = []
            for ee in range(2):
                out.append(lambda ee=ee: E('ds_read_b64_tr_b16 v[%d:%d], v%d offset:%d' % (
                    b + 2 * ee, b + 2 * ee + 1, vb, (32 * u + 16 * hf + 8 * ee) * 256), tag=tag))
            for qt in qs:
                off = PSL[(qt, t)] + u * 2048 + hf * 1024
                out.append(lambda qt=qt, off=off: E('ds_read_b128 v[%d:%d], v11 offset:%d' % (
                    b + 4 + 4 * qt, b + 7 + 4 * qt, off), tag=tag))
            return out
        pro = reads(0) + reads(1)
        anc = []
        for i, (t, qs, first, n) in enumerate(steps):
            b = PB4[(base + i) & 3]
            rd = reads(i + 2) if i + 2 < len(steps) else []
            k = len(qs)
            for x, qt in enumerate(qs):
                o = OA[t >> 1] + 16 * qt
                src = '0' if (first and n == 0) else 'a[%d:%d]' % (o, o + 15)
                fn = (lambda o=o, b=b, qt=qt, src=src: E('v_mfma_f32_32x32x16_bf16 a[%d:%d], v[%d:%d], v[%d:%d], %s' % (
                    o, o + 15, b, b + 3, b + 4 + 4 * qt, b + 7 + 4 * qt, src)))
                pre = [lambda i=i: e.wait(lds='pv%d' % (base + i))] if x == 0 else []
                post = rd[len(rd) * x // k: len(rd) * (x + 1) // k]
                anc.append((pre, fn, post))
        return pro, anc

    WOR = 240
    def wo_loads():
        out = []
        def pre():
            E('s_lshr_b32 s4, s2, 2')
            E('s_lshl_b32 s4, s4, 16')
            E('s_and_b32 s5, s2, 3')
            E('s_lshl_b32 s5, s5, 8')
            E('s_add_u32 s4, s4, s5')
            E('s_lshl_b32 s5, s3, 14')
            E('s_add_u32 s56, s4, s5')
            E('v_lshrrev_b32 v3, 4, v1')
            E('v_and_b32 v4, 15, v1')
            E('v_lshlrev_b32 v3, 10, v3')
            E('v_lshl_add_u32 v3, v4, 4, v3')
        out.append(pre)
        for m in range(4):
            def f(m=m):
                E('s_add_u32 s6, s56, %d' % (m * 4096))
                E('buffer_load_dwordx4 a[%d:%d], v3, s[24:27], s6 offen' % (WOR + 4 * m, WOR + 4 * m + 3), tag='WO')
            out.append(f)
        return out
    def wp_reg(j, i):
        if 1 <= j <= 4:
            return 'a', 128 + ((j + 2) % 4) * 32 + 4 * i
        if j == 7 and P4:
            return 'v', [144, 148, 152, 156, 32, 36, 40, 16][i]
        if j in (0, 7):
            return 'v', 192 + 4 * i
        if j == 5:
            return 'v', 224 + 4 * i
        return 'a', (48 + 4 * i) if i < 4 else (112 + 4 * (i - 4))
    def wp_pre():
        E('s_lshl_b32 s4, s39, 17')
        E('s_lshl_b32 s5, s3, 8')
        E('s_add_u32 s56, s4, s5')
        E('v_lshrrev_b32 v3, 4, v1')
        E('v_and_b32 v4, 15, v1')
        E('v_lshlrev_b32 v4, 4, v4')
        E('v_lshl_add_u32 v3, v3, 13, v4')
    def wp_load(j, i):
        def f():
            fl, r = wp_reg(j, i)
            if i % 4 == 0:
                E('s_add_u32 s62, s56, %d' % ((32 * j + i) * 1024))
            E('buffer_load_dwordx4 %s[%d:%d], v3, s[24:27], s62 offen offset:%d' % (fl, r, r + 3, (i % 4) * 1024), tag='wp%d' % j)
        return C(20, f)
    def v_store(t):
        out = [C(0, lambda: vwait('V%d' % t))]
        def pre():
            E('s_lshl_b32 s4, s3, 13')
            E('s_add_u32 s4, s4, %d' % VS[t])
            E('v_add_u32 v55, s4, v13')
        out.append(pre)
        for mm in range(8):
            r = 192 + (t - 2) * 32 + mm * 4
            out.append(lambda r=r, mm=mm: E('ds_write_b128 v55, v[%d:%d] offset:%d' % (r, r + 3, mm * 1024)))
        return out
    def iss(n):
        return [C(20, lambda: issue(SLOWCOST))] * n

    E('v_add_u32 v10, 0x%x, v14' % (VS[1] - VS[0]))
    for f in ktr(0):
        f()
    e.wait(lds='kt0')
    stamp()
    xpost = []
    for u in range(6):
        h, q = u // 3, u % 3
        t0, t1 = 2 * h, 2 * h + 1
        sa = [([], f, []) for f in s_mf(u, t0)] + [([], f, []) for f in s_mf(u, t1)]
        if q == 0:
            sa[8] = ([lambda t1=t1: e.wait(lds='kt%d' % t1)], sa[8][1], [])
        pro = []
        if u in (4, 5):
            pro, pa = pv_anchors([(u - 4, (0, 1, 2), u == 4)])
            anc = sa[:2] + merge(sa[2:], pa[:PVS]) + pa[PVS:]
        else:
            anc = sa
        i7 = [k for k, a in enumerate(anc) if a[1] is sa[7][1]][0]
        i15 = [k for k, a in enumerate(anc) if a[1] is sa[15][1]][0]
        s0, s1 = [], []
        if u > 0:
            pu = u - 1
            s0 = exp_ops(pu, 2 * (pu // 3))
            s1 = exp_ops(pu, 2 * (pu // 3) + 1)
        if q == 0:
            s0 = ktr(t1) + s0 if KTF else merge(s0, ktr(t1))
        if u == 2:
            s1 = merge(s1, ktr(2))
        if u == 5:
            s1 = merge(s1, v_store(2))
        if u == 4 and not FUSE and not PART:
            s1 = merge(s1, wo_loads())
        if u == 4 and PART:
            early = [wp_load(1, m) for m in range(8)] + [wp_load(6, m) for m in range(4)]
            late6 = [wp_load(j, m) for j in (2, 3, 4) for m in range(8)] + [wp_load(6, m) for m in range(4, 8)]
            late6 = early[PFA:] + late6
            s1 = merge(s1, [wp_pre] + early[:PFA])
        s0 = xpost + merge(s0, iss(NV_S[u][0]))
        s1 = merge(s1, iss(NV_S[u][1]))
        cons = [(i7 + 1, f) for f in max_ops(u, t0)] + [(i15 + 1, f) for f in max_ops(u, t1)]
        if FUSE > 1 and u == 4:
            E('s_and_b32 s4, s2, 3')
            E('s_lshl_b32 s4, s4, 2')
            E('s_add_u32 s4, s4, 64')
            E('v_mov_b32 v4, 1')
            E('v_mov_b32 v3, 0')
            E('s_cmp_eq_u32 s3, 0')
            E('s_cselect_b32 s58, 1, 0')
            E('s_mov_b32 s59, 0')
            E('s_mov_b64 exec, s[58:59]')
            E('buffer_atomic_add v4, v3, s[20:23], s4 offen sc1')
            E('s_mov_b64 exec, -1')
        if FUSE > 1 and u == 5:
            E('s_lshr_b32 s4, s39, 3')
            E('s_lshl_b32 s4, s4, 2')
            E('s_add_u32 s4, s4, 64')
            E('buffer_load_dword v5, v3, s[20:23], s4 offen sc0 sc1', tag='rdy')
        for f in pro:
            f()
        if q == 0:
            sched(e, anc[:8], s0, burst=BURST if u else 0)
            sched(e, anc[8:], s1, [(m - 8, f) for m, f in cons])
        else:
            sched(e, anc, s0 + s1, cons, burst=BURST)
        if u == 3:
            vwait('V0')
        if u == 4:
            vwait('V1')
        xpost = exchange(u)
        if u == 2:
            stamp(True)
    tail = exp_ops(5, 2) + exp_ops(5, 3)
    tail = xpost + merge(tail, v_store(3))
    for qt in range(3):
        tail.append(lambda qt=qt: E('ds_write_b32 v60, v%d offset:%d' % (24 + qt, LSTAT - STATS + qt * 1024)))
    def stg():
        e.wait(vm='WO')
        E('s_lshl_b32 s4, s3, 12')
        E('s_add_u32 s4, s4, %d' % WOST)
        E('v_add_u32 v56, s4, v13')
        for m in range(4):
            E('ds_write_b128 v56, a[%d:%d] offset:%d' % (WOR + 4 * m, WOR + 4 * m + 3, m * 1024))
    if not FUSE and not PART:
        tail.append(stg)
    if PART:
        late6 = [wp_load(0, m) for m in range(8)] + late6
        tail = merge(tail, late6[:PF6])
        late7 = late6[PF6:] + [wp_load(5, m) for m in range(8)]
        if P4:
            late7 += [wp_load(7, m) for m in range(8)]
    if FUSE > 1:
        e.wait(vm='rdy')
        E('v_readfirstlane_b32 s64, v5')
        E('s_mov_b32 s12, s54')
        E('s_and_b32 s13, s55, 0xffff')
        E('s_cmp_ge_u32 s64, 64')
        E('s_cselect_b32 s14, 0x%x, 0' % WS_SIZE)
        E('s_mov_b32 s15, 0x20000')
        if P3PF:
            E('s_lshr_b32 s4, s2, 3')
            E('s_lshl_b32 s4, s4, 2')
            E('s_add_u32 s4, s4, s3')
            E('s_lshl_b32 s4, s4, 13')
            E('s_lshr_b32 s5, s39, 3')
            E('s_lshl_b32 s5, s5, 20')
            E('s_add_u32 s4, s4, s5')
            E('s_add_u32 s4, s4, 0x%x' % WOT_OFF)
            E('v_lshlrev_b32 v4, 7, v1')
            E('buffer_load_dword v5, v4, s[12:15], s4 offen', tag='pf')
    pro, pa = pv_anchors([(2, (0, 1), True)])
    for f in pro:
        f()
    sched(e, pa, tail, lead=100)
    e.wait(lds='all')
    stamp()
    E('s_barrier')
    stamp(True)
    b = []
    TB = [64, 80, 128]
    for qt in range(3):
        def ls(qt=qt):
            E('ds_read_b128 v[46:49], v61 offset:%d' % (LSTAT - STATS + qt * 1024), tag='ls%d' % qt)
            E('ds_read_b128 v[50:53], v61 offset:%d' % (LSTAT - STATS + qt * 1024 + 16), tag='ls%d' % qt)
            e.wait(lds='ls%d' % qt)
            E('v_add_f32 v46, v46, v47')
            E('v_add_f32 v48, v48, v49')
            E('v_add_f32 v50, v50, v51')
            E('v_add_f32 v52, v52, v53')
            E('v_add_f32 v46, v46, v48')
            E('v_add_f32 v50, v50, v52')
            E('v_add_f32 v46, v46, v50')
            E('v_rcp_f32 v%d, v46' % (24 + qt))
            E('v_mul_f32 v%d, v%d, v%d' % (57 + qt, 57 + qt, 24 + qt))
        b.append(ls)
        for r in range(16):
            def f(qt=qt, r=r):
                E('v_accvgpr_read_b32 v%d, a%d' % (TB[qt] + r, OA[0] + 16 * qt + r))
                E('v_mul_f32 v%d, v%d, v%d' % (TB[qt] + r, TB[qt] + r, 57 + qt))
            b.append(f)
    def wt_addr():
        E('v_lshrrev_b32 v46, 4, v1')
        E('v_lshrrev_b32 v47, 2, v1')
        E('v_and_b32 v47, 3, v47')
        E('v_and_b32 v48, 3, v1')
        E('v_lshl_add_u32 v49, v46, 3, v47')
        E('v_lshlrev_b32 v49, 8, v49')
        E('v_xor_b32 v50, s3, v47')
        E('v_lshl_add_u32 v49, v50, 6, v49')
        E('v_lshl_add_u32 v49, v48, 3, v49')
        E('v_add_u32 v49, 0x%x, v49' % WOST)
        for kk in range(2):
            for nn in range(2):
                for hh in range(2):
                    r = 30 + (kk * 2 + nn) * 4 + 2 * hh
                    E('ds_read_b64_tr_b16 v[%d:%d], v49 offset:%d' % (r, r + 1, (32 * kk + 4 * hh) * 256 + nn * 32), tag='wt')
    if not FUSE and not PART:
        b.append(wt_addr)
    if PART:
        b = merge(b, late7)
    def epi(qt):
        out = []
        T = TB[qt]
        U = (96 if PART else 192) + (qt & 1) * 16
        for r in range(16):
            out.append(lambda r=r: E('v_accvgpr_read_b32 v%d, a%d' % (U + r, OA[1] + 16 * qt + r)))
        for r in range(16):
            out.append(lambda r=r: E('v_fma_f32 v%d, v%d, v%d, v%d' % (T + r, U + r, 24 + qt, T + r)))
        for k in range(8):
            out.append(lambda k=k: E('v_cvt_pk_bf16_f32 v%d, v%d, v%d' % (T + k, T + 2 * k, T + 2 * k + 1)))
        for k in (0, 2):
            def f(k=k):
                E('v_permlane32_swap_b32 v%d, v%d' % (T + 2 * k, T + 2 * k + 2))
                E('v_permlane32_swap_b32 v%d, v%d' % (T + 2 * k + 1, T + 2 * k + 3))
                if PART:
                    E('ds_write_b128 v%d, v[%d:%d] offset:%d' % (27 + qt, T + 2 * k, T + 2 * k + 3, k * 256))
                else:
                    E('buffer_store_dwordx4 v[%d:%d], v%d, s[28:31], s57 offen offset:%d%s' % (T + 2 * k, T + 2 * k + 3, 27 + qt, k * 256, STPOL))
            out.append(f)
        return out
    E('s_mul_i32 s4, s37, 393216')
    E('s_lshl_b32 s5, s39, 2')
    E('s_add_u32 s5, s5, s3')
    E('s_mul_i32 s5, s5, 3072')
    E('s_add_u32 s57, s4, s5')
    if EPO:
        pro, pa = pv_anchors([(3, (0, 1), False), (2, (2,), True), (3, (2,), False)])
        for f in pro:
            f()
        sched(e, pa[:16], b, lead=60)
        sched(e, pa[16:], epi(0) + epi(1), burst=1)
        stamp()
        for f in epi(2):
            f()
    else:
        pro, pa = pv_anchors([(2, (2,), True), (3, (0, 1, 2), False)])
        for f in pro:
            f()
        sched(e, pa, b, lead=60)
        stamp()
        for qt in range(3):
            for f in epi(qt):
                f()
    if PART and P4:
        phase3q(e, stamp, wp_reg, C)
    elif PART:
        phase3p(e, stamp, wp_reg, wp_load, C)
    elif FUSE:
        phase3(e, stamp)
    else:
        E('s_and_b32 s4, s2, 3')
        E('s_lshl_b32 s4, s4, 3')
        E('s_lshl_b32 s5, s3, 1')
        E('s_add_u32 s4, s4, s5')
        E('s_lshl_b32 s4, s4, 17')
        E('s_lshr_b32 s5, s2, 2')
        E('s_lshl_b32 s5, s5, 11')
        E('s_add_u32 s4, s4, s5')
        E('s_add_u32 s4, s4, 0x%x' % WOT_OFF)
        E('s_add_u32 s5, s4, 0x20000')
        e.wait(lds='wt')
        for kk in range(2):
            for nn in range(2):
                r = 30 + (kk * 2 + nn) * 4
                E('buffer_store_dwordx4 v[%d:%d], v11, s[28:31], s%d offen offset:%d%s' % (r, r + 3, 4 + nn, kk * 1024, STPOL))
    stamp(True)
    e.label('L_a_done')
    E('s_endpgm')
    return e


def phase3p(e, stamp, wp_reg, wp_load, C):
    E = e
    ACC = 64
    WF = [160, 32]
    ORD = [0, 5, 1, 2, 3, 4, 6, 7]
    def OB(j):
        return 65536 + 3072 * j if j < 5 else 89088 + 3072 * (j - 5)
    def oreg(j, st):
        i = j * 3 + st
        return i * 4 if i < 12 else 64 + (i - 12) * 4
    E('v_add_u32 v8, 0x10000, v11')
    E('s_mov_b32 s68, 0x05040100')
    E('s_mov_b32 s69, 0x07060302')
    E('s_lshl_b32 s4, s37, 4')
    E('s_lshr_b32 s5, s39, 1')
    E('s_add_u32 s4, s4, s5')
    E('s_mul_i32 s4, s4, 49152')
    E('s_mul_i32 s5, s3, 12288')
    E('s_add_u32 s4, s4, s5')
    E('s_add_u32 s57, s4, 0x%x' % PRT_OFF)
    def oread(j):
        out = []
        for st in range(3):
            r = oreg(j, st)
            out.append(lambda r=r, st=st: E('ds_read_b128 a[%d:%d], v8 offset:%d' % (r, r + 3, OB(j) - 65536 + st * 1024), tag='o%d' % j))
        return out
    tc = [0]
    def tr(x):
        j = ORD[x]
        out = [C(0, lambda: e.wait(vm='wp%d' % j))]
        for c in range(4):
            for ip in range(4):
                def f(c=c, ip=ip):
                    fl, r0 = wp_reg(j, 2 * ip)
                    fl, r1 = wp_reg(j, 2 * ip + 1)
                    r0 += c; r1 += c
                    if fl == 'a':
                        t0 = 16 + 2 * (tc[0] & 3); tc[0] += 1
                        E('v_accvgpr_read_b32 v%d, a%d' % (t0, r0))
                        E('v_accvgpr_read_b32 v%d, a%d' % (t0 + 1, r1))
                        r0, r1 = t0, t0 + 1
                    d = WF[x & 1] + 8 * c + ip
                    E('v_perm_b32 v%d, v%d, v%d, s68' % (d, r1, r0))
                    E('v_perm_b32 v%d, v%d, v%d, s69' % (d + 4, r1, r0))
                out.append(f)
        return out
    for f in tr(0):
        f()
    e.wait(lds='all')
    stamp()
    E('s_barrier')
    stamp(True)
    for f in oread(ORD[0]) + oread(ORD[1]) + [wp_load(7, m) for m in range(8)]:
        f()
    for x in range(8):
        j = ORD[x]
        anc = []
        order = [(t, st) for t in range(8) for st in range(3)] if x < 7 else [(t, st) for st in range(3) for t in range(8)]
        for (t, st) in order:
            a = ACC + (t * 3 + st) * 4
            src = 'v[%d:%d]' % (a, a + 3) if x > 0 else '0'
            w = WF[x & 1] + 4 * t
            o = oreg(j, st)
            fn = (lambda a=a, w=w, o=o, src=src: E('v_mfma_f32_16x16x32_bf16 v[%d:%d], v[%d:%d], a[%d:%d], %s' % (
                a, a + 3, w, w + 3, o, o + 3, src)))
            anc.append(([], fn, []))
        e.wait(lds='o%d' % j)
        if P3ST:
            stamp(True)
        fill = []
        if x + 2 < 8:
            fill += oread(ORD[x + 2])
        if x + 1 < 8:
            fill += tr(x + 1)
        cons = []
        if x == 7:
            for st in range(3):
                for r in range(4):
                    d = WF[0] + (st & 1) * 16 + 4 * r
                    def f(d=d, st=st, r=r):
                        for c in range(4):
                            E('v_cvt_pk_bf16_f32 v%d, v%d, v%d' % (d + c, ACC + (2 * c * 3 + st) * 4 + r, ACC + ((2 * c + 1) * 3 + st) * 4 + r))
                        if r == 0:
                            E('s_add_u32 s4, s57, %d' % (st * 4096))
                        E('buffer_store_dwordx4 v[%d:%d], v11, s[28:31], s4 offen offset:%d%s' % (d, d + 3, r * 1024, STPOL))
                    cons.append((8 * st + 7 + 2 + r, f))
        sched(e, anc, fill, cons)
    stamp()


def phase3q(e, stamp, wp_reg, C):
    E = e
    ACC = [64, 88]
    WB = 112
    ORD = [0, 1, 2, 3, 4, 6, 5, 7]
    def OB(j):
        return 65536 + 3072 * j if j < 5 else 89088 + 3072 * (j - 5)
    def oreg(j, st):
        i = j * 3 + st
        return i * 4 if i < 12 else 64 + (i - 12) * 4
    E('v_add_u32 v8, 0x10000, v11')
    E('s_mov_b32 s68, 0x05040100')
    E('s_mov_b32 s69, 0x07060302')
    E('s_lshl_b32 s4, s37, 4')
    E('s_lshr_b32 s5, s39, 1')
    E('s_add_u32 s4, s4, s5')
    E('s_mul_i32 s4, s4, 49152')
    E('s_mul_i32 s5, s3, 12288')
    E('s_add_u32 s4, s4, s5')
    E('s_add_u32 s57, s4, 0x%x' % PRT_OFF)
    def oread(j):
        out = []
        for st in range(3):
            r = oreg(j, st)
            out.append(lambda r=r, st=st: E('ds_read_b128 a[%d:%d], v8 offset:%d' % (r, r + 3, OB(j) - 65536 + st * 1024), tag='o%d' % j))
        return out
    tc = [0]
    def tr(s):
        c, j = s // 8, ORD[s % 8]
        out = [C(0, lambda: e.wait(vm='wp%d' % j))] if c == 0 else []
        for ip in range(4):
            def f(ip=ip):
                fl, r0 = wp_reg(j, 2 * ip)
                fl, r1 = wp_reg(j, 2 * ip + 1)
                r0 += c; r1 += c
                if fl == 'a':
                    t0 = 48 + 2 * (tc[0] & 3); tc[0] += 1
                    E('v_accvgpr_read_b32 v%d, a%d' % (t0, r0))
                    E('v_accvgpr_read_b32 v%d, a%d' % (t0 + 1, r1))
                    r0, r1 = t0, t0 + 1
                d = WB + (s & 3) * 8 + ip
                E('v_perm_b32 v%d, v%d, v%d, s68' % (d, r1, r0))
                E('v_perm_b32 v%d, v%d, v%d, s69' % (d + 4, r1, r0))
            out.append(f)
        return out
    def pack(c, st):
        def f():
            a = ACC[c & 1] + st * 8
            d = 160 + ((c * 3 + st) & 3) * 4
            for r in range(4):
                E('v_cvt_pk_bf16_f32 v%d, v%d, v%d' % (d + r, a + r, a + 4 + r))
            E('s_add_u32 s4, s57, %d' % (c * 3072))
            E('buffer_store_dwordx4 v[%d:%d], v11, s[28:31], s4 offen offset:%d%s' % (d, d + 3, st * 1024, STPOL))
        return f
    for f in tr(0) + tr(1):
        f()
    e.wait(lds='all')
    stamp()
    E('s_barrier')
    stamp(True)
    for f in oread(ORD[0]) + oread(ORD[1]):
        f()
    for s in range(32):
        c, x = s // 8, s % 8
        j = ORD[x]
        anc = []
        for st in range(3):
            for t in range(2):
                a = ACC[c & 1] + st * 8 + t * 4
                src = 'v[%d:%d]' % (a, a + 3) if x > 0 else '0'
                w = WB + (s & 3) * 8 + 4 * t
                o = oreg(j, st)
                fn = (lambda a=a, w=w, o=o, src=src: E('v_mfma_f32_16x16x32_bf16 v[%d:%d], v[%d:%d], a[%d:%d], %s' % (
                    a, a + 3, w, w + 3, o, o + 3, src)))
                anc.append(([], fn, []))
        if c == 0:
            e.wait(lds='o%d' % j)
        if P3ST and x == 0:
            stamp(True)
        fill = []
        if s + 2 < 8:
            fill += oread(ORD[x + 2])
        if c > 0 and x < 3:
            fill.append(pack(c - 1, x))
        if s + 2 < 32:
            fill += tr(s + 2)
        cons = []
        if s == 31:
            cons = [(3, pack(3, 0)), (5, pack(3, 1)), (6, pack(3, 2))]
        sched(e, anc, fill, cons)
    stamp()


def kernel_r():
    e = Emitter()
    E = e
    e.raw('.p2align 8')
    e.raw('.globl %s' % KB)
    e.raw('.type %s,@function' % KB)
    e.label(KB)
    E('s_cmp_ge_u32 s2, 256')
    E('s_cbranch_scc1 L_b_done')
    E('s_load_dwordx2 s[40:41], s[0:1], 40')
    E('s_load_dwordx2 s[42:43], s[0:1], 56')
    E('v_and_b32 v1, 63, v0')
    E('v_lshrrev_b32 v2, 6, v0')
    E('s_nop 0')
    E('v_readfirstlane_b32 s3, v2')
    E('s_lshr_b32 s37, s2, 4')
    E('s_and_b32 s38, s2, 15')
    E('s_mul_i32 s32, s37, 786432')
    if P4:
        E('s_lshr_b32 s33, s38, 2')
        E('s_and_b32 s4, s38, 3')
        E('s_mul_i32 s4, s4, 3')
        E('s_lshr_b32 s5, s3, 2')
        E('s_add_u32 s4, s4, s5')
        E('s_lshr_b32 s34, s4, 2')
        E('s_and_b32 s35, s4, 3')
        E('s_and_b32 s36, s3, 3')
        E('s_mul_i32 s4, s33, 12')
        E('s_mul_i32 s5, s36, 3')
        E('s_add_u32 s4, s4, s5')
        E('s_add_u32 s4, s4, s34')
        E('s_lshl_b32 s4, s4, 10')
        E('s_add_u32 s32, s32, s4')
        E('s_lshl_b32 s4, s35, 8')
        E('s_add_u32 s32, s32, s4')
    else:
        E('s_mul_i32 s4, s38, 3072')
        E('s_add_u32 s32, s32, s4')
        E('s_lshl_b32 s4, s3, 8')
        E('s_add_u32 s32, s32, s4')
    E('s_add_u32 s32, s32, 0x%x' % PRT_OFF)
    E('v_lshlrev_b32 v11, 2, v1')
    E('s_waitcnt lgkmcnt(0)')
    E('s_mov_b32 s28, s42')
    E('s_and_b32 s29, s43, 0xffff')
    E('s_mov_b32 s30, 0x%x' % WS_SIZE)
    E('s_mov_b32 s31, 0x20000')
    for p in range(16):
        E('s_add_u32 s5, s32, %d' % (p * 49152))
        E('buffer_load_dword v%d, v11, s[28:31], s5 offen' % (16 + p), tag='p%d' % p)
    E('s_mov_b32 s8, s40')
    E('s_and_b32 s9, s41, 0xffff')
    E('s_mov_b32 s10, 786432')
    E('s_mov_b32 s11, 0x20000')
    if P4:
        E('s_mul_i32 s6, s37, 49152')
        E('s_lshl_b32 s5, s33, 8')
        E('s_add_u32 s6, s6, s5')
        E('s_lshl_b32 s5, s34, 14')
        E('s_add_u32 s6, s6, s5')
        E('s_lshl_b32 s5, s35, 6')
        E('s_add_u32 s6, s6, s5')
        E('s_lshl_b32 s5, s36, 2')
        E('s_add_u32 s6, s6, s5')
        E('v_lshrrev_b32 v2, 2, v1')
        E('v_lshlrev_b32 v2, 10, v2')
        E('v_and_b32 v3, 3, v1')
        E('v_lshl_add_u32 v2, v3, 4, v2')
    else:
        E('s_mul_i32 s4, s38, 3')
        E('s_lshr_b32 s5, s3, 2')
        E('s_add_u32 s4, s4, s5')
        E('s_mul_i32 s5, s4, 43')
        E('s_lshr_b32 s5, s5, 9')
        E('s_mul_i32 s6, s5, 12')
        E('s_sub_u32 s4, s4, s6')
        E('s_mul_i32 s6, s37, 49152')
        E('s_lshl_b32 s5, s5, 8')
        E('s_add_u32 s6, s6, s5')
        E('s_lshr_b32 s5, s4, 2')
        E('s_lshl_b32 s5, s5, 14')
        E('s_add_u32 s6, s6, s5')
        E('s_and_b32 s5, s4, 3')
        E('s_lshl_b32 s5, s5, 4')
        E('s_add_u32 s6, s6, s5')
        E('s_and_b32 s5, s3, 3')
        E('s_lshl_b32 s5, s5, 6')
        E('s_add_u32 s6, s6, s5')
        E('v_lshrrev_b32 v2, 2, v1')
        E('v_lshlrev_b32 v2, 10, v2')
        E('v_and_b32 v3, 3, v1')
        E('v_lshl_add_u32 v2, v3, 2, v2')
    E('s_mov_b32 s7, 0xffff0000')
    for p in range(16):
        e.wait(vm='p%d' % p)
        d = 4 if p < 2 else 8
        d = (4 + 2 * p) if p < 2 else (8 + 2 * (p & 1))
        E('v_lshlrev_b32 v%d, 16, v%d' % (d, 16 + p))
        E('v_and_b32 v%d, s7, v%d' % (d + 1, 16 + p))
        if p >= 2:
            a = 4 + 2 * (p & 1)
            E('v_pk_add_f32 v[%d:%d], v[%d:%d], v[%d:%d]' % (a, a + 1, a, a + 1, d, d + 1))
    E('v_pk_add_f32 v[4:5], v[4:5], v[6:7]')
    E('v_cvt_pk_bf16_f32 v4, v4, v5')
    E('buffer_store_dword v4, v2, s[8:11], s6 offen')
    e.label('L_b_done')
    E('s_endpgm')
    return e


def phase3(e, stamp):
    E = e
    E('s_mov_b32 s20, s52')
    E('s_and_b32 s21, s53, 0xffff')
    E('s_mov_b32 s22, 256')
    E('s_mov_b32 s23, 0x20000')
    E('s_mov_b32 s8, s50')
    E('s_and_b32 s9, s51, 0xffff')
    E('s_mov_b32 s10, 786432')
    E('s_mov_b32 s11, 0x20000')
    E('s_lshl_b32 s62, s37, 2')
    E('s_mul_i32 s63, s3, 40960')
    E('v_mov_b32 v2, 1')
    E('v_mov_b32 v3, 0')
    E('s_cmp_eq_u32 s3, 0')
    E('s_cselect_b32 s58, 1, 0')
    E('s_mov_b32 s59, 0')
    def pub():
        E('s_barrier')
        E('s_mov_b64 exec, s[58:59]')
        E('buffer_atomic_add v2, v3, s[20:23], s62 offen sc1')
        E('s_mov_b64 exec, -1')
    if FUSE > 1:
        E('s_cmp_ge_u32 s64, 64')
        E('s_cbranch_scc0 L_slow')
        q0 = list(e.vmq)
        E('s_lshl_b32 s33, s39, 17')
        E('s_lshl_b32 s5, s3, 15')
        E('s_add_u32 s33, s33, s5')
        E('s_add_u32 s33, s33, 0x%x' % WOT_OFF)
        E('s_lshr_b32 s5, s39, 1')
        E('s_add_u32 s34, s37, s5')
        E('s_and_b32 s34, s34, %d' % P3ROT)
        for n in range(64):
            i, nn = n // 2, n % 2
            if n % 8 == 0:
                E('s_add_u32 s5, s34, %d' % (n // 8))
                E('s_and_b32 s5, s5, 7')
                E('s_lshl_b32 s5, s5, 12')
                E('s_add_u32 s56, s33, s5')
                E('s_add_u32 s57, s56, 0x20000')
            if n == 40:
                e.wait(vm=q0[-1], lds='all')
                if DIAG:
                    E('s_memtime s[68:69]')
                    E('s_waitcnt lgkmcnt(0)')
                pub()
            if n == 60:
                e.wait(vm='wf3')
            E('buffer_load_dwordx4 a[%d:%d], v11, s[28:31], s%d offen offset:%d' % (n * 4, n * 4 + 3, 56 + nn, (i % 4) * 1024), tag='wf%d' % n)
        if P3X:
            e.wait(vm='all')
            E('s_memtime s[68:69]')
            E('s_waitcnt lgkmcnt(0)')
            for n in range(64):
                i, nn = n // 2, n % 2
                if n % 8 == 0:
                    E('s_add_u32 s5, s34, %d' % (n // 8))
                    E('s_and_b32 s5, s5, 7')
                    E('s_lshl_b32 s5, s5, 12')
                    E('s_add_u32 s56, s33, s5')
                    E('s_add_u32 s57, s56, 0x20000')
                if n == 60:
                    e.wait(vm='wf3')
                E('buffer_load_dwordx4 a[%d:%d], v11, s[28:31], s%d offen offset:%d' % (n * 4, n * 4 + 3, 56 + nn, (i % 4) * 1024), tag='wf%d' % n)
            e.wait(vm='all')
        if DIAG:
            E('s_memtime s[70:71]')
            E('s_waitcnt lgkmcnt(0)')
            E('s_lshl_b32 s5, s2, 2')
            E('s_add_u32 s5, s5, s3')
            E('s_lshl_b32 s5, s5, 8')
            E('s_add_u32 s5, s5, 0x%x' % (0xC00000 + 22 * 8))
            E('v_mov_b32 v63, 0')
            for k in range(4):
                E('v_mov_b32 v0, s%d' % (68 + k))
                e.wait(vm='wf30') if not P3X else None
                E('buffer_store_dword v0, v63, s[28:31], s5 offen offset:%d' % (4 * k))
        E('s_branch L_join')
        e.label('L_slow')
        e.vmq = q0
    E('s_mov_b32 s34, 0')
    e.wait(vm='all', lds='all')
    pub()
    e.vmq = []
    stamp()
    E('v_lshrrev_b32 v4, 2, v1')
    E('v_lshrrev_b32 v5, 5, v1')
    E('v_lshlrev_b32 v5, 1, v5')
    E('v_and_b32 v6, 3, v1')
    E('v_xor_b32 v5, v5, v6')
    E('v_lshlrev_b32 v5, 4, v5')
    E('v_lshl_add_u32 v4, v4, 10, v5')
    E('s_lshl_b32 s56, s3, 20')
    E('s_lshl_b32 s5, s39, 5')
    E('s_add_u32 s56, s56, s5')
    E('v_lshrrev_b32 v46, 4, v1')
    E('v_lshrrev_b32 v47, 2, v1')
    E('v_and_b32 v47, 3, v47')
    E('v_lshl_add_u32 v48, v46, 3, v47')
    E('v_lshlrev_b32 v48, 6, v48')
    E('v_lshl_add_u32 v48, v6, 3, v48')
    E('v_and_b32 v46, 1, v46')
    E('v_lshl_add_u32 v48, v46, 5, v48')
    E('v_add_u32 v7, s63, v48')
    E('v_xor_b32 v8, 32, v7')
    def dma(step, slot):
        for k in range(2):
            E('s_add_u32 s5, s63, %d' % (slot * 2048 + k * 1024))
            E('s_mov_b32 m0, s5')
            E('s_add_u32 s6, s56, %d' % ((step * 2 + k) * 16384))
            E('buffer_load_dwordx4 v4, s[24:27], s6 offen lds', tag='w%d' % step)
    def trd(step, slot):
        for nt in range(2):
            for hh in range(2):
                r = (step * 2 + nt) * 4 + 2 * hh
                E('ds_read_b64_tr_b16 a[%d:%d], v%d offset:%d' % (r, r + 1, 7 + nt, slot * 2048 + hh * 256), tag='t%d' % step)
    for st in range(20):
        dma(st, st)
    for st in range(32):
        e.wait(vm='w%d' % st)
        trd(st, st % 20)
        if st == 12:
            e.wait(lds='t11')
            for s2_ in range(20, 32):
                dma(s2_, s2_ - 20)
    stamp()
    e.wait(vm='all', lds='all')
    e.label('L_join')
    E('s_mov_b32 s7, 0')
    e.label('L_poll')
    E('buffer_load_dword v2, v3, s[20:23], s62 offen sc0 sc1')
    E('s_waitcnt vmcnt(0)')
    E('v_readfirstlane_b32 s4, v2')
    E('s_cmp_ge_u32 s4, 16')
    E('s_cbranch_scc1 L_go')
    E('s_sleep 4')
    E('s_add_u32 s7, s7, 1')
    E('s_cmp_lt_u32 s7, 0x10000')
    E('s_cbranch_scc1 L_poll')
    e.label('L_go')
    e.vmq = []
    stamp()
    E('s_mul_i32 s32, s37, 393216')
    E('s_mul_i32 s4, s3, 98304')
    E('s_add_u32 s32, s32, s4')
    D = P3D
    ACC = 64
    FR = 96
    if P3PF > 1:
        E('s_bfe_u32 s4, s2, 0x20003')
        E('s_lshl_b32 s4, s4, 2')
        E('s_add_u32 s4, s4, s3')
        E('s_mul_i32 s4, s4, 24576')
        E('s_mul_i32 s5, s37, 393216')
        E('s_add_u32 s4, s4, s5')
        E('v_lshlrev_b32 v4, 7, v1')
        for t in range(3):
            E('s_add_u32 s5, s4, %d' % (t * 8192))
            E('buffer_load_dword v%d, v4, s[28:31], s5 offen' % (8 + t), tag='pf')
    def loads(i):
        base = FR + (i % D) * 12
        if i % 4 == 0:
            E('s_add_u32 s35, s34, %d' % (i // 4))
            E('s_and_b32 s35, s35, 7')
            E('s_mul_i32 s35, s35, 12288')
            E('s_add_u32 s35, s35, s32')
        E('s_add_u32 s5, s35, %d' % ((i % 4) * 3072))
        for st in range(3):
            E('buffer_load_dwordx4 v[%d:%d], v11, s[28:31], s5 offen offset:%d' % (base + 4 * st, base + 4 * st + 3, st * 1024), tag='k%d' % i)
    for i in range(D):
        loads(i)
    for i in range(32):
        base = FR + (i % D) * 12
        e.wait(vm='k%d' % i)
        for nn in range(2):
            for st in range(3):
                a = ACC + (nn * 3 + st) * 4
                wr = (i * 2 + nn) * 4
                src = 'v[%d:%d]' % (a, a + 3) if i > 0 else '0'
                E('v_mfma_f32_16x16x32_bf16 v[%d:%d], a[%d:%d], v[%d:%d], %s' % (
                    a, a + 3, wr, wr + 3, base + 4 * st, base + 4 * st + 3, src))
        if i + D < 32:
            loads(i + D)
    stamp()
    E('v_add_u32 v12, s63, v11')
    for tl in range(6):
        E('ds_write_b128 v12, v[%d:%d] offset:%d' % (ACC + 4 * tl, ACC + 4 * tl + 3, tl * 1024))
    e.wait(lds='all')
    E('s_barrier')
    E('v_and_b32 v2, 15, v1')
    E('v_lshrrev_b32 v3, 4, v1')
    E('v_lshlrev_b32 v2, 10, v2')
    E('v_lshl_add_u32 v2, v3, 3, v2')
    E('s_mul_i32 s6, s37, 49152')
    E('s_lshl_b32 s5, s39, 5')
    E('s_add_u32 s6, s6, s5')
    def red(rnd):
        E('s_add_u32 s4, s3, %d' % (4 * rnd))
        E('s_lshl_b32 s5, s4, 10')
        E('v_add_u32 v12, s5, v11')
        E('v_add_u32 v13, 0x14000, v12')
        b0 = 96 + 32 * rnd
        E('ds_read_b128 v[%d:%d], v12' % (b0, b0 + 3), tag='r')
        E('ds_read_b128 v[%d:%d], v12 offset:40960' % (b0 + 4, b0 + 7), tag='r')
        E('ds_read_b128 v[%d:%d], v13' % (b0 + 8, b0 + 11), tag='r')
        E('ds_read_b128 v[%d:%d], v13 offset:40960' % (b0 + 12, b0 + 15), tag='r')
        E('s_cmp_ge_u32 s4, 3')
        E('s_cselect_b32 s7, 1, 0')
        E('s_mul_i32 s5, s7, 3')
        E('s_sub_u32 s5, s4, s5')
        E('s_lshl_b32 s5, s5, 14')
        E('s_lshl_b32 s7, s7, 5')
        E('s_add_u32 s5, s5, s7')
        E('s_add_u32 s5, s5, s6')
        e.wait(lds='r')
        for r in range(4):
            E('v_add_f32 v%d, v%d, v%d' % (b0 + r, b0 + r, b0 + 4 + r))
            E('v_add_f32 v%d, v%d, v%d' % (b0 + 8 + r, b0 + 8 + r, b0 + 12 + r))
        for r in range(4):
            E('v_add_f32 v%d, v%d, v%d' % (b0 + r, b0 + r, b0 + 8 + r))
        E('v_cvt_pk_bf16_f32 v%d, v%d, v%d' % (b0 + 16, b0, b0 + 1))
        E('v_cvt_pk_bf16_f32 v%d, v%d, v%d' % (b0 + 17, b0 + 2, b0 + 3))
        E('buffer_store_dwordx2 v[%d:%d], v2, s[8:11], s5 offen' % (b0 + 16, b0 + 17))
    red(0)
    E('s_cmp_ge_u32 s3, 2')
    E('s_cbranch_scc1 L_a_done')
    red(1)


def kernel_b():
    e = Emitter()
    E = e
    e.raw('.p2align 8')
    e.raw('.globl %s' % KB)
    e.raw('.type %s,@function' % KB)
    e.label(KB)
    E('s_cmp_ge_u32 s2, 256')
    E('s_cbranch_scc1 L_b_done')
    E('s_load_dwordx2 s[40:41], s[0:1], 40')
    E('s_load_dwordx2 s[42:43], s[0:1], 56')
    E('v_and_b32 v1, 63, v0')
    E('v_lshrrev_b32 v2, 6, v0')
    E('s_nop 0')
    E('v_readfirstlane_b32 s3, v2')
    E('s_and_b32 s4, s2, 7')
    E('s_lshr_b32 s5, s2, 3')
    E('s_lshr_b32 s6, s4, 1')
    E('s_lshl_b32 s6, s6, 2')
    E('s_lshr_b32 s7, s5, 3')
    E('s_add_u32 s37, s6, s7')
    E('s_and_b32 s6, s4, 1')
    E('s_lshl_b32 s6, s6, 3')
    E('s_and_b32 s7, s5, 7')
    E('s_add_u32 s38, s6, s7')
    E('v_lshlrev_b32 v11, 4, v1')
    E('s_mul_i32 s32, s37, 393216')
    E('s_mul_i32 s4, s3, 49152')
    E('s_add_u32 s32, s32, s4')
    E('s_lshl_b32 s33, s38, 18')
    E('s_lshl_b32 s4, s3, 14')
    E('s_add_u32 s33, s33, s4')
    E('s_add_u32 s33, s33, 0x%x' % WOT_OFF)
    E('s_add_u32 s34, s33, 0x20000')
    E('s_waitcnt lgkmcnt(0)')
    E('s_mov_b32 s8, s40')
    E('s_and_b32 s9, s41, 0xffff')
    E('s_mov_b32 s10, 786432')
    E('s_mov_b32 s11, 0x20000')
    E('s_mov_b32 s28, s42')
    E('s_and_b32 s29, s43, 0xffff')
    E('s_mov_b32 s30, 0x%x' % WS_SIZE)
    E('s_mov_b32 s31, 0x20000')
    D = BD
    ACC = 16
    FR = 40
    stc = [0]
    def stampb():
        if not DIAG:
            return
        i = stc[0]; stc[0] += 1
        E('s_memtime s[60:61]')
        E('s_waitcnt lgkmcnt(0)')
        E('s_lshl_b32 s58, s2, 3')
        E('s_add_u32 s58, s58, s3')
        E('s_lshl_b32 s58, s58, 8')
        E('s_add_u32 s58, s58, 0x%x' % (0xD00000 + i * 8))
        E('v_mov_b32 v39, 0')
        E('v_mov_b32 v0, s60')
        E('buffer_store_dword v0, v39, s[28:31], s58 offen', tag='stamp')
        E('v_mov_b32 v0, s61')
        E('buffer_store_dword v0, v39, s[28:31], s58 offen offset:4', tag='stamp')
    stampb()
    def loads(i):
        base = FR + (i % D) * 20
        E('s_add_u32 s5, s32, %d' % (i * 3072))
        for st in range(3):
            E('buffer_load_dwordx4 v[%d:%d], v11, s[28:31], s5 offen offset:%d' % (base + 4 * st, base + 4 * st + 3, st * 1024), tag='k%d' % i)
        E('s_add_u32 s6, s33, %d' % (i * 1024))
        E('s_add_u32 s7, s34, %d' % (i * 1024))
        E('buffer_load_dwordx4 v[%d:%d], v11, s[28:31], s6 offen' % (base + 12, base + 15), tag='k%d' % i)
        E('buffer_load_dwordx4 v[%d:%d], v11, s[28:31], s7 offen' % (base + 16, base + 19), tag='k%d' % i)
    for i in range(D):
        loads(i)
    for i in range(16):
        base = FR + (i % D) * 20
        e.wait(vm='k%d' % i)
        if i in (0, 4, 8, 12, 15):
            stampb()
        for nn in range(2):
            for st in range(3):
                a = ACC + (nn * 3 + st) * 4
                src = 'v[%d:%d]' % (a, a + 3) if i > 0 else '0'
                E('v_mfma_f32_16x16x32_bf16 v[%d:%d], v[%d:%d], v[%d:%d], %s' % (
                    a, a + 3, base + 12 + 4 * nn, base + 15 + 4 * nn, base + 4 * st, base + 4 * st + 3, src))
        if i + D < 16:
            loads(i + D)
    E('s_mul_i32 s4, s3, 6144')
    E('v_add_u32 v12, s4, v11')
    for tl in range(6):
        E('ds_write_b128 v12, v[%d:%d] offset:%d' % (ACC + 4 * tl, ACC + 4 * tl + 3, tl * 1024))
    e.wait(lds='all')
    E('s_barrier')
    E('s_cmp_ge_u32 s3, 6')
    E('s_cbranch_scc1 L_b_done')
    E('s_lshl_b32 s4, s3, 10')
    E('v_add_u32 v12, s4, v11')
    for wv in range(8):
        E('ds_read_b128 v[%d:%d], v12 offset:%d' % (FR + 4 * wv, FR + 4 * wv + 3, wv * 6144), tag='r%d' % wv)
    e.wait(lds='r1')
    for r in range(4):
        E('v_add_f32 v%d, v%d, v%d' % (16 + r, FR + r, FR + 4 + r))
    for wv in range(2, 8):
        e.wait(lds='r%d' % wv)
        for r in range(4):
            E('v_add_f32 v%d, v%d, v%d' % (16 + r, 16 + r, FR + 4 * wv + r))
    E('v_cvt_pk_bf16_f32 v20, v16, v17')
    E('v_cvt_pk_bf16_f32 v21, v18, v19')
    E('s_cmp_ge_u32 s3, 3')
    E('s_cselect_b32 s4, 1, 0')
    E('s_mul_i32 s5, s4, 3')
    E('s_sub_u32 s5, s3, s5')
    E('s_mul_i32 s6, s37, 49152')
    E('s_lshl_b32 s5, s5, 14')
    E('s_add_u32 s6, s6, s5')
    E('s_lshl_b32 s5, s38, 6')
    E('s_add_u32 s6, s6, s5')
    E('s_lshl_b32 s4, s4, 5')
    E('s_add_u32 s6, s6, s4')
    E('v_and_b32 v2, 15, v1')
    E('v_lshrrev_b32 v3, 4, v1')
    E('v_lshlrev_b32 v2, 10, v2')
    E('v_lshl_add_u32 v2, v3, 3, v2')
    E('buffer_store_dwordx2 v[20:21], v2, s[8:11], s6 offen')
    stampb()
    e.label('L_b_done')
    E('s_endpgm')
    return e


def kd(name, vgpr, accum, sgpr=72):
    return '''.p2align 6
.amdhsa_kernel %s
  .amdhsa_next_free_vgpr %d
  .amdhsa_next_free_sgpr %d
  .amdhsa_accum_offset %d
  .amdhsa_group_segment_fixed_size 0
  .amdhsa_kernarg_size 64
  .amdhsa_user_sgpr_count 2
  .amdhsa_user_sgpr_kernarg_segment_ptr 1
  .amdhsa_system_sgpr_workgroup_id_x 1
.end_amdhsa_kernel
''' % (name, vgpr, sgpr, accum)


def main():
    global DIAG
    global DIAG_ALL
    if len(sys.argv) > 2 and sys.argv[2].startswith('diag'):
        DIAG = True
        DIAG_ALL = sys.argv[2] == 'diag'
    for kv in sys.argv[3:]:
        k, v = kv.split('=', 1)
        globals()[k] = eval(v)
    ref = open('cdna_kernels/%s.s.ref' % NAME).read().splitlines()
    head = [l for l in ref if l.startswith(';') and '@launch' not in l and 'launch geometry' not in l and 'grid=ceil' not in l]
    a = kernel_a()
    b = kernel_r() if PART else kernel_b()
    out = '\n'.join(head) + '\n'
    out += '; @launch kernel=%s grid=(256,1,1) block=(256,1,1) lds=%d\n' % (KA, LDS_A)
    if not FUSE:
        if PART:
            out += '; @launch kernel=%s grid=(256,1,1) block=(768,1,1) lds=0\n' % KB
        else:
            out += '; @launch kernel=%s grid=(256,1,1) block=(512,1,1) lds=49152\n' % KB
    out += '.amdgcn_target "amdgcn-amd-amdhsa--gfx950"\n.text\n'
    out += a.text() + ('' if FUSE else b.text())
    out += 'L_text_end:\n'
    out += '.section .rodata,"a"\n'
    if PART:
        out += kd(KA, 512, 256) + kd(KB, 32, 32)
    else:
        out += kd(KA, 512, 256) + ('' if FUSE else kd(KB, max(144, 44 + 20 * BD), max(144, 44 + 20 * BD)))
    path = sys.argv[1] if len(sys.argv) > 1 else 'cdna_kernels/%s.s' % NAME
    open(path, 'w').write(out)
    print('nops inserted: A %d  B %d; lines %d' % (a.nops_inserted, b.nops_inserted, out.count('\n')))


if __name__ == '__main__':
    main()
```

```python
import struct, sys, math
from emit import Emitter, merge, sched

NAME = 'standalone__gqa_block_cached__near_ridge'
KA = 'gqa_attn_kernel'
KB = 'gqa_oproj_kernel'

def f32bits(x):
    return struct.unpack('<I', struct.pack('<f', x))[0]

XB = 0
QB = 0
OBASE = 24576
XCH = 49152
PSL = [49152, 65536]
STATS = 81920
LSTAT = 86016
SLOT = 98304
LDS_A = 163840
PRT_OFF = 0x2000000
WS_SIZE = 0x3000000

DIAG = False
DIAG_ALL = True
CPF = 1
WQPF = 1
STPOL = ' sc1'
TOUCH = 1
PRO = 14
SLW = [4, 4, 4, 4, 0, 0, 0, 0]
BURST = 0
SPV3 = 3
DBG = 0
ORDM = 0


def C(cost, fn):
    fn.cost = cost
    return fn


def kernel_a():
    e = Emitter()
    E = e
    stampc = [0]
    def stamp(key=False):
        if not DIAG or not (DIAG_ALL or key):
            return
        i = stampc[0]; stampc[0] += 1
        if len(e.vmq) > 36:
            e.wait(vm='stamp')
        E('s_memtime s[60:61]')
        E('s_waitcnt lgkmcnt(0)')
        e.ldsq = []
        E('s_lshl_b32 s58, s2, 3')
        E('s_add_u32 s58, s58, s3')
        E('s_lshl_b32 s58, s58, 8')
        E('s_add_u32 s58, s58, 0x%x' % (0xC00000 + i * 8))
        E('v_mov_b32 v31, 0')
        E('v_mov_b32 v0, s60')
        E('buffer_store_dword v0, v31, s[28:31], s58 offen', tag='stamp')
        E('v_mov_b32 v0, s61')
        E('buffer_store_dword v0, v31, s[28:31], s58 offen offset:4', tag='stamp')
    e.raw('.p2align 8')
    e.raw('.globl %s' % KA)
    e.raw('.type %s,@function' % KA)
    e.label(KA)
    E('s_cmp_ge_u32 s2, 256')
    E('s_cbranch_scc1 L_a_done')
    E('s_load_dwordx16 s[40:55], s[0:1], 0')
    E('v_and_b32 v1, 63, v0')
    E('v_lshrrev_b32 v2, 6, v0')
    E('s_nop 0')
    E('v_readfirstlane_b32 s3, v2')
    if CPF:
        E('s_getpc_b64 s[68:69]')
        e.label('L_pc')
        E('s_and_b32 s69, s69, 0xffff')
        E('s_mov_b32 s70, L_text_end-L_pc')
        E('s_mov_b32 s71, 0x20000')
        E('v_lshlrev_b32 v159, 6, v0')
        E('buffer_load_dword v159, v159, s[68:71], 0 offen', tag='cpf')
    E('s_and_b32 s62, s3, 3')
    E('s_lshr_b32 s63, s3, 2')
    E('s_and_b32 s38, s2, 7')
    E('s_lshr_b32 s4, s2, 3')
    E('s_lshr_b32 s37, s4, 1')
    E('s_and_b32 s4, s4, 1')
    E('s_lshl_b32 s39, s38, 2')
    E('s_lshl_b32 s4, s4, 1')
    E('s_add_u32 s39, s39, s4')
    E('s_lshl_b32 s4, s37, 3')
    E('s_add_u32 s4, s4, s38')
    E('s_lshl_b32 s32, s4, 17')
    E('s_lshl_b32 s4, s63, 15')
    E('s_add_u32 s4, s4, s32')
    E('s_lshl_b32 s5, s62, 13')
    E('s_add_u32 s64, s4, s5')
    E('s_lshl_b32 s5, s62, 6')
    E('s_add_u32 s65, s4, s5')
    E('s_mul_i32 s33, s37, 49152')
    E('s_mul_i32 s5, s3, 6144')
    E('s_add_u32 s33, s33, s5')
    E('s_lshl_b32 s34, s39, 8')
    E('s_lshl_b32 s5, s62, 7')
    E('s_add_u32 s34, s34, s5')
    E('s_lshl_b32 s5, s63, 21')
    E('s_add_u32 s34, s34, s5')
    E('s_lshl_b32 s35, s3, 13')
    E('s_add_u32 s35, s35, %d' % SLOT)
    E('s_mov_b32 s36, 0x%08x' % f32bits(math.log2(math.e) / math.sqrt(128.0)))
    E('s_mov_b32 s66, 0x05040100')
    E('s_mov_b32 s67, 0x07060302')
    E('v_and_b32 v40, 15, v1')
    E('v_lshrrev_b32 v41, 4, v1')
    E('v_lshrrev_b32 v42, 5, v1')
    E('v_and_b32 v43, 31, v1')
    E('v_lshlrev_b32 v11, 4, v1')
    E('v_xor_b32 v2, v40, v41')
    E('v_lshlrev_b32 v2, 4, v2')
    E('v_lshl_add_u32 v2, v40, 10, v2')
    E('s_lshl_b32 s4, s63, 9')
    E('v_xor_b32 v2, s4, v2')
    E('v_lshrrev_b32 v3, 1, v40')
    E('v_xor_b32 v3, s63, v3')
    E('v_lshlrev_b32 v3, 4, v3')
    E('v_lshl_add_u32 v3, v41, 16, v3')
    E('v_and_b32 v44, 1, v40')
    E('v_lshl_add_u32 v3, v44, 15, v3')
    E('s_mov_b32 s72, 0x55555555')
    E('s_mov_b32 s73, 0x55555555')
    E('v_xor_b32 v4, v40, v41')
    E('v_lshlrev_b32 v4, 4, v4')
    E('v_lshl_add_u32 v4, v41, 8, v4')
    for k in range(1, 4):
        E('v_xor_b32 v%d, %d, v4' % (4 + k, 64 * k))
    E('v_lshrrev_b32 v44, 2, v1')
    E('v_and_b32 v45, 3, v1')
    E('v_lshlrev_b32 v8, 4, v45')
    E('v_lshl_add_u32 v8, v44, 8, v8')
    E('v_xor_b32 v9, v40, v42')
    E('v_lshlrev_b32 v9, 4, v9')
    E('v_lshl_add_u32 v9, v43, 8, v9')
    E('v_add_u32 v9, s35, v9')
    E('v_and_b32 v44, 3, v44')
    E('v_lshl_add_u32 v46, v42, 2, v44')
    E('v_lshlrev_b32 v46, 6, v46')
    E('v_and_b32 v47, 1, v41')
    E('v_xor_b32 v10, s63, v47')
    E('v_lshl_add_u32 v10, v10, 5, v46')
    E('v_lshl_add_u32 v10, v45, 3, v10')
    E('v_add_u32 v10, s35, v10')
    E('s_lshl_b32 s4, s3, 11')
    E('s_add_u32 s4, s4, %d' % PSL[0])
    E('v_add_u32 v12, s4, v11')
    E('s_lshl_b32 s4, s63, 13')
    E('s_add_u32 s4, s4, %d' % PSL[0])
    E('v_add_u32 v13, s4, v11')
    E('v_lshlrev_b32 v15, 5, v43')
    E('v_add_u32 v15, 0x%x, v15' % STATS)
    E('s_lshl_b32 s4, s3, 2')
    E('v_add_u32 v14, s4, v15')
    E('s_lshr_b32 s4, s62, 1')
    E('s_mul_i32 s4, s4, 48')
    E('s_and_b32 s5, s62, 1')
    E('s_lshl_b32 s5, s5, 12')
    E('s_lshl_b32 s6, s63, 9')
    E('s_add_u32 s5, s5, s6')
    E('s_add_u32 s5, s5, %d' % QB)
    E('v_lshlrev_b32 v46, 10, v41')
    E('v_add_u32 v46, s5, v46')
    for st in range(3):
        E('s_add_u32 s6, s4, %d' % (16 * st))
        E('v_add_u32 v45, s6, v40')
        E('v_lshrrev_b32 v44, 5, v45')
        E('v_and_b32 v45, 31, v45')
        E('v_lshl_add_u32 v45, v45, 4, v46')
        E('v_lshl_add_u32 v%d, v44, 13, v45' % (16 + st))
    E('s_mul_i32 s4, s3, 6144')
    E('s_add_u32 s4, s4, %d' % XCH)
    E('v_lshlrev_b32 v45, 3, v1')
    E('v_add_u32 v19, s4, v45')
    E('s_xor_b32 s4, s3, 4')
    E('s_mul_i32 s4, s4, 6144')
    E('s_add_u32 s4, s4, %d' % XCH)
    E('v_add_u32 v20, s4, v45')
    E('s_waitcnt lgkmcnt(0)')
    def srd(d, lo, size):
        E('s_mov_b32 s%d, s%d' % (d, lo))
        E('s_and_b32 s%d, s%d, 0xffff' % (d + 1, lo + 1))
        E('s_mov_b32 s%d, 0x%x' % (d + 2, size))
        E('s_mov_b32 s%d, 0x20000' % (d + 3))
    srd(8, 40, 786432)
    srd(12, 42, 16777216)
    srd(16, 44, 16777216)
    srd(20, 46, 4194304)
    srd(24, 48, 4194304)
    srd(28, 54, WS_SIZE)
    stamp(True)

    RAW = [64 + 16 * i for i in range(5)]
    NR = 5
    def x_dma():
        out = []
        for i in range(6):
            def f(i=i):
                E('s_mul_i32 s5, s3, 6')
                E('s_add_u32 s5, s5, %d' % i)
                E('s_lshl_b32 s6, s5, 10')
                E('s_mov_b32 m0, s6')
                E('s_and_b32 s5, s5, 15')
                E('s_lshl_b32 s5, s5, 4')
                E('v_xor_b32 v%d, s5, v11' % (30 + (i & 1)))
                E('s_add_u32 s6, s33, %d' % (i * 1024))
                E('buffer_load_dwordx4 v%d, s[8:11], s6 offen lds' % (30 + (i & 1)), tag='x')
            out.append(f)
        return out
    def wq_load(i):
        out = []
        r = RAW[i % NR]
        for j in range(4):
            def f(j=j):
                E('s_add_u32 s6, s34, %d' % ((32 * i + j) * 8192))
                E('buffer_load_dwordx4 v[%d:%d], v3, s[20:23], s6 offen' % (r + 4 * j, r + 4 * j + 3), tag='wq%d' % i)
            out.append(f)
        return out
    def v_regs():
        out = []
        for m in range(8):
            def f(m=m):
                E('s_add_u32 s6, s65, %d' % (m * 4096))
                E('buffer_load_dwordx4 a[%d:%d], v8, s[16:19], s6 offen' % (64 + 4 * m, 67 + 4 * m), tag='V0')
            out.append(f)
        return out
    def k_dma(h):
        out = []
        for m in range(8):
            def f(m=m):
                E('s_add_u32 s5, s35, %d' % (m * 1024))
                E('s_mov_b32 m0, s5')
                E('s_add_u32 s6, s64, %d' % (h * 65536 + m * 1024))
                E('buffer_load_dwordx4 v%d, s[12:15], s6 offen lds' % (4 + (m & 3)), tag='K%d' % h)
            out.append(C(30, f))
        return out
    def v_dma(h):
        out = []
        for m in range(8):
            def f(m=m):
                E('s_add_u32 s5, s35, %d' % (m * 1024))
                E('s_mov_b32 m0, s5')
                E('s_add_u32 s6, s65, %d' % (h * 65536 + m * 4096))
                E('buffer_load_dwordx4 v8, s[16:19], s6 offen lds', tag='V%d' % h)
            out.append(C(30, f))
        return out
    def touch():
        E('v_lshlrev_b32 v158, 7, v1')
        E('s_lshl_b32 s7, s3, 13')
        E('s_add_u32 s7, s7, s32')
        E('s_add_u32 s7, s7, 65536')
        E('buffer_load_dword v158, v158, s[16:19], s7 offen', tag='pf')
    def wqpf():
        E('s_lshr_b32 s4, s2, 3')
        E('s_lshl_b32 s4, s4, 3')
        E('s_add_u32 s4, s4, s3')
        E('s_lshl_b32 s4, s4, 14')
        E('s_lshl_b32 s5, s38, 10')
        E('s_add_u32 s4, s4, s5')
        E('v_lshrrev_b32 v156, 5, v1')
        E('v_lshlrev_b32 v156, 13, v156')
        E('v_and_b32 v155, 31, v1')
        E('v_lshl_add_u32 v156, v155, 5, v156')
        E('buffer_load_dword v156, v156, s[20:23], s4 offen', tag='pf')

    seq = x_dma() + wq_load(0) + wq_load(1)
    if WQPF:
        seq.append(wqpf)
    seq += wq_load(2) + wq_load(3) + wq_load(4)
    slow = k_dma(0) + v_regs()
    def issue(maxn=1000):
        n = 0
        while seq and len(e.vmq) < 62 and n < maxn:
            seq.pop(0)()
            n += 1
    issue(PRO)
    stamp()
    e.wait(vm='x')
    E('s_barrier')
    stamp()
    issue()

    WF = [32, 48]
    XA = [('a', 48), ('v', 144)]
    def xr(i):
        out = [lambda: E('v_xor_b32 v%d, %d, v2' % (30 + (i & 1), i * 64))]
        fl, r0 = XA[i & 1]
        for st in range(3):
            r = r0 + 4 * st
            out.append(lambda st=st, r=r: E('ds_read_b128 %s[%d:%d], v%d offset:%d' % (fl, r, r + 3, 30 + (i & 1), XB + st * 16384), tag='xr%d' % i))
        return out
    def xperm(fl, R, c, d, tmp):
        out = []
        def rd(i):
            if fl == 'v':
                return R + 4 * i + c, R + 4 * i + 2 + c
            E('v_accvgpr_read_b32 v%d, a%d' % (tmp + 8 + 2 * i, R + 4 * i + c))
            E('v_accvgpr_read_b32 v%d, a%d' % (tmp + 9 + 2 * i, R + 4 * i + 2 + c))
            return tmp + 8 + 2 * i, tmp + 9 + 2 * i
        def src(i):
            return (R + 4 * i + c, R + 4 * i + 2 + c) if fl == 'v' else (tmp + 8 + 2 * i, tmp + 9 + 2 * i)
        def fa():
            if fl == 'a':
                for i in range(4):
                    rd(i)
            E('s_mov_b64 vcc, s[72:73]')
            for i in range(4):
                lo, hi = src(i)
                E('v_cndmask_b32_dpp v%d, v%d, v%d, vcc quad_perm:[1,0,3,2] row_mask:0xf bank_mask:0xf' % (tmp + i, hi, lo))
        def fb():
            E('s_not_b64 vcc, s[72:73]')
            for i in range(4):
                lo, hi = src(i)
                E('v_cndmask_b32_dpp v%d, v%d, v%d, vcc quad_perm:[1,0,3,2] row_mask:0xf bank_mask:0xf' % (tmp + 4 + i, lo, hi))
        out += [fa, fb]
        for ip in range(4):
            def f(ip=ip):
                E('v_perm_b32 v%d, v%d, v%d, s66' % (d + ip, tmp + 2 * ip + 1, tmp + 2 * ip))
                E('v_perm_b32 v%d, v%d, v%d, s67' % (d + 4 + ip, tmp + 2 * ip + 1, tmp + 2 * ip))
            out.append(f)
        return out
    def wperm(i):
        out = [C(0, lambda: e.wait(vm='wq%d' % i))]
        for c in range(2):
            out += xperm('v', RAW[i % NR], c, WF[i & 1] + 8 * c, 21 + 0 * c)
        return out
    for f in xr(0) + wperm(0):
        f()
    for i in range(8):
        anc = []
        for t in range(4):
            for st in range(3):
                a = (t * 3 + st) * 4
                src = 'a[%d:%d]' % (a, a + 3) if i > 0 else '0'
                w_ = WF[i & 1] + 4 * t
                xf, x_ = XA[i & 1]
                x_ += 4 * st
                anc.append(([], (lambda a=a, w_=w_, x_=x_, xf=xf, src=src: E('v_mfma_f32_16x16x32_bf16 a[%d:%d], v[%d:%d], %s[%d:%d], %s' % (
                    a, a + 3, w_, w_ + 3, xf, x_, x_ + 3, src))), []))
        e.wait(lds='xr%d' % i)
        if i in (1, 3, 5):
            stamp()
        fill = []
        if i + NR < 8:
            seq += wq_load(i + NR)
        seq += slow[:SLW[i]]
        slow = slow[SLW[i]:]
        fill.append(C(0, issue))
        if i + 1 < 8:
            fill += xr(i + 1) + wperm(i + 1)
        sched(e, anc, fill)
    assert not slow
    assert not seq
    stamp(True)
    for idx in range(12):
        E('ds_write_b64 v19, a[%d:%d] offset:%d' % (idx * 4 + 2, idx * 4 + 3, idx * 512))
    for idx in range(12):
        E('v_accvgpr_read_b32 v%d, a%d' % (64 + 2 * idx, idx * 4))
        E('v_accvgpr_read_b32 v%d, a%d' % (65 + 2 * idx, idx * 4 + 1))
    e.wait(lds='all')
    E('s_barrier')
    for idx in range(12):
        E('ds_read_b64 v[%d:%d], v20 offset:%d' % (96 + 2 * idx, 97 + 2 * idx, idx * 512), tag='xc%d' % (idx % 3))
    def kread(h, delay=False):
        out = [C(0, lambda: e.wait(vm='K%d' % h))]
        for ks in range(8):
            def f(ks=ks):
                E('v_xor_b32 v%d, %d, v9' % (30 + (ks & 1), ks * 32))
                E('ds_read_b128 a[%d:%d], v%d' % (4 * ks, 4 * ks + 3, 30 + (ks & 1)), tag='kf%d' % h)
            out.append(f)
        return out
    for f in kread(0):
        f()
    e.wait(lds=['xc0', 'xc1', 'xc2'])
    for st in range(3):
        for t in range(4):
            idx = t * 3 + st
            for r in range(2):
                E('v_add_f32 v%d, v%d, v%d' % (64 + 2 * idx + r, 64 + 2 * idx + r, 96 + 2 * idx + r))
        d = 32 + 4 * st
        for r in range(2):
            for c in range(2):
                E('v_cvt_pk_bf16_f32 v%d, v%d, v%d' % (d + 2 * r + c, 64 + 2 * ((2 * c) * 3 + st) + r, 64 + 2 * ((2 * c + 1) * 3 + st) + r))
        E('ds_write_b128 v%d, v[%d:%d]' % (16 + st, d, d + 3))
    E('v_add_u32 v31, s35, v11')
    e.wait(vm='V0', lds='all')
    for m in range(8):
        E('ds_write_b128 v31, a[%d:%d] offset:%d' % (64 + 4 * m, 67 + 4 * m, m * 1024))
    e.wait(lds='all')
    stamp()
    E('s_barrier')
    def dump(base, r0):
        E('v_lshlrev_b32 v%d, 4, v0' % (r0 + 12))
        E('s_lshl_b32 s4, s2, 15')
        E('s_add_u32 s4, s4, 0x1000000')
        for k in range(3):
            E('ds_read_b128 v[%d:%d], v%d offset:%d' % (r0 + 4 * k, r0 + 4 * k + 3, r0 + 12, base + k * 8192), tag='dbg')
        e.wait(lds='dbg')
        for k in range(3):
            E('s_add_u32 s5, s4, %d' % (k * 8192))
            E('buffer_store_dwordx4 v[%d:%d], v%d, s[28:31], s5 offen' % (r0 + 4 * k, r0 + 4 * k + 3, r0 + 12), tag='dbgs')
        e.wait(vm='dbgs')
    if DBG == 1:
        dump(QB, 96)
    def qread(q, ks):
        return lambda: E('ds_read_b128 a[%d:%d], v11 offset:%d' % (32 + 4 * ks, 35 + 4 * ks, QB + (q * 8 + ks) * 1024), tag='q%d' % q)
    for ks in range(8):
        qread(0, ks)()
    def vread(h):
        out = [C(0, lambda: e.wait(vm='V%d' % h))]
        for n in range(8):
            for ee in range(2):
                r = 64 + 4 * n + 2 * ee
                out.append(lambda n=n, ee=ee, r=r: E('ds_read_b64_tr_b16 a[%d:%d], v10 offset:%d' % (r, r + 1, n * 1024 + ee * 512), tag='vf%d' % h))
        return out
    for f in vread(0):
        f()
    E('v_and_b32 v40, 15, v1')
    E('v_lshrrev_b32 v41, 4, v1')
    E('v_and_b32 v41, 1, v41')
    E('v_lshrrev_b32 v42, 5, v1')
    E('v_lshlrev_b32 v40, 4, v40')
    E('v_lshl_add_u32 v40, v42, 8, v40')
    E('s_mul_i32 s4, s62, 3072')
    E('s_lshl_b32 s5, s63, 9')
    E('s_add_u32 s4, s4, s5')
    E('s_add_u32 s4, s4, %d' % OBASE)
    E('v_add_u32 v40, s4, v40')
    for qt in range(3):
        E('v_add_u32 v42, %d, v41' % (2 * qt))
        E('v_cmp_le_u32 vcc, 3, v42')
        E('v_subrev_u32 v43, 3, v42')
        E('v_lshlrev_b32 v43, 10, v43')
        E('v_add_u32 v43, 12288, v43')
        E('v_lshlrev_b32 v42, 10, v42')
        E('v_cndmask_b32 v42, v42, v43, vcc')
        E('v_add_u32 v%d, v42, v40' % (16 + qt))
    E('v_add_u32 v19, s35, v11')
    E('s_xor_b32 s4, s3, 4')
    E('s_lshl_b32 s4, s4, 13')
    E('s_add_u32 s4, s4, %d' % SLOT)
    E('v_add_u32 v20, s4, v11')
    E('v_and_b32 v40, 15, v1')
    E('v_lshrrev_b32 v41, 4, v1')
    E('v_lshrrev_b32 v42, 1, v40')
    E('v_lshlrev_b32 v42, 4, v42')
    E('v_lshl_add_u32 v3, v41, 13, v42')
    E('v_and_b32 v40, 1, v40')
    E('v_lshl_add_u32 v3, v40, 12, v3')
    E('s_lshl_b32 s4, s39, 17')
    E('s_lshl_b32 s5, s3, 7')
    E('s_add_u32 s56, s4, s5')
    stamp(True)

    SB = [64, 80]
    OA = 96
    MX = 30
    PR = [48, 52, 56, 60]
    PK = [32, 36]
    def s_anch(u):
        q = u % 3
        anc = []
        for ks in range(8):
            s_ = SB[u & 1]
            src = 'v[%d:%d]' % (s_, s_ + 15) if ks > 0 else '0'
            fn = (lambda s_=s_, ks=ks, src=src: E('v_mfma_f32_32x32x16_bf16 v[%d:%d], a[%d:%d], a[%d:%d], %s' % (
                s_, s_ + 15, 4 * ks, 4 * ks + 3, 32 + 4 * ks, 35 + 4 * ks, src)))
            post = []
            if u < 5 and ks > 0:
                post.append(qread((u + 1) % 3, ks - 1))
            anc.append(([], fn, post))
        return anc
    def max_ops(u):
        s0 = SB[u & 1]
        q = u % 3
        out = []
        for i in range(8):
            s_ = s0 + 2 * i
            if i == 0:
                out.append(lambda s_=s_: E('v_max_f32 v%d, v%d, v%d' % (MX, s_, s_ + 1)))
            else:
                out.append(lambda s_=s_: E('v_max3_f32 v%d, v%d, v%d, v%d' % (MX, s_, s_ + 1, MX)))
        def fin():
            E('v_mov_b32 v31, v%d' % MX)
            E('v_permlane32_swap_b32 v%d, v31' % MX)
            E('v_max_f32 v%d, v%d, v31' % (MX, MX))
            E('ds_write_b32 v14, v%d offset:%d' % (MX, q * 1024))
        out.append(fin)
        return out
    def stat_ops(u):
        h, q = u // 3, u % 3
        E('ds_read_b128 v[40:43], v15 offset:%d' % (q * 1024), tag='st')
        E('ds_read_b128 v[44:47], v15 offset:%d' % (q * 1024 + 16), tag='st')
        out = [C(0, lambda: e.wait(lds='st'))]
        ops = ['v_max3_f32 v40, v40, v41, v42', 'v_max3_f32 v44, v44, v45, v46', 'v_max3_f32 v40, v40, v43, v47', 'v_max_f32 v40, v40, v44']
        if h == 0:
            ops += ['v_mul_f32 v%d, s36, v40' % (21 + q)]
        else:
            ops += ['v_mul_f32 v40, s36, v40', 'v_max_f32 v40, v40, v%d' % (21 + q), 'v_sub_f32 v41, v%d, v40' % (21 + q),
                    'v_exp_f32 v%d, v41' % (27 + q), 'v_mov_b32 v%d, v40' % (21 + q), 'v_mul_f32 v%d, v%d, v%d' % (24 + q, 24 + q, 27 + q)]
        out += [(lambda o=o: E(o)) for o in ops]
        return out
    def exp_ops(u):
        h, q = u // 3, u % 3
        out = []
        s0 = SB[u & 1]
        for hf in range(2):
            pk = PK[hf]
            regs = [s0 + 8 * hf + i for i in range(8)]
            for r in regs:
                out.append(lambda r=r: E('v_fma_f32 v%d, v%d, s36, -v%d' % (r, r, 21 + q)))
            for r in regs:
                out.append(lambda r=r: E('v_exp_f32 v%d, v%d' % (r, r)))
            for k, r in enumerate(regs):
                if h == 0 and hf == 0 and k == 0:
                    out.append(lambda r=r: E('v_add_f32 v%d, v%d, v%d' % (24 + q, r, r + 1)))
                elif h == 0 and hf == 0 and k == 1:
                    pass
                else:
                    out.append(lambda r=r: E('v_add_f32 v%d, v%d, v%d' % (24 + q, r, 24 + q)))
                if k & 1:
                    out.append(lambda r=r, pk=pk, k=k: E('v_cvt_pk_bf16_f32 v%d, v%d, v%d' % (pk + k // 2, r - 1, r)))
            out.append(lambda pk=pk, hf=hf: E('ds_write_b128 v12, v[%d:%d] offset:%d' % (pk, pk + 3, PSL[u & 1] - PSL[0] + hf * 1024)))
        return out
    def pread(u, n):
        r = PR[n & 3]
        return lambda: E('ds_read_b128 v[%d:%d], v13 offset:%d' % (r, r + 3, PSL[u & 1] - PSL[0] + n * 1024), tag='p%d_%d' % (u, n))
    def pv_anch(u):
        h, q = u // 3, u % 3
        o = OA + 16 * q
        pro = [pread(u, n) for n in range(3)]
        anc = []
        for n in range(8):
            src = '0' if (h == 0 and n == 0) else 'v[%d:%d]' % (o, o + 15)
            r = PR[n & 3]
            fn = (lambda n=n, r=r, src=src: E('v_mfma_f32_32x32x16_bf16 v[%d:%d], a[%d:%d], v[%d:%d], %s' % (
                o, o + 15, 64 + 4 * n, 67 + 4 * n, r, r + 3, src)))
            pre = [lambda n=n: e.wait(lds='p%d_%d' % (u, n))]
            post = [pread(u, n + 3)] if n + 3 < 8 else []
            anc.append((pre, fn, post))
        return pro, anc
    def oscale(q):
        return [(lambda r=r: E('v_mul_f32 v%d, v%d, v%d' % (OA + 16 * q + r, OA + 16 * q + r, 27 + q))) for r in range(16)]
    WP = {0: ('v', 144), 1: ('v', 64), 2: ('a', 0), 3: ('a', 16), 4: ('a', 32), 5: ('a', 48), 6: ('v', 80), 7: ('v', 96)}
    def wp_load(j):
        out = []
        fl, r = WP[j]
        for i in range(4):
            def f(i=i):
                if i == 0:
                    E('s_add_u32 s59, s56, %d' % (32 * j * 1024))
                E('buffer_load_dwordx4 %s[%d:%d], v3, s[24:27], s59 offen offset:%d' % (fl, r + 4 * i, r + 4 * i + 3, i * 1024), tag='wp%d' % j)
            out.append(C(20, f))
        return out

    for s in range(8):
        us, ue, up = s, s - 1, s - 2
        fill = []
        pre = []
        if 0 <= ue <= 5:
            fill += stat_ops(ue)
        pro, pa = ([], [])
        if 0 <= up <= 5:
            pro, pa = pv_anch(up)
        for f in pro:
            f()
        sa = s_anch(us) if us <= 5 else []
        if s == 0:
            sa[1] = ([lambda: e.wait(lds='vf0')], sa[1][1], sa[1][2] + k_dma(1))
        if s == 1 and TOUCH:
            fill.append(C(30, touch))
        if s == 3:
            for f in kread(1):
                f()
            sa[0] = ([lambda: e.wait(lds='kf1')], sa[0][1], sa[0][2])
            sa[1] = (sa[1][0], sa[1][1], sa[1][2] + v_dma(1))
        if s == 5:
            for f in vread(1):
                f()
            pa[0] = ([lambda: e.wait(lds='vf1')] + pa[0][0], pa[0][1], pa[0][2])
        if sa:
            sa[0] = ([lambda us=us: e.wait(lds=['q%d' % (us % 3), 'kf0'])] + sa[0][0], sa[0][1], sa[0][2])
        if 0 <= ue <= 5:
            fill += exp_ops(ue)
        if s == 3:
            anc = pa[:SPV3] + sa + pa[SPV3:]
        elif ORDM:
            anc = merge(sa, pa)
        else:
            anc = sa + pa
        cons = []
        if sa:
            il = [k for k, a in enumerate(anc) if a[1] is sa[7][1]][0]
            if us < 5:
                cons.append((il + 1, qread((us + 1) % 3, 7)))
            cons += [(il + 1, f) for f in max_ops(us)]
        if up >= 3:
            for f in oscale(up - 3):
                f()
        if s == 4:
            fill = merge(fill, wp_load(0))
        if s == 6:
            fill = merge(fill, wp_load(1) + wp_load(2) + wp_load(3))
            def lsw(q):
                def f():
                    E('v_mov_b32 v31, v%d' % (24 + q))
                    E('v_permlane32_swap_b32 v%d, v31' % (24 + q))
                    E('v_add_f32 v%d, v%d, v31' % (24 + q, 24 + q))
                    E('ds_write_b32 v14, v%d offset:%d' % (24 + q, LSTAT - STATS + q * 1024))
                return f
            fill = [lsw(0), lsw(1)] + fill + [lsw(2)]
        if s == 7:
            fill = wp_load(4) + wp_load(5) + wp_load(6)
            for qt in range(3):
                def ls(qt=qt):
                    E('ds_read_b128 v[40:43], v15 offset:%d' % (LSTAT - STATS + qt * 1024), tag='ls%d' % qt)
                    E('ds_read_b128 v[44:47], v15 offset:%d' % (LSTAT - STATS + qt * 1024 + 16), tag='ls%d' % qt)
                    e.wait(lds='ls%d' % qt)
                    E('v_add_f32 v40, v40, v41')
                    E('v_add_f32 v42, v42, v43')
                    E('v_add_f32 v44, v44, v45')
                    E('v_add_f32 v46, v46, v47')
                    E('v_add_f32 v40, v40, v42')
                    E('v_add_f32 v44, v44, v46')
                    E('v_add_f32 v40, v40, v44')
                    E('v_rcp_f32 v%d, v40' % (24 + qt))
                fill.append(ls)
            for qt in range(2):
                for k in range(2):
                    r = OA + 16 * qt + 8 + 4 * k
                    fill.append(lambda r=r, qt=qt, k=k: E('ds_write_b128 v19, v[%d:%d] offset:%d' % (r, r + 3, (qt * 2 + k) * 1024)))
        sched(e, anc, fill, cons, burst=BURST)
        if s < 7:
            e.wait(lds='all')
            stamp()
            E('s_barrier')
    for k in range(2):
        r = OA + 32 + 8 + 4 * k
        E('ds_write_b128 v19, v[%d:%d] offset:%d' % (r, r + 3, (4 + k) * 1024))
    e.wait(lds='all')
    stamp(True)
    E('s_barrier')
    for i in range(6):
        E('ds_read_b128 v[%d:%d], v20 offset:%d' % (32 + 4 * i, 35 + 4 * i, i * 1024), tag='oe%d' % (i // 2))
    for qt in range(3):
        e.wait(lds='oe%d' % qt)
        T = OA + 16 * qt
        for r in range(8):
            E('v_add_f32 v%d, v%d, v%d' % (T + r, T + r, 32 + 8 * qt + r))
        for r in range(8):
            E('v_mul_f32 v%d, v%d, v%d' % (T + r, T + r, 24 + qt))
        for k in range(4):
            E('v_cvt_pk_bf16_f32 v%d, v%d, v%d' % (T + 8 + k, T + 2 * k, T + 2 * k + 1))
        E('v_permlane32_swap_b32 v%d, v%d' % (T + 8, T + 10))
        E('v_permlane32_swap_b32 v%d, v%d' % (T + 9, T + 11))
        E('ds_write_b128 v%d, v[%d:%d]' % (16 + qt, T + 8, T + 11))
        if qt == 0:
            pass
    E('s_lshl_b32 s4, s37, 4')
    E('s_lshr_b32 s5, s39, 1')
    E('s_add_u32 s4, s4, s5')
    E('s_mul_i32 s4, s4, 49152')
    E('s_mul_i32 s5, s3, 6144')
    E('s_add_u32 s4, s4, s5')
    E('s_add_u32 s57, s4, 0x%x' % PRT_OFF)
    ACC = 112
    WB = 32
    ORD = [0, 1, 2, 3, 4, 5, 6, 7]
    def tr(s):
        c, j = s // 8, ORD[s % 8]
        fl, R = WP[j]
        out = [C(0, lambda: e.wait(vm='wp%d' % j))] if c == 0 else []
        return out + xperm(fl, R, c, WB + (s & 3) * 8, 12)
    def oread(s):
        j = ORD[s % 8]
        out = []
        for st in range(3):
            r = 64 + (s & 1) * 12 + 4 * st
            out.append(lambda r=r, st=st: E('ds_read_b128 a[%d:%d], v11 offset:%d' % (r, r + 3, OBASE + j * 3072 + st * 1024), tag='o%d' % s))
        return out
    def pack(c, st):
        def f():
            a = ACC + st * 8
            d = 136 + (st & 1) * 4
            for r in range(4):
                E('v_cvt_pk_bf16_f32 v%d, v%d, v%d' % (d + r, a + r, a + 4 + r))
            E('s_add_u32 s4, s57, %d' % (c * 3072))
            E('buffer_store_dwordx4 v[%d:%d], v11, s[28:31], s4 offen offset:%d%s' % (d, d + 3, st * 1024, STPOL))
        return f
    e.wait(lds='all')
    for f in tr(0) + wp_load(7) + tr(1):
        f()
    stamp()
    E('s_barrier')
    stamp(True)
    if DBG == 2:
        dump(OBASE, 112)
    for f in oread(0):
        f()
    for s in range(16):
        c, x = s // 8, s % 8
        anc = []
        for st in range(3):
            for t in range(2):
                a = ACC + st * 8 + t * 4
                src = 'v[%d:%d]' % (a, a + 3) if x > 0 else '0'
                w_ = WB + (s & 3) * 8 + 4 * t
                o = 64 + (s & 1) * 12 + 4 * st
                fn = (lambda a=a, w_=w_, o=o, src=src: E('v_mfma_f32_16x16x32_bf16 v[%d:%d], v[%d:%d], a[%d:%d], %s' % (
                    a, a + 3, w_, w_ + 3, o, o + 3, src)))
                anc.append(([], fn, []))
        fill = []
        if s + 1 < 16:
            fill += oread(s + 1)
        e.wait(lds='o%d' % s)
        if s + 2 < 16:
            fill += tr(s + 2)
        cons = []
        if x == 7:
            cons = [(3, pack(c, 0)), (5, pack(c, 1)), (6, pack(c, 2))]
        sched(e, anc, fill, cons)
    stamp(True)
    e.label('L_a_done')
    E('s_endpgm')
    return e


def kernel_r():
    e = Emitter()
    E = e
    e.raw('.p2align 8')
    e.raw('.globl %s' % KB)
    e.raw('.type %s,@function' % KB)
    e.label(KB)
    E('s_cmp_ge_u32 s2, 256')
    E('s_cbranch_scc1 L_b_done')
    E('s_load_dwordx2 s[40:41], s[0:1], 40')
    E('s_load_dwordx2 s[42:43], s[0:1], 56')
    E('v_and_b32 v1, 63, v0')
    E('v_lshrrev_b32 v2, 6, v0')
    E('s_nop 0')
    E('v_readfirstlane_b32 s3, v2')
    E('s_lshr_b32 s37, s2, 4')
    E('s_and_b32 s38, s2, 15')
    E('s_lshr_b32 s33, s38, 1')
    E('s_and_b32 s4, s38, 1')
    E('s_mul_i32 s4, s4, 6')
    E('s_lshr_b32 s5, s3, 1')
    E('s_add_u32 s4, s4, s5')
    E('s_lshr_b32 s34, s4, 2')
    E('s_and_b32 s35, s4, 3')
    E('s_and_b32 s36, s3, 1')
    E('s_mul_i32 s32, s37, 786432')
    E('s_mul_i32 s4, s33, 6')
    E('s_mul_i32 s5, s36, 3')
    E('s_add_u32 s4, s4, s5')
    E('s_add_u32 s4, s4, s34')
    E('s_lshl_b32 s4, s4, 10')
    E('s_add_u32 s32, s32, s4')
    E('s_lshl_b32 s4, s35, 8')
    E('s_add_u32 s32, s32, s4')
    E('s_add_u32 s32, s32, 0x%x' % PRT_OFF)
    E('v_lshlrev_b32 v11, 2, v1')
    E('s_waitcnt lgkmcnt(0)')
    E('s_mov_b32 s28, s42')
    E('s_and_b32 s29, s43, 0xffff')
    E('s_mov_b32 s30, 0x%x' % WS_SIZE)
    E('s_mov_b32 s31, 0x20000')
    for p in range(16):
        E('s_add_u32 s5, s32, %d' % (p * 49152))
        E('buffer_load_dword v%d, v11, s[28:31], s5 offen' % (16 + p), tag='p%d' % p)
    E('s_mov_b32 s8, s40')
    E('s_and_b32 s9, s41, 0xffff')
    E('s_mov_b32 s10, 786432')
    E('s_mov_b32 s11, 0x20000')
    E('s_mul_i32 s6, s37, 49152')
    E('s_lshl_b32 s5, s33, 7')
    E('s_add_u32 s6, s6, s5')
    E('s_lshl_b32 s5, s34, 14')
    E('s_add_u32 s6, s6, s5')
    E('s_lshl_b32 s5, s35, 5')
    E('s_add_u32 s6, s6, s5')
    E('s_lshl_b32 s5, s36, 2')
    E('s_add_u32 s6, s6, s5')
    E('v_lshrrev_b32 v2, 2, v1')
    E('v_lshlrev_b32 v2, 10, v2')
    E('v_and_b32 v3, 3, v1')
    E('v_lshl_add_u32 v2, v3, 3, v2')
    E('s_mov_b32 s7, 0xffff0000')
    for p in range(16):
        e.wait(vm='p%d' % p)
        d = (4 + 2 * p) if p < 2 else (8 + 2 * (p & 1))
        E('v_lshlrev_b32 v%d, 16, v%d' % (d, 16 + p))
        E('v_and_b32 v%d, s7, v%d' % (d + 1, 16 + p))
        if p >= 2:
            a = 4 + 2 * (p & 1)
            E('v_pk_add_f32 v[%d:%d], v[%d:%d], v[%d:%d]' % (a, a + 1, a, a + 1, d, d + 1))
    E('v_pk_add_f32 v[4:5], v[4:5], v[6:7]')
    E('v_cvt_pk_bf16_f32 v4, v4, v5')
    E('buffer_store_dword v4, v2, s[8:11], s6 offen')
    e.label('L_b_done')
    E('s_endpgm')
    return e


def kd(name, vgpr, accum, sgpr=80):
    return '''.p2align 6
.amdhsa_kernel %s
  .amdhsa_next_free_vgpr %d
  .amdhsa_next_free_sgpr %d
  .amdhsa_accum_offset %d
  .amdhsa_group_segment_fixed_size 0
  .amdhsa_kernarg_size 64
  .amdhsa_user_sgpr_count 2
  .amdhsa_user_sgpr_kernarg_segment_ptr 1
  .amdhsa_system_sgpr_workgroup_id_x 1
.end_amdhsa_kernel
''' % (name, vgpr, sgpr, accum)


def main():
    global DIAG
    global DIAG_ALL
    if len(sys.argv) > 2 and sys.argv[2].startswith('diag'):
        DIAG = True
        DIAG_ALL = sys.argv[2] == 'diag'
    for kv in sys.argv[3:]:
        k, v = kv.split('=', 1)
        globals()[k] = eval(v)
    ref = open('cdna_kernels/%s.s.ref' % NAME).read().splitlines()
    head = [l for l in ref if l.startswith(';') and '@launch' not in l and 'launch geometry' not in l and 'grid=ceil' not in l]
    a = kernel_a()
    b = kernel_r()
    out = '\n'.join(head) + '\n'
    out += '; @launch kernel=%s grid=(256,1,1) block=(512,1,1) lds=%d\n' % (KA, LDS_A)
    out += '; @launch kernel=%s grid=(256,1,1) block=(768,1,1) lds=0\n' % KB
    out += '.amdgcn_target "amdgcn-amd-amdhsa--gfx950"\n.text\n'
    out += a.text() + b.text()
    out += 'L_text_end:\n'
    out += '.section .rodata,"a"\n'
    out += kd(KA, 256, 160) + kd(KB, 32, 32)
    path = sys.argv[1] if len(sys.argv) > 1 else 'cdna_kernels/%s.s' % NAME
    open(path, 'w').write(out)
    print('nops inserted: A %d  B %d; lines %d' % (a.nops_inserted, b.nops_inserted, out.count('\n')))


if __name__ == '__main__':
    main()
```
